```python
import torch

def _softmax(x, axis=-1):
    return torch.softmax(x, dim=axis)
def _gelu(x):
    return torch.nn.functional.gelu(x, approximate="tanh")
def _silu(x):
    return torch.nn.functional.silu(x)
def _sigmoid(x):
    return torch.sigmoid(x)
def _layernorm(x, axis=-1, eps=1e-5):
    m = x.mean(dim=axis, keepdim=True)
    v = x.var(dim=axis, keepdim=True, unbiased=False)
    return (x - m) / torch.sqrt(v + eps)
def _scatter_add(tgt, idx, src, axis=0):
    return tgt.clone().index_add_(axis, idx, src)
def _segment_sum(src, seg, n):
    out = torch.zeros((n,) + src.shape[1:], dtype=src.dtype)
    return out.index_add_(0, seg, src)
def _pad(x, pw):
    flat = tuple(v for pair in reversed(pw) for v in pair)
    return torch.nn.functional.pad(x, flat)

kernel_name = 'concat_heads__gqa_block_cached__mha_block_cached__near_ridge'

def setup_inputs():

    _w = (lambda a: (lambda t: t.to(torch.bfloat16) if t.is_floating_point() else t)(torch.as_tensor(a)))
    def _A_setup():
        B, Sq, D = 32, 32, 1024
        Hq, Hkv, Sk, Dh = 32, 4, 512, 128
        assert Hq % Hkv == 0, (Hq, Hkv)
        return {
            "x": _w((lambda *s: torch.randn(*s, dtype=torch.bfloat16) * 0.8)(B, Sq, D)),
            "k_cache": _w((lambda *s: torch.randn(*s, dtype=torch.bfloat16) * 0.8)(B, Hkv, Sk, Dh)),
            "v_cache": _w((lambda *s: torch.randn(*s, dtype=torch.bfloat16) * 0.05)(B, Hkv, Sk, Dh)),
            "wq": _w((lambda *s: torch.randn(*s, dtype=torch.bfloat16) * 0.8)(D, Hq * Dh) * (D ** -0.5)),
            "wo": _w((lambda *s: torch.randn(*s, dtype=torch.bfloat16) * 0.05)(Hq * Dh, D) * ((Hq * Dh) ** -0.5)),
        }
    _A_in = _A_setup()

    def _B_setup():
        B, Sq, D = 32, 32, 1024
        H, Sk, Dh = 32, 512, 128
        return {
            "x": _w((lambda *s: torch.randn(*s, dtype=torch.bfloat16) * 0.8)(B, Sq, D)),
            "k_cache": _w((lambda *s: torch.randn(*s, dtype=torch.bfloat16) * 0.8)(B, H, Sk, Dh)),
            "v_cache": _w((lambda *s: torch.randn(*s, dtype=torch.bfloat16) * 0.05)(B, H, Sk, Dh)),
            "wq": _w((lambda *s: torch.randn(*s, dtype=torch.bfloat16) * 0.8)(D, H * Dh) * (D ** -0.5)),
            "wo": _w((lambda *s: torch.randn(*s, dtype=torch.bfloat16) * 0.05)(H * Dh, D) * ((H * Dh) ** -0.5)),
        }
    _B_in = _B_setup()

    return {
        "A_x": _A_in["x"],
        "A_k_cache": _A_in["k_cache"],
        "A_v_cache": _A_in["v_cache"],
        "A_wq": _A_in["wq"],
        "A_wo": _A_in["wo"],
        "B_x": _B_in["x"],
        "B_k_cache": _B_in["k_cache"],
        "B_v_cache": _B_in["v_cache"],
        "B_wq": _B_in["wq"],
        "B_wo": _B_in["wo"],
    }

def reference(A_x, A_k_cache, A_v_cache, A_wq, A_wo, B_x, B_k_cache, B_v_cache, B_wq, B_wo):
    def _A_ref(x, k_cache, v_cache, wq, wo):
        B, Sq, D = x.shape
        Hq, Dh = 32, 128
        Hkv = k_cache.shape[1]
        rep = Hq // Hkv
        q = (lambda x, *d: x.permute(*d))((x @ wq).reshape(B, Sq, Hq, Dh), 0, 2, 1, 3)
        k = (lambda x, n, axis: torch.repeat_interleave(x, n, dim=axis))(k_cache, rep, axis=1)
        v = (lambda x, n, axis: torch.repeat_interleave(x, n, dim=axis))(v_cache, rep, axis=1)
        scores = torch.einsum("bhqd,bhkd->bhqk", q, k) * (Dh ** -0.5)
        p = _softmax(scores, axis=-1)
        o = torch.einsum("bhqk,bhkd->bhqd", p, v)
        return (lambda x, *d: x.permute(*d))(o, 0, 2, 1, 3).reshape(B, Sq, Hq * Dh) @ wo

    def _B_ref(x, k_cache, v_cache, wq, wo):
        B, Sq, D = x.shape
        H, Dh = 32, 128
        q = (lambda x, *d: x.permute(*d))((x @ wq).reshape(B, Sq, H, Dh), 0, 2, 1, 3)
        scores = torch.einsum("bhqd,bhkd->bhqk", q, k_cache) * (Dh ** -0.5)
        p = _softmax(scores, axis=-1)
        o = torch.einsum("bhqk,bhkd->bhqd", p, v_cache)
        return (lambda x, *d: x.permute(*d))(o, 0, 2, 1, 3).reshape(B, Sq, H * Dh) @ wo

    a = _A_ref(A_x, A_k_cache, A_v_cache, A_wq, A_wo)
    b = _B_ref(B_x, B_k_cache, B_v_cache, B_wq, B_wo)
    return torch.concatenate([a, b], axis=-1)
```

```python
class Asm:
    def __init__(self):
        self.lines = []
    def e(self, s=""):
        for ln in s.split("\n"):
            self.lines.append("    " + ln.strip() if ln.strip() and not ln.strip().endswith(":") else ln.strip())
    def c(self, s):
        self.lines.append("    ; " + s)
    def label(self, s):
        self.lines.append(s + ":")
    def nop(self, n):
        while n > 0:
            k = min(n, 16)
            self.e(f"s_nop {k-1}")
            n -= k
    def text(self):
        return "\n".join(self.lines) + "\n"

def vr(base, n=1):
    return f"v{base}" if n == 1 else f"v[{base}:{base+n-1}]"

def sr(base, n=1):
    return f"s{base}" if n == 1 else f"s[{base}:{base+n-1}]"

def kernel_header(a, name):
    a.lines.append(".text")
    a.lines.append(f".globl {name}")
    a.lines.append(".p2align 8")
    a.lines.append(f".type {name},@function")
    a.lines.append(f"{name}:")

def kernel_descriptor(a, name, nvgpr, nsgpr):
    acc = (nvgpr + 3) // 4 * 4
    a.lines.append('.section .rodata,"a"')
    a.lines.append(".p2align 6")
    a.lines.append(f".amdhsa_kernel {name}")
    a.lines.append(f"  .amdhsa_next_free_vgpr {nvgpr}")
    a.lines.append(f"  .amdhsa_next_free_sgpr {nsgpr}")
    a.lines.append(f"  .amdhsa_accum_offset {acc}")
    a.lines.append("  .amdhsa_group_segment_fixed_size 0")
    a.lines.append("  .amdhsa_kernarg_size 104")
    a.lines.append("  .amdhsa_user_sgpr_count 2")
    a.lines.append("  .amdhsa_user_sgpr_kernarg_segment_ptr 1")
    a.lines.append("  .amdhsa_system_sgpr_workgroup_id_x 1")
    a.lines.append("  .amdhsa_float_denorm_mode_32 3")
    a.lines.append("  .amdhsa_float_denorm_mode_16_64 3")
    a.lines.append(".end_amdhsa_kernel")


TS_OFF = 256 << 20

def ts_begin(a, sreg):
    a.e(f"s_memrealtime s[{sreg}:{sreg+1}]")

def ts_end(a, sreg, kslot, swave, stmp, vtmp, nwaves=4, ws_off=96):
    e = a.e
    e(f"s_memrealtime s[{stmp}:{stmp+1}]")
    e(f"s_load_dwordx2 s[{stmp+2}:{stmp+3}], s[0:1], {ws_off}")
    e("s_waitcnt lgkmcnt(0)")
    e(f"s_add_u32 s{stmp+2}, s{stmp+2}, {TS_OFF + kslot*65536}")
    e(f"s_addc_u32 s{stmp+3}, s{stmp+3}, 0")
    e(f"s_mul_i32 s{stmp+4}, s2, {nwaves}")
    e(f"s_add_u32 s{stmp+4}, s{stmp+4}, s{swave}")
    e(f"s_lshl_b32 s{stmp+4}, s{stmp+4}, 4")
    e(f"v_mov_b32 v{vtmp}, s{sreg}")
    e(f"v_mov_b32 v{vtmp+1}, s{sreg+1}")
    e(f"v_mov_b32 v{vtmp+2}, s{stmp}")
    e(f"v_mov_b32 v{vtmp+3}, s{stmp+1}")
    e(f"v_mov_b32 v{vtmp+4}, s{stmp+4}")
    e(f"global_store_dwordx4 v{vtmp+4}, v[{vtmp}:{vtmp+3}], s[{stmp+2}:{stmp+3}]")
    e("s_waitcnt vmcnt(0)")
```

```python
from asmlib import *
import math

OOB = 0x80000000
QWS_OFF = 32 << 20
C_SCALE = math.log2(math.e) / math.sqrt(128.0)

def f32bits(x):
    import struct
    return struct.unpack("<I", struct.pack("<f", x))[0]

sWV = 4
sRole, sH, sI, sB = 5, 6, 7, 3
SRD_X, SRD_W, SRD_K, SRD_V, SRD_O = 8, 12, 16, 20, 24
sT0, sT1, sT2, sT3 = 28, 29, 30, 31
sXoff, sWoff, sWslotF, sWslotR, sXslot, sCnt = 32, 33, 34, 35, 36, 37
sKVoff, sTask, sScale, sM0a, sM0b = 38, 39, 40, 41, 42
sOoff, sT4, sT5 = 43, 44, 45
sTS = 46
sPtr = 48
sStg = 80
NS = 96
vLane16 = 1
vT0, vT1, vT2, vT3 = 2, 3, 4, 5
vKD = 6
vVD = 10
vKR = 11
vVR = 19
vM, vL, vMx, vF = 23, 24, 25, 26
vA0, vA1 = 27, 28
vSt = 29
QOWN, QCUR, S, O, DEF = 32, 64, 96, 160, 224
vWD = DEF
vXD = DEF + 4
vWR = DEF + 8
vXR = DEF + 12
vWR2 = DEF + 16
vXR2 = DEF + 20
ACC = S
FW = O
FX = QCUR

LDS_RING0, LDS_RING1, LDS_MISC = 0, 32768, 65536
LDS_BYTES = 81920

def mfma(e, d, a, b, c=None):
    cc = f"v[{d}:{d+15}]" if c is None else c
    e(f"v_mfma_f32_32x32x16_bf16 v[{d}:{d+15}], v[{a}:{a+3}], v[{b}:{b+3}], {cc}")


def gen_prologue(a, name, timing):
    e = a.e
    e("s_cmp_ge_u32 s2, 512")
    e(f"s_cbranch_scc1 {name}_done")
    if timing:
        ts_begin(a, sTS)
    e(f"s_load_dwordx8 s[{sPtr}:{sPtr+7}], s[0:1], 0")
    e(f"s_load_dwordx8 s[{sPtr+8}:{sPtr+15}], s[0:1], 40")
    e(f"s_load_dwordx2 s[{sPtr+16}:{sPtr+17}], s[0:1], 96")
    e(f"s_load_dwordx2 s[{sPtr+18}:{sPtr+19}], s[0:1], 88")
    e(f"v_lshrrev_b32 v{vT0}, 6, v0")
    e("v_and_b32 v0, 63, v0")
    e(f"v_readfirstlane_b32 s{sWV}, v{vT0}")
    e(f"s_lshr_b32 s{sRole}, s2, 8")
    e(f"s_and_b32 s{sT0}, s2, 7")
    e(f"s_bfe_u32 s{sT1}, s2, 0x50003")
    e(f"s_lshr_b32 s{sH}, s{sT0}, 1")
    e(f"s_lshl_b32 s{sH}, s{sH}, 3")
    e(f"s_and_b32 s{sT2}, s{sT1}, 7")
    e(f"s_add_u32 s{sH}, s{sH}, s{sT2}")
    e(f"s_and_b32 s{sI}, s{sT0}, 1")
    e(f"s_lshl_b32 s{sI}, s{sI}, 2")
    e(f"s_lshr_b32 s{sT2}, s{sT1}, 3")
    e(f"s_add_u32 s{sI}, s{sI}, s{sT2}")
    e(f"v_lshlrev_b32 v{vLane16}, 4, v0")
    e(f"v_lshrrev_b32 v{vT0}, 4, v0")
    e(f"v_and_b32 v{vT1}, 15, v0")
    e(f"v_lshlrev_b32 v{vT2}, 8, v{vT0}")
    for jj in range(4):
        e(f"v_add_u32 v{vT3}, {4*jj}, v{vT0}")
        e(f"v_xor_b32 v{vT3}, v{vT3}, v{vT1}")
        e(f"v_lshlrev_b32 v{vT3}, 4, v{vT3}")
        e(f"v_add_u32 v{vKD+jj}, v{vT3}, v{vT2}")
    e(f"v_lshlrev_b32 v{vT3}, 2, v{vT0}")
    e(f"v_xor_b32 v{vT3}, v{vT3}, v{vT1}")
    e(f"v_lshlrev_b32 v{vT3}, 4, v{vT3}")
    e(f"v_add_u32 v{vVD}, v{vT3}, v{vT2}")
    e(f"v_lshlrev_b32 v{vT2}, 13, v{vT0}")
    e(f"v_add_u32 v{vWD}, v{vT3}, v{vT2}")
    for jj in range(1, 4):
        e(f"v_add_u32 v{vWD+jj}, {jj*(4*8192-1024)}, v{vWD}")
    e(f"v_lshrrev_b32 v{vT1}, 3, v0")
    e(f"v_and_b32 v{vT2}, 7, v0")
    for jj in range(4):
        e(f"v_add_u32 v{vT3}, {4*jj}, v{vT0}")
        e(f"v_and_b32 v{vT3}, 7, v{vT3}")
        e(f"v_xor_b32 v{vT3}, v{vT3}, v{vT2}")
        e(f"v_lshlrev_b32 v{vT3}, 4, v{vT3}")
        e(f"v_lshlrev_b32 v{vXD+jj}, 11, v{vT1}")
        e(f"v_add_u32 v{vXD+jj}, v{vXD+jj}, v{vT3}")
        c = 8*jj*2048 - jj*1024
        if c:
            e(f"v_add_u32 v{vXD+jj}, {c}, v{vXD+jj}")
    e("s_waitcnt lgkmcnt(0)")
    e(f"s_cmp_eq_u32 s{sRole}, 0")
    for k, srd in enumerate((SRD_X, SRD_K, SRD_V, SRD_W)):
        e(f"s_cselect_b32 s{srd}, s{sPtr+8+2*k}, s{sPtr+2*k}")
        e(f"s_cselect_b32 s{srd+1}, s{sPtr+9+2*k}, s{sPtr+1+2*k}")
    e(f"s_mov_b32 s{sT0}, {32*32*131072}")
    e(f"s_cselect_b32 s{SRD_K+2}, s{sT0}, {32*4*131072}")
    e(f"s_mov_b32 s{SRD_V+2}, s{SRD_K+2}")
    for srd in (SRD_X, SRD_K, SRD_V, SRD_W):
        e(f"s_and_b32 s{srd+1}, s{srd+1}, 0xffff")
        e(f"s_mov_b32 s{srd+3}, 0x20000")
    e(f"s_mov_b32 s{SRD_X+2}, {1024*1024*2}")
    e(f"s_mov_b32 s{SRD_W+2}, {1024*4096*2}")
    e(f"s_mov_b32 s{SRD_O}, s{sPtr+16}")
    e(f"s_and_b32 s{SRD_O+1}, s{sPtr+17}, 0xffff")
    e(f"s_mov_b32 s{SRD_O+2}, {64 << 20}")
    e(f"s_mov_b32 s{SRD_O+3}, 0x20000")
    e(f"s_lshl_b32 s{sT0}, s{sWV}, 3")
    e(f"s_add_u32 s{sB}, s{sT0}, s{sI}")
    e(f"s_lshl_b32 s{sXoff}, s{sB}, 16")
    e(f"s_lshl_b32 s{sWoff}, s{sWV}, 17")
    e(f"s_lshl_b32 s{sT0}, s{sH}, 8")
    e(f"s_add_u32 s{sWoff}, s{sWoff}, s{sT0}")
    e(f"v_and_b32 v{vT0}, 31, v0")
    e(f"v_lshrrev_b32 v{vT1}, 5, v0")
    e(f"v_bfe_u32 v{vT2}, v0, 1, 3")
    e(f"v_xor_b32 v{vT2}, v{vT2}, v{vT1}")
    e(f"v_lshlrev_b32 v{vT2}, 4, v{vT2}")
    e(f"v_lshlrev_b32 v{vT3}, 7, v{vT0}")
    e(f"v_add_u32 v{vXR}, v{vT2}, v{vT3}")
    e(f"s_lshl_b32 s{sT0}, s{sWV}, 13")
    e(f"s_add_u32 s{sT0}, s{sT0}, {LDS_RING1}")
    e(f"v_add_u32 v{vXR}, s{sT0}, v{vXR}")
    for u in range(1, 4):
        e(f"v_xor_b32 v{vXR+u}, {u*32}, v{vXR}")
    e(f"v_and_b32 v{vT2}, 15, v0")
    e(f"v_xor_b32 v{vT2}, v{vT2}, v{vT1}")
    e(f"v_lshlrev_b32 v{vT2}, 4, v{vT2}")
    e(f"v_lshlrev_b32 v{vT3}, 8, v{vT0}")
    e(f"v_add_u32 v{vKR}, v{vT2}, v{vT3}")
    e(f"s_lshl_b32 s{sT0}, s{sWV}, 13")
    e(f"v_add_u32 v{vKR}, s{sT0}, v{vKR}")
    for s in range(1, 8):
        e(f"v_xor_b32 v{vKR+s}, {s*32}, v{vKR}")
    e(f"v_bfe_u32 v{vT0}, v0, 2, 2")
    e(f"v_lshlrev_b32 v{vT2}, 6, v{vT0}")
    e(f"v_bfe_u32 v{vT3}, v0, 4, 1")
    e(f"v_lshlrev_b32 v{vT3}, 5, v{vT3}")
    e(f"v_add_u32 v{vT2}, v{vT2}, v{vT3}")
    e(f"v_and_b32 v{vT3}, 1, v0")
    e(f"v_lshlrev_b32 v{vT3}, 4, v{vT3}")
    e(f"v_add_u32 v{vT2}, v{vT2}, v{vT3}")
    e(f"v_bfe_u32 v{vT3}, v0, 1, 1")
    e(f"v_lshlrev_b32 v{vT3}, 3, v{vT3}")
    e(f"v_add_u32 v{vT2}, v{vT2}, v{vT3}")
    e(f"v_lshlrev_b32 v{vT3}, 3, v{vT1}")
    e(f"v_add_u32 v{vT3}, v{vT3}, v{vT0}")
    e(f"v_lshlrev_b32 v{vT3}, 8, v{vT3}")
    e(f"v_add_u32 v{vWR}, v{vT2}, v{vT3}")
    e(f"v_lshlrev_b32 v{vT3}, 2, v{vT1}")
    e(f"v_add_u32 v{vT3}, v{vT3}, v{vT0}")
    e(f"v_lshlrev_b32 v{vT3}, 8, v{vT3}")
    e(f"v_add_u32 v{vVR}, v{vT2}, v{vT3}")
    for t in range(1, 4):
        e(f"v_xor_b32 v{vWR+t}, {t*64}, v{vWR}")
    e(f"s_lshl_b32 s{sT0}, s{sWV}, 13")
    e(f"v_add_u32 v{vT2}, s{sT0}, v{vVR}")
    for k in range(4):
        e(f"s_add_u32 s{sT0}, s{sWV}, {k}")
        e(f"s_and_b32 s{sT0}, s{sT0}, 3")
        e(f"s_lshl_b32 s{sT0}, s{sT0}, 6")
        e(f"v_xor_b32 v{vVR+k}, s{sT0}, v{vT2}")
    e(f"s_lshl_b32 s{sM0a}, s{sWV}, 13")
    e(f"s_add_u32 s{sM0b}, s{sM0a}, {LDS_RING1}")
    e(f"s_mov_b32 s{sScale}, {f32bits(C_SCALE):#x}")


def gen_qproj(a, name, pol_x, pol_w, after_barrier15=None, after_x15=None):
    e = a.e
    WSLOT = [LDS_MISC, 0, 16384]

    def issue_w():
        e(f"s_lshl_b32 s{sT0}, s{sWV}, 12")
        e(f"s_add_u32 m0, s{sWslotF}, s{sT0}")
        e(f"s_lshl_b32 s{sT1}, s{sStg}, 19")
        e(f"s_add_u32 s{sT1}, s{sT1}, s{sWoff}")
        for jj in range(4):
            e(f"buffer_load_dwordx4 v{vWD+jj}, s[{SRD_W}:{SRD_W+3}], s{sT1} offen offset:{jj*1024} {pol_w} lds")
        e(f"s_cmp_eq_u32 s{sWslotF}, {LDS_MISC}")
        e(f"s_cselect_b32 s{sT0}, 0, {LDS_MISC}")
        e(f"s_cmp_eq_u32 s{sWslotF}, 0")
        e(f"s_cselect_b32 s{sWslotF}, 16384, s{sT0}")

    def issue_x(par):
        e(f"s_lshl_b32 s{sT0}, s{sWV}, 13")
        e(f"s_add_u32 s{sT0}, s{sT0}, {LDS_RING1}")
        if par is not None:
            e(f"s_add_u32 m0, s{sT0}, {par*4096}")
        else:
            e(f"s_add_u32 m0, s{sT0}, s{sXslot}")
        e(f"s_lshl_b32 s{sT1}, s{sStg}, 7")
        e(f"s_add_u32 s{sT1}, s{sT1}, s{sXoff}")
        for jj in range(4):
            e(f"buffer_load_dwordx4 v{vXD+jj}, s[{SRD_X}:{SRD_X+3}], s{sT1} offen offset:{jj*1024} {pol_x} lds")
        e(f"s_add_u32 s{sStg}, s{sStg}, 1")

    def stage(first, issue, hook_w=None, hook_x=None, last=False):
        e("s_waitcnt vmcnt(8)" if not last else "s_waitcnt vmcnt(0)")
        e("s_barrier")
        if issue:
            issue_w()
        if hook_w:
            hook_w()
        for t in range(4):
            e(f"v_add_u32 v{vWR2+t}, s{sWslotR}, v{vWR+t}")
        for u in range(4):
            e(f"v_add_u32 v{vXR2+u}, s{sXslot}, v{vXR+u}")
        for u in range(4):
            e(f"ds_read_b128 v[{FX+4*u}:{FX+4*u+3}], v{vXR2+u}")
        def rw(u):
            for t in range(4):
                for half in range(2):
                    r = FW + 16*u + 4*t + 2*half
                    e(f"ds_read_b64_tr_b16 v[{r}:{r+1}], v{vWR2+t} offset:{(16*u+4*half)*256}")
        def mm(u):
            for t in range(4):
                c = "0" if (first and u == 0) else None
                mfma(e, ACC+16*t, FW+16*u+4*t, FX+4*u, c)
        rw(0)
        e("s_waitcnt lgkmcnt(8)")
        if issue:
            issue_x(None)
        if hook_x:
            hook_x()
        rw(1)
        e("s_waitcnt lgkmcnt(8)")
        mm(0)
        rw(2)
        e("s_waitcnt lgkmcnt(8)")
        mm(1)
        rw(3)
        e("s_waitcnt lgkmcnt(8)")
        mm(2)
        e("s_waitcnt lgkmcnt(0)")
        mm(3)
        e(f"s_cmp_eq_u32 s{sWslotR}, {LDS_MISC}")
        e(f"s_cselect_b32 s{sT0}, 0, {LDS_MISC}")
        e(f"s_cmp_eq_u32 s{sWslotR}, 0")
        e(f"s_cselect_b32 s{sWslotR}, 16384, s{sT0}")
        e(f"s_xor_b32 s{sXslot}, s{sXslot}, 4096")

    e(f"s_mov_b32 s{sWslotF}, {LDS_MISC}")
    e(f"s_mov_b32 s{sWslotR}, {LDS_MISC}")
    e(f"s_mov_b32 s{sXslot}, 0")
    e(f"s_mov_b32 s{sStg}, 0")
    issue_w(); issue_x(0)
    issue_w(); issue_x(1)
    stage(True, True)
    e(f"s_mov_b32 s{sCnt}, 1")
    a.label(f"{name}_qloop")
    stage(False, True)
    e(f"s_add_u32 s{sCnt}, s{sCnt}, 1")
    e(f"s_cmp_lt_u32 s{sCnt}, 14")
    e(f"s_cbranch_scc1 {name}_qloop")
    stage(False, False)
    stage(False, False, hook_w=after_barrier15, hook_x=after_x15, last=True)
    a.nop(12)
    for s in range(8):
        t, sg = s >> 1, s & 1
        for i in range(4):
            src = ACC + 16*t + 8*sg + 2*i
            e(f"v_cvt_pk_bf16_f32 v{QOWN+4*s+i}, v{src}, v{src+1}")


def issue_tile(e, srd, slot_reg, off_reg, imm, is_k, pol):
    e(f"s_mov_b32 m0, s{slot_reg}")
    if imm:
        e(f"s_add_u32 s{sT0}, s{off_reg}, {imm}")
    else:
        e(f"s_mov_b32 s{sT0}, s{off_reg}")
    for half in range(2):
        for jj in range(4):
            v = vKD + jj if is_k else vVD
            e(f"buffer_load_dwordx4 v{v}, s[{srd}:{srd+3}], s{sT0} offen offset:{jj*1024} {pol} lds")
        if half == 0:
            e(f"s_add_u32 m0, s{slot_reg}, 4096")
            e(f"s_add_u32 s{sT0}, s{sT0}, 4096")


def k_tile(e, T, slot, hook):
    FK = O + 32*(T & 1)
    e("s_waitcnt vmcnt(8)")
    for s in range(8):
        e(f"ds_read_b128 v[{FK+4*s}:{FK+4*s+3}], v{vKR+s} offset:{slot*LDS_RING1}")
    e("s_waitcnt lgkmcnt(0)")
    hook()
    for s in range(8):
        mfma(e, S+16*T, FK+4*s, QCUR+4*s, "0" if s == 0 else None)


def v_tile(e, T, slot, hook):
    FV = S + 32
    e("s_waitcnt vmcnt(8)")
    for k in range(4):
        for u in range(2):
            for half in range(2):
                r = FV + 8*k + 4*u + 2*half
                e(f"ds_read_b64_tr_b16 v[{r}:{r+1}], v{vVR+k} offset:{slot*LDS_RING1 + (16*u+8*half)*256}")
    e("s_waitcnt lgkmcnt(0)")
    hook()
    for u in range(2):
        for k in range(4):
            mfma(e, O+16*k, FV+8*k+4*u, S+8*T+4*u, "0" if (T == 0 and u == 0) else None)


def softmax(a, nreg=64):
    e = a.e
    e(f"v_max3_f32 v{vMx}, v{S}, v{S+1}, v{S+2}")
    e(f"v_max3_f32 v{vT0}, v{S+3}, v{S+4}, v{S+5}")
    k = 6
    tgt = [vMx, vT0]
    n = 0
    while k + 1 < nreg:
        e(f"v_max3_f32 v{tgt[n&1]}, v{tgt[n&1]}, v{S+k}, v{S+k+1}")
        k += 2; n += 1
    e(f"v_max_f32 v{vMx}, v{vMx}, v{vT0}")
    e(f"v_mov_b32 v{vT0}, v{vMx}")
    a.nop(2)
    e(f"v_permlane32_swap_b32 v{vMx}, v{vT0}")
    a.nop(1)
    e(f"v_max_f32 v{vM}, v{vMx}, v{vT0}")
    e(f"v_mul_f32 v{vF}, s{sScale}, v{vM}")
    for k in range(nreg):
        e(f"v_fma_f32 v{S+k}, v{S+k}, s{sScale}, -v{vF}")
    for k in range(nreg):
        e(f"v_exp_f32 v{S+k}, v{S+k}")
    e(f"v_add_f32 v{vL}, v{S}, v{S+1}")
    e(f"v_add_f32 v{vT0}, v{S+2}, v{S+3}")
    for k in range(4, nreg, 2):
        e(f"v_add_f32 v{vL}, v{vL}, v{S+k}")
        e(f"v_add_f32 v{vT0}, v{vT0}, v{S+k+1}")
    for k in range(nreg//2):
        e(f"v_cvt_pk_bf16_f32 v{S+k}, v{S+2*k}, v{S+2*k+1}")
    e(f"v_add_f32 v{vL}, v{vL}, v{vT0}")
    e(f"v_mov_b32 v{vT0}, v{vL}")
    a.nop(2)
    e(f"v_permlane32_swap_b32 v{vL}, v{vT0}")
    a.nop(1)
    e(f"v_add_f32 v{vL}, v{vL}, v{vT0}")


def q_broadcast(a, name, tag, owner_reg_or_imm):
    e = a.e
    e(f"s_cmp_lg_u32 s{sWV}, {owner_reg_or_imm}")
    e(f"s_cbranch_scc1 {name}_{tag}_skip")
    e(f"v_add_u32 v{vA0}, {LDS_MISC}, v{vLane16}")
    for s in range(8):
        e(f"ds_write_b128 v{vA0}, v[{QOWN+4*s}:{QOWN+4*s+3}] offset:{s*1024}")
    e("s_waitcnt lgkmcnt(0)")
    a.label(f"{name}_{tag}_skip")
    e("s_barrier")
    e(f"v_add_u32 v{vA0}, {LDS_MISC}, v{vLane16}")
    for s in range(8):
        e(f"ds_read_b128 v[{QCUR+4*s}:{QCUR+4*s+3}], v{vA0} offset:{s*1024}")
    e("s_waitcnt lgkmcnt(0)")


def gen_m1(a, name, pol):
    e = a.e
    sNext = sT5
    G = S + 32
    a.label(f"{name}_task")
    e(f"s_add_u32 s{sNext}, s{sKVoff}, s{sOoff}")
    e(f"s_cmp_lt_u32 s{sTask}, 3")
    e(f"s_cselect_b32 s{sNext}, s{sNext}, {OOB:#x}")
    slotreg = [sM0a, sM0b]
    for T in range(4):
        if T < 2:
            hook = lambda T=T: issue_tile(e, SRD_K, slotreg[T & 1], sKVoff, (T+2)*32768, True, pol)
        else:
            hook = lambda T=T: issue_tile(e, SRD_V, slotreg[T & 1], sKVoff, (T-2)*32768, False, pol)
        k_tile(e, T, T & 1, hook)
    softmax(a)
    e(f"s_cmp_ge_u32 s{sTask}, 3")
    e(f"s_cbranch_scc1 {name}_noq")
    e(f"s_add_u32 s{sT4}, s{sTask}, 1")
    q_broadcast(a, name, "qn", f"s{sT4}")
    a.label(f"{name}_noq")
    for T in range(4):
        if T < 2:
            hook = lambda T=T: issue_tile(e, SRD_V, slotreg[T & 1], sKVoff, (T+2)*32768, False, pol)
        elif T == 2:
            hook = lambda: issue_tile(e, SRD_K, sM0a, sNext, 0, True, pol)
        else:
            hook = lambda: None
        v_tile(e, T, T & 1, hook)
    e(f"v_and_b32 v{vT0}, 31, v0")
    e(f"v_lshlrev_b32 v{vT0}, 3, v{vT0}")
    e(f"v_add_u32 v{vT0}, {LDS_MISC + 8192}, v{vT0}")
    e(f"s_lshl_b32 s{sT0}, s{sWV}, 8")
    e(f"v_add_u32 v{vA0}, s{sT0}, v{vT0}")
    e(f"v_add_u32 v{vA1}, s{sM0b}, v{vLane16}")
    e(f"ds_write_b32 v{vA0}, v{vM}")
    e(f"ds_write_b32 v{vA0}, v{vL} offset:4")
    a.nop(10)
    for k in (1, 2):
        for j in range(4):
            e(f"ds_write_b128 v{vA1}, v[{O+16*k+4*j}:{O+16*k+4*j+3}] offset:{(k-1)*4096 + j*1024}")
    e("s_waitcnt lgkmcnt(0)")
    e("s_barrier")
    for k in range(4):
        e(f"s_sub_u32 s{sT0}, s{sWV}, {k}")
        e(f"s_and_b32 s{sT0}, s{sT0}, 3")
        e(f"s_lshl_b32 s{sT0}, s{sT0}, 8")
        e(f"v_add_u32 v{vA0}, s{sT0}, v{vT0}")
        e(f"ds_read_b64 v[{G+2*k}:{G+2*k+1}], v{vA0}")
    TI = S
    for k in (1, 2):
        e(f"s_sub_u32 s{sT0}, s{sWV}, {k}")
        e(f"s_and_b32 s{sT0}, s{sT0}, 3")
        e(f"s_lshl_b32 s{sT0}, s{sT0}, 13")
        e(f"s_add_u32 s{sT0}, s{sT0}, {LDS_RING1 + (k-1)*4096}")
        e(f"v_add_u32 v{vA0}, s{sT0}, v{vLane16}")
        for j in range(4):
            e(f"ds_read_b128 v[{TI+16*(k-1)+4*j}:{TI+16*(k-1)+4*j+3}], v{vA0} offset:{j*1024}")
    e("s_waitcnt lgkmcnt(8)")
    e(f"v_max3_f32 v{vMx}, v{G}, v{G+2}, v{G+4}")
    e(f"v_max_f32 v{vMx}, v{vMx}, v{G+6}")
    e(f"v_mul_f32 v{vMx}, s{sScale}, v{vMx}")
    for k in range(4):
        e(f"v_fma_f32 v{G+2*k}, v{G+2*k}, s{sScale}, -v{vMx}")
    for k in range(4):
        e(f"v_exp_f32 v{G+2*k}, v{G+2*k}")
    a.nop(1)
    e(f"v_mul_f32 v{vF}, v{G}, v{G+1}")
    for k in range(1, 4):
        e(f"v_fma_f32 v{vF}, v{G+2*k}, v{G+2*k+1}, v{vF}")
    e(f"v_rcp_f32 v{vF}, v{vF}")
    a.nop(1)
    for k in range(4):
        e(f"v_mul_f32 v{G+2*k}, v{G+2*k}, v{vF}")
    for j in range(16):
        e(f"v_mul_f32 v{O+j}, v{O+j}, v{G}")
    e("s_waitcnt lgkmcnt(0)")
    for k in (1, 2):
        for j in range(16):
            e(f"v_fma_f32 v{O+j}, v{TI+16*(k-1)+j}, v{G+2*k}, v{O+j}")
    e("s_barrier")
    for j in range(4):
        e(f"ds_write_b128 v{vA1}, v[{O+48+4*j}:{O+48+4*j+3}] offset:{j*1024}")
    e("s_waitcnt lgkmcnt(0)")
    e("s_barrier")
    e(f"s_sub_u32 s{sT0}, s{sWV}, 3")
    e(f"s_and_b32 s{sT0}, s{sT0}, 3")
    e(f"s_lshl_b32 s{sT0}, s{sT0}, 13")
    e(f"s_add_u32 s{sT0}, s{sT0}, {LDS_RING1}")
    e(f"v_add_u32 v{vA0}, s{sT0}, v{vLane16}")
    for j in range(4):
        e(f"ds_read_b128 v[{TI+4*j}:{TI+4*j+3}], v{vA0} offset:{j*1024}")
    e("s_waitcnt lgkmcnt(0)")
    e("s_barrier")
    issue_tile(e, SRD_K, sM0b, sNext, 32768, True, pol)
    for j in range(16):
        e(f"v_fma_f32 v{O+j}, v{TI+j}, v{G+6}, v{O+j}")
    for k in range(24):
        e(f"v_mov_b32 v{DEF+k}, v{DEF+8+k}")
    for j in range(8):
        e(f"v_cvt_pk_bf16_f32 v{DEF+24+j}, v{O+2*j}, v{O+2*j+1}")
    e(f"s_mov_b32 s{sKVoff}, s{sNext}")
    e(f"s_add_u32 s{sTask}, s{sTask}, 1")
    e(f"s_cmp_lt_u32 s{sTask}, 4")
    e(f"s_cbranch_scc1 {name}_task")
    e("s_waitcnt vmcnt(0)")
    e(f"s_xor_b32 s{sT0}, s{sRole}, 1")
    e(f"s_lshl_b32 s{sT0}, s{sT0}, 23")
    e(f"s_lshl_b32 s{sT1}, s{sI}, 18")
    e(f"s_add_u32 s{sT0}, s{sT0}, s{sT1}")
    e(f"s_lshl_b32 s{sT1}, s{sH}, 13")
    e(f"s_add_u32 s{sT0}, s{sT0}, s{sT1}")
    e(f"s_lshl_b32 s{sT1}, s{sWV}, 11")
    e(f"s_add_u32 s{sT0}, s{sT0}, s{sT1}")
    for r in range(4):
        for sg in range(2):
            e(f"buffer_store_dwordx4 v[{DEF+8*r+4*sg}:{DEF+8*r+4*sg+3}], v{vLane16}, s[{SRD_O}:{SRD_O+3}], s{sT0} offen offset:{sg*1024}")
        if r < 3:
            e(f"s_add_u32 s{sT0}, s{sT0}, {8*262144}")


def gen_attn(a, name, timing=False, pol_x="nt", pol_w="nt", pol_kv="nt", dumpq=False):
    kernel_header(a, name)
    e = a.e
    gen_prologue(a, name, timing)
    e(f"s_lshl_b32 s{sT0}, s{sI}, 5")
    e(f"s_add_u32 s{sT0}, s{sT0}, s{sH}")
    e(f"s_lshl_b32 s{sT1}, s{sI}, 2")
    e(f"s_lshr_b32 s{sT2}, s{sH}, 3")
    e(f"s_add_u32 s{sT1}, s{sT1}, s{sT2}")
    e(f"s_cmp_eq_u32 s{sRole}, 0")
    e(f"s_cselect_b32 s{sKVoff}, s{sT0}, s{sT1}")
    e(f"s_lshl_b32 s{sKVoff}, s{sKVoff}, 17")
    e(f"s_add_u32 s{sKVoff}, s{sKVoff}, s{sM0a}")
    e(f"s_mov_b32 s{sT0}, {8*32*131072}")
    e(f"s_cmp_eq_u32 s{sRole}, 0")
    e(f"s_cselect_b32 s{sOoff}, s{sT0}, {8*4*131072}")
    hook_w = lambda: issue_tile(e, SRD_K, sM0a, sKVoff, 0, True, pol_kv)
    hook_x = lambda: issue_tile(e, SRD_K, sM0b, sKVoff, 32768, True, pol_kv)
    if dumpq:
        hook_w = hook_x = None
    gen_qproj(a, name, pol_x, pol_w, hook_w, hook_x)
    if dumpq:
        e(f"s_lshl_b32 s{sT0}, s{sB}, 5")
        e(f"s_add_u32 s{sT0}, s{sT0}, s{sH}")
        e(f"s_lshl_b32 s{sT0}, s{sT0}, 13")
        e(f"s_xor_b32 s{sT1}, s{sRole}, 1")
        e(f"s_lshl_b32 s{sT1}, s{sT1}, 23")
        e(f"s_add_u32 s{sT0}, s{sT0}, s{sT1}")
        e(f"s_add_u32 s{sT0}, s{sT0}, {QWS_OFF}")
        for s in range(8):
            if s == 4:
                e(f"s_add_u32 s{sT0}, s{sT0}, 4096")
            e(f"buffer_store_dwordx4 v[{QOWN+4*s}:{QOWN+4*s+3}], v{vLane16}, s[{SRD_O}:{SRD_O+3}], s{sT0} offen offset:{(s%4)*1024}")
        e("s_waitcnt vmcnt(0)")
    else:
        e("s_barrier")
        q_broadcast(a, name, "q0", "0")
        e(f"s_mov_b32 s{sTask}, 0")
        gen_m1(a, name, pol_kv)
        e("s_waitcnt vmcnt(0)")
    if timing:
        ts_end(a, sTS, 0, sWV, 52, 2)
    a.label(f"{name}_done")
    e("s_endpgm")
    return dict(nv=256, ns=NS, lds=LDS_BYTES)
```

```python
from asmlib import *

NS = 6
STAGE = 24576
NSTAGE = 64
OOB = 0x80000000

def gen_oproj(a, name, pol_o="nt", pol_w="nt", timing=False, skip="", bstride=262144, rot=True, win=16):
    kernel_header(a, name)
    e = a.e
    sWV = 4
    SRD_O, SRD_W, SRD_OUT = 8, 12, 16
    sO, sW, sFill, sRead, sCnt, sT0, sT1, sT2, sBr, sB0, sCol = 20, 21, 22, 23, 24, 25, 26, 27, 28, 29, 30
    sOx = 31
    sIss, sRot, sWx, sM0o, sM0w = 42, 43, 52, 53, 54
    vLane16, vW0, vW1, vRO, vRW, vRO2, vRW2, vT, vT2, vOut = 1, 2, 3, 4, 5, 6, 7, 8, 9, 10
    ACC = 16
    FA = [48, 96]
    FB = [64, 112]
    NV = 144

    e("s_cmp_ge_u32 s2, 256")
    e(f"s_cbranch_scc1 {name}_done")
    if timing:
        ts_begin(a, 40)
    e("s_load_dwordx2 s[32:33], s[0:1], 32")
    e("s_load_dwordx2 s[34:35], s[0:1], 72")
    e("s_load_dwordx2 s[36:37], s[0:1], 80")
    e("s_load_dwordx2 s[38:39], s[0:1], 96")
    e("v_lshrrev_b32 v8, 6, v0")
    e("v_and_b32 v0, 63, v0")
    e(f"v_readfirstlane_b32 s{sWV}, v8")
    e(f"s_and_b32 s{sT0}, s2, 7")
    e(f"s_lshr_b32 s{sT1}, s2, 3")
    e(f"s_lshr_b32 s{sBr}, s{sT0}, 2")
    e(f"s_bfe_u32 s{sT2}, s{sT0}, 0x10001")
    e(f"s_lshl_b32 s{sB0}, s{sT2}, 4")
    e(f"s_lshr_b32 s{sT2}, s{sT1}, 3")
    e(f"s_lshl_b32 s{sT2}, s{sT2}, 2")
    e(f"s_add_u32 s{sB0}, s{sB0}, s{sT2}")
    e(f"s_and_b32 s{sT2}, s{sT0}, 1")
    e(f"s_lshl_b32 s{sCol}, s{sT2}, 9")
    e(f"s_and_b32 s{sT2}, s{sT1}, 7")
    e(f"s_lshl_b32 s{sT2}, s{sT2}, 6")
    e(f"s_add_u32 s{sCol}, s{sCol}, s{sT2}")
    e(f"s_and_b32 s{sT2}, s{sT1}, 7")
    e(f"s_lshl_b32 s{sRot}, s{sT2}, 1")
    e(f"s_lshr_b32 s{sT2}, s{sT1}, 3")
    e(f"s_lshl_b32 s{sT2}, s{sT2}, 2")
    e(f"s_add_u32 s{sRot}, s{sRot}, s{sT2}")
    if not rot:
        e(f"s_mov_b32 s{sRot}, 0")
    e(f"v_lshlrev_b32 v{vLane16}, 4, v0")
    e(f"v_lshrrev_b32 v{vT}, 3, v0")
    e(f"v_and_b32 v{vT2}, 7, v0")
    e(f"v_lshlrev_b32 v{vW0}, 1, v{vT}")
    e(f"v_and_b32 v{vW0}, 4, v{vW0}")
    e(f"v_xor_b32 v{vW0}, v{vW0}, v{vT2}")
    e(f"v_lshlrev_b32 v{vW0}, 4, v{vW0}")
    e(f"v_lshlrev_b32 v{vT}, 11, v{vT}")
    e(f"v_add_u32 v{vW0}, v{vW0}, v{vT}")
    e(f"v_add_u32 v{vW1}, {8*2048 - 1024}, v{vW0}")
    e("s_waitcnt lgkmcnt(0)")
    e(f"s_cmp_eq_u32 s{sBr}, 0")
    e(f"s_cselect_b32 s{SRD_W}, s32, s34")
    e(f"s_cselect_b32 s{SRD_W+1}, s33, s35")
    e(f"s_and_b32 s{SRD_W+1}, s{SRD_W+1}, 0xffff")
    e(f"s_mov_b32 s{SRD_W+2}, {4096*1024*2}")
    e(f"s_mov_b32 s{SRD_W+3}, 0x20000")
    e(f"s_mov_b32 s{SRD_O}, s38")
    e(f"s_and_b32 s{SRD_O+1}, s39, 0xffff")
    e(f"s_mov_b32 s{SRD_O+2}, {64*bstride}")
    e(f"s_mov_b32 s{SRD_O+3}, 0x20000")
    e(f"s_mov_b32 s{SRD_OUT}, s36")
    e(f"s_and_b32 s{SRD_OUT+1}, s37, 0xffff")
    e(f"s_mov_b32 s{SRD_OUT+2}, {1024*2048*2}")
    e(f"s_mov_b32 s{SRD_OUT+3}, 0x20000")
    e(f"s_add_u32 s{sT0}, s{sB0}, s{sWV}")
    e(f"s_mul_i32 s{sO}, s{sT0}, {bstride}")
    e(f"s_mul_i32 s{sT0}, s{sBr}, {32*bstride}")
    e(f"s_add_u32 s{sO}, s{sO}, s{sT0}")
    e(f"s_lshl_b32 s{sW}, s{sWV}, 15")
    e(f"s_lshl_b32 s{sT0}, s{sCol}, 1")
    e(f"s_add_u32 s{sW}, s{sW}, s{sT0}")
    e(f"s_lshl_b32 s{sM0o}, s{sWV}, 12")
    e(f"s_lshl_b32 s{sM0w}, s{sWV}, 11")
    e(f"s_add_u32 s{sM0w}, s{sM0w}, 16384")
    e(f"s_lshr_b32 s{sT0}, s{sWV}, 1")
    e(f"s_lshl_b32 s{sT0}, s{sT0}, 13")
    e(f"v_add_u32 v{vRO}, s{sT0}, v{vLane16}")
    e(f"v_lshrrev_b32 v{vT}, 5, v0")
    e(f"v_lshlrev_b32 v{vT}, 3, v{vT}")
    e(f"v_bfe_u32 v{vT2}, v0, 2, 2")
    e(f"v_add_u32 v{vT}, v{vT}, v{vT2}")
    e(f"v_lshlrev_b32 v{vRW}, 7, v{vT}")
    e(f"v_bfe_u32 v{vT}, v0, 4, 1")
    e(f"v_lshlrev_b32 v{vT}, 1, v{vT}")
    e(f"v_and_b32 v{vT2}, 1, v0")
    e(f"v_add_u32 v{vT}, v{vT}, v{vT2}")
    e(f"s_and_b32 s{sT0}, s{sWV}, 1")
    e(f"s_lshl_b32 s{sT0}, s{sT0}, 2")
    e(f"v_add_u32 v{vT}, s{sT0}, v{vT}")
    e(f"v_bfe_u32 v{vT2}, v0, 3, 1")
    e(f"v_lshlrev_b32 v{vT2}, 2, v{vT2}")
    e(f"v_xor_b32 v{vT}, v{vT}, v{vT2}")
    e(f"v_lshlrev_b32 v{vT}, 4, v{vT}")
    e(f"v_add_u32 v{vRW}, v{vRW}, v{vT}")
    e(f"v_bfe_u32 v{vT2}, v0, 1, 1")
    e(f"v_lshlrev_b32 v{vT2}, 3, v{vT2}")
    e(f"v_add_u32 v{vRW}, v{vRW}, v{vT2}")
    e(f"v_add_u32 v{vRW}, 16384, v{vRW}")
    e(f"v_and_b32 v{vOut}, 31, v0")
    e(f"v_lshlrev_b32 v{vOut}, 12, v{vOut}")
    e(f"v_lshrrev_b32 v{vT}, 5, v0")
    e(f"v_lshlrev_b32 v{vT}, 4, v{vT}")
    e(f"v_add_u32 v{vOut}, v{vOut}, v{vT}")
    e(f"s_and_b32 s{sT0}, s{sWV}, 1")
    e(f"s_lshl_b32 s{sT0}, s{sT0}, 6")
    e(f"v_add_u32 v{vOut}, s{sT0}, v{vOut}")

    def issue():
        e(f"s_add_u32 s{sT1}, s{sIss}, s{sRot}")
        e(f"s_and_b32 s{sT1}, s{sT1}, {win-1}")
        e(f"s_andn2_b32 s{sT2}, s{sIss}, {win-1}")
        e(f"s_or_b32 s{sT1}, s{sT1}, s{sT2}")
        e(f"s_lshl_b32 s{sT2}, s{sT1}, 12")
        e(f"s_add_u32 s{sOx}, s{sO}, s{sT2}")
        e(f"s_cmp_lt_u32 s{sIss}, {NSTAGE}")
        e(f"s_cselect_b32 s{sOx}, s{sOx}, {OOB:#x}")
        e(f"s_lshl_b32 s{sT1}, s{sT1}, 17")
        e(f"s_add_u32 s{sWx}, s{sW}, s{sT1}")
        e(f"s_add_u32 m0, s{sFill}, s{sM0o}")
        e(f"s_add_u32 s{sIss}, s{sIss}, 1")
        for k in range(4):
            if "o" in skip: continue
            e(f"buffer_load_dwordx4 v{vLane16}, s[{SRD_O}:{SRD_O+3}], s{sOx} offen offset:{k*1024} {pol_o} lds")
        e(f"s_add_u32 m0, s{sFill}, s{sM0w}")
        e(f"s_add_u32 s{sFill}, s{sFill}, {STAGE}")
        if "w" not in skip:
            e(f"buffer_load_dwordx4 v{vW0}, s[{SRD_W}:{SRD_W+3}], s{sWx} offen {pol_w} lds")
            e(f"buffer_load_dwordx4 v{vW1}, s[{SRD_W}:{SRD_W+3}], s{sWx} offen offset:1024 {pol_w} lds")
        e(f"s_cmp_eq_u32 s{sFill}, {NS*STAGE}")
        e(f"s_cselect_b32 s{sFill}, 0, s{sFill}")

    e(f"s_mov_b32 s{sFill}, 0")
    e(f"s_mov_b32 s{sIss}, 0")
    for s in range(NS - 1):
        issue()
    e(f"s_mov_b32 s{sRead}, 0")
    e(f"s_mov_b32 s{sCnt}, 0")
    for r in range(32):
        e(f"v_mov_b32 v{ACC+r}, 0")
    for r in range(48):
        e(f"v_mov_b32 v{FA[1]+r}, 0")

    def reads(k):
        e(f"v_add_u32 v{vRO2}, s{sRead}, v{vRO}")
        e(f"v_add_u32 v{vRW2}, s{sRead}, v{vRW}")
        for u in range(4):
            for half in range(2):
                r = FA[k] + 4*u + 2*half
                e(f"ds_read_b64_tr_b16 v[{r}:{r+1}], v{vRW2} offset:{(16*u + 4*half)*128}")
            for t in range(2):
                r = FB[k] + 16*t + 4*u
                e(f"ds_read_b128 v[{r}:{r+3}], v{vRO2} offset:{t*4096 + u*1024}")
        e(f"s_add_u32 s{sRead}, s{sRead}, {STAGE}")
        e(f"s_cmp_eq_u32 s{sRead}, {NS*STAGE}")
        e(f"s_cselect_b32 s{sRead}, 0, s{sRead}")

    def mfmas(k):
        for u in range(4):
            for t in range(2):
                d = ACC + 16*t
                e(f"v_mfma_f32_32x32x16_bf16 v[{d}:{d+15}], v[{FA[k]+4*u}:{FA[k]+4*u+3}], v[{FB[k]+16*t+4*u}:{FB[k]+16*t+4*u+3}], v[{d}:{d+15}]")

    a.label(f"{name}_loop")
    for k in range(2):
        per = 6 - (4 if "o" in skip else 0) - (2 if "w" in skip else 0)
        e(f"s_waitcnt vmcnt({(NS-2)*per})")
        if "b" not in skip:
            e("s_barrier")
        if "r" not in skip:
            reads(k)
        if "d" not in skip:
            issue()
        if "m" not in skip:
            mfmas(1-k)
        e(f"s_add_u32 s{sCnt}, s{sCnt}, 1")
        e("s_waitcnt lgkmcnt(0)")
    e(f"s_cmp_lt_u32 s{sCnt}, {NSTAGE}")
    e(f"s_cbranch_scc1 {name}_loop")
    mfmas(1)
    e(f"s_lshr_b32 s{sT0}, s{sWV}, 1")
    e(f"s_lshl_b32 s{sT0}, s{sT0}, 1")
    e(f"s_add_u32 s{sT0}, s{sT0}, s{sB0}")
    e(f"s_lshl_b32 s{sT0}, s{sT0}, 17")
    e(f"s_lshl_b32 s{sT1}, s{sBr}, 11")
    e(f"s_add_u32 s{sT0}, s{sT0}, s{sT1}")
    e(f"s_lshl_b32 s{sT1}, s{sCol}, 1")
    e(f"s_add_u32 s{sT0}, s{sT0}, s{sT1}")
    e(f"s_add_u32 s{sT1}, s{sT0}, {32*4096}")
    a.nop(8)
    P = FA[0]
    for t in range(2):
        for sg in range(2):
            for i in range(4):
                src = ACC + 16*t + 8*sg + 2*i
                e(f"v_cvt_pk_bf16_f32 v{P + 8*t + 4*sg + i}, v{src}, v{src+1}")
    for t in range(2):
        for sg in range(2):
            r = P + 8*t + 4*sg
            e(f"buffer_store_dwordx4 v[{r}:{r+3}], v{vOut}, s[{SRD_OUT}:{SRD_OUT+3}], s{sT0 if t == 0 else sT1} offen offset:{32*sg}")
    e("s_waitcnt vmcnt(0)")
    if timing:
        ts_end(a, 40, 1, sWV, 44, 48)
    a.label(f"{name}_done")
    e("s_endpgm")
    return dict(nv=NV, ns=64, lds=NS*STAGE)
```

```python
import sys, os
sys.path.insert(0, os.path.dirname(__file__))
from asmlib import *
import oproj

HEADER = open("concat_heads__gqa_block_cached__mha_block_cached__near_ridge.s.ref").read().split("; Override launch")[0]
MAIN = "concat_heads__gqa_block_cached__mha_block_cached__near_ridge_kernel"

def build(which=("attn", "oproj"), **opt):
    a = Asm()
    launches = []
    descs = []
    body = Asm()
    if "attn" in which:
        import attn
        r = attn.gen_attn(body, MAIN, **opt.get("attn", {}))
        launches.append(f"; @launch kernel={MAIN} grid=(512,1,1) block=(256,1,1) lds={r['lds']}")
        descs.append((MAIN, r))
    if "oproj" in which:
        r = oproj.gen_oproj(body, "oproj_kernel", **opt.get("oproj", {}))
        launches.append(f"; @launch kernel=oproj_kernel grid=(256,1,1) block=(256,1,1) lds={r['lds']}")
        descs.append(("oproj_kernel", r))
    out = HEADER + "\n".join(launches) + "\n" + '.amdgcn_target "amdgcn-amd-amdhsa--gfx950"\n' + body.text()
    d = Asm()
    for name, r in descs:
        kernel_descriptor(d, name, r["nv"], r["ns"])
    return out + d.text()

if __name__ == "__main__":
    which = sys.argv[2].split(",") if len(sys.argv) > 2 else ("attn", "oproj")
    opt = eval(sys.argv[3]) if len(sys.argv) > 3 else {}
    open(sys.argv[1], "w").write(build(which, **opt))
```

```python
class Asm:
    def __init__(self):
        self.lines = []
    def e(self, s=""):
        for ln in s.split("\n"):
            self.lines.append("    " + ln.strip() if ln.strip() and not ln.strip().endswith(":") else ln.strip())
    def c(self, s):
        self.lines.append("    ; " + s)
    def label(self, s):
        self.lines.append(s + ":")
    def nop(self, n):
        while n > 0:
            k = min(n, 16)
            self.e(f"s_nop {k-1}")
            n -= k
    def text(self):
        return "\n".join(self.lines) + "\n"

def vr(base, n=1):
    return f"v{base}" if n == 1 else f"v[{base}:{base+n-1}]"

def sr(base, n=1):
    return f"s{base}" if n == 1 else f"s[{base}:{base+n-1}]"

def kernel_header(a, name):
    a.lines.append(".text")
    a.lines.append(f".globl {name}")
    a.lines.append(".p2align 8")
    a.lines.append(f".type {name},@function")
    a.lines.append(f"{name}:")

def kernel_descriptor(a, name, nvgpr, nsgpr):
    acc = (nvgpr + 3) // 4 * 4
    a.lines.append('.section .rodata,"a"')
    a.lines.append(".p2align 6")
    a.lines.append(f".amdhsa_kernel {name}")
    a.lines.append(f"  .amdhsa_next_free_vgpr {nvgpr}")
    a.lines.append(f"  .amdhsa_next_free_sgpr {nsgpr}")
    a.lines.append(f"  .amdhsa_accum_offset {acc}")
    a.lines.append("  .amdhsa_group_segment_fixed_size 0")
    a.lines.append("  .amdhsa_kernarg_size 104")
    a.lines.append("  .amdhsa_user_sgpr_count 2")
    a.lines.append("  .amdhsa_user_sgpr_kernarg_segment_ptr 1")
    a.lines.append("  .amdhsa_system_sgpr_workgroup_id_x 1")
    a.lines.append("  .amdhsa_float_denorm_mode_32 3")
    a.lines.append("  .amdhsa_float_denorm_mode_16_64 3")
    a.lines.append(".end_amdhsa_kernel")


TS_OFF = 256 << 20

def ts_begin(a, sreg):
    a.e(f"s_memrealtime s[{sreg}:{sreg+1}]")

def ts_end(a, sreg, kslot, swave, stmp, vtmp, nwaves=4, ws_off=96):
    e = a.e
    e(f"s_memrealtime s[{stmp}:{stmp+1}]")
    e(f"s_load_dwordx2 s[{stmp+2}:{stmp+3}], s[0:1], {ws_off}")
    e("s_waitcnt lgkmcnt(0)")
    e(f"s_add_u32 s{stmp+2}, s{stmp+2}, {TS_OFF + kslot*65536}")
    e(f"s_addc_u32 s{stmp+3}, s{stmp+3}, 0")
    e(f"s_mul_i32 s{stmp+4}, s2, {nwaves}")
    e(f"s_add_u32 s{stmp+4}, s{stmp+4}, s{swave}")
    e(f"s_lshl_b32 s{stmp+4}, s{stmp+4}, 4")
    e(f"v_mov_b32 v{vtmp}, s{sreg}")
    e(f"v_mov_b32 v{vtmp+1}, s{sreg+1}")
    e(f"v_mov_b32 v{vtmp+2}, s{stmp}")
    e(f"v_mov_b32 v{vtmp+3}, s{stmp+1}")
    e(f"v_mov_b32 v{vtmp+4}, s{stmp+4}")
    e(f"global_store_dwordx4 v{vtmp+4}, v[{vtmp}:{vtmp+3}], s[{stmp+2}:{stmp+3}]")
    e("s_waitcnt vmcnt(0)")


def ts_mark(a, sreg):
    a.e(f"s_memrealtime s[{sreg}:{sreg+1}]")
    a.e("s_waitcnt lgkmcnt(0)")

def ts_dump(a, regs, kslot, swave, stmp, vtmp, nwaves=4, ws_off=96):
    e = a.e
    e(f"s_load_dwordx2 s[{stmp+2}:{stmp+3}], s[0:1], {ws_off}")
    e("s_waitcnt lgkmcnt(0)")
    e(f"s_add_u32 s{stmp+2}, s{stmp+2}, {TS_OFF + (1 << 20) + kslot*(1 << 18)}")
    e(f"s_addc_u32 s{stmp+3}, s{stmp+3}, 0")
    e(f"s_mul_i32 s{stmp+4}, s2, {nwaves}")
    e(f"s_add_u32 s{stmp+4}, s{stmp+4}, s{swave}")
    e(f"s_lshl_b32 s{stmp+4}, s{stmp+4}, 5")
    for k in range(8):
        r = regs[k] if k < len(regs) else regs[0]
        e(f"v_mov_b32 v{vtmp+k}, s{r}")
    e(f"v_mov_b32 v{vtmp+8}, s{stmp+4}")
    e(f"global_store_dwordx4 v{vtmp+8}, v[{vtmp}:{vtmp+3}], s[{stmp+2}:{stmp+3}]")
    e(f"global_store_dwordx4 v{vtmp+8}, v[{vtmp+4}:{vtmp+7}], s[{stmp+2}:{stmp+3}] offset:16")
    e("s_waitcnt vmcnt(0)")
```

```python
from asmlib import *
import math

OOB = 0x80000000
FLAG_OFF = 48 << 20
QWS_OFF = 32 << 20
C_SCALE = math.log2(math.e) / math.sqrt(128.0)

def f32bits(x):
    import struct
    return struct.unpack("<I", struct.pack("<f", x))[0]

sWV = 4
sRole, sH, sI, sB = 5, 6, 7, 3
SRD_X, SRD_W, SRD_K, SRD_V, SRD_O = 8, 12, 16, 20, 24
sT0, sT1, sT2, sT3 = 28, 29, 30, 31
sXoff, sWoff, sWslotF, sWslotR, sXslot, sCnt = 32, 33, 34, 35, 36, 37
sKVoff, sTask, sScale, sM0a, sM0b = 38, 39, 40, 41, 42
sOoff, sT4, sT5 = 43, 44, 45
sTS = 46
sPtr = 48
sStg = 80
sX, sDbg, sBs, sHq, sCls, sSig = 81, 82, 84, 85, 86, 87
sFlag, sNonce = 92, 93
sTbase, sTstep, SRD_T = 94, 95, 96
vNon = 31
SRD_D = 88
NS = 100
MK = [60, 62, 64, 66, 68, 70, 72, 74]
TIMING = [False]
QMARKS = [False]
QSKIP = ['']
QORDER = [None]
LOOK = [2]
SLEEPQ = [8]
XM = [False]
ALT = [False]
WT = [0]
INV = [True]
QST = ['sc0 sc1', 'sc0 sc1']
def mark(a, k):
    if TIMING[0]:
        ts_mark(a, MK[k])
vLane16 = 1
vT0, vT1, vT2, vT3 = 2, 3, 4, 5
vKD = 6
vVD = 10
vKR = 11
vVR = 19
vM, vL, vMx, vF = 23, 24, 25, 26
vA0, vA1 = 27, 28
vSt = 29
QOWN, QCUR, S, O, DEF = 32, 64, 96, 160, 224
vWD = DEF
vXD = DEF + 4
vWR = DEF + 8
vXR = DEF + 12
vWR2 = DEF + 16
vXR2 = DEF + 20
vTT, vTD = DEF + 24, DEF + 25
ACC = S
FW = O
FX = QCUR

LDS_RING0, LDS_RING1, LDS_MISC = 0, 32768, 65536
LDS_BYTES = 81920

def mfma(e, d, a, b, c=None):
    cc = f"v[{d}:{d+15}]" if c is None else c
    e(f"v_mfma_f32_32x32x16_bf16 v[{d}:{d+15}], v[{a}:{a+3}], v[{b}:{b+3}], {cc}")


def gen_prologue(a, name, timing):
    e = a.e
    e("s_cmp_ge_u32 s2, 512")
    e(f"s_cbranch_scc1 {name}_done")
    if timing:
        ts_begin(a, sTS)
    e(f"s_load_dwordx8 s[{sPtr}:{sPtr+7}], s[0:1], 0")
    e(f"s_load_dwordx8 s[{sPtr+8}:{sPtr+15}], s[0:1], 40")
    e(f"s_load_dwordx2 s[{sPtr+16}:{sPtr+17}], s[0:1], 96")
    e(f"s_load_dwordx2 s[{sPtr+18}:{sPtr+19}], s[0:1], 88")
    e(f"v_lshrrev_b32 v{vT0}, 6, v0")
    e("v_and_b32 v0, 63, v0")
    e(f"v_readfirstlane_b32 s{sWV}, v{vT0}")
    e(f"s_lshr_b32 s{sRole}, s2, 8")
    e(f"s_and_b32 s{sT0}, s2, 7")
    e(f"s_bfe_u32 s{sT1}, s2, 0x50003")
    e(f"s_lshr_b32 s{sH}, s{sT0}, 1")
    e(f"s_lshl_b32 s{sH}, s{sH}, 3")
    e(f"s_and_b32 s{sT2}, s{sT1}, 7")
    e(f"s_add_u32 s{sH}, s{sH}, s{sT2}")
    e(f"s_and_b32 s{sI}, s{sT0}, 1")
    e(f"s_lshl_b32 s{sI}, s{sI}, 2")
    e(f"s_lshr_b32 s{sT2}, s{sT1}, 3")
    e(f"s_add_u32 s{sI}, s{sI}, s{sT2}")
    e(f"s_mov_b32 s{sX}, s{sT0}")
    e(f"s_add_u32 s{sCls}, s{sH}, s{sI}")
    e(f"s_and_b32 s{sCls}, s{sCls}, 3")
    e(f"v_lshlrev_b32 v{vLane16}, 4, v0")
    e(f"v_lshrrev_b32 v{vT0}, 4, v0")
    e(f"v_and_b32 v{vT1}, 15, v0")
    e(f"v_lshlrev_b32 v{vT2}, 8, v{vT0}")
    for jj in range(4):
        e(f"v_add_u32 v{vT3}, {4*jj}, v{vT0}")
        e(f"v_xor_b32 v{vT3}, v{vT3}, v{vT1}")
        e(f"v_lshlrev_b32 v{vT3}, 4, v{vT3}")
        e(f"v_add_u32 v{vKD+jj}, v{vT3}, v{vT2}")
    e(f"v_lshlrev_b32 v{vT3}, 2, v{vT0}")
    e(f"v_xor_b32 v{vT3}, v{vT3}, v{vT1}")
    e(f"v_lshlrev_b32 v{vT3}, 4, v{vT3}")
    e(f"v_add_u32 v{vVD}, v{vT3}, v{vT2}")
    e(f"v_lshlrev_b32 v{vT2}, 13, v{vT0}")
    e(f"v_add_u32 v{vWD}, v{vT3}, v{vT2}")
    for jj in range(1, 4):
        e(f"v_add_u32 v{vWD+jj}, {jj*(4*8192-1024)}, v{vWD}")
    e(f"v_lshrrev_b32 v{vT1}, 3, v0")
    e(f"v_and_b32 v{vT2}, 7, v0")
    for jj in range(4):
        e(f"v_add_u32 v{vT3}, {4*jj}, v{vT0}")
        e(f"v_and_b32 v{vT3}, 7, v{vT3}")
        e(f"v_xor_b32 v{vT3}, v{vT3}, v{vT2}")
        e(f"v_lshlrev_b32 v{vT3}, 4, v{vT3}")
        e(f"v_lshlrev_b32 v{vXD+jj}, 11, v{vT1}")
        e(f"v_add_u32 v{vXD+jj}, v{vXD+jj}, v{vT3}")
        c = 8*jj*2048 - jj*1024
        if c:
            e(f"v_add_u32 v{vXD+jj}, {c}, v{vXD+jj}")
    e("s_waitcnt lgkmcnt(0)")
    e(f"s_cmp_eq_u32 s{sRole}, 0")
    for k, srd in enumerate((SRD_X, SRD_K, SRD_V, SRD_W)):
        e(f"s_cselect_b32 s{srd}, s{sPtr+8+2*k}, s{sPtr+2*k}")
        e(f"s_cselect_b32 s{srd+1}, s{sPtr+9+2*k}, s{sPtr+1+2*k}")
    e(f"s_mov_b32 s{sT0}, {32*32*131072}")
    e(f"s_cselect_b32 s{SRD_K+2}, s{sT0}, {32*4*131072}")
    e(f"s_mov_b32 s{SRD_V+2}, s{SRD_K+2}")
    for srd in (SRD_X, SRD_K, SRD_V, SRD_W):
        e(f"s_and_b32 s{srd+1}, s{srd+1}, 0xffff")
        e(f"s_mov_b32 s{srd+3}, 0x20000")
    e(f"s_mov_b32 s{SRD_X+2}, {1024*1024*2}")
    e(f"s_mov_b32 s{SRD_W+2}, {1024*4096*2}")
    e(f"s_mov_b32 s{sDbg}, s{sPtr+18}")
    e(f"s_mov_b32 s{sDbg+1}, s{sPtr+19}")
    e(f"s_mov_b32 s{SRD_D}, s{sPtr+18}")
    e(f"s_and_b32 s{SRD_D+1}, s{sPtr+19}, 0xffff")
    e(f"s_mov_b32 s{SRD_D+2}, 256")
    e(f"s_mov_b32 s{SRD_D+3}, 0x20000")
    e(f"s_mov_b32 s{SRD_O}, s{sPtr+16}")
    e(f"s_and_b32 s{SRD_O+1}, s{sPtr+17}, 0xffff")
    e(f"s_mov_b32 s{SRD_O+2}, {64 << 20}")
    e(f"s_mov_b32 s{SRD_O+3}, 0x20000")
    e(f"s_lshl_b32 s{sT0}, s{sWV}, 3")
    e(f"s_add_u32 s{sB}, s{sT0}, s{sI}")
    e(f"s_lshl_b32 s{sXoff}, s{sB}, 16")
    e(f"s_lshl_b32 s{sWoff}, s{sWV}, 17")
    e(f"s_lshl_b32 s{sT0}, s{sH}, 8")
    e(f"s_add_u32 s{sWoff}, s{sWoff}, s{sT0}")
    e(f"v_and_b32 v{vT0}, 31, v0")
    e(f"v_lshrrev_b32 v{vT1}, 5, v0")
    e(f"v_bfe_u32 v{vT2}, v0, 1, 3")
    e(f"v_xor_b32 v{vT2}, v{vT2}, v{vT1}")
    e(f"v_lshlrev_b32 v{vT2}, 4, v{vT2}")
    e(f"v_lshlrev_b32 v{vT3}, 7, v{vT0}")
    e(f"v_add_u32 v{vXR}, v{vT2}, v{vT3}")
    e(f"s_lshl_b32 s{sT0}, s{sWV}, 13")
    e(f"s_add_u32 s{sT0}, s{sT0}, {LDS_RING1}")
    e(f"v_add_u32 v{vXR}, s{sT0}, v{vXR}")
    for u in range(1, 4):
        e(f"v_xor_b32 v{vXR+u}, {u*32}, v{vXR}")
    e(f"v_and_b32 v{vT2}, 15, v0")
    e(f"v_xor_b32 v{vT2}, v{vT2}, v{vT1}")
    e(f"v_lshlrev_b32 v{vT2}, 4, v{vT2}")
    e(f"v_lshlrev_b32 v{vT3}, 8, v{vT0}")
    e(f"v_add_u32 v{vKR}, v{vT2}, v{vT3}")
    e(f"s_lshl_b32 s{sT0}, s{sWV}, 13")
    e(f"v_add_u32 v{vKR}, s{sT0}, v{vKR}")
    for s in range(1, 8):
        e(f"v_xor_b32 v{vKR+s}, {s*32}, v{vKR}")
    e(f"v_bfe_u32 v{vT0}, v0, 2, 2")
    e(f"v_lshlrev_b32 v{vT2}, 6, v{vT0}")
    e(f"v_bfe_u32 v{vT3}, v0, 4, 1")
    e(f"v_lshlrev_b32 v{vT3}, 5, v{vT3}")
    e(f"v_add_u32 v{vT2}, v{vT2}, v{vT3}")
    e(f"v_and_b32 v{vT3}, 1, v0")
    e(f"v_lshlrev_b32 v{vT3}, 4, v{vT3}")
    e(f"v_add_u32 v{vT2}, v{vT2}, v{vT3}")
    e(f"v_bfe_u32 v{vT3}, v0, 1, 1")
    e(f"v_lshlrev_b32 v{vT3}, 3, v{vT3}")
    e(f"v_add_u32 v{vT2}, v{vT2}, v{vT3}")
    e(f"v_lshlrev_b32 v{vT3}, 3, v{vT1}")
    e(f"v_add_u32 v{vT3}, v{vT3}, v{vT0}")
    e(f"v_lshlrev_b32 v{vT3}, 8, v{vT3}")
    e(f"v_add_u32 v{vWR}, v{vT2}, v{vT3}")
    e(f"v_lshlrev_b32 v{vT3}, 2, v{vT1}")
    e(f"v_add_u32 v{vT3}, v{vT3}, v{vT0}")
    e(f"v_lshlrev_b32 v{vT3}, 8, v{vT3}")
    e(f"v_add_u32 v{vVR}, v{vT2}, v{vT3}")
    for t in range(1, 4):
        e(f"v_xor_b32 v{vWR+t}, {t*64}, v{vWR}")
    e(f"s_lshl_b32 s{sT0}, s{sWV}, 13")
    e(f"v_add_u32 v{vT2}, s{sT0}, v{vVR}")
    for k in range(4):
        e(f"s_add_u32 s{sT0}, s{sWV}, {k}")
        e(f"s_and_b32 s{sT0}, s{sT0}, 3")
        e(f"s_lshl_b32 s{sT0}, s{sT0}, 6")
        e(f"v_xor_b32 v{vVR+k}, s{sT0}, v{vT2}")
    e(f"s_lshl_b32 s{sM0a}, s{sWV}, 13")
    e(f"s_add_u32 s{sM0b}, s{sM0a}, {LDS_RING1}")
    e(f"s_mov_b32 s{sScale}, {f32bits(C_SCALE):#x}")


def gen_qproj(a, name, pol_x, pol_w, after_barrier15=None, after_x15=None):
    e = a.e
    WSLOT = [LDS_MISC, 0, 16384]

    def wt_setup():
        e(f"s_and_b32 s{sT2}, s{sH}, 7")
        e(f"v_lshrrev_b32 v{vT0}, 4, v0")
        e(f"v_lshlrev_b32 v{vT0}, 13, v{vT0}")
        e(f"v_and_b32 v{vT1}, 15, v0")
        e(f"v_lshlrev_b32 v{vT1}, 7, v{vT1}")
        e(f"v_add_u32 v{vT0}, v{vT0}, v{vT1}")
        e(f"s_lshl_b32 s{sT0}, s{sT2}, 6")
        e(f"v_add_u32 v{vT1}, s{sT0}, v0")
        e(f"v_bfe_u32 v{vT2}, v{vT1}, 5, 2")
        e(f"v_lshrrev_b32 v{vT3}, 7, v{vT1}")
        e(f"v_lshlrev_b32 v{vT3}, 3, v{vT3}")
        e(f"v_add_u32 v{vT2}, v{vT2}, v{vT3}")
        e(f"v_lshlrev_b32 v{vT2}, 5, v{vT2}")
        e(f"v_and_b32 v{vT1}, 31, v{vT1}")
        e(f"v_add_u32 v{vT1}, v{vT1}, v{vT2}")
        e(f"v_lshlrev_b32 v{vT1}, 11, v{vT1}")
        e(f"s_cmp_lt_u32 s{sWV}, 2")
        e(f"s_cselect_b64 vcc, -1, 0")
        e(f"v_cndmask_b32 v{vTT}, v{vT1}, v{vT0}, vcc")
        for k in range(4):
            e(f"s_cselect_b32 s{SRD_T+k}, s{SRD_W+k}, s{SRD_X+k}")
        e(f"s_mov_b32 s{SRD_T+3}, 0x20000")
        e(f"s_lshl_b32 s{sT0}, s{sT2}, 3")
        e(f"s_lshl_b32 s{sT1}, s{sWV}, 2")
        e(f"s_add_u32 s{sT0}, s{sT0}, s{sT1}")
        e(f"s_lshl_b32 s{sT0}, s{sT0}, 13")
        e(f"s_lshr_b32 s{sT1}, s{sX}, 1")
        e(f"s_lshl_b32 s{sT1}, s{sT1}, 11")
        e(f"s_add_u32 s{sT0}, s{sT0}, s{sT1}")
        e(f"s_and_b32 s{sT1}, s{sX}, 1")
        e(f"s_lshl_b32 s{sT1}, s{sT1}, 18")
        e(f"s_cmp_lt_u32 s{sWV}, 2")
        e(f"s_cselect_b32 s{sTbase}, s{sT0}, s{sT1}")
        e(f"s_mov_b32 s{sT0}, {64*8192}")
        e(f"s_cselect_b32 s{sTstep}, s{sT0}, 128")
        e(f"s_cmp_eq_u32 s{sWV}, 3")
        e(f"s_cselect_b32 s{sTbase}, {OOB:#x}, s{sTbase}")
        e(f"s_cselect_b32 s{sTstep}, 0, s{sTstep}")

    def wt_issue(tau_reg_or_imm):
        if isinstance(tau_reg_or_imm, int):
            e(f"s_mov_b32 s{sT2}, {tau_reg_or_imm}")
        else:
            e(f"s_add_u32 s{sT2}, s{sCnt}, {WT[0]}")
        e(f"s_mul_i32 s{sT3}, s{sT2}, s{sTstep}")
        e(f"s_add_u32 s{sT3}, s{sT3}, s{sTbase}")
        e(f"s_and_b32 s{sT0}, s{sT2}, 3")
        e(f"s_cmp_eq_u32 s{sT0}, s{sCls}")
        e(f"s_cselect_b32 s{sT3}, s{sT3}, {OOB:#x}")
        e(f"s_cmp_lt_u32 s{sT2}, 16")
        e(f"s_cselect_b32 s{sT3}, s{sT3}, {OOB:#x}")
        e(f"buffer_load_dword v{vTD}, v{vTT}, s[{SRD_T}:{SRD_T+3}], s{sT3} offen {pol_w}")

    def sigma():
        if QORDER[0] == "adv":
            e(f"s_add_u32 s{sT1}, s{sStg}, 1")
            e(f"s_sub_u32 s{sT1}, s{sT1}, s{sCls}")
            e(f"s_and_b32 s{sT1}, s{sT1}, 3")
            e(f"s_cmp_eq_u32 s{sT1}, 0")
            e(f"s_cselect_b32 s{sT0}, 1, 0")
            e(f"s_cmp_eq_u32 s{sT1}, 1")
            e(f"s_cselect_b32 s{sT0}, -1, s{sT0}")
            e(f"s_add_u32 s{sSig}, s{sStg}, s{sT0}")
            e(f"s_cmp_lt_u32 s{sSig}, 16")
            e(f"s_cselect_b32 s{sSig}, s{sSig}, s{sStg}")
        else:
            e(f"s_mov_b32 s{sSig}, s{sStg}")

    def issue_w():
        sigma()
        e(f"s_lshl_b32 s{sT0}, s{sWV}, 12")
        e(f"s_add_u32 m0, s{sWslotF}, s{sT0}")
        e(f"s_lshl_b32 s{sT1}, s{sSig}, 19")
        e(f"s_add_u32 s{sT1}, s{sT1}, s{sWoff}")
        for jj in range(4):
            e(f"buffer_load_dwordx4 v{vWD+jj}, s[{SRD_W}:{SRD_W+3}], s{sT1} offen offset:{jj*1024} {pol_w} lds")
        e(f"s_cmp_eq_u32 s{sWslotF}, {LDS_MISC}")
        e(f"s_cselect_b32 s{sT0}, 0, {LDS_MISC}")
        e(f"s_cmp_eq_u32 s{sWslotF}, 0")
        e(f"s_cselect_b32 s{sWslotF}, 16384, s{sT0}")

    def issue_x(par):
        e(f"s_lshl_b32 s{sT0}, s{sWV}, 13")
        e(f"s_add_u32 s{sT0}, s{sT0}, {LDS_RING1}")
        if par is not None:
            e(f"s_add_u32 m0, s{sT0}, {par*4096}")
        else:
            e(f"s_add_u32 m0, s{sT0}, s{sXslot}")
        e(f"s_lshl_b32 s{sT1}, s{sSig}, 7")
        e(f"s_add_u32 s{sT1}, s{sT1}, s{sXoff}")
        for jj in range(4):
            e(f"buffer_load_dwordx4 v{vXD+jj}, s[{SRD_X}:{SRD_X+3}], s{sT1} offen offset:{jj*1024} {pol_x} lds")
        e(f"s_add_u32 s{sStg}, s{sStg}, 1")

    class Cap:
        def __init__(self): self.L = []
        def __call__(self, t=""): self.L.append(t)

    def capture(fn):
        nonlocal e
        keep = e
        c = Cap(); e = c
        fn()
        e = keep
        return c.L

    def stage(first, issue, hook_w=None, hook_x=None, last=False):
        nwait = 9 if (WT[0] and not first) else 8
        e(f"s_waitcnt vmcnt({nwait})" if not last else "s_waitcnt vmcnt(0)")
        e("s_barrier")
        for t in range(4):
            e(f"v_add_u32 v{vWR2+t}, s{sWslotR}, v{vWR+t}")
        for u in range(4):
            e(f"v_add_u32 v{vXR2+u}, s{sXslot}, v{vXR+u}")
        if 'd' in QSKIP[0]:
            issue = False
        def rx():
            if 'r' in QSKIP[0]: return []
            return [f"ds_read_b128 v[{FX+4*u}:{FX+4*u+3}], v{vXR2+u}" for u in range(4)]
        def rw(u):
            L = []
            if 'r' in QSKIP[0]: return L
            for t in range(4):
                for half in range(2):
                    r = FW + 16*u + 4*t + 2*half
                    L.append(f"ds_read_b64_tr_b16 v[{r}:{r+1}], v{vWR2+t} offset:{(16*u+4*half)*256}")
            return L
        def mm(u):
            L = []
            for t in range(4):
                c = "0" if (first and u == 0) else f"v[{ACC+16*t}:{ACC+16*t+15}]"
                L.append(f"v_mfma_f32_32x32x16_bf16 v[{ACC+16*t}:{ACC+16*t+15}], v[{FW+16*u+4*t}:{FW+16*u+4*t+3}], v[{FX+4*u}:{FX+4*u+3}], {c}" if 'm' not in QSKIP[0] else "s_nop 0")
            return L
        for ln in rx() + rw(0):
            e(ln)
        if issue:
            issue_w()
            if WT[0]:
                wt_issue("cnt")
        if hook_w:
            hook_w()
        e("s_waitcnt lgkmcnt(0)")
        fill = rw(1) + rw(2)
        k = 0
        for m in mm(0):
            e(m)
            for ln in fill[k:k+4]:
                e(ln)
            k += 4
        xl = capture(lambda: issue_x(None)) if issue else []
        e("s_waitcnt lgkmcnt(8)")
        fill = rw(3)
        k = 0
        for m in mm(1):
            e(m)
            for ln in fill[k:k+2]:
                e(ln)
            k += 2
        e("s_waitcnt lgkmcnt(8)")
        k = 0
        per = (len(xl) + 3) // 4
        for m in mm(2):
            e(m)
            for ln in xl[k:k+per]:
                e(ln)
            k += per
        if hook_x:
            hook_x()
        e("s_waitcnt lgkmcnt(0)")
        adv = [f"s_cmp_eq_u32 s{sWslotR}, {LDS_MISC}",
               f"s_cselect_b32 s{sT0}, 0, {LDS_MISC}",
               f"s_cmp_eq_u32 s{sWslotR}, 0",
               f"s_cselect_b32 s{sWslotR}, 16384, s{sT0}",
               f"s_xor_b32 s{sXslot}, s{sXslot}, 4096"]
        k = 0
        for m in mm(3):
            e(m)
            for ln in adv[k:k+2]:
                e(ln)
            k += 2

    e(f"s_mov_b32 s{sWslotF}, {LDS_MISC}")
    e(f"s_mov_b32 s{sWslotR}, {LDS_MISC}")
    e(f"s_mov_b32 s{sXslot}, 0")
    e(f"s_mov_b32 s{sStg}, 0")
    e(f"s_mov_b32 s{sCnt}, 0")
    if WT[0]:
        wt_setup()
        for tau in range(WT[0]):
            wt_issue(tau)
    issue_w(); issue_x(0)
    issue_w(); issue_x(1)
    stage(True, True)
    e(f"s_mov_b32 s{sCnt}, 1")
    a.label(f"{name}_qloop")
    if QMARKS[0]:
        ts_mark(a, 76)
        for k, cnt in enumerate((1, 2, 4, 8, 12)):
            e(f"s_cmp_eq_u32 s{sCnt}, {cnt}")
            e(f"s_cselect_b32 s{MK[2+k]}, s76, s{MK[2+k]}")
    if ALT[0]:
        e(f"s_add_u32 s{sT0}, s{sCnt}, s{sRole}")
        e(f"s_bitcmp1_b32 s{sT0}, 0")
        e(f"s_cbranch_scc1 {name}_p1")
        e("s_setprio 0")
        e(f"s_branch {name}_p2")
        a.label(f"{name}_p1")
        e("s_setprio 1")
        a.label(f"{name}_p2")
    stage(False, True)
    e(f"s_add_u32 s{sCnt}, s{sCnt}, 1")
    e(f"s_cmp_lt_u32 s{sCnt}, 14")
    e(f"s_cbranch_scc1 {name}_qloop")
    stage(False, False)
    stage(False, False, hook_w=after_barrier15, hook_x=after_x15, last=True)
    a.nop(12)
    for s in range(8):
        t, sg = s >> 1, s & 1
        for i in range(4):
            src = ACC + 16*t + 8*sg + 2*i
            e(f"v_cvt_pk_bf16_f32 v{QOWN+4*s+i}, v{src}, v{src+1}")


def issue_tile(e, srd, slot_reg, off_reg, imm, is_k, pol):
    e(f"s_mov_b32 m0, s{slot_reg}")
    if imm:
        e(f"s_add_u32 s{sT0}, s{off_reg}, {imm}")
    else:
        e(f"s_mov_b32 s{sT0}, s{off_reg}")
    for half in range(2):
        for jj in range(4):
            v = vKD + jj if is_k else vVD
            e(f"buffer_load_dwordx4 v{v}, s[{srd}:{srd+3}], s{sT0} offen offset:{jj*1024} {pol} lds")
        if half == 0:
            e(f"s_add_u32 m0, s{slot_reg}, 4096")
            e(f"s_add_u32 s{sT0}, s{sT0}, 4096")


def k_tile(e, T, slot, hook, early=None):
    FK = O + 32*(T & 1)
    if early:
        e("s_waitcnt vmcnt(0)")
        early()
    else:
        e("s_waitcnt vmcnt(8)")
    for s in range(8):
        e(f"ds_read_b128 v[{FK+4*s}:{FK+4*s+3}], v{vKR+s} offset:{slot*LDS_RING1}")
    e("s_waitcnt lgkmcnt(0)")
    hook()
    for s in range(8):
        mfma(e, S+16*T, FK+4*s, QCUR+4*s, "0" if s == 0 else None)


def v_tile(e, T, slot, hook, early=None):
    FV = S + 32
    if early:
        e("s_waitcnt vmcnt(0)")
        early()
    else:
        e("s_waitcnt vmcnt(8)")
    for k in range(4):
        for u in range(2):
            for half in range(2):
                r = FV + 8*k + 4*u + 2*half
                e(f"ds_read_b64_tr_b16 v[{r}:{r+1}], v{vVR+k} offset:{slot*LDS_RING1 + (16*u+8*half)*256}")
    e("s_waitcnt lgkmcnt(0)")
    hook()
    for u in range(2):
        for k in range(4):
            mfma(e, O+16*k, FV+8*k+4*u, S+8*T+4*u, "0" if (T == 0 and u == 0) else None)


def softmax(a, nreg=64):
    e = a.e
    e(f"v_max3_f32 v{vMx}, v{S}, v{S+1}, v{S+2}")
    e(f"v_max3_f32 v{vT0}, v{S+3}, v{S+4}, v{S+5}")
    k = 6
    tgt = [vMx, vT0]
    n = 0
    while k + 1 < nreg:
        e(f"v_max3_f32 v{tgt[n&1]}, v{tgt[n&1]}, v{S+k}, v{S+k+1}")
        k += 2; n += 1
    e(f"v_max_f32 v{vMx}, v{vMx}, v{vT0}")
    e(f"v_mov_b32 v{vT0}, v{vMx}")
    a.nop(2)
    e(f"v_permlane32_swap_b32 v{vMx}, v{vT0}")
    a.nop(1)
    e(f"v_max_f32 v{vM}, v{vMx}, v{vT0}")
    e(f"v_mul_f32 v{vF}, s{sScale}, v{vM}")
    for k in range(nreg):
        e(f"v_fma_f32 v{S+k}, v{S+k}, s{sScale}, -v{vF}")
    for k in range(nreg):
        e(f"v_exp_f32 v{S+k}, v{S+k}")
    e(f"v_add_f32 v{vL}, v{S}, v{S+1}")
    e(f"v_add_f32 v{vT0}, v{S+2}, v{S+3}")
    for k in range(4, nreg, 2):
        e(f"v_add_f32 v{vL}, v{vL}, v{S+k}")
        e(f"v_add_f32 v{vT0}, v{vT0}, v{S+k+1}")
    for k in range(nreg//2):
        e(f"v_cvt_pk_bf16_f32 v{S+k}, v{S+2*k}, v{S+2*k+1}")
    e(f"v_add_f32 v{vL}, v{vL}, v{vT0}")
    e(f"v_mov_b32 v{vT0}, v{vL}")
    a.nop(2)
    e(f"v_permlane32_swap_b32 v{vL}, v{vT0}")
    a.nop(1)
    e(f"v_add_f32 v{vL}, v{vL}, v{vT0}")


def q_broadcast(a, name, tag, owner_reg_or_imm):
    e = a.e
    e(f"s_cmp_lg_u32 s{sWV}, {owner_reg_or_imm}")
    e(f"s_cbranch_scc1 {name}_{tag}_skip")
    e(f"v_add_u32 v{vA0}, {LDS_MISC}, v{vLane16}")
    for s in range(8):
        e(f"ds_write_b128 v{vA0}, v[{QOWN+4*s}:{QOWN+4*s+3}] offset:{s*1024}")
    e("s_waitcnt lgkmcnt(0)")
    a.label(f"{name}_{tag}_skip")
    e("s_barrier")
    e(f"v_add_u32 v{vA0}, {LDS_MISC}, v{vLane16}")
    for s in range(8):
        e(f"ds_read_b128 v[{QCUR+4*s}:{QCUR+4*s+3}], v{vA0} offset:{s*1024}")
    e("s_waitcnt lgkmcnt(0)")


def gen_m1(a, name, pol):
    e = a.e
    sNext = sT5
    G = S + 32
    a.label(f"{name}_task")
    e(f"s_add_u32 s{sNext}, s{sKVoff}, s{sOoff}")
    e(f"s_cmp_lt_u32 s{sTask}, 3")
    e(f"s_cselect_b32 s{sNext}, s{sNext}, {OOB:#x}")
    slotreg = [sM0a, sM0b]
    none = lambda: None
    for T in range(4):
        if LOOK[0] == 2:
            if T < 2:
                hook = lambda T=T: issue_tile(e, SRD_K, slotreg[T & 1], sKVoff, (T+2)*32768, True, pol)
            else:
                hook = lambda T=T: issue_tile(e, SRD_V, slotreg[T & 1], sKVoff, (T-2)*32768, False, pol)
            k_tile(e, T, T & 1, hook)
        else:
            if T < 3:
                early = lambda T=T: issue_tile(e, SRD_K, slotreg[(T+1) & 1], sKVoff, (T+1)*32768, True, pol)
            else:
                early = lambda: issue_tile(e, SRD_V, sM0a, sKVoff, 0, False, pol)
            k_tile(e, T, T & 1, none, early)
    softmax(a)
    e(f"s_cmp_ge_u32 s{sTask}, 3")
    e(f"s_cbranch_scc1 {name}_noq")
    e(f"s_add_u32 s{sT4}, s{sTask}, 1")
    q_broadcast(a, name, "qn", f"s{sT4}")
    a.label(f"{name}_noq")
    for T in range(4):
        if LOOK[0] == 2:
            if T < 2:
                hook = lambda T=T: issue_tile(e, SRD_V, slotreg[T & 1], sKVoff, (T+2)*32768, False, pol)
            elif T == 2:
                hook = lambda: issue_tile(e, SRD_K, sM0a, sNext, 0, True, pol)
            else:
                hook = lambda: None
            v_tile(e, T, T & 1, hook)
        else:
            if T < 3:
                early = lambda T=T: issue_tile(e, SRD_V, slotreg[(T+1) & 1], sKVoff, (T+1)*32768, False, pol)
            else:
                early = lambda: issue_tile(e, SRD_K, sM0a, sNext, 0, True, pol)
            v_tile(e, T, T & 1, none, early)
    e(f"v_and_b32 v{vT0}, 31, v0")
    e(f"v_lshlrev_b32 v{vT0}, 3, v{vT0}")
    e(f"v_add_u32 v{vT0}, {LDS_MISC + 8192}, v{vT0}")
    e(f"s_lshl_b32 s{sT0}, s{sWV}, 8")
    e(f"v_add_u32 v{vA0}, s{sT0}, v{vT0}")
    e(f"v_add_u32 v{vA1}, s{sM0b}, v{vLane16}")
    e(f"ds_write_b32 v{vA0}, v{vM}")
    e(f"ds_write_b32 v{vA0}, v{vL} offset:4")
    a.nop(10)
    for k in (1, 2):
        for j in range(4):
            e(f"ds_write_b128 v{vA1}, v[{O+16*k+4*j}:{O+16*k+4*j+3}] offset:{(k-1)*4096 + j*1024}")
    e("s_waitcnt lgkmcnt(0)")
    e("s_barrier")
    for k in range(4):
        e(f"s_sub_u32 s{sT0}, s{sWV}, {k}")
        e(f"s_and_b32 s{sT0}, s{sT0}, 3")
        e(f"s_lshl_b32 s{sT0}, s{sT0}, 8")
        e(f"v_add_u32 v{vA0}, s{sT0}, v{vT0}")
        e(f"ds_read_b64 v[{G+2*k}:{G+2*k+1}], v{vA0}")
    TI = S
    for k in (1, 2):
        e(f"s_sub_u32 s{sT0}, s{sWV}, {k}")
        e(f"s_and_b32 s{sT0}, s{sT0}, 3")
        e(f"s_lshl_b32 s{sT0}, s{sT0}, 13")
        e(f"s_add_u32 s{sT0}, s{sT0}, {LDS_RING1 + (k-1)*4096}")
        e(f"v_add_u32 v{vA0}, s{sT0}, v{vLane16}")
        for j in range(4):
            e(f"ds_read_b128 v[{TI+16*(k-1)+4*j}:{TI+16*(k-1)+4*j+3}], v{vA0} offset:{j*1024}")
    e("s_waitcnt lgkmcnt(8)")
    e(f"v_max3_f32 v{vMx}, v{G}, v{G+2}, v{G+4}")
    e(f"v_max_f32 v{vMx}, v{vMx}, v{G+6}")
    e(f"v_mul_f32 v{vMx}, s{sScale}, v{vMx}")
    for k in range(4):
        e(f"v_fma_f32 v{G+2*k}, v{G+2*k}, s{sScale}, -v{vMx}")
    for k in range(4):
        e(f"v_exp_f32 v{G+2*k}, v{G+2*k}")
    a.nop(1)
    e(f"v_mul_f32 v{vF}, v{G}, v{G+1}")
    for k in range(1, 4):
        e(f"v_fma_f32 v{vF}, v{G+2*k}, v{G+2*k+1}, v{vF}")
    e(f"v_rcp_f32 v{vF}, v{vF}")
    a.nop(1)
    for k in range(4):
        e(f"v_mul_f32 v{G+2*k}, v{G+2*k}, v{vF}")
    for j in range(16):
        e(f"v_mul_f32 v{O+j}, v{O+j}, v{G}")
    e("s_waitcnt lgkmcnt(0)")
    for k in (1, 2):
        for j in range(16):
            e(f"v_fma_f32 v{O+j}, v{TI+16*(k-1)+j}, v{G+2*k}, v{O+j}")
    e("s_barrier")
    for j in range(4):
        e(f"ds_write_b128 v{vA1}, v[{O+48+4*j}:{O+48+4*j+3}] offset:{j*1024}")
    e("s_waitcnt lgkmcnt(0)")
    e("s_barrier")
    e(f"s_sub_u32 s{sT0}, s{sWV}, 3")
    e(f"s_and_b32 s{sT0}, s{sT0}, 3")
    e(f"s_lshl_b32 s{sT0}, s{sT0}, 13")
    e(f"s_add_u32 s{sT0}, s{sT0}, {LDS_RING1}")
    e(f"v_add_u32 v{vA0}, s{sT0}, v{vLane16}")
    for j in range(4):
        e(f"ds_read_b128 v[{TI+4*j}:{TI+4*j+3}], v{vA0} offset:{j*1024}")
    e("s_waitcnt lgkmcnt(0)")
    e("s_barrier")
    if LOOK[0] == 2:
        issue_tile(e, SRD_K, sM0b, sNext, 32768, True, pol)
    for j in range(16):
        e(f"v_fma_f32 v{O+j}, v{TI+j}, v{G+6}, v{O+j}")
    for k in range(24):
        e(f"v_mov_b32 v{DEF+k}, v{DEF+8+k}")
    for j in range(8):
        e(f"v_cvt_pk_bf16_f32 v{DEF+24+j}, v{O+2*j}, v{O+2*j+1}")
    if TIMING[0]:
        ts_mark(a, 76)
        for k in range(4):
            e(f"s_cmp_eq_u32 s{sTask}, {k}")
            e(f"s_cselect_b32 s{MK[2+k]}, s76, s{MK[2+k]}")
    e(f"s_mov_b32 s{sKVoff}, s{sNext}")
    e(f"s_add_u32 s{sTask}, s{sTask}, 1")
    e(f"s_cmp_lt_u32 s{sTask}, 4")
    e(f"s_cbranch_scc1 {name}_task")
    e("s_waitcnt vmcnt(0)")
    e(f"s_xor_b32 s{sT0}, s{sRole}, 1")
    e(f"s_lshl_b32 s{sT0}, s{sT0}, 23")
    e(f"s_lshl_b32 s{sT1}, s{sI}, 18")
    e(f"s_add_u32 s{sT0}, s{sT0}, s{sT1}")
    e(f"s_lshl_b32 s{sT1}, s{sH}, 13")
    e(f"s_add_u32 s{sT0}, s{sT0}, s{sT1}")
    e(f"s_lshl_b32 s{sT1}, s{sWV}, 11")
    e(f"s_add_u32 s{sT0}, s{sT0}, s{sT1}")
    for r in range(4):
        for sg in range(2):
            e(f"buffer_store_dwordx4 v[{DEF+8*r+4*sg}:{DEF+8*r+4*sg+3}], v{vLane16}, s[{SRD_O}:{SRD_O+3}], s{sT0} offen offset:{sg*1024}")
        if r < 3:
            e(f"s_add_u32 s{sT0}, s{sT0}, {8*262144}")


def gen_touch(a, pol):
    e = a.e
    vD = S
    e(f"s_bfe_u32 s{sT2}, s2, 0x50003")
    e(f"v_lshrrev_b32 v{vT0}, 4, v0")
    e(f"v_lshlrev_b32 v{vT0}, 13, v{vT0}")
    e(f"v_and_b32 v{vT1}, 15, v0")
    e(f"v_lshlrev_b32 v{vT1}, 7, v{vT1}")
    e(f"v_add_u32 v{vT0}, v{vT0}, v{vT1}")
    e(f"s_lshl_b32 s{sT0}, s{sWV}, 5")
    e(f"s_add_u32 s{sT0}, s{sT0}, s{sT2}")
    e(f"s_lshl_b32 s{sT0}, s{sT0}, 15")
    e(f"s_lshr_b32 s{sT1}, s{sX}, 1")
    e(f"s_lshl_b32 s{sT1}, s{sT1}, 11")
    e(f"s_add_u32 s{sT0}, s{sT0}, s{sT1}")
    e(f"s_add_u32 s{sT1}, s{sT0}, {128*4*8192}")
    e(f"s_lshl_b32 s{sT3}, s{sWV}, 5")
    e(f"s_add_u32 s{sT3}, s{sT3}, s{sT2}")
    e(f"s_and_b32 s{sT2}, s{sT3}, 7")
    e(f"s_lshl_b32 s{sT2}, s{sT2}, 6")
    e(f"v_add_u32 v{vT1}, s{sT2}, v0")
    e(f"v_bfe_u32 v{vT2}, v{vT1}, 5, 2")
    e(f"v_lshrrev_b32 v{vT3}, 7, v{vT1}")
    e(f"v_lshlrev_b32 v{vT3}, 3, v{vT3}")
    e(f"v_add_u32 v{vT2}, v{vT2}, v{vT3}")
    e(f"v_lshlrev_b32 v{vT2}, 5, v{vT2}")
    e(f"v_and_b32 v{vT1}, 31, v{vT1}")
    e(f"v_add_u32 v{vT1}, v{vT1}, v{vT2}")
    e(f"v_lshlrev_b32 v{vT1}, 11, v{vT1}")
    e(f"s_lshr_b32 s{sT3}, s{sT3}, 3")
    e(f"s_lshl_b32 s{sT3}, s{sT3}, 7")
    e(f"s_and_b32 s{sT2}, s{sX}, 1")
    e(f"s_lshl_b32 s{sT2}, s{sT2}, 18")
    e(f"s_add_u32 s{sT3}, s{sT3}, s{sT2}")
    e(f"buffer_load_dword v{vD}, v{vT0}, s[{SRD_W}:{SRD_W+3}], s{sT0} offen {pol}")
    e(f"buffer_load_dword v{vD+1}, v{vT1}, s[{SRD_X}:{SRD_X+3}], s{sT3} offen {pol}")
    e(f"buffer_load_dword v{vD+2}, v{vT0}, s[{SRD_W}:{SRD_W+3}], s{sT1} offen {pol}")


def poll_counter(a, label, off_reg, mask, shift_reg, target, bound, sleep=8):
    e = a.e
    e(f"v_mov_b32 v{vT0}, s{off_reg}")
    if bound:
        e(f"s_mov_b32 s{sT3}, {bound}")
    a.label(label)
    e(f"buffer_load_dword v{vT1}, v{vT0}, s[{SRD_D}:{SRD_D+3}], 0 offen sc1")
    e("s_waitcnt vmcnt(0)")
    e(f"v_readfirstlane_b32 s{sT1}, v{vT1}")
    a.nop(3)
    if shift_reg is not None:
        e(f"s_lshr_b32 s{sT1}, s{sT1}, s{shift_reg}")
    e(f"s_and_b32 s{sT1}, s{sT1}, {mask}")
    e(f"s_cmp_ge_u32 s{sT1}, {target}")
    e(f"s_cbranch_scc1 {label}_ok")
    if bound:
        e(f"s_sub_u32 s{sT3}, s{sT3}, 1")
        e(f"s_cmp_eq_u32 s{sT3}, 0")
        e(f"s_cbranch_scc1 {label}_ok")
    e(f"s_sleep {sleep}")
    e(f"s_branch {label}")
    a.label(label + "_ok")


def signal(a, label, off_reg, val_reg_or_imm):
    e = a.e
    e(f"s_cmp_lg_u32 s{sWV}, 0")
    e(f"s_cbranch_scc1 {label}")
    e(f"v_mov_b32 v{vT0}, s{off_reg}")
    e(f"v_mov_b32 v{vT1}, {val_reg_or_imm}")
    e(f"v_cmp_eq_u32 vcc, 0, v0")
    e(f"s_and_saveexec_b64 s[{sT2}:{sT3}], vcc")
    e(f"buffer_atomic_add v{vT1}, v{vT0}, s[{SRD_D}:{SRD_D+3}], 0 offen sc1")
    e(f"s_mov_b64 exec, s[{sT2}:{sT3}]")
    a.label(label)


def gen_flash(a, name, pol):
    e = a.e
    FK = [QOWN, DEF]
    sNextK, sNextV = sT4, sT5
    e(f"s_lshl_b32 s{sT0}, s{sB}, 5")
    e(f"s_add_u32 s{sT0}, s{sT0}, s{sH}")
    e(f"s_lshl_b32 s{sT0}, s{sT0}, 13")
    e(f"s_add_u32 s{sT0}, s{sT0}, {QWS_OFF}")
    for s in range(8):
        if s == 4:
            e(f"s_add_u32 s{sT0}, s{sT0}, 4096")
        e(f"buffer_store_dwordx4 v[{QOWN+4*s}:{QOWN+4*s+3}], v{vLane16}, s[{SRD_O}:{SRD_O+3}], s{sT0} offen offset:{(s%4)*1024} {QST[0]}")
    e("s_waitcnt vmcnt(0)")
    if XM[0]: mark(a, 3)
    e("s_barrier")
    e(f"v_readfirstlane_b32 s{sNonce}, v{vNon}")
    a.nop(3)
    e(f"s_mul_i32 s{sNonce}, s{sNonce}, 0x9e3779b1")
    e(f"s_add_u32 s{sNonce}, s{sNonce}, 0x7f4a7c15")
    e(f"s_cmp_lg_u32 s{sWV}, 0")
    e(f"s_cbranch_scc1 {name}_qwait")
    e(f"s_and_b32 s{sT0}, s{sH}, 3")
    e(f"s_lshl_b32 s{sT0}, s{sT0}, 2")
    e(f"s_add_u32 s{sT0}, s{sT0}, s{sFlag}")
    e(f"s_add_u32 s{sT0}, s{sT0}, 16")
    e(f"v_mov_b32 v{vT0}, 0")
    e(f"v_mov_b32 v{vT1}, s{sNonce}")
    e(f"v_cmp_eq_u32 vcc, 0, v0")
    e(f"s_and_saveexec_b64 s[{sT2}:{sT3}], vcc")
    e(f"buffer_store_dword v{vT1}, v{vT0}, s[{SRD_O}:{SRD_O+3}], s{sT0} offen sc0 sc1")
    e(f"s_mov_b64 exec, s[{sT2}:{sT3}]")
    a.label(f"{name}_pollq")
    e(f"buffer_load_dwordx4 v[{S}:{S+3}], v{vT0}, s[{SRD_O}:{SRD_O+3}], s{sFlag} offen offset:16 sc0 sc1")
    e("s_waitcnt vmcnt(0)")
    for k in range(4):
        e(f"v_xor_b32 v{S+k}, s{sNonce}, v{S+k}")
    e(f"v_or3_b32 v{S}, v{S}, v{S+1}, v{S+2}")
    e(f"v_or_b32 v{S}, v{S}, v{S+3}")
    a.nop(1)
    e(f"v_readfirstlane_b32 s{sT1}, v{S}")
    a.nop(3)
    e(f"s_cmp_eq_u32 s{sT1}, 0")
    e(f"s_cbranch_scc1 {name}_pollq_ok")
    e(f"s_sleep {SLEEPQ[0]}")
    e(f"s_branch {name}_pollq")
    a.label(f"{name}_pollq_ok")
    if XM[0]: mark(a, 4)
    e(f"v_cmp_eq_u32 vcc, 0, v0")
    e(f"s_and_saveexec_b64 s[{sT2}:{sT3}], vcc")
    e(f"buffer_store_dword v{vT1}, v{vT0}, s[{SRD_O}:{SRD_O+3}], s{sFlag} offen sc0 sc1")
    e(f"s_mov_b64 exec, s[{sT2}:{sT3}]")
    if INV[0]:
        e("buffer_inv sc1")
    e("s_waitcnt vmcnt(0)")
    if XM[0]: mark(a, 5)
    a.label(f"{name}_qwait")
    e("s_barrier")
    mark(a, 2)
    e(f"s_lshl_b32 s{sT0}, s{sBs}, 5")
    e(f"s_lshl_b32 s{sT1}, s{sHq}, 2")
    e(f"s_add_u32 s{sT1}, s{sT1}, s{sWV}")
    e(f"s_add_u32 s{sT0}, s{sT0}, s{sT1}")
    e(f"s_lshl_b32 s{sT0}, s{sT0}, 13")
    e(f"s_add_u32 s{sT0}, s{sT0}, {QWS_OFF}")
    for s in range(8):
        if s == 4:
            e(f"s_add_u32 s{sT0}, s{sT0}, 4096")
        e(f"buffer_load_dwordx4 v[{QCUR+4*s}:{QCUR+4*s+3}], v{vLane16}, s[{SRD_O}:{SRD_O+3}], s{sT0} offen offset:{(s%4)*1024} {QST[1]}")
    issue_tile(e, SRD_K, sM0a, sKVoff, 0, True, pol)
    issue_tile(e, SRD_V, sM0b, sKVoff, 0, False, pol)
    for s in range(8):
        e(f"v_subrev_u32 v{vKR+s}, s{sM0a}, v{vKR+s}")
    e(f"s_lshl_b32 s{sT0}, s{sWV}, 6")
    e(f"v_subrev_u32 v{vT2}, s{sM0a}, v{vVR}")
    e(f"v_xor_b32 v{vT2}, s{sT0}, v{vT2}")
    for k in range(4):
        e(f"v_xor_b32 v{vVR+k}, {k*64}, v{vT2}")
    for j in range(64):
        e(f"v_mov_b32 v{O+j}, 0")
    e(f"v_mov_b32 v{vM}, 0xff7fffff")
    e(f"v_mov_b32 v{vL}, 0")
    e(f"s_mov_b32 s{sTask}, 0")
    a.label(f"{name}_chunk")
    e(f"s_add_u32 s{sNextK}, s{sKVoff}, 32768")
    e(f"s_cmp_lt_u32 s{sTask}, 3")
    e(f"s_cselect_b32 s{sNextK}, s{sNextK}, {OOB:#x}")
    e("s_waitcnt vmcnt(8)")
    e("s_barrier")
    def rk(T):
        for s in range(8):
            e(f"ds_read_b128 v[{FK[T&1]+4*s}:{FK[T&1]+4*s+3}], v{vKR+s} offset:{T*8192}")
    def mk(T):
        for s in range(8):
            mfma(e, S+16*T, FK[T&1]+4*s, QCUR+4*s, "0" if s == 0 else None)
    rk(0); rk(1)
    e("s_waitcnt lgkmcnt(8)")
    mk(0)
    rk(2)
    e("s_waitcnt lgkmcnt(8)")
    mk(1)
    rk(3)
    e("s_waitcnt lgkmcnt(8)")
    mk(2)
    e("s_waitcnt lgkmcnt(0)")
    e("s_barrier")
    issue_tile(e, SRD_K, sM0a, sNextK, 0, True, pol)
    mk(3)
    e(f"v_max3_f32 v{vMx}, v{S}, v{S+1}, v{S+2}")
    e(f"v_max3_f32 v{vT0}, v{S+3}, v{S+4}, v{S+5}")
    k = 6; n = 0
    tgt = [vMx, vT0]
    while k + 1 < 64:
        e(f"v_max3_f32 v{tgt[n&1]}, v{tgt[n&1]}, v{S+k}, v{S+k+1}")
        k += 2; n += 1
    e(f"v_max3_f32 v{vMx}, v{vMx}, v{vT0}, v{vM}")
    e(f"v_mov_b32 v{vT0}, v{vMx}")
    a.nop(2)
    e(f"v_permlane32_swap_b32 v{vMx}, v{vT0}")
    a.nop(1)
    e(f"v_max_f32 v{vMx}, v{vMx}, v{vT0}")
    e(f"v_mul_f32 v{vF}, s{sScale}, v{vMx}")
    e(f"v_fma_f32 v{vT1}, v{vM}, s{sScale}, -v{vF}")
    e(f"v_exp_f32 v{vT1}, v{vT1}")
    e(f"v_mov_b32 v{vM}, v{vMx}")
    for k in range(64):
        e(f"v_fma_f32 v{S+k}, v{S+k}, s{sScale}, -v{vF}")
    for k in range(64):
        e(f"v_exp_f32 v{S+k}, v{S+k}")
    for k in range(64):
        e(f"v_mul_f32 v{O+k}, v{O+k}, v{vT1}")
    e(f"v_add_f32 v{vT2}, v{S}, v{S+1}")
    e(f"v_add_f32 v{vT0}, v{S+2}, v{S+3}")
    for k in range(4, 64, 2):
        e(f"v_add_f32 v{vT2}, v{vT2}, v{S+k}")
        e(f"v_add_f32 v{vT0}, v{vT0}, v{S+k+1}")
    for k in range(32):
        e(f"v_cvt_pk_bf16_f32 v{S+k}, v{S+2*k}, v{S+2*k+1}")
    e(f"v_add_f32 v{vT2}, v{vT2}, v{vT0}")
    e(f"v_fma_f32 v{vL}, v{vL}, v{vT1}, v{vT2}")
    e("s_waitcnt vmcnt(8)")
    e("s_barrier")
    FV = [S+32, QOWN]
    def rv(T):
        for k in range(4):
            for u in range(2):
                for half in range(2):
                    r = FV[T&1] + 8*k + 4*u + 2*half
                    e(f"ds_read_b64_tr_b16 v[{r}:{r+1}], v{vVR+k} offset:{LDS_RING1 + T*8192 + (16*u+8*half)*256}")
    def mv(T):
        for u in range(2):
            for k in range(4):
                mfma(e, O+16*k, FV[T&1]+8*k+4*u, S+8*T+4*u)
    rv(0)
    e("s_waitcnt lgkmcnt(0)")
    rv(1); mv(0)
    e("s_waitcnt lgkmcnt(0)")
    rv(2); mv(1)
    e("s_waitcnt lgkmcnt(0)")
    rv(3); mv(2)
    e("s_waitcnt lgkmcnt(0)")
    e("s_barrier")
    issue_tile(e, SRD_V, sM0b, sNextK, 0, False, pol)
    mv(3)
    if TIMING[0]:
        ts_mark(a, 76)
        for k in range(4):
            e(f"s_cmp_eq_u32 s{sTask}, {k}")
            if not XM[0] or k == 3:
                e(f"s_cselect_b32 s{MK[3+k]}, s76, s{MK[3+k]}")
    e(f"s_mov_b32 s{sKVoff}, s{sNextK}")
    e(f"s_add_u32 s{sTask}, s{sTask}, 1")
    e(f"s_cmp_lt_u32 s{sTask}, 4")
    e(f"s_cbranch_scc1 {name}_chunk")
    e(f"v_mov_b32 v{vT0}, v{vL}")
    a.nop(2)
    e(f"v_permlane32_swap_b32 v{vL}, v{vT0}")
    a.nop(1)
    e(f"v_add_f32 v{vL}, v{vL}, v{vT0}")
    e(f"v_rcp_f32 v{vF}, v{vL}")
    a.nop(8)
    for k in range(64):
        e(f"v_mul_f32 v{O+k}, v{O+k}, v{vF}")
    for k in range(32):
        e(f"v_cvt_pk_bf16_f32 v{S+k}, v{O+2*k}, v{O+2*k+1}")
    e("s_waitcnt vmcnt(0)")
    e(f"s_lshl_b32 s{sT0}, s{sBs}, 18")
    e(f"s_lshl_b32 s{sT1}, s{sHq}, 2")
    e(f"s_add_u32 s{sT1}, s{sT1}, s{sWV}")
    e(f"s_lshl_b32 s{sT1}, s{sT1}, 13")
    e(f"s_add_u32 s{sT0}, s{sT0}, s{sT1}")
    for f in range(8):
        if f == 4:
            e(f"s_add_u32 s{sT0}, s{sT0}, 4096")
        e(f"buffer_store_dwordx4 v[{S+4*f}:{S+4*f+3}], v{vLane16}, s[{SRD_O}:{SRD_O+3}], s{sT0} offen offset:{(f%4)*1024}")


def gen_attn(a, name, timing=False, pol_x="nt", pol_w="nt", pol_kv="nt", touch=True, delay_a=True, thresh=32, bound=64, qmarks=False, only=None, qonly=False, qskip='', qorder='adv', look=2, prio_a=0, prio_b=0, touch_a=False, sleep_q=8, sleep_b=48, xmarks=False, use_inv=False, altprio=False, wo_pf=None, wtouch=0, prio_flash=0, qst='sc0 sc1', qld='sc0 sc1'):
    kernel_header(a, name)
    e = a.e
    TIMING[0] = timing
    QMARKS[0] = qmarks
    QSKIP[0] = qskip
    QORDER[0] = qorder
    LOOK[0] = look
    SLEEPQ[0] = sleep_q
    XM[0] = xmarks
    ALT[0] = altprio
    WT[0] = wtouch
    INV[0] = use_inv
    QST[0] = qst
    QST[1] = qld
    gen_prologue(a, name, timing)
    if only == "B":
        e(f"s_cmp_lg_u32 s{sRole}, 0")
        e(f"s_cbranch_scc1 {name}_done")
    if only == "A":
        e(f"s_cmp_eq_u32 s{sRole}, 0")
        e(f"s_cbranch_scc1 {name}_done")
    if timing:
        for k in range(8):
            e(f"s_mov_b32 s{MK[k]}, 0")
    e(f"s_and_b32 s{sT2}, s{sH}, 3")
    e(f"s_lshl_b32 s{sT2}, s{sT2}, 3")
    e(f"s_add_u32 s{sBs}, s{sT2}, s{sI}")
    e(f"s_lshr_b32 s{sHq}, s{sH}, 2")
    e(f"s_lshl_b32 s{sT0}, s{sI}, 5")
    e(f"s_add_u32 s{sT0}, s{sT0}, s{sH}")
    e(f"s_lshl_b32 s{sT1}, s{sBs}, 2")
    e(f"s_lshr_b32 s{sT2}, s{sH}, 3")
    e(f"s_add_u32 s{sT1}, s{sT1}, s{sT2}")
    e(f"s_cmp_eq_u32 s{sRole}, 0")
    e(f"s_cselect_b32 s{sKVoff}, s{sT0}, s{sT1}")
    e(f"s_lshl_b32 s{sKVoff}, s{sKVoff}, 17")
    e(f"s_add_u32 s{sKVoff}, s{sKVoff}, s{sM0a}")
    e(f"s_mov_b32 s{sOoff}, {8*32*131072}")
    e(f"s_cmp_eq_u32 s{sRole}, 0")
    e(f"s_cbranch_scc1 {name}_startb")
    if delay_a:
        e(f"s_lshl_b32 s{sT4}, s{sX}, 2")
        e(f"s_cmp_lg_u32 s{sWV}, 0")
        e(f"s_cbranch_scc1 {name}_await")
        poll_counter(a, f"{name}_pollb", sT4, 255, None, thresh, bound, sleep=sleep_b)
        a.label(f"{name}_await")
        e("s_barrier")
    e(f"s_lshl_b32 s{sFlag}, s{sHq}, 3")
    e(f"s_add_u32 s{sFlag}, s{sFlag}, s{sI}")
    e(f"s_lshl_b32 s{sFlag}, s{sFlag}, 8")
    e(f"s_add_u32 s{sFlag}, s{sFlag}, {FLAG_OFF}")
    e(f"v_mov_b32 v{vT0}, 0")
    e(f"buffer_load_dword v{vNon}, v{vT0}, s[{SRD_O}:{SRD_O+3}], s{sFlag} offen sc0 sc1")
    if prio_a:
        e(f"s_setprio {prio_a}")
    if touch_a:
        gen_touch(a, pol_w)
    e(f"s_branch {name}_q")
    a.label(f"{name}_startb")
    if prio_b:
        e(f"s_setprio {prio_b}")
    if touch:
        gen_touch(a, pol_w)
    a.label(f"{name}_q")
    mark(a, 0)

    def hook_w():
        e(f"s_cmp_lg_u32 s{sRole}, 0")
        e(f"s_cbranch_scc1 {name}_hw")
        if delay_a:
            e(f"s_lshl_b32 s{sT4}, s{sX}, 2")
            signal(a, f"{name}_sigb", sT4, "1")
        issue_tile(e, SRD_K, sM0a, sKVoff, 0, True, pol_kv)
        a.label(f"{name}_hw")
    def hook_x():
        if LOOK[0] != 2:
            return
        e(f"s_cmp_lg_u32 s{sRole}, 0")
        e(f"s_cbranch_scc1 {name}_hx")
        issue_tile(e, SRD_K, sM0b, sKVoff, 32768, True, pol_kv)
        a.label(f"{name}_hx")
    gen_qproj(a, name, pol_x, pol_w, hook_w, hook_x)
    mark(a, 1)
    if ALT[0]:
        e("s_setprio 0")
    if qonly:
        e(f"s_branch {name}_end")
    e(f"s_cmp_lg_u32 s{sRole}, 0")
    e(f"s_cbranch_scc1 {name}_rolea")
    e("s_barrier")
    q_broadcast(a, name, "q0", "0")
    e(f"s_mov_b32 s{sTask}, 0")
    gen_m1(a, name, pol_kv)
    e(f"s_branch {name}_end")
    a.label(f"{name}_rolea")
    e(f"s_setprio {prio_flash}")
    gen_flash(a, name, pol_kv)
    a.label(f"{name}_end")
    if wo_pf is not None:
        e(f"s_load_dwordx2 s[52:53], s[0:1], 32")
        e(f"s_load_dwordx2 s[54:55], s[0:1], 72")
        e(f"s_waitcnt lgkmcnt(0)")
        e(f"s_cmp_lt_u32 s{sX}, 4")
        e(f"s_cselect_b32 s{SRD_W}, s52, s54")
        e(f"s_cselect_b32 s{SRD_W+1}, s53, s55")
        e(f"s_and_b32 s{SRD_W+1}, s{SRD_W+1}, 0xffff")
        e(f"s_mov_b32 s{SRD_W+2}, {4096*1024*2}")
        e(f"s_mov_b32 s{SRD_W+3}, 0x20000")
        e(f"s_lshr_b32 s{sT0}, s2, 3")
        e(f"s_lshl_b32 s{sT0}, s{sT0}, 3")
        e(f"s_lshl_b32 s{sT1}, s{sWV}, 1")
        e(f"s_add_u32 s{sT0}, s{sT0}, s{sT1}")
        e(f"s_lshl_b32 s{sT0}, s{sT0}, 14")
        e(f"s_and_b32 s{sT1}, s{sX}, 1")
        e(f"s_lshl_b32 s{sT1}, s{sT1}, 10")
        e(f"s_add_u32 s{sT0}, s{sT0}, s{sT1}")
        e(f"v_lshrrev_b32 v{vT0}, 3, v0")
        e(f"v_lshlrev_b32 v{vT0}, 11, v{vT0}")
        e(f"v_and_b32 v{vT1}, 7, v0")
        e(f"v_lshlrev_b32 v{vT1}, 7, v{vT1}")
        e(f"v_add_u32 v{vT0}, v{vT0}, v{vT1}")
        e(f"buffer_load_dword v{vT2}, v{vT0}, s[{SRD_W}:{SRD_W+3}], s{sT0} offen {wo_pf}")
        e(f"s_add_u32 s{sT0}, s{sT0}, {8*2048}")
        e(f"buffer_load_dword v{vT3}, v{vT0}, s[{SRD_W}:{SRD_W+3}], s{sT0} offen {wo_pf}")
    e("s_waitcnt vmcnt(0)")
    if timing:
        mark(a, 7)
        ts_dump(a, [sTS] + MK[0:7], 0, sWV, 52, 8)
        ts_end(a, sTS, 0, sWV, 52, 2)
    a.label(f"{name}_done")
    e("s_endpgm")
    return dict(nv=256, ns=NS, lds=LDS_BYTES)
```

```python
from asmlib import *

STAGE = 24576
NSTAGE = 64
OOB = 0x80000000

def interleave(main, fill, per_gap):
    out = []
    k = 0
    for n, m in enumerate(main):
        out.append(m)
        take = per_gap[n] if isinstance(per_gap, list) else per_gap
        out += fill[k:k+take]
        k += take
    out += fill[k:]
    return out

def gen_oproj(a, name, pol_o="", pol_w="", timing=False, skip="", NS=6, order=None, lazy=True, gaps=(4,4,4,4,2,2,0,0)):
    kernel_header(a, name)
    e = a.e
    sWV = 4
    SRD_O, SRD_W, SRD_OUT = 8, 12, 16
    sO, sW, sFill, sRead, sCnt, sT0, sT1, sT2, sBr, sB0, sCol = 20, 21, 22, 23, 24, 25, 26, 27, 28, 29, 30
    sOx, sIss, sCls, sWx, sM0o, sM0w, sLW = 31, 42, 43, 52, 53, 54, 55
    vLane16, vW0, vW1, vRO, vRW, vRO2, vRW2, vT, vT2, vOut = 1, 2, 3, 4, 5, 6, 7, 8, 9, 10
    ACC = 16
    FA = [48, 96]
    FB = [64, 112]
    NV = 144

    e("s_cmp_ge_u32 s2, 256")
    e(f"s_cbranch_scc1 {name}_done")
    if timing:
        ts_begin(a, 40)
    e("s_load_dwordx2 s[32:33], s[0:1], 32")
    e("s_load_dwordx2 s[34:35], s[0:1], 72")
    e("s_load_dwordx2 s[36:37], s[0:1], 80")
    e("s_load_dwordx2 s[38:39], s[0:1], 96")
    e("v_lshrrev_b32 v8, 6, v0")
    e("v_and_b32 v0, 63, v0")
    e(f"v_readfirstlane_b32 s{sWV}, v8")
    e(f"s_and_b32 s{sT0}, s2, 7")
    e(f"s_lshr_b32 s{sT1}, s2, 3")
    e(f"s_lshr_b32 s{sBr}, s{sT0}, 2")
    e(f"s_bfe_u32 s{sT2}, s{sT0}, 0x10001")
    e(f"s_lshl_b32 s{sB0}, s{sT2}, 4")
    e(f"s_lshr_b32 s{sT2}, s{sT1}, 3")
    e(f"s_mov_b32 s{sCls}, s{sT2}")
    e(f"s_lshl_b32 s{sT2}, s{sT2}, 2")
    e(f"s_add_u32 s{sB0}, s{sB0}, s{sT2}")
    e(f"s_and_b32 s{sT2}, s{sT0}, 1")
    e(f"s_lshl_b32 s{sCol}, s{sT2}, 9")
    e(f"s_and_b32 s{sT2}, s{sT1}, 7")
    e(f"s_add_u32 s{sCls}, s{sCls}, s{sT2}")
    e(f"s_and_b32 s{sCls}, s{sCls}, 3")
    e(f"s_lshl_b32 s{sT2}, s{sT2}, 6")
    e(f"s_add_u32 s{sCol}, s{sCol}, s{sT2}")
    e(f"v_lshlrev_b32 v{vLane16}, 4, v0")
    e("s_waitcnt lgkmcnt(0)")
    e(f"s_cmp_ge_u32 s{sWV}, 4")
    e(f"s_cbranch_scc1 {name}_loader")

    e(f"s_mov_b32 s{SRD_OUT}, s36")
    e(f"s_and_b32 s{SRD_OUT+1}, s37, 0xffff")
    e(f"s_mov_b32 s{SRD_OUT+2}, {1024*2048*2}")
    e(f"s_mov_b32 s{SRD_OUT+3}, 0x20000")
    e(f"s_lshr_b32 s{sT0}, s{sWV}, 1")
    e(f"s_lshl_b32 s{sT0}, s{sT0}, 13")
    e(f"v_add_u32 v{vRO}, s{sT0}, v{vLane16}")
    e(f"v_lshrrev_b32 v{vT}, 5, v0")
    e(f"v_lshlrev_b32 v{vT}, 3, v{vT}")
    e(f"v_bfe_u32 v{vT2}, v0, 2, 2")
    e(f"v_add_u32 v{vT}, v{vT}, v{vT2}")
    e(f"v_lshlrev_b32 v{vRW}, 7, v{vT}")
    e(f"v_bfe_u32 v{vT}, v0, 4, 1")
    e(f"v_lshlrev_b32 v{vT}, 1, v{vT}")
    e(f"v_and_b32 v{vT2}, 1, v0")
    e(f"v_add_u32 v{vT}, v{vT}, v{vT2}")
    e(f"s_and_b32 s{sT0}, s{sWV}, 1")
    e(f"s_lshl_b32 s{sT0}, s{sT0}, 2")
    e(f"v_add_u32 v{vT}, s{sT0}, v{vT}")
    e(f"v_bfe_u32 v{vT2}, v0, 3, 1")
    e(f"v_lshlrev_b32 v{vT2}, 2, v{vT2}")
    e(f"v_xor_b32 v{vT}, v{vT}, v{vT2}")
    e(f"v_lshlrev_b32 v{vT}, 4, v{vT}")
    e(f"v_add_u32 v{vRW}, v{vRW}, v{vT}")
    e(f"v_bfe_u32 v{vT2}, v0, 1, 1")
    e(f"v_lshlrev_b32 v{vT2}, 3, v{vT2}")
    e(f"v_add_u32 v{vRW}, v{vRW}, v{vT2}")
    e(f"v_add_u32 v{vRW}, 16384, v{vRW}")
    e(f"v_and_b32 v{vOut}, 31, v0")
    e(f"v_lshlrev_b32 v{vOut}, 12, v{vOut}")
    e(f"v_lshrrev_b32 v{vT}, 5, v0")
    e(f"v_lshlrev_b32 v{vT}, 4, v{vT}")
    e(f"v_add_u32 v{vOut}, v{vOut}, v{vT}")
    e(f"s_and_b32 s{sT0}, s{sWV}, 1")
    e(f"s_lshl_b32 s{sT0}, s{sT0}, 6")
    e(f"v_add_u32 v{vOut}, s{sT0}, v{vOut}")
    e(f"s_mov_b32 s{sRead}, 0")
    e(f"s_mov_b32 s{sCnt}, 0")
    for r in range(32):
        e(f"v_mov_b32 v{ACC+r}, 0")
    for r in range(48):
        e(f"v_mov_b32 v{FA[1]+r}, 0")

    def reads(k):
        L = []
        for u in range(4):
            for half in range(2):
                r = FA[k] + 4*u + 2*half
                L.append(f"ds_read_b64_tr_b16 v[{r}:{r+1}], v{vRW2} offset:{(16*u + 4*half)*128}")
            for t in range(2):
                r = FB[k] + 16*t + 4*u
                L.append(f"ds_read_b128 v[{r}:{r+3}], v{vRO2} offset:{t*4096 + u*1024}")
        return L

    def mfmas(k):
        L = []
        for u in range(4):
            for t in range(2):
                d = ACC + 16*t
                L.append(f"v_mfma_f32_32x32x16_bf16 v[{d}:{d+15}], v[{FA[k]+4*u}:{FA[k]+4*u+3}], v[{FB[k]+16*t+4*u}:{FB[k]+16*t+4*u+3}], v[{d}:{d+15}]")
        return L

    a.label(f"{name}_cloop")
    for k in range(2):
        e("s_barrier")
        e(f"v_add_u32 v{vRO2}, s{sRead}, v{vRO}")
        e(f"v_add_u32 v{vRW2}, s{sRead}, v{vRW}")
        if lazy:
            e("s_waitcnt lgkmcnt(0)")
        fill = reads(k) if "r" not in skip else []
        fill += [f"s_add_u32 s{sRead}, s{sRead}, {STAGE}",
                 f"s_cmp_eq_u32 s{sRead}, {NS*STAGE}",
                 f"s_cselect_b32 s{sRead}, 0, s{sRead}",
                 f"s_add_u32 s{sCnt}, s{sCnt}, 1"]
        main = mfmas(1-k) if "m" not in skip else []
        if main:
            for ln in interleave(main, fill, list(gaps)):
                e(ln)
        else:
            for ln in fill:
                e(ln)
        if not lazy:
            e("s_waitcnt lgkmcnt(0)")
    e(f"s_cmp_lt_u32 s{sCnt}, {NSTAGE}")
    e(f"s_cbranch_scc1 {name}_cloop")
    e("s_waitcnt lgkmcnt(0)")
    for ln in mfmas(1):
        e(ln)
    e(f"s_lshr_b32 s{sT0}, s{sWV}, 1")
    e(f"s_lshl_b32 s{sT0}, s{sT0}, 1")
    e(f"s_add_u32 s{sT0}, s{sT0}, s{sB0}")
    e(f"s_lshl_b32 s{sT0}, s{sT0}, 17")
    e(f"s_lshl_b32 s{sT1}, s{sBr}, 11")
    e(f"s_add_u32 s{sT0}, s{sT0}, s{sT1}")
    e(f"s_lshl_b32 s{sT1}, s{sCol}, 1")
    e(f"s_add_u32 s{sT0}, s{sT0}, s{sT1}")
    e(f"s_add_u32 s{sT1}, s{sT0}, {32*4096}")
    a.nop(8)
    P = FA[0]
    for t in range(2):
        for sg in range(2):
            for i in range(4):
                src = ACC + 16*t + 8*sg + 2*i
                e(f"v_cvt_pk_bf16_f32 v{P + 8*t + 4*sg + i}, v{src}, v{src+1}")
    for t in range(2):
        for sg in range(2):
            r = P + 8*t + 4*sg
            e(f"buffer_store_dwordx4 v[{r}:{r+3}], v{vOut}, s[{SRD_OUT}:{SRD_OUT+3}], s{sT0 if t == 0 else sT1} offen offset:{32*sg}")
    e("s_waitcnt vmcnt(0)")
    e(f"s_branch {name}_fin")

    a.label(f"{name}_loader")
    e(f"s_sub_u32 s{sLW}, s{sWV}, 4")
    e(f"v_lshrrev_b32 v{vT}, 3, v0")
    e(f"v_and_b32 v{vT2}, 7, v0")
    e(f"v_lshlrev_b32 v{vW0}, 1, v{vT}")
    e(f"v_and_b32 v{vW0}, 4, v{vW0}")
    e(f"v_xor_b32 v{vW0}, v{vW0}, v{vT2}")
    e(f"v_lshlrev_b32 v{vW0}, 4, v{vW0}")
    e(f"v_lshlrev_b32 v{vT}, 11, v{vT}")
    e(f"v_add_u32 v{vW0}, v{vW0}, v{vT}")
    e(f"v_add_u32 v{vW1}, {8*2048 - 1024}, v{vW0}")
    e(f"s_cmp_eq_u32 s{sBr}, 0")
    e(f"s_cselect_b32 s{SRD_W}, s32, s34")
    e(f"s_cselect_b32 s{SRD_W+1}, s33, s35")
    e(f"s_and_b32 s{SRD_W+1}, s{SRD_W+1}, 0xffff")
    e(f"s_mov_b32 s{SRD_W+2}, {4096*1024*2}")
    e(f"s_mov_b32 s{SRD_W+3}, 0x20000")
    e(f"s_mov_b32 s{SRD_O}, s38")
    e(f"s_and_b32 s{SRD_O+1}, s39, 0xffff")
    e(f"s_mov_b32 s{SRD_O+2}, {2*8388608}")
    e(f"s_mov_b32 s{SRD_O+3}, 0x20000")
    e(f"s_add_u32 s{sT0}, s{sB0}, s{sLW}")
    e(f"s_lshl_b32 s{sO}, s{sT0}, 18")
    e(f"s_lshl_b32 s{sT0}, s{sBr}, 23")
    e(f"s_add_u32 s{sO}, s{sO}, s{sT0}")
    e(f"s_lshl_b32 s{sW}, s{sLW}, 15")
    e(f"s_lshl_b32 s{sT0}, s{sCol}, 1")
    e(f"s_add_u32 s{sW}, s{sW}, s{sT0}")
    e(f"s_lshl_b32 s{sM0o}, s{sLW}, 12")
    e(f"s_lshl_b32 s{sM0w}, s{sLW}, 11")
    e(f"s_add_u32 s{sM0w}, s{sM0w}, 16384")

    def issue():
        if order == "adv":
            e(f"s_lshr_b32 s{sT1}, s{sIss}, 1")
            e(f"s_add_u32 s{sT2}, s{sT1}, 1")
            e(f"s_sub_u32 s{sT2}, s{sT2}, s{sCls}")
            e(f"s_and_b32 s{sT2}, s{sT2}, 3")
            e(f"s_cmp_eq_u32 s{sT2}, 0")
            e(f"s_cselect_b32 s{sT0}, 2, 0")
            e(f"s_cmp_eq_u32 s{sT2}, 1")
            e(f"s_cselect_b32 s{sT0}, -2, s{sT0}")
            e(f"s_add_u32 s{sT1}, s{sIss}, s{sT0}")
            e(f"s_cmp_lt_u32 s{sT1}, {NSTAGE}")
            e(f"s_cselect_b32 s{sT1}, s{sT1}, s{sIss}")
        else:
            e(f"s_mov_b32 s{sT1}, s{sIss}")
        e(f"s_lshl_b32 s{sT2}, s{sT1}, 12")
        e(f"s_add_u32 s{sOx}, s{sO}, s{sT2}")
        e(f"s_cmp_lt_u32 s{sIss}, {NSTAGE}")
        e(f"s_cselect_b32 s{sOx}, s{sOx}, {OOB:#x}")
        e(f"s_lshl_b32 s{sT1}, s{sT1}, 17")
        e(f"s_add_u32 s{sWx}, s{sW}, s{sT1}")
        e(f"s_add_u32 m0, s{sFill}, s{sM0o}")
        e(f"s_add_u32 s{sIss}, s{sIss}, 1")
        for k in range(4):
            e(f"buffer_load_dwordx4 v{vLane16}, s[{SRD_O}:{SRD_O+3}], s{sOx} offen offset:{k*1024} {pol_o} lds")
        e(f"s_add_u32 m0, s{sFill}, s{sM0w}")
        e(f"s_add_u32 s{sFill}, s{sFill}, {STAGE}")
        e(f"buffer_load_dwordx4 v{vW0}, s[{SRD_W}:{SRD_W+3}], s{sWx} offen {pol_w} lds")
        e(f"buffer_load_dwordx4 v{vW1}, s[{SRD_W}:{SRD_W+3}], s{sWx} offen offset:1024 {pol_w} lds")
        e(f"s_cmp_eq_u32 s{sFill}, {NS*STAGE}")
        e(f"s_cselect_b32 s{sFill}, 0, s{sFill}")

    e(f"s_mov_b32 s{sFill}, 0")
    e(f"s_mov_b32 s{sIss}, 0")
    ahead = NS - 2 if lazy else NS - 1
    for s in range(ahead):
        issue()
    e(f"s_mov_b32 s{sCnt}, 0")
    a.label(f"{name}_lloop")
    e(f"s_waitcnt vmcnt({(ahead-1)*6})")
    e("s_barrier")
    if "d" not in skip:
        issue()
    e(f"s_add_u32 s{sCnt}, s{sCnt}, 1")
    e(f"s_cmp_lt_u32 s{sCnt}, {NSTAGE}")
    e(f"s_cbranch_scc1 {name}_lloop")
    e("s_waitcnt vmcnt(0)")
    a.label(f"{name}_fin")
    if timing:
        ts_end(a, 40, 1, sWV, 44, 48, nwaves=8)
    a.label(f"{name}_done")
    e("s_endpgm")
    return dict(nv=NV, ns=64, lds=NS*STAGE, threads=512)
```

```python
import sys, os
sys.path.insert(0, os.path.dirname(__file__))
from asmlib import *
import oproj

HEADER = open("concat_heads__gqa_block_cached__mha_block_cached__near_ridge.s.ref").read().split("; Override launch")[0]
MAIN = "concat_heads__gqa_block_cached__mha_block_cached__near_ridge_kernel"

def build(which=("attn", "oproj"), **opt):
    a = Asm()
    launches = []
    descs = []
    body = Asm()
    if "attn" in which:
        import attn
        r = attn.gen_attn(body, MAIN, **opt.get("attn", {}))
        launches.append(f"; @launch kernel={MAIN} grid=(512,1,1) block=(256,1,1) lds={r['lds']}")
        descs.append((MAIN, r))
    if "oproj" in which:
        o = dict(opt.get("oproj", {}))
        mod = oproj
        if o.pop("v2", True):
            import oproj2 as mod
        r = mod.gen_oproj(body, "oproj_kernel", **o)
        launches.append(f"; @launch kernel=oproj_kernel grid=(256,1,1) block=({r.get('threads', 256)},1,1) lds={r['lds']}")
        descs.append(("oproj_kernel", r))
    out = HEADER + "\n".join(launches) + "\n" + '.amdgcn_target "amdgcn-amd-amdhsa--gfx950"\n' + body.text()
    d = Asm()
    for name, r in descs:
        kernel_descriptor(d, name, r["nv"], r["ns"])
    return out + d.text()

if __name__ == "__main__":
    which = sys.argv[2].split(",") if len(sys.argv) > 2 else ("attn", "oproj")
    opt = eval(sys.argv[3]) if len(sys.argv) > 3 else {}
    open(sys.argv[1], "w").write(build(which, **opt))
```

```python
from asmlib import *
import math

OOB = 0x80000000
FLAG_OFF = 48 << 20
QWS_OFF = 32 << 20
C_SCALE = math.log2(math.e) / math.sqrt(128.0)

def f32bits(x):
    import struct
    return struct.unpack("<I", struct.pack("<f", x))[0]

sWV = 4
sRole, sH, sI, sB = 5, 6, 7, 3
SRD_X, SRD_W, SRD_K, SRD_V, SRD_O = 8, 12, 16, 20, 24
sT0, sT1, sT2, sT3 = 28, 29, 30, 31
sXoff, sWoff, sWslotF, sWslotR, sXslot, sCnt = 32, 33, 34, 35, 36, 37
sKVoff, sTask, sScale, sM0a, sM0b = 38, 39, 40, 41, 42
sOoff, sT4, sT5 = 43, 44, 45
sTS = 46
sPtr = 48
sStg = 80
sX, sDbg, sBs, sHq, sCls, sSig = 81, 82, 84, 85, 86, 87
sFlag, sNonce = 92, 93
sTbase, sTstep, SRD_T = 94, 95, 96
sLB, sW8, sBarT, sWid = 100, 101, 78, 79
vL16L, vBarA = 30, 29
vNon = 31
SRD_D = 88
NS = 102
MK = [60, 62, 64, 66, 68, 70, 72, 74]
TIMING = [False]
QMARKS = [False]
QSKIP = ['']
QORDER = [None]
LOOK = [2]
SLEEPQ = [8]
XM = [False]
ALT = [False]
SINGLE = [False]
GB = [0]
WT = [0]
INV = [True]
QST = ['sc0 sc1', 'sc0 sc1']
def mark(a, k):
    if TIMING[0]:
        ts_mark(a, MK[k])
vLane16 = 1
vT0, vT1, vT2, vT3 = 2, 3, 4, 5
vKD = 6
vVD = 10
vKR = 11
vVR = 19
vM, vL, vMx, vF = 23, 24, 25, 26
vA0, vA1 = 27, 28
vSt = 29
QOWN, QCUR, S, O, DEF = 32, 64, 96, 160, 224
vWD = DEF
vXD = DEF + 4
vWR = DEF + 8
vXR = DEF + 12
vWR2 = DEF + 16
vXR2 = DEF + 20
vTT, vTD = DEF + 24, DEF + 25
ACC = S
FW = O
FX = QCUR

LDS_RING0, LDS_RING1, LDS_MISC = 0, 32768, 65536
LDS_BYTES = 81920

def bar(a):
    e = a.e
    if not SINGLE[0]:
        e("s_barrier")
        return
    GB[0] += 1
    L = f"gb{GB[0]}"
    e(f"s_add_u32 s{sBarT}, s{sBarT}, 1")
    e("s_waitcnt lgkmcnt(0)")
    e(f"v_mov_b32 v{vSt+2-0 if False else vT3}, 1")
    e("s_mov_b64 exec, 1")
    e(f"ds_add_u32 v{vBarA}, v{vT3}")
    e("s_mov_b64 exec, -1")
    a.label(L)
    e(f"ds_read_b32 v{vT3}, v{vBarA}")
    e("s_waitcnt lgkmcnt(0)")
    e(f"v_readfirstlane_b32 s{sT3}, v{vT3}")
    e(f"s_lshl_b32 s{sT2}, s{sBarT}, 2")
    a.nop(2)
    e(f"s_cmp_ge_u32 s{sT3}, s{sT2}")
    e(f"s_cbranch_scc1 {L}_ok")
    e("s_sleep 1")
    e(f"s_branch {L}")
    a.label(L + "_ok")


def mfma(e, d, a, b, c=None):
    cc = f"v[{d}:{d+15}]" if c is None else c
    e(f"v_mfma_f32_32x32x16_bf16 v[{d}:{d+15}], v[{a}:{a+3}], v[{b}:{b+3}], {cc}")


def gen_prologue(a, name, timing):
    e = a.e
    e(f"s_cmp_ge_u32 s2, {256 if SINGLE[0] else 512}")
    e(f"s_cbranch_scc1 {name}_done")
    if timing:
        ts_begin(a, sTS)
    e(f"s_load_dwordx8 s[{sPtr}:{sPtr+7}], s[0:1], 0")
    e(f"s_load_dwordx8 s[{sPtr+8}:{sPtr+15}], s[0:1], 40")
    e(f"s_load_dwordx2 s[{sPtr+16}:{sPtr+17}], s[0:1], 96")
    e(f"s_load_dwordx2 s[{sPtr+18}:{sPtr+19}], s[0:1], 88")
    e(f"v_lshrrev_b32 v{vT0}, 6, v0")
    e("v_and_b32 v0, 63, v0")
    e(f"v_readfirstlane_b32 s{sWid}, v{vT0}")
    a.nop(3)
    if SINGLE[0]:
        e(f"s_lshr_b32 s{sRole}, s{sWid}, 2")
        e(f"s_and_b32 s{sWV}, s{sWid}, 3")
        e(f"s_mul_i32 s{sLB}, s{sRole}, {LDS_BYTES}")
    else:
        e(f"s_mov_b32 s{sWV}, s{sWid}")
        e(f"s_lshr_b32 s{sRole}, s2, 8")
        e(f"s_mov_b32 s{sLB}, 0")
    e(f"s_lshl_b32 s{sW8}, s{sWV}, 13")
    e(f"s_and_b32 s{sT0}, s2, 7")
    e(f"s_bfe_u32 s{sT1}, s2, 0x50003")
    e(f"s_lshr_b32 s{sH}, s{sT0}, 1")
    e(f"s_lshl_b32 s{sH}, s{sH}, 3")
    e(f"s_and_b32 s{sT2}, s{sT1}, 7")
    e(f"s_add_u32 s{sH}, s{sH}, s{sT2}")
    e(f"s_and_b32 s{sI}, s{sT0}, 1")
    e(f"s_lshl_b32 s{sI}, s{sI}, 2")
    e(f"s_lshr_b32 s{sT2}, s{sT1}, 3")
    e(f"s_add_u32 s{sI}, s{sI}, s{sT2}")
    e(f"s_mov_b32 s{sX}, s{sT0}")
    e(f"s_add_u32 s{sCls}, s{sH}, s{sI}")
    e(f"s_and_b32 s{sCls}, s{sCls}, 3")
    e(f"v_lshlrev_b32 v{vLane16}, 4, v0")
    e(f"v_add_u32 v{vL16L}, s{sLB}, v{vLane16}")
    e(f"s_add_u32 s{sT2}, s{sLB}, {LDS_MISC + 12288}")
    e(f"v_mov_b32 v{vBarA}, s{sT2}")
    e(f"s_mov_b32 s{sBarT}, 0")
    e(f"v_lshrrev_b32 v{vT0}, 4, v0")
    e(f"v_and_b32 v{vT1}, 15, v0")
    e(f"v_lshlrev_b32 v{vT2}, 8, v{vT0}")
    for jj in range(4):
        e(f"v_add_u32 v{vT3}, {4*jj}, v{vT0}")
        e(f"v_xor_b32 v{vT3}, v{vT3}, v{vT1}")
        e(f"v_lshlrev_b32 v{vT3}, 4, v{vT3}")
        e(f"v_add_u32 v{vKD+jj}, v{vT3}, v{vT2}")
    e(f"v_lshlrev_b32 v{vT3}, 2, v{vT0}")
    e(f"v_xor_b32 v{vT3}, v{vT3}, v{vT1}")
    e(f"v_lshlrev_b32 v{vT3}, 4, v{vT3}")
    e(f"v_add_u32 v{vVD}, v{vT3}, v{vT2}")
    e(f"v_lshlrev_b32 v{vT2}, 13, v{vT0}")
    e(f"v_add_u32 v{vWD}, v{vT3}, v{vT2}")
    for jj in range(1, 4):
        e(f"v_add_u32 v{vWD+jj}, {jj*(4*8192-1024)}, v{vWD}")
    e(f"v_lshrrev_b32 v{vT1}, 3, v0")
    e(f"v_and_b32 v{vT2}, 7, v0")
    for jj in range(4):
        e(f"v_add_u32 v{vT3}, {4*jj}, v{vT0}")
        e(f"v_and_b32 v{vT3}, 7, v{vT3}")
        e(f"v_xor_b32 v{vT3}, v{vT3}, v{vT2}")
        e(f"v_lshlrev_b32 v{vT3}, 4, v{vT3}")
        e(f"v_lshlrev_b32 v{vXD+jj}, 11, v{vT1}")
        e(f"v_add_u32 v{vXD+jj}, v{vXD+jj}, v{vT3}")
        c = 8*jj*2048 - jj*1024
        if c:
            e(f"v_add_u32 v{vXD+jj}, {c}, v{vXD+jj}")
    e("s_waitcnt lgkmcnt(0)")
    e(f"s_cmp_eq_u32 s{sRole}, 0")
    for k, srd in enumerate((SRD_X, SRD_K, SRD_V, SRD_W)):
        e(f"s_cselect_b32 s{srd}, s{sPtr+8+2*k}, s{sPtr+2*k}")
        e(f"s_cselect_b32 s{srd+1}, s{sPtr+9+2*k}, s{sPtr+1+2*k}")
    e(f"s_mov_b32 s{sT0}, {32*32*131072}")
    e(f"s_cselect_b32 s{SRD_K+2}, s{sT0}, {32*4*131072}")
    e(f"s_mov_b32 s{SRD_V+2}, s{SRD_K+2}")
    for srd in (SRD_X, SRD_K, SRD_V, SRD_W):
        e(f"s_and_b32 s{srd+1}, s{srd+1}, 0xffff")
        e(f"s_mov_b32 s{srd+3}, 0x20000")
    e(f"s_mov_b32 s{SRD_X+2}, {1024*1024*2}")
    e(f"s_mov_b32 s{SRD_W+2}, {1024*4096*2}")
    e(f"s_mov_b32 s{sDbg}, s{sPtr+18}")
    e(f"s_mov_b32 s{sDbg+1}, s{sPtr+19}")
    e(f"s_mov_b32 s{SRD_D}, s{sPtr+18}")
    e(f"s_and_b32 s{SRD_D+1}, s{sPtr+19}, 0xffff")
    e(f"s_mov_b32 s{SRD_D+2}, 256")
    e(f"s_mov_b32 s{SRD_D+3}, 0x20000")
    e(f"s_mov_b32 s{SRD_O}, s{sPtr+16}")
    e(f"s_and_b32 s{SRD_O+1}, s{sPtr+17}, 0xffff")
    e(f"s_mov_b32 s{SRD_O+2}, {64 << 20}")
    e(f"s_mov_b32 s{SRD_O+3}, 0x20000")
    e(f"s_lshl_b32 s{sT0}, s{sWV}, 3")
    e(f"s_add_u32 s{sB}, s{sT0}, s{sI}")
    e(f"s_lshl_b32 s{sXoff}, s{sB}, 16")
    e(f"s_lshl_b32 s{sWoff}, s{sWV}, 17")
    e(f"s_lshl_b32 s{sT0}, s{sH}, 8")
    e(f"s_add_u32 s{sWoff}, s{sWoff}, s{sT0}")
    e(f"v_and_b32 v{vT0}, 31, v0")
    e(f"v_lshrrev_b32 v{vT1}, 5, v0")
    e(f"v_bfe_u32 v{vT2}, v0, 1, 3")
    e(f"v_xor_b32 v{vT2}, v{vT2}, v{vT1}")
    e(f"v_lshlrev_b32 v{vT2}, 4, v{vT2}")
    e(f"v_lshlrev_b32 v{vT3}, 7, v{vT0}")
    e(f"v_add_u32 v{vXR}, v{vT2}, v{vT3}")
    e(f"s_add_u32 s{sT0}, s{sW8}, {LDS_RING1}")
    e(f"s_add_u32 s{sT0}, s{sT0}, s{sLB}")
    e(f"v_add_u32 v{vXR}, s{sT0}, v{vXR}")
    for u in range(1, 4):
        e(f"v_xor_b32 v{vXR+u}, {u*32}, v{vXR}")
    e(f"v_and_b32 v{vT2}, 15, v0")
    e(f"v_xor_b32 v{vT2}, v{vT2}, v{vT1}")
    e(f"v_lshlrev_b32 v{vT2}, 4, v{vT2}")
    e(f"v_lshlrev_b32 v{vT3}, 8, v{vT0}")
    e(f"v_add_u32 v{vKR}, v{vT2}, v{vT3}")
    e(f"s_add_u32 s{sT0}, s{sW8}, s{sLB}")
    e(f"v_add_u32 v{vKR}, s{sT0}, v{vKR}")
    for s in range(1, 8):
        e(f"v_xor_b32 v{vKR+s}, {s*32}, v{vKR}")
    e(f"v_bfe_u32 v{vT0}, v0, 2, 2")
    e(f"v_lshlrev_b32 v{vT2}, 6, v{vT0}")
    e(f"v_bfe_u32 v{vT3}, v0, 4, 1")
    e(f"v_lshlrev_b32 v{vT3}, 5, v{vT3}")
    e(f"v_add_u32 v{vT2}, v{vT2}, v{vT3}")
    e(f"v_and_b32 v{vT3}, 1, v0")
    e(f"v_lshlrev_b32 v{vT3}, 4, v{vT3}")
    e(f"v_add_u32 v{vT2}, v{vT2}, v{vT3}")
    e(f"v_bfe_u32 v{vT3}, v0, 1, 1")
    e(f"v_lshlrev_b32 v{vT3}, 3, v{vT3}")
    e(f"v_add_u32 v{vT2}, v{vT2}, v{vT3}")
    e(f"v_lshlrev_b32 v{vT3}, 3, v{vT1}")
    e(f"v_add_u32 v{vT3}, v{vT3}, v{vT0}")
    e(f"v_lshlrev_b32 v{vT3}, 8, v{vT3}")
    e(f"v_add_u32 v{vWR}, v{vT2}, v{vT3}")
    e(f"v_add_u32 v{vWR}, s{sLB}, v{vWR}")
    e(f"v_lshlrev_b32 v{vT3}, 2, v{vT1}")
    e(f"v_add_u32 v{vT3}, v{vT3}, v{vT0}")
    e(f"v_lshlrev_b32 v{vT3}, 8, v{vT3}")
    e(f"v_add_u32 v{vVR}, v{vT2}, v{vT3}")
    for t in range(1, 4):
        e(f"v_xor_b32 v{vWR+t}, {t*64}, v{vWR}")
    e(f"s_add_u32 s{sT0}, s{sW8}, s{sLB}")
    e(f"v_add_u32 v{vT2}, s{sT0}, v{vVR}")
    for k in range(4):
        e(f"s_add_u32 s{sT0}, s{sWV}, {k}")
        e(f"s_and_b32 s{sT0}, s{sT0}, 3")
        e(f"s_lshl_b32 s{sT0}, s{sT0}, 6")
        e(f"v_xor_b32 v{vVR+k}, s{sT0}, v{vT2}")
    e(f"s_add_u32 s{sM0a}, s{sW8}, s{sLB}")
    e(f"s_add_u32 s{sM0b}, s{sM0a}, {LDS_RING1}")
    e(f"s_mov_b32 s{sScale}, {f32bits(C_SCALE):#x}")


def gen_qproj(a, name, pol_x, pol_w, after_barrier15=None, after_x15=None):
    e = a.e
    WSLOT = [LDS_MISC, 0, 16384]

    def wt_setup():
        e(f"s_and_b32 s{sT2}, s{sH}, 7")
        e(f"v_lshrrev_b32 v{vT0}, 4, v0")
        e(f"v_lshlrev_b32 v{vT0}, 13, v{vT0}")
        e(f"v_and_b32 v{vT1}, 15, v0")
        e(f"v_lshlrev_b32 v{vT1}, 7, v{vT1}")
        e(f"v_add_u32 v{vT0}, v{vT0}, v{vT1}")
        e(f"s_lshl_b32 s{sT0}, s{sT2}, 6")
        e(f"v_add_u32 v{vT1}, s{sT0}, v0")
        e(f"v_bfe_u32 v{vT2}, v{vT1}, 5, 2")
        e(f"v_lshrrev_b32 v{vT3}, 7, v{vT1}")
        e(f"v_lshlrev_b32 v{vT3}, 3, v{vT3}")
        e(f"v_add_u32 v{vT2}, v{vT2}, v{vT3}")
        e(f"v_lshlrev_b32 v{vT2}, 5, v{vT2}")
        e(f"v_and_b32 v{vT1}, 31, v{vT1}")
        e(f"v_add_u32 v{vT1}, v{vT1}, v{vT2}")
        e(f"v_lshlrev_b32 v{vT1}, 11, v{vT1}")
        e(f"s_cmp_lt_u32 s{sWV}, 2")
        e(f"s_cselect_b64 vcc, -1, 0")
        e(f"v_cndmask_b32 v{vTT}, v{vT1}, v{vT0}, vcc")
        for k in range(4):
            e(f"s_cselect_b32 s{SRD_T+k}, s{SRD_W+k}, s{SRD_X+k}")
        e(f"s_mov_b32 s{SRD_T+3}, 0x20000")
        e(f"s_lshl_b32 s{sT0}, s{sT2}, 3")
        e(f"s_lshl_b32 s{sT1}, s{sWV}, 2")
        e(f"s_add_u32 s{sT0}, s{sT0}, s{sT1}")
        e(f"s_lshl_b32 s{sT0}, s{sT0}, 13")
        e(f"s_lshr_b32 s{sT1}, s{sX}, 1")
        e(f"s_lshl_b32 s{sT1}, s{sT1}, 11")
        e(f"s_add_u32 s{sT0}, s{sT0}, s{sT1}")
        e(f"s_and_b32 s{sT1}, s{sX}, 1")
        e(f"s_lshl_b32 s{sT1}, s{sT1}, 18")
        e(f"s_cmp_lt_u32 s{sWV}, 2")
        e(f"s_cselect_b32 s{sTbase}, s{sT0}, s{sT1}")
        e(f"s_mov_b32 s{sT0}, {64*8192}")
        e(f"s_cselect_b32 s{sTstep}, s{sT0}, 128")
        e(f"s_cmp_eq_u32 s{sWV}, 3")
        e(f"s_cselect_b32 s{sTbase}, {OOB:#x}, s{sTbase}")
        e(f"s_cselect_b32 s{sTstep}, 0, s{sTstep}")

    def wt_issue(tau_reg_or_imm):
        if isinstance(tau_reg_or_imm, int):
            e(f"s_mov_b32 s{sT2}, {tau_reg_or_imm}")
        else:
            e(f"s_add_u32 s{sT2}, s{sCnt}, {WT[0]}")
        e(f"s_mul_i32 s{sT3}, s{sT2}, s{sTstep}")
        e(f"s_add_u32 s{sT3}, s{sT3}, s{sTbase}")
        e(f"s_and_b32 s{sT0}, s{sT2}, 3")
        e(f"s_cmp_eq_u32 s{sT0}, s{sCls}")
        e(f"s_cselect_b32 s{sT3}, s{sT3}, {OOB:#x}")
        e(f"s_cmp_lt_u32 s{sT2}, 16")
        e(f"s_cselect_b32 s{sT3}, s{sT3}, {OOB:#x}")
        e(f"buffer_load_dword v{vTD}, v{vTT}, s[{SRD_T}:{SRD_T+3}], s{sT3} offen {pol_w}")

    def sigma():
        if QORDER[0] == "adv":
            e(f"s_add_u32 s{sT1}, s{sStg}, 1")
            e(f"s_sub_u32 s{sT1}, s{sT1}, s{sCls}")
            e(f"s_and_b32 s{sT1}, s{sT1}, 3")
            e(f"s_cmp_eq_u32 s{sT1}, 0")
            e(f"s_cselect_b32 s{sT0}, 1, 0")
            e(f"s_cmp_eq_u32 s{sT1}, 1")
            e(f"s_cselect_b32 s{sT0}, -1, s{sT0}")
            e(f"s_add_u32 s{sSig}, s{sStg}, s{sT0}")
            e(f"s_cmp_lt_u32 s{sSig}, 16")
            e(f"s_cselect_b32 s{sSig}, s{sSig}, s{sStg}")
        else:
            e(f"s_mov_b32 s{sSig}, s{sStg}")

    def issue_w():
        sigma()
        e(f"s_lshl_b32 s{sT0}, s{sWV}, 12")
        e(f"s_add_u32 s{sT0}, s{sT0}, s{sLB}")
        e(f"s_add_u32 m0, s{sWslotF}, s{sT0}")
        e(f"s_lshl_b32 s{sT1}, s{sSig}, 19")
        e(f"s_add_u32 s{sT1}, s{sT1}, s{sWoff}")
        for jj in range(4):
            e(f"buffer_load_dwordx4 v{vWD+jj}, s[{SRD_W}:{SRD_W+3}], s{sT1} offen offset:{jj*1024} {pol_w} lds")
        e(f"s_cmp_eq_u32 s{sWslotF}, {LDS_MISC}")
        e(f"s_cselect_b32 s{sT0}, 0, {LDS_MISC}")
        e(f"s_cmp_eq_u32 s{sWslotF}, 0")
        e(f"s_cselect_b32 s{sWslotF}, 16384, s{sT0}")

    def issue_x(par):
        e(f"s_mov_b32 s{sT0}, s{sM0b}")
        if par is not None:
            e(f"s_add_u32 m0, s{sT0}, {par*4096}")
        else:
            e(f"s_add_u32 m0, s{sT0}, s{sXslot}")
        e(f"s_lshl_b32 s{sT1}, s{sSig}, 7")
        e(f"s_add_u32 s{sT1}, s{sT1}, s{sXoff}")
        for jj in range(4):
            e(f"buffer_load_dwordx4 v{vXD+jj}, s[{SRD_X}:{SRD_X+3}], s{sT1} offen offset:{jj*1024} {pol_x} lds")
        e(f"s_add_u32 s{sStg}, s{sStg}, 1")

    class Cap:
        def __init__(self): self.L = []
        def __call__(self, t=""): self.L.append(t)

    def capture(fn):
        nonlocal e
        keep = e
        c = Cap(); e = c
        fn()
        e = keep
        return c.L

    def stage(first, issue, hook_w=None, hook_x=None, last=False):
        nwait = 9 if (WT[0] and not first) else 8
        e(f"s_waitcnt vmcnt({nwait})" if not last else "s_waitcnt vmcnt(0)")
        e("s_barrier")
        for t in range(4):
            e(f"v_add_u32 v{vWR2+t}, s{sWslotR}, v{vWR+t}")
        for u in range(4):
            e(f"v_add_u32 v{vXR2+u}, s{sXslot}, v{vXR+u}")
        if 'd' in QSKIP[0]:
            issue = False
        def rx():
            if 'r' in QSKIP[0]: return []
            return [f"ds_read_b128 v[{FX+4*u}:{FX+4*u+3}], v{vXR2+u}" for u in range(4)]
        def rw(u):
            L = []
            if 'r' in QSKIP[0]: return L
            for t in range(4):
                for half in range(2):
                    r = FW + 16*u + 4*t + 2*half
                    L.append(f"ds_read_b64_tr_b16 v[{r}:{r+1}], v{vWR2+t} offset:{(16*u+4*half)*256}")
            return L
        def mm(u):
            L = []
            for t in range(4):
                c = "0" if (first and u == 0) else f"v[{ACC+16*t}:{ACC+16*t+15}]"
                L.append(f"v_mfma_f32_32x32x16_bf16 v[{ACC+16*t}:{ACC+16*t+15}], v[{FW+16*u+4*t}:{FW+16*u+4*t+3}], v[{FX+4*u}:{FX+4*u+3}], {c}" if 'm' not in QSKIP[0] else "s_nop 0")
            return L
        for ln in rx() + rw(0):
            e(ln)
        if issue:
            issue_w()
            if WT[0]:
                wt_issue("cnt")
        if hook_w:
            hook_w()
        e("s_waitcnt lgkmcnt(0)")
        fill = rw(1) + rw(2)
        k = 0
        for m in mm(0):
            e(m)
            for ln in fill[k:k+4]:
                e(ln)
            k += 4
        xl = capture(lambda: issue_x(None)) if issue else []
        e("s_waitcnt lgkmcnt(8)")
        fill = rw(3)
        k = 0
        for m in mm(1):
            e(m)
            for ln in fill[k:k+2]:
                e(ln)
            k += 2
        e("s_waitcnt lgkmcnt(8)")
        k = 0
        per = (len(xl) + 3) // 4
        for m in mm(2):
            e(m)
            for ln in xl[k:k+per]:
                e(ln)
            k += per
        if hook_x:
            hook_x()
        e("s_waitcnt lgkmcnt(0)")
        adv = [f"s_cmp_eq_u32 s{sWslotR}, {LDS_MISC}",
               f"s_cselect_b32 s{sT0}, 0, {LDS_MISC}",
               f"s_cmp_eq_u32 s{sWslotR}, 0",
               f"s_cselect_b32 s{sWslotR}, 16384, s{sT0}",
               f"s_xor_b32 s{sXslot}, s{sXslot}, 4096"]
        k = 0
        for m in mm(3):
            e(m)
            for ln in adv[k:k+2]:
                e(ln)
            k += 2

    e(f"s_mov_b32 s{sWslotF}, {LDS_MISC}")
    e(f"s_mov_b32 s{sWslotR}, {LDS_MISC}")
    e(f"s_mov_b32 s{sXslot}, 0")
    e(f"s_mov_b32 s{sStg}, 0")
    e(f"s_mov_b32 s{sCnt}, 0")
    if WT[0]:
        wt_setup()
        for tau in range(WT[0]):
            wt_issue(tau)
    issue_w(); issue_x(0)
    issue_w(); issue_x(1)
    stage(True, True)
    e(f"s_mov_b32 s{sCnt}, 1")
    a.label(f"{name}_qloop")
    if QMARKS[0]:
        ts_mark(a, 76)
        for k, cnt in enumerate((1, 2, 4, 8, 12)):
            e(f"s_cmp_eq_u32 s{sCnt}, {cnt}")
            e(f"s_cselect_b32 s{MK[2+k]}, s76, s{MK[2+k]}")
    if ALT[0]:
        e(f"s_add_u32 s{sT0}, s{sCnt}, s{sRole}")
        e(f"s_bitcmp1_b32 s{sT0}, 0")
        e(f"s_cbranch_scc1 {name}_p1")
        e("s_setprio 0")
        e(f"s_branch {name}_p2")
        a.label(f"{name}_p1")
        e("s_setprio 1")
        a.label(f"{name}_p2")
    stage(False, True)
    e(f"s_add_u32 s{sCnt}, s{sCnt}, 1")
    e(f"s_cmp_lt_u32 s{sCnt}, 14")
    e(f"s_cbranch_scc1 {name}_qloop")
    stage(False, False)
    stage(False, False, hook_w=after_barrier15, hook_x=after_x15, last=True)
    a.nop(12)
    for s in range(8):
        t, sg = s >> 1, s & 1
        for i in range(4):
            src = ACC + 16*t + 8*sg + 2*i
            e(f"v_cvt_pk_bf16_f32 v{QOWN+4*s+i}, v{src}, v{src+1}")


def issue_tile(e, srd, slot_reg, off_reg, imm, is_k, pol):
    e(f"s_mov_b32 m0, s{slot_reg}")
    if imm:
        e(f"s_add_u32 s{sT0}, s{off_reg}, {imm}")
    else:
        e(f"s_mov_b32 s{sT0}, s{off_reg}")
    for half in range(2):
        for jj in range(4):
            v = vKD + jj if is_k else vVD
            e(f"buffer_load_dwordx4 v{v}, s[{srd}:{srd+3}], s{sT0} offen offset:{jj*1024} {pol} lds")
        if half == 0:
            e(f"s_add_u32 m0, s{slot_reg}, 4096")
            e(f"s_add_u32 s{sT0}, s{sT0}, 4096")


def k_tile(e, T, slot, hook, early=None):
    FK = O + 32*(T & 1)
    if early:
        e("s_waitcnt vmcnt(0)")
        early()
    else:
        e("s_waitcnt vmcnt(8)")
    for s in range(8):
        e(f"ds_read_b128 v[{FK+4*s}:{FK+4*s+3}], v{vKR+s} offset:{slot*LDS_RING1}")
    e("s_waitcnt lgkmcnt(0)")
    hook()
    for s in range(8):
        mfma(e, S+16*T, FK+4*s, QCUR+4*s, "0" if s == 0 else None)


def v_tile(e, T, slot, hook, early=None):
    FV = S + 32
    if early:
        e("s_waitcnt vmcnt(0)")
        early()
    else:
        e("s_waitcnt vmcnt(8)")
    for k in range(4):
        for u in range(2):
            for half in range(2):
                r = FV + 8*k + 4*u + 2*half
                e(f"ds_read_b64_tr_b16 v[{r}:{r+1}], v{vVR+k} offset:{slot*LDS_RING1 + (16*u+8*half)*256}")
    e("s_waitcnt lgkmcnt(0)")
    hook()
    for u in range(2):
        for k in range(4):
            mfma(e, O+16*k, FV+8*k+4*u, S+8*T+4*u, "0" if (T == 0 and u == 0) else None)


def softmax(a, nreg=64):
    e = a.e
    e(f"v_max3_f32 v{vMx}, v{S}, v{S+1}, v{S+2}")
    e(f"v_max3_f32 v{vT0}, v{S+3}, v{S+4}, v{S+5}")
    k = 6
    tgt = [vMx, vT0]
    n = 0
    while k + 1 < nreg:
        e(f"v_max3_f32 v{tgt[n&1]}, v{tgt[n&1]}, v{S+k}, v{S+k+1}")
        k += 2; n += 1
    e(f"v_max_f32 v{vMx}, v{vMx}, v{vT0}")
    e(f"v_mov_b32 v{vT0}, v{vMx}")
    a.nop(2)
    e(f"v_permlane32_swap_b32 v{vMx}, v{vT0}")
    a.nop(1)
    e(f"v_max_f32 v{vM}, v{vMx}, v{vT0}")
    e(f"v_mul_f32 v{vF}, s{sScale}, v{vM}")
    for k in range(nreg):
        e(f"v_fma_f32 v{S+k}, v{S+k}, s{sScale}, -v{vF}")
    for k in range(nreg):
        e(f"v_exp_f32 v{S+k}, v{S+k}")
    e(f"v_add_f32 v{vL}, v{S}, v{S+1}")
    e(f"v_add_f32 v{vT0}, v{S+2}, v{S+3}")
    for k in range(4, nreg, 2):
        e(f"v_add_f32 v{vL}, v{vL}, v{S+k}")
        e(f"v_add_f32 v{vT0}, v{vT0}, v{S+k+1}")
    for k in range(nreg//2):
        e(f"v_cvt_pk_bf16_f32 v{S+k}, v{S+2*k}, v{S+2*k+1}")
    e(f"v_add_f32 v{vL}, v{vL}, v{vT0}")
    e(f"v_mov_b32 v{vT0}, v{vL}")
    a.nop(2)
    e(f"v_permlane32_swap_b32 v{vL}, v{vT0}")
    a.nop(1)
    e(f"v_add_f32 v{vL}, v{vL}, v{vT0}")


def q_broadcast(a, name, tag, owner_reg_or_imm):
    e = a.e
    e(f"s_cmp_lg_u32 s{sWV}, {owner_reg_or_imm}")
    e(f"s_cbranch_scc1 {name}_{tag}_skip")
    e(f"v_add_u32 v{vA0}, {LDS_MISC}, v{vL16L}")
    for s in range(8):
        e(f"ds_write_b128 v{vA0}, v[{QOWN+4*s}:{QOWN+4*s+3}] offset:{s*1024}")
    e("s_waitcnt lgkmcnt(0)")
    a.label(f"{name}_{tag}_skip")
    bar(a)
    e(f"v_add_u32 v{vA0}, {LDS_MISC}, v{vL16L}")
    for s in range(8):
        e(f"ds_read_b128 v[{QCUR+4*s}:{QCUR+4*s+3}], v{vA0} offset:{s*1024}")
    e("s_waitcnt lgkmcnt(0)")


def gen_m1(a, name, pol):
    e = a.e
    sNext = sT5
    G = S + 32
    a.label(f"{name}_task")
    e(f"s_add_u32 s{sNext}, s{sKVoff}, s{sOoff}")
    e(f"s_cmp_lt_u32 s{sTask}, 3")
    e(f"s_cselect_b32 s{sNext}, s{sNext}, {OOB:#x}")
    slotreg = [sM0a, sM0b]
    none = lambda: None
    for T in range(4):
        if LOOK[0] == 2:
            if T < 2:
                hook = lambda T=T: issue_tile(e, SRD_K, slotreg[T & 1], sKVoff, (T+2)*32768, True, pol)
            else:
                hook = lambda T=T: issue_tile(e, SRD_V, slotreg[T & 1], sKVoff, (T-2)*32768, False, pol)
            k_tile(e, T, T & 1, hook)
        else:
            if T < 3:
                early = lambda T=T: issue_tile(e, SRD_K, slotreg[(T+1) & 1], sKVoff, (T+1)*32768, True, pol)
            else:
                early = lambda: issue_tile(e, SRD_V, sM0a, sKVoff, 0, False, pol)
            k_tile(e, T, T & 1, none, early)
    softmax(a)
    e(f"s_cmp_ge_u32 s{sTask}, 3")
    e(f"s_cbranch_scc1 {name}_noq")
    e(f"s_add_u32 s{sT4}, s{sTask}, 1")
    q_broadcast(a, name, "qn", f"s{sT4}")
    a.label(f"{name}_noq")
    for T in range(4):
        if LOOK[0] == 2:
            if T < 2:
                hook = lambda T=T: issue_tile(e, SRD_V, slotreg[T & 1], sKVoff, (T+2)*32768, False, pol)
            elif T == 2:
                hook = lambda: issue_tile(e, SRD_K, sM0a, sNext, 0, True, pol)
            else:
                hook = lambda: None
            v_tile(e, T, T & 1, hook)
        else:
            if T < 3:
                early = lambda T=T: issue_tile(e, SRD_V, slotreg[(T+1) & 1], sKVoff, (T+1)*32768, False, pol)
            else:
                early = lambda: issue_tile(e, SRD_K, sM0a, sNext, 0, True, pol)
            v_tile(e, T, T & 1, none, early)
    e(f"v_and_b32 v{vT0}, 31, v0")
    e(f"v_lshlrev_b32 v{vT0}, 3, v{vT0}")
    e(f"v_add_u32 v{vT0}, {LDS_MISC + 8192}, v{vT0}")
    e(f"v_add_u32 v{vT0}, s{sLB}, v{vT0}")
    e(f"s_lshl_b32 s{sT0}, s{sWV}, 8")
    e(f"v_add_u32 v{vA0}, s{sT0}, v{vT0}")
    e(f"v_add_u32 v{vA1}, s{sM0b}, v{vLane16}")
    e(f"ds_write_b32 v{vA0}, v{vM}")
    e(f"ds_write_b32 v{vA0}, v{vL} offset:4")
    a.nop(10)
    for k in (1, 2):
        for j in range(4):
            e(f"ds_write_b128 v{vA1}, v[{O+16*k+4*j}:{O+16*k+4*j+3}] offset:{(k-1)*4096 + j*1024}")
    e("s_waitcnt lgkmcnt(0)")
    bar(a)
    for k in range(4):
        e(f"s_sub_u32 s{sT0}, s{sWV}, {k}")
        e(f"s_and_b32 s{sT0}, s{sT0}, 3")
        e(f"s_lshl_b32 s{sT0}, s{sT0}, 8")
        e(f"v_add_u32 v{vA0}, s{sT0}, v{vT0}")
        e(f"ds_read_b64 v[{G+2*k}:{G+2*k+1}], v{vA0}")
    TI = S
    for k in (1, 2):
        e(f"s_sub_u32 s{sT0}, s{sWV}, {k}")
        e(f"s_and_b32 s{sT0}, s{sT0}, 3")
        e(f"s_lshl_b32 s{sT0}, s{sT0}, 13")
        e(f"s_add_u32 s{sT0}, s{sT0}, {LDS_RING1 + (k-1)*4096}")
        e(f"v_add_u32 v{vA0}, s{sT0}, v{vL16L}")
        for j in range(4):
            e(f"ds_read_b128 v[{TI+16*(k-1)+4*j}:{TI+16*(k-1)+4*j+3}], v{vA0} offset:{j*1024}")
    e("s_waitcnt lgkmcnt(8)")
    e(f"v_max3_f32 v{vMx}, v{G}, v{G+2}, v{G+4}")
    e(f"v_max_f32 v{vMx}, v{vMx}, v{G+6}")
    e(f"v_mul_f32 v{vMx}, s{sScale}, v{vMx}")
    for k in range(4):
        e(f"v_fma_f32 v{G+2*k}, v{G+2*k}, s{sScale}, -v{vMx}")
    for k in range(4):
        e(f"v_exp_f32 v{G+2*k}, v{G+2*k}")
    a.nop(1)
    e(f"v_mul_f32 v{vF}, v{G}, v{G+1}")
    for k in range(1, 4):
        e(f"v_fma_f32 v{vF}, v{G+2*k}, v{G+2*k+1}, v{vF}")
    e(f"v_rcp_f32 v{vF}, v{vF}")
    a.nop(1)
    for k in range(4):
        e(f"v_mul_f32 v{G+2*k}, v{G+2*k}, v{vF}")
    for j in range(16):
        e(f"v_mul_f32 v{O+j}, v{O+j}, v{G}")
    e("s_waitcnt lgkmcnt(0)")
    for k in (1, 2):
        for j in range(16):
            e(f"v_fma_f32 v{O+j}, v{TI+16*(k-1)+j}, v{G+2*k}, v{O+j}")
    bar(a)
    for j in range(4):
        e(f"ds_write_b128 v{vA1}, v[{O+48+4*j}:{O+48+4*j+3}] offset:{j*1024}")
    e("s_waitcnt lgkmcnt(0)")
    bar(a)
    e(f"s_sub_u32 s{sT0}, s{sWV}, 3")
    e(f"s_and_b32 s{sT0}, s{sT0}, 3")
    e(f"s_lshl_b32 s{sT0}, s{sT0}, 13")
    e(f"s_add_u32 s{sT0}, s{sT0}, {LDS_RING1}")
    e(f"v_add_u32 v{vA0}, s{sT0}, v{vL16L}")
    for j in range(4):
        e(f"ds_read_b128 v[{TI+4*j}:{TI+4*j+3}], v{vA0} offset:{j*1024}")
    e("s_waitcnt lgkmcnt(0)")
    bar(a)
    if LOOK[0] == 2:
        issue_tile(e, SRD_K, sM0b, sNext, 32768, True, pol)
    for j in range(16):
        e(f"v_fma_f32 v{O+j}, v{TI+j}, v{G+6}, v{O+j}")
    for k in range(24):
        e(f"v_mov_b32 v{DEF+k}, v{DEF+8+k}")
    for j in range(8):
        e(f"v_cvt_pk_bf16_f32 v{DEF+24+j}, v{O+2*j}, v{O+2*j+1}")
    if TIMING[0]:
        ts_mark(a, 76)
        for k in range(4):
            e(f"s_cmp_eq_u32 s{sTask}, {k}")
            e(f"s_cselect_b32 s{MK[2+k]}, s76, s{MK[2+k]}")
    e(f"s_mov_b32 s{sKVoff}, s{sNext}")
    e(f"s_add_u32 s{sTask}, s{sTask}, 1")
    e(f"s_cmp_lt_u32 s{sTask}, 4")
    e(f"s_cbranch_scc1 {name}_task")
    e("s_waitcnt vmcnt(0)")
    e(f"s_xor_b32 s{sT0}, s{sRole}, 1")
    e(f"s_lshl_b32 s{sT0}, s{sT0}, 23")
    e(f"s_lshl_b32 s{sT1}, s{sI}, 18")
    e(f"s_add_u32 s{sT0}, s{sT0}, s{sT1}")
    e(f"s_lshl_b32 s{sT1}, s{sH}, 13")
    e(f"s_add_u32 s{sT0}, s{sT0}, s{sT1}")
    e(f"s_lshl_b32 s{sT1}, s{sWV}, 11")
    e(f"s_add_u32 s{sT0}, s{sT0}, s{sT1}")
    for r in range(4):
        for sg in range(2):
            e(f"buffer_store_dwordx4 v[{DEF+8*r+4*sg}:{DEF+8*r+4*sg+3}], v{vLane16}, s[{SRD_O}:{SRD_O+3}], s{sT0} offen offset:{sg*1024}")
        if r < 3:
            e(f"s_add_u32 s{sT0}, s{sT0}, {8*262144}")


def gen_touch(a, pol):
    e = a.e
    vD = S
    e(f"s_bfe_u32 s{sT2}, s2, 0x50003")
    e(f"v_lshrrev_b32 v{vT0}, 4, v0")
    e(f"v_lshlrev_b32 v{vT0}, 13, v{vT0}")
    e(f"v_and_b32 v{vT1}, 15, v0")
    e(f"v_lshlrev_b32 v{vT1}, 7, v{vT1}")
    e(f"v_add_u32 v{vT0}, v{vT0}, v{vT1}")
    e(f"s_lshl_b32 s{sT0}, s{sWV}, 5")
    e(f"s_add_u32 s{sT0}, s{sT0}, s{sT2}")
    e(f"s_lshl_b32 s{sT0}, s{sT0}, 15")
    e(f"s_lshr_b32 s{sT1}, s{sX}, 1")
    e(f"s_lshl_b32 s{sT1}, s{sT1}, 11")
    e(f"s_add_u32 s{sT0}, s{sT0}, s{sT1}")
    e(f"s_add_u32 s{sT1}, s{sT0}, {128*4*8192}")
    e(f"s_lshl_b32 s{sT3}, s{sWV}, 5")
    e(f"s_add_u32 s{sT3}, s{sT3}, s{sT2}")
    e(f"s_and_b32 s{sT2}, s{sT3}, 7")
    e(f"s_lshl_b32 s{sT2}, s{sT2}, 6")
    e(f"v_add_u32 v{vT1}, s{sT2}, v0")
    e(f"v_bfe_u32 v{vT2}, v{vT1}, 5, 2")
    e(f"v_lshrrev_b32 v{vT3}, 7, v{vT1}")
    e(f"v_lshlrev_b32 v{vT3}, 3, v{vT3}")
    e(f"v_add_u32 v{vT2}, v{vT2}, v{vT3}")
    e(f"v_lshlrev_b32 v{vT2}, 5, v{vT2}")
    e(f"v_and_b32 v{vT1}, 31, v{vT1}")
    e(f"v_add_u32 v{vT1}, v{vT1}, v{vT2}")
    e(f"v_lshlrev_b32 v{vT1}, 11, v{vT1}")
    e(f"s_lshr_b32 s{sT3}, s{sT3}, 3")
    e(f"s_lshl_b32 s{sT3}, s{sT3}, 7")
    e(f"s_and_b32 s{sT2}, s{sX}, 1")
    e(f"s_lshl_b32 s{sT2}, s{sT2}, 18")
    e(f"s_add_u32 s{sT3}, s{sT3}, s{sT2}")
    e(f"buffer_load_dword v{vD}, v{vT0}, s[{SRD_W}:{SRD_W+3}], s{sT0} offen {pol}")
    e(f"buffer_load_dword v{vD+1}, v{vT1}, s[{SRD_X}:{SRD_X+3}], s{sT3} offen {pol}")
    e(f"buffer_load_dword v{vD+2}, v{vT0}, s[{SRD_W}:{SRD_W+3}], s{sT1} offen {pol}")


def poll_counter(a, label, off_reg, mask, shift_reg, target, bound, sleep=8):
    e = a.e
    e(f"v_mov_b32 v{vT0}, s{off_reg}")
    if bound:
        e(f"s_mov_b32 s{sT3}, {bound}")
    a.label(label)
    e(f"buffer_load_dword v{vT1}, v{vT0}, s[{SRD_D}:{SRD_D+3}], 0 offen sc1")
    e("s_waitcnt vmcnt(0)")
    e(f"v_readfirstlane_b32 s{sT1}, v{vT1}")
    a.nop(3)
    if shift_reg is not None:
        e(f"s_lshr_b32 s{sT1}, s{sT1}, s{shift_reg}")
    e(f"s_and_b32 s{sT1}, s{sT1}, {mask}")
    e(f"s_cmp_ge_u32 s{sT1}, {target}")
    e(f"s_cbranch_scc1 {label}_ok")
    if bound:
        e(f"s_sub_u32 s{sT3}, s{sT3}, 1")
        e(f"s_cmp_eq_u32 s{sT3}, 0")
        e(f"s_cbranch_scc1 {label}_ok")
    e(f"s_sleep {sleep}")
    e(f"s_branch {label}")
    a.label(label + "_ok")


def signal(a, label, off_reg, val_reg_or_imm):
    e = a.e
    e(f"s_cmp_lg_u32 s{sWV}, 0")
    e(f"s_cbranch_scc1 {label}")
    e(f"v_mov_b32 v{vT0}, s{off_reg}")
    e(f"v_mov_b32 v{vT1}, {val_reg_or_imm}")
    e(f"v_cmp_eq_u32 vcc, 0, v0")
    e(f"s_and_saveexec_b64 s[{sT2}:{sT3}], vcc")
    e(f"buffer_atomic_add v{vT1}, v{vT0}, s[{SRD_D}:{SRD_D+3}], 0 offen sc1")
    e(f"s_mov_b64 exec, s[{sT2}:{sT3}]")
    a.label(label)


def gen_flash(a, name, pol):
    e = a.e
    FK = [QOWN, DEF]
    sNextK, sNextV = sT4, sT5
    e(f"s_lshl_b32 s{sT0}, s{sB}, 5")
    e(f"s_add_u32 s{sT0}, s{sT0}, s{sH}")
    e(f"s_lshl_b32 s{sT0}, s{sT0}, 13")
    e(f"s_add_u32 s{sT0}, s{sT0}, {QWS_OFF}")
    for s in range(8):
        if s == 4:
            e(f"s_add_u32 s{sT0}, s{sT0}, 4096")
        e(f"buffer_store_dwordx4 v[{QOWN+4*s}:{QOWN+4*s+3}], v{vLane16}, s[{SRD_O}:{SRD_O+3}], s{sT0} offen offset:{(s%4)*1024} {QST[0]}")
    e("s_waitcnt vmcnt(0)")
    if XM[0]: mark(a, 3)
    bar(a)
    e(f"v_readfirstlane_b32 s{sNonce}, v{vNon}")
    a.nop(3)
    e(f"s_mul_i32 s{sNonce}, s{sNonce}, 0x9e3779b1")
    e(f"s_add_u32 s{sNonce}, s{sNonce}, 0x7f4a7c15")
    e(f"s_cmp_lg_u32 s{sWV}, 0")
    e(f"s_cbranch_scc1 {name}_qwait")
    e(f"s_and_b32 s{sT0}, s{sH}, 3")
    e(f"s_lshl_b32 s{sT0}, s{sT0}, 2")
    e(f"s_add_u32 s{sT0}, s{sT0}, s{sFlag}")
    e(f"s_add_u32 s{sT0}, s{sT0}, 16")
    e(f"v_mov_b32 v{vT0}, 0")
    e(f"v_mov_b32 v{vT1}, s{sNonce}")
    e(f"v_cmp_eq_u32 vcc, 0, v0")
    e(f"s_and_saveexec_b64 s[{sT2}:{sT3}], vcc")
    e(f"buffer_store_dword v{vT1}, v{vT0}, s[{SRD_O}:{SRD_O+3}], s{sT0} offen sc0 sc1")
    e(f"s_mov_b64 exec, s[{sT2}:{sT3}]")
    a.label(f"{name}_pollq")
    e(f"buffer_load_dwordx4 v[{S}:{S+3}], v{vT0}, s[{SRD_O}:{SRD_O+3}], s{sFlag} offen offset:16 sc0 sc1")
    e("s_waitcnt vmcnt(0)")
    for k in range(4):
        e(f"v_xor_b32 v{S+k}, s{sNonce}, v{S+k}")
    e(f"v_or3_b32 v{S}, v{S}, v{S+1}, v{S+2}")
    e(f"v_or_b32 v{S}, v{S}, v{S+3}")
    a.nop(1)
    e(f"v_readfirstlane_b32 s{sT1}, v{S}")
    a.nop(3)
    e(f"s_cmp_eq_u32 s{sT1}, 0")
    e(f"s_cbranch_scc1 {name}_pollq_ok")
    e(f"s_sleep {SLEEPQ[0]}")
    e(f"s_branch {name}_pollq")
    a.label(f"{name}_pollq_ok")
    if XM[0]: mark(a, 4)
    e(f"v_cmp_eq_u32 vcc, 0, v0")
    e(f"s_and_saveexec_b64 s[{sT2}:{sT3}], vcc")
    e(f"buffer_store_dword v{vT1}, v{vT0}, s[{SRD_O}:{SRD_O+3}], s{sFlag} offen sc0 sc1")
    e(f"s_mov_b64 exec, s[{sT2}:{sT3}]")
    if INV[0]:
        e("buffer_inv sc1")
    e("s_waitcnt vmcnt(0)")
    if XM[0]: mark(a, 5)
    a.label(f"{name}_qwait")
    bar(a)
    mark(a, 2)
    e(f"s_lshl_b32 s{sT0}, s{sBs}, 5")
    e(f"s_lshl_b32 s{sT1}, s{sHq}, 2")
    e(f"s_add_u32 s{sT1}, s{sT1}, s{sWV}")
    e(f"s_add_u32 s{sT0}, s{sT0}, s{sT1}")
    e(f"s_lshl_b32 s{sT0}, s{sT0}, 13")
    e(f"s_add_u32 s{sT0}, s{sT0}, {QWS_OFF}")
    for s in range(8):
        if s == 4:
            e(f"s_add_u32 s{sT0}, s{sT0}, 4096")
        e(f"buffer_load_dwordx4 v[{QCUR+4*s}:{QCUR+4*s+3}], v{vLane16}, s[{SRD_O}:{SRD_O+3}], s{sT0} offen offset:{(s%4)*1024} {QST[1]}")
    issue_tile(e, SRD_K, sM0a, sKVoff, 0, True, pol)
    issue_tile(e, SRD_V, sM0b, sKVoff, 0, False, pol)
    for s in range(8):
        e(f"v_subrev_u32 v{vKR+s}, s{sW8}, v{vKR+s}")
    e(f"s_lshl_b32 s{sT0}, s{sWV}, 6")
    e(f"v_subrev_u32 v{vT2}, s{sW8}, v{vVR}")
    e(f"v_xor_b32 v{vT2}, s{sT0}, v{vT2}")
    for k in range(4):
        e(f"v_xor_b32 v{vVR+k}, {k*64}, v{vT2}")
    for j in range(64):
        e(f"v_mov_b32 v{O+j}, 0")
    e(f"v_mov_b32 v{vM}, 0xff7fffff")
    e(f"v_mov_b32 v{vL}, 0")
    e(f"s_mov_b32 s{sTask}, 0")
    a.label(f"{name}_chunk")
    e(f"s_add_u32 s{sNextK}, s{sKVoff}, 32768")
    e(f"s_cmp_lt_u32 s{sTask}, 3")
    e(f"s_cselect_b32 s{sNextK}, s{sNextK}, {OOB:#x}")
    e("s_waitcnt vmcnt(8)")
    bar(a)
    def rk(T):
        for s in range(8):
            e(f"ds_read_b128 v[{FK[T&1]+4*s}:{FK[T&1]+4*s+3}], v{vKR+s} offset:{T*8192}")
    def mk(T):
        for s in range(8):
            mfma(e, S+16*T, FK[T&1]+4*s, QCUR+4*s, "0" if s == 0 else None)
    rk(0); rk(1)
    e("s_waitcnt lgkmcnt(8)")
    mk(0)
    rk(2)
    e("s_waitcnt lgkmcnt(8)")
    mk(1)
    rk(3)
    e("s_waitcnt lgkmcnt(8)")
    mk(2)
    e("s_waitcnt lgkmcnt(0)")
    bar(a)
    issue_tile(e, SRD_K, sM0a, sNextK, 0, True, pol)
    mk(3)
    e(f"v_max3_f32 v{vMx}, v{S}, v{S+1}, v{S+2}")
    e(f"v_max3_f32 v{vT0}, v{S+3}, v{S+4}, v{S+5}")
    k = 6; n = 0
    tgt = [vMx, vT0]
    while k + 1 < 64:
        e(f"v_max3_f32 v{tgt[n&1]}, v{tgt[n&1]}, v{S+k}, v{S+k+1}")
        k += 2; n += 1
    e(f"v_max3_f32 v{vMx}, v{vMx}, v{vT0}, v{vM}")
    e(f"v_mov_b32 v{vT0}, v{vMx}")
    a.nop(2)
    e(f"v_permlane32_swap_b32 v{vMx}, v{vT0}")
    a.nop(1)
    e(f"v_max_f32 v{vMx}, v{vMx}, v{vT0}")
    e(f"v_mul_f32 v{vF}, s{sScale}, v{vMx}")
    e(f"v_fma_f32 v{vT1}, v{vM}, s{sScale}, -v{vF}")
    e(f"v_exp_f32 v{vT1}, v{vT1}")
    e(f"v_mov_b32 v{vM}, v{vMx}")
    for k in range(64):
        e(f"v_fma_f32 v{S+k}, v{S+k}, s{sScale}, -v{vF}")
    for k in range(64):
        e(f"v_exp_f32 v{S+k}, v{S+k}")
    for k in range(64):
        e(f"v_mul_f32 v{O+k}, v{O+k}, v{vT1}")
    e(f"v_add_f32 v{vT2}, v{S}, v{S+1}")
    e(f"v_add_f32 v{vT0}, v{S+2}, v{S+3}")
    for k in range(4, 64, 2):
        e(f"v_add_f32 v{vT2}, v{vT2}, v{S+k}")
        e(f"v_add_f32 v{vT0}, v{vT0}, v{S+k+1}")
    for k in range(32):
        e(f"v_cvt_pk_bf16_f32 v{S+k}, v{S+2*k}, v{S+2*k+1}")
    e(f"v_add_f32 v{vT2}, v{vT2}, v{vT0}")
    e(f"v_fma_f32 v{vL}, v{vL}, v{vT1}, v{vT2}")
    e("s_waitcnt vmcnt(8)")
    bar(a)
    FV = [S+32, QOWN]
    def rv(T):
        for k in range(4):
            for u in range(2):
                for half in range(2):
                    r = FV[T&1] + 8*k + 4*u + 2*half
                    e(f"ds_read_b64_tr_b16 v[{r}:{r+1}], v{vVR+k} offset:{LDS_RING1 + T*8192 + (16*u+8*half)*256}")
    def mv(T):
        for u in range(2):
            for k in range(4):
                mfma(e, O+16*k, FV[T&1]+8*k+4*u, S+8*T+4*u)
    rv(0)
    e("s_waitcnt lgkmcnt(0)")
    rv(1); mv(0)
    e("s_waitcnt lgkmcnt(0)")
    rv(2); mv(1)
    e("s_waitcnt lgkmcnt(0)")
    rv(3); mv(2)
    e("s_waitcnt lgkmcnt(0)")
    bar(a)
    issue_tile(e, SRD_V, sM0b, sNextK, 0, False, pol)
    mv(3)
    if TIMING[0]:
        ts_mark(a, 76)
        for k in range(4):
            e(f"s_cmp_eq_u32 s{sTask}, {k}")
            if not XM[0] or k == 3:
                e(f"s_cselect_b32 s{MK[3+k]}, s76, s{MK[3+k]}")
    e(f"s_mov_b32 s{sKVoff}, s{sNextK}")
    e(f"s_add_u32 s{sTask}, s{sTask}, 1")
    e(f"s_cmp_lt_u32 s{sTask}, 4")
    e(f"s_cbranch_scc1 {name}_chunk")
    e(f"v_mov_b32 v{vT0}, v{vL}")
    a.nop(2)
    e(f"v_permlane32_swap_b32 v{vL}, v{vT0}")
    a.nop(1)
    e(f"v_add_f32 v{vL}, v{vL}, v{vT0}")
    e(f"v_rcp_f32 v{vF}, v{vL}")
    a.nop(8)
    for k in range(64):
        e(f"v_mul_f32 v{O+k}, v{O+k}, v{vF}")
    for k in range(32):
        e(f"v_cvt_pk_bf16_f32 v{S+k}, v{O+2*k}, v{O+2*k+1}")
    e("s_waitcnt vmcnt(0)")
    e(f"s_lshl_b32 s{sT0}, s{sBs}, 18")
    e(f"s_lshl_b32 s{sT1}, s{sHq}, 2")
    e(f"s_add_u32 s{sT1}, s{sT1}, s{sWV}")
    e(f"s_lshl_b32 s{sT1}, s{sT1}, 13")
    e(f"s_add_u32 s{sT0}, s{sT0}, s{sT1}")
    for f in range(8):
        if f == 4:
            e(f"s_add_u32 s{sT0}, s{sT0}, 4096")
        e(f"buffer_store_dwordx4 v[{S+4*f}:{S+4*f+3}], v{vLane16}, s[{SRD_O}:{SRD_O+3}], s{sT0} offen offset:{(f%4)*1024}")


def gen_attn(a, name, timing=False, pol_x="nt", pol_w="nt", pol_kv="nt", touch=True, delay_a=True, thresh=32, bound=64, qmarks=False, only=None, qonly=False, qskip='', qorder='adv', look=2, prio_a=0, prio_b=0, touch_a=False, sleep_q=8, sleep_b=48, xmarks=False, use_inv=False, altprio=False, clk=False, single=False, exp_sleep=0, wo_pf=None, wtouch=0, prio_flash=0, qst='sc0 sc1', qld='sc0 sc1'):
    kernel_header(a, name)
    e = a.e
    TIMING[0] = timing
    QMARKS[0] = qmarks
    QSKIP[0] = qskip
    QORDER[0] = qorder
    LOOK[0] = look
    SLEEPQ[0] = sleep_q
    XM[0] = xmarks
    ALT[0] = altprio
    SINGLE[0] = single
    GB[0] = 0
    WT[0] = wtouch
    INV[0] = use_inv
    QST[0] = qst
    QST[1] = qld
    gen_prologue(a, name, timing)
    if only == "B":
        e(f"s_cmp_lg_u32 s{sRole}, 0")
        e(f"s_cbranch_scc1 {name}_done")
    if only == "A":
        e(f"s_cmp_eq_u32 s{sRole}, 0")
        e(f"s_cbranch_scc1 {name}_done")
    if timing:
        for k in range(8):
            e(f"s_mov_b32 s{MK[k]}, 0")
    e(f"s_and_b32 s{sT2}, s{sH}, 3")
    e(f"s_lshl_b32 s{sT2}, s{sT2}, 3")
    e(f"s_add_u32 s{sBs}, s{sT2}, s{sI}")
    e(f"s_lshr_b32 s{sHq}, s{sH}, 2")
    e(f"s_lshl_b32 s{sT0}, s{sI}, 5")
    e(f"s_add_u32 s{sT0}, s{sT0}, s{sH}")
    e(f"s_lshl_b32 s{sT1}, s{sBs}, 2")
    e(f"s_lshr_b32 s{sT2}, s{sH}, 3")
    e(f"s_add_u32 s{sT1}, s{sT1}, s{sT2}")
    e(f"s_cmp_eq_u32 s{sRole}, 0")
    e(f"s_cselect_b32 s{sKVoff}, s{sT0}, s{sT1}")
    e(f"s_lshl_b32 s{sKVoff}, s{sKVoff}, 17")
    e(f"s_add_u32 s{sKVoff}, s{sKVoff}, s{sW8}")
    e(f"s_mov_b32 s{sOoff}, {8*32*131072}")
    e(f"s_cmp_eq_u32 s{sRole}, 0")
    e(f"s_cbranch_scc1 {name}_startb")
    if exp_sleep:
        for k in range(exp_sleep):
            e("s_sleep 127")
    if delay_a:
        e(f"s_lshl_b32 s{sT4}, s{sX}, 2")
        e(f"s_cmp_lg_u32 s{sWV}, 0")
        e(f"s_cbranch_scc1 {name}_await")
        poll_counter(a, f"{name}_pollb", sT4, 255, None, thresh, bound, sleep=sleep_b)
        a.label(f"{name}_await")
        e("s_barrier")
    e(f"s_lshl_b32 s{sFlag}, s{sHq}, 3")
    e(f"s_add_u32 s{sFlag}, s{sFlag}, s{sI}")
    e(f"s_lshl_b32 s{sFlag}, s{sFlag}, 8")
    e(f"s_add_u32 s{sFlag}, s{sFlag}, {FLAG_OFF}")
    e(f"v_mov_b32 v{vT0}, 0")
    e(f"buffer_load_dword v{vNon}, v{vT0}, s[{SRD_O}:{SRD_O+3}], s{sFlag} offen sc0 sc1")
    if prio_a:
        e(f"s_setprio {prio_a}")
    if touch_a:
        gen_touch(a, pol_w)
    e(f"s_branch {name}_q")
    a.label(f"{name}_startb")
    if prio_b:
        e(f"s_setprio {prio_b}")
    if touch:
        gen_touch(a, pol_w)
    a.label(f"{name}_q")
    mark(a, 0)
    if clk:
        e("s_memtime s[76:77]")
        e("s_waitcnt lgkmcnt(0)")
        e(f"s_mov_b32 s{MK[5]}, s76")

    def hook_w():
        e(f"s_cmp_lg_u32 s{sRole}, 0")
        e(f"s_cbranch_scc1 {name}_hw")
        if delay_a:
            e(f"s_lshl_b32 s{sT4}, s{sX}, 2")
            signal(a, f"{name}_sigb", sT4, "1")
        issue_tile(e, SRD_K, sM0a, sKVoff, 0, True, pol_kv)
        a.label(f"{name}_hw")
    def hook_x():
        if LOOK[0] != 2:
            return
        e(f"s_cmp_lg_u32 s{sRole}, 0")
        e(f"s_cbranch_scc1 {name}_hx")
        issue_tile(e, SRD_K, sM0b, sKVoff, 32768, True, pol_kv)
        a.label(f"{name}_hx")
    gen_qproj(a, name, pol_x, pol_w, hook_w, hook_x)
    mark(a, 1)
    if clk:
        e("s_memtime s[76:77]")
        e("s_waitcnt lgkmcnt(0)")
        e(f"s_sub_u32 s{MK[6]}, s76, s{MK[5]}")
        e(f"s_mov_b32 s{MK[5]}, 0")
    if ALT[0]:
        e("s_setprio 0")
    if qonly:
        e(f"s_branch {name}_end")
    if single:
        e("s_barrier")
        e(f"v_mov_b32 v{vT3}, 0")
        e(f"ds_write_b32 v{vBarA}, v{vT3}")
        e("s_waitcnt lgkmcnt(0)")
        e("s_barrier")
    e(f"s_cmp_lg_u32 s{sRole}, 0")
    e(f"s_cbranch_scc1 {name}_rolea")
    if not single:
        e("s_barrier")
    q_broadcast(a, name, "q0", "0")
    e(f"s_mov_b32 s{sTask}, 0")
    gen_m1(a, name, pol_kv)
    e(f"s_branch {name}_end")
    a.label(f"{name}_rolea")
    e(f"s_setprio {prio_flash}")
    gen_flash(a, name, pol_kv)
    a.label(f"{name}_end")
    if wo_pf is not None:
        e(f"s_load_dwordx2 s[52:53], s[0:1], 32")
        e(f"s_load_dwordx2 s[54:55], s[0:1], 72")
        e(f"s_waitcnt lgkmcnt(0)")
        e(f"s_cmp_lt_u32 s{sX}, 4")
        e(f"s_cselect_b32 s{SRD_W}, s52, s54")
        e(f"s_cselect_b32 s{SRD_W+1}, s53, s55")
        e(f"s_and_b32 s{SRD_W+1}, s{SRD_W+1}, 0xffff")
        e(f"s_mov_b32 s{SRD_W+2}, {4096*1024*2}")
        e(f"s_mov_b32 s{SRD_W+3}, 0x20000")
        if single:
            e(f"s_lshr_b32 s{sT0}, s2, 3")
            e(f"s_lshl_b32 s{sT0}, s{sT0}, 3")
            e(f"s_add_u32 s{sT0}, s{sT0}, s{sWid}")
        else:
            e(f"s_lshr_b32 s{sT0}, s2, 3")
            e(f"s_lshl_b32 s{sT0}, s{sT0}, 2")
            e(f"s_add_u32 s{sT0}, s{sT0}, s{sWV}")
        e(f"s_lshl_b32 s{sT0}, s{sT0}, 14")
        e(f"s_and_b32 s{sT1}, s{sX}, 1")
        e(f"s_lshl_b32 s{sT1}, s{sT1}, 10")
        e(f"s_add_u32 s{sT0}, s{sT0}, s{sT1}")
        e(f"s_bfe_u32 s{sT1}, s{sX}, 0x10001")
        e(f"s_lshl_b32 s{sT1}, s{sT1}, 22")
        e(f"s_add_u32 s{sT0}, s{sT0}, s{sT1}")
        e(f"v_lshrrev_b32 v{vT0}, 3, v0")
        e(f"v_lshlrev_b32 v{vT0}, 11, v{vT0}")
        e(f"v_and_b32 v{vT1}, 7, v0")
        e(f"v_lshlrev_b32 v{vT1}, 7, v{vT1}")
        e(f"v_add_u32 v{vT0}, v{vT0}, v{vT1}")
        e(f"buffer_load_dword v{vT2}, v{vT0}, s[{SRD_W}:{SRD_W+3}], s{sT0} offen {wo_pf}")
    e("s_waitcnt vmcnt(0)")
    if timing:
        mark(a, 7)
        ts_dump(a, [sTS] + MK[0:7], 0, sWid if single else sWV, 52, 8, nwaves=8 if single else 4)
        ts_end(a, sTS, 0, sWid if single else sWV, 52, 2, nwaves=8 if single else 4)
    a.label(f"{name}_done")
    e("s_endpgm")
    return dict(nv=256, ns=NS, lds=LDS_BYTES*(2 if single else 1), threads=512 if single else 256, grid=256 if single else 512)
```

```python
from asmlib import *
from oproj2 import interleave

NSTAGE = 64
OOB = 0x80000000
OSLOT = 16384
WSLOT = 32768

def gen_oproj(a, name, pol_o="", pol_w="nt", timing=False, skip="", order=None, gaps=(4,4,4,4,2,2,0,0), NO=5):
    kernel_header(a, name)
    e = a.e
    WBASE = NO * OSLOT
    sWV = 4
    SRD_O, SRD_W, SRD_OUT = 8, 12, 16
    sO, sW, sFill, sReadO, sCnt, sT0, sT1, sT2, sBr, sB0, sCol = 20, 21, 22, 23, 24, 25, 26, 27, 28, 29, 30
    sOx, sIss, sCls, sWx, sM0o, sM0w, sLW, sReadW, sGrp, sWfill = 31, 42, 43, 52, 53, 54, 55, 56, 57, 58
    vLane16, vW0, vW1, vRO, vRW, vRO2, vRW2, vT, vT2, vOut = 1, 2, 3, 4, 5, 6, 7, 8, 9, 10
    ACC = 16
    FA = [48, 96]
    FB = [64, 112]
    NV = 144

    e("s_cmp_ge_u32 s2, 256")
    e(f"s_cbranch_scc1 {name}_done")
    if timing:
        ts_begin(a, 40)
    e("s_load_dwordx2 s[32:33], s[0:1], 32")
    e("s_load_dwordx2 s[34:35], s[0:1], 72")
    e("s_load_dwordx2 s[36:37], s[0:1], 80")
    e("s_load_dwordx2 s[38:39], s[0:1], 96")
    e("v_lshrrev_b32 v8, 6, v0")
    e("v_and_b32 v0, 63, v0")
    e(f"v_readfirstlane_b32 s{sWV}, v8")
    e(f"s_and_b32 s{sT0}, s2, 7")
    e(f"s_lshr_b32 s{sT1}, s2, 3")
    e(f"s_lshr_b32 s{sBr}, s{sT0}, 2")
    e(f"s_bfe_u32 s{sT2}, s{sT0}, 0x10001")
    e(f"s_lshl_b32 s{sB0}, s{sT2}, 4")
    e(f"s_lshr_b32 s{sT2}, s{sT1}, 3")
    e(f"s_mov_b32 s{sCls}, s{sT2}")
    e(f"s_lshl_b32 s{sT2}, s{sT2}, 2")
    e(f"s_add_u32 s{sB0}, s{sB0}, s{sT2}")
    e(f"s_and_b32 s{sT2}, s{sT0}, 1")
    e(f"s_lshl_b32 s{sCol}, s{sT2}, 9")
    e(f"s_and_b32 s{sT2}, s{sT1}, 7")
    e(f"s_add_u32 s{sCls}, s{sCls}, s{sT2}")
    e(f"s_and_b32 s{sCls}, s{sCls}, 3")
    e(f"s_lshl_b32 s{sT2}, s{sT2}, 6")
    e(f"s_add_u32 s{sCol}, s{sCol}, s{sT2}")
    e(f"v_lshlrev_b32 v{vLane16}, 4, v0")
    e("s_waitcnt lgkmcnt(0)")
    e(f"s_cmp_ge_u32 s{sWV}, 4")
    e(f"s_cbranch_scc1 {name}_loader")

    e(f"s_mov_b32 s{SRD_OUT}, s36")
    e(f"s_and_b32 s{SRD_OUT+1}, s37, 0xffff")
    e(f"s_mov_b32 s{SRD_OUT+2}, {1024*2048*2}")
    e(f"s_mov_b32 s{SRD_OUT+3}, 0x20000")
    e(f"s_lshr_b32 s{sT0}, s{sWV}, 1")
    e(f"s_lshl_b32 s{sT0}, s{sT0}, 13")
    e(f"v_add_u32 v{vRO}, s{sT0}, v{vLane16}")
    e(f"v_lshrrev_b32 v{vT}, 5, v0")
    e(f"v_lshlrev_b32 v{vT}, 3, v{vT}")
    e(f"v_bfe_u32 v{vT2}, v0, 2, 2")
    e(f"v_add_u32 v{vT}, v{vT}, v{vT2}")
    e(f"v_lshlrev_b32 v{vRW}, 7, v{vT}")
    e(f"v_bfe_u32 v{vT}, v0, 4, 1")
    e(f"v_lshlrev_b32 v{vT}, 1, v{vT}")
    e(f"v_and_b32 v{vT2}, 1, v0")
    e(f"v_add_u32 v{vT}, v{vT}, v{vT2}")
    e(f"s_and_b32 s{sT0}, s{sWV}, 1")
    e(f"s_lshl_b32 s{sT0}, s{sT0}, 2")
    e(f"v_add_u32 v{vT}, s{sT0}, v{vT}")
    e(f"v_bfe_u32 v{vT2}, v0, 3, 1")
    e(f"v_lshlrev_b32 v{vT2}, 2, v{vT2}")
    e(f"v_xor_b32 v{vT}, v{vT}, v{vT2}")
    e(f"v_lshlrev_b32 v{vT}, 4, v{vT}")
    e(f"v_add_u32 v{vRW}, v{vRW}, v{vT}")
    e(f"v_bfe_u32 v{vT2}, v0, 1, 1")
    e(f"v_lshlrev_b32 v{vT2}, 3, v{vT2}")
    e(f"v_add_u32 v{vRW}, v{vRW}, v{vT2}")
    e(f"v_add_u32 v{vRW}, {WBASE}, v{vRW}")
    e(f"v_and_b32 v{vOut}, 31, v0")
    e(f"v_lshlrev_b32 v{vOut}, 12, v{vOut}")
    e(f"v_lshrrev_b32 v{vT}, 5, v0")
    e(f"v_lshlrev_b32 v{vT}, 4, v{vT}")
    e(f"v_add_u32 v{vOut}, v{vOut}, v{vT}")
    e(f"s_and_b32 s{sT0}, s{sWV}, 1")
    e(f"s_lshl_b32 s{sT0}, s{sT0}, 6")
    e(f"v_add_u32 v{vOut}, s{sT0}, v{vOut}")
    e(f"s_mov_b32 s{sReadO}, 0")
    e(f"s_mov_b32 s{sReadW}, 0")
    e(f"s_mov_b32 s{sCnt}, 0")
    for r in range(32):
        e(f"v_mov_b32 v{ACC+r}, 0")
    for r in range(48):
        e(f"v_mov_b32 v{FA[1]+r}, 0")

    def reads(k):
        L = []
        for u in range(4):
            for half in range(2):
                r = FA[k] + 4*u + 2*half
                L.append(f"ds_read_b64_tr_b16 v[{r}:{r+1}], v{vRW2} offset:{(16*u + 4*half)*128}")
            for t in range(2):
                r = FB[k] + 16*t + 4*u
                L.append(f"ds_read_b128 v[{r}:{r+3}], v{vRO2} offset:{t*4096 + u*1024}")
        return L

    def mfmas(k):
        L = []
        for u in range(4):
            for t in range(2):
                d = ACC + 16*t
                L.append(f"v_mfma_f32_32x32x16_bf16 v[{d}:{d+15}], v[{FA[k]+4*u}:{FA[k]+4*u+3}], v[{FB[k]+16*t+4*u}:{FB[k]+16*t+4*u+3}], v[{d}:{d+15}]")
        return L

    a.label(f"{name}_cloop")
    for k in range(2):
        e("s_barrier")
        e(f"v_add_u32 v{vRO2}, s{sReadO}, v{vRO}")
        e(f"v_add_u32 v{vRW2}, s{sReadW}, v{vRW}")
        e("s_waitcnt lgkmcnt(0)")
        fill = reads(k) if "r" not in skip else []
        fill += [f"s_add_u32 s{sReadO}, s{sReadO}, {OSLOT}",
                 f"s_cmp_eq_u32 s{sReadO}, {NO*OSLOT}",
                 f"s_cselect_b32 s{sReadO}, 0, s{sReadO}",
                 f"s_add_u32 s{sReadW}, s{sReadW}, 8192",
                 f"s_and_b32 s{sReadW}, s{sReadW}, {2*WSLOT-1}",
                 f"s_add_u32 s{sCnt}, s{sCnt}, 1"]
        main = mfmas(1-k) if "m" not in skip else []
        if main:
            for ln in interleave(main, fill, [4,4,4,4,3,3,0,0]):
                e(ln)
        else:
            for ln in fill:
                e(ln)
    e(f"s_cmp_lt_u32 s{sCnt}, {NSTAGE}")
    e(f"s_cbranch_scc1 {name}_cloop")
    e("s_waitcnt lgkmcnt(0)")
    for ln in mfmas(1):
        e(ln)
    e(f"s_lshr_b32 s{sT0}, s{sWV}, 1")
    e(f"s_lshl_b32 s{sT0}, s{sT0}, 1")
    e(f"s_add_u32 s{sT0}, s{sT0}, s{sB0}")
    e(f"s_lshl_b32 s{sT0}, s{sT0}, 17")
    e(f"s_lshl_b32 s{sT1}, s{sBr}, 11")
    e(f"s_add_u32 s{sT0}, s{sT0}, s{sT1}")
    e(f"s_lshl_b32 s{sT1}, s{sCol}, 1")
    e(f"s_add_u32 s{sT0}, s{sT0}, s{sT1}")
    e(f"s_add_u32 s{sT1}, s{sT0}, {32*4096}")
    a.nop(8)
    P = FA[0]
    for t in range(2):
        for sg in range(2):
            for i in range(4):
                src = ACC + 16*t + 8*sg + 2*i
                e(f"v_cvt_pk_bf16_f32 v{P + 8*t + 4*sg + i}, v{src}, v{src+1}")
    for t in range(2):
        for sg in range(2):
            r = P + 8*t + 4*sg
            e(f"buffer_store_dwordx4 v[{r}:{r+3}], v{vOut}, s[{SRD_OUT}:{SRD_OUT+3}], s{sT0 if t == 0 else sT1} offen offset:{32*sg}")
    e("s_waitcnt vmcnt(0)")
    e(f"s_branch {name}_fin")

    a.label(f"{name}_loader")
    e(f"s_sub_u32 s{sLW}, s{sWV}, 4")
    e(f"v_lshrrev_b32 v{vT}, 3, v0")
    e(f"v_and_b32 v{vT2}, 7, v0")
    e(f"v_lshlrev_b32 v{vW0}, 1, v{vT}")
    e(f"v_and_b32 v{vW0}, 4, v{vW0}")
    e(f"v_xor_b32 v{vW0}, v{vW0}, v{vT2}")
    e(f"v_lshlrev_b32 v{vW0}, 4, v{vW0}")
    e(f"v_lshlrev_b32 v{vT}, 11, v{vT}")
    e(f"v_add_u32 v{vW0}, v{vW0}, v{vT}")
    vWk = [vW0, vW1, vRO, vRW]
    for k in range(1, 4):
        e(f"v_add_u32 v{vWk[k]}, {k*(8*2048 - 1024)}, v{vW0}")
    e(f"s_cmp_eq_u32 s{sBr}, 0")
    e(f"s_cselect_b32 s{SRD_W}, s32, s34")
    e(f"s_cselect_b32 s{SRD_W+1}, s33, s35")
    e(f"s_and_b32 s{SRD_W+1}, s{SRD_W+1}, 0xffff")
    e(f"s_mov_b32 s{SRD_W+2}, {4096*1024*2}")
    e(f"s_mov_b32 s{SRD_W+3}, 0x20000")
    e(f"s_mov_b32 s{SRD_O}, s38")
    e(f"s_and_b32 s{SRD_O+1}, s39, 0xffff")
    e(f"s_mov_b32 s{SRD_O+2}, {2*8388608}")
    e(f"s_mov_b32 s{SRD_O+3}, 0x20000")
    e(f"s_add_u32 s{sT0}, s{sB0}, s{sLW}")
    e(f"s_lshl_b32 s{sO}, s{sT0}, 18")
    e(f"s_lshl_b32 s{sT0}, s{sBr}, 23")
    e(f"s_add_u32 s{sO}, s{sO}, s{sT0}")
    e(f"s_lshl_b32 s{sW}, s{sLW}, 17")
    e(f"s_lshl_b32 s{sT0}, s{sCol}, 1")
    e(f"s_add_u32 s{sW}, s{sW}, s{sT0}")
    e(f"s_lshl_b32 s{sM0o}, s{sLW}, 12")
    e(f"s_lshl_b32 s{sM0w}, s{sLW}, 13")
    e(f"s_add_u32 s{sM0w}, s{sM0w}, {WBASE}")

    def group_of(pos_reg, dst):
        if order == "adv":
            e(f"s_add_u32 s{sT2}, s{pos_reg}, 1")
            e(f"s_sub_u32 s{sT2}, s{sT2}, s{sCls}")
            e(f"s_and_b32 s{sT2}, s{sT2}, 3")
            e(f"s_cmp_eq_u32 s{sT2}, 0")
            e(f"s_cselect_b32 s{sT0}, 1, 0")
            e(f"s_cmp_eq_u32 s{sT2}, 1")
            e(f"s_cselect_b32 s{sT0}, -1, s{sT0}")
            e(f"s_add_u32 s{dst}, s{pos_reg}, s{sT0}")
            e(f"s_cmp_lt_u32 s{dst}, 16")
            e(f"s_cselect_b32 s{dst}, s{dst}, s{pos_reg}")
        else:
            e(f"s_mov_b32 s{dst}, s{pos_reg}")

    def issue_o():
        e(f"s_lshr_b32 s{sT1}, s{sIss}, 2")
        group_of(sT1, sOx)
        e(f"s_lshl_b32 s{sOx}, s{sOx}, 2")
        e(f"s_and_b32 s{sT0}, s{sIss}, 3")
        e(f"s_add_u32 s{sOx}, s{sOx}, s{sT0}")
        e(f"s_lshl_b32 s{sOx}, s{sOx}, 12")
        e(f"s_add_u32 s{sOx}, s{sOx}, s{sO}")
        e(f"s_cmp_lt_u32 s{sIss}, {NSTAGE}")
        e(f"s_cselect_b32 s{sOx}, s{sOx}, {OOB:#x}")
        e(f"s_add_u32 m0, s{sFill}, s{sM0o}")
        e(f"s_add_u32 s{sIss}, s{sIss}, 1")
        for k in range(4):
            e(f"buffer_load_dwordx4 v{vLane16}, s[{SRD_O}:{SRD_O+3}], s{sOx} offen offset:{k*1024} {pol_o} lds")
        e(f"s_add_u32 s{sFill}, s{sFill}, {OSLOT}")
        e(f"s_cmp_eq_u32 s{sFill}, {NO*OSLOT}")
        e(f"s_cselect_b32 s{sFill}, 0, s{sFill}")

    def issue_w():
        group_of(sGrp, sWx)
        e(f"s_lshl_b32 s{sWx}, s{sWx}, 19")
        e(f"s_add_u32 s{sWx}, s{sWx}, s{sW}")
        e(f"s_cmp_lt_u32 s{sGrp}, 16")
        e(f"s_cselect_b32 s{sWx}, s{sWx}, {OOB:#x}")
        e(f"s_add_u32 m0, s{sWfill}, s{sM0w}")
        e(f"s_add_u32 s{sGrp}, s{sGrp}, 1")
        for half in range(2):
            for k in range(4):
                e(f"buffer_load_dwordx4 v{vWk[k]}, s[{SRD_W}:{SRD_W+3}], s{sWx} offen offset:{k*1024} {pol_w} lds")
            if half == 0:
                e(f"s_add_u32 m0, m0, 4096")
                e(f"s_add_u32 s{sWx}, s{sWx}, {32*2048}")
        e(f"s_xor_b32 s{sWfill}, s{sWfill}, {WSLOT}")

    e(f"s_mov_b32 s{sFill}, 0")
    e(f"s_mov_b32 s{sIss}, 0")
    e(f"s_mov_b32 s{sGrp}, 0")
    e(f"s_mov_b32 s{sWfill}, 0")
    AO = NO - 2
    assert AO == 3
    issue_w()
    for s in range(AO):
        issue_o()
    e(f"s_mov_b32 s{sCnt}, 0")
    a.label(f"{name}_lloop")
    for r in range(4):
        e(f"s_waitcnt vmcnt({[8, 8, 16, 16][r]})")
        e("s_barrier")
        if "d" not in skip:
            issue_o()
            if r == 1:
                issue_w()
    e(f"s_add_u32 s{sCnt}, s{sCnt}, 4")
    e(f"s_cmp_lt_u32 s{sCnt}, {NSTAGE}")
    e(f"s_cbranch_scc1 {name}_lloop")
    e("s_waitcnt vmcnt(0)")
    a.label(f"{name}_fin")
    if timing:
        ts_end(a, 40, 1, sWV, 44, 48, nwaves=8)
    a.label(f"{name}_done")
    e("s_endpgm")
    return dict(nv=NV, ns=64, lds=NO*OSLOT + 2*WSLOT, threads=512)
```

```python
from asmlib import *
from oproj2 import interleave

NST = 32
OOB = 0x80000000
OSLOT, NO = 16384, 4
WSLOT, NW = 32768, 3
WBASE = NO * OSLOT
PART_OFF = 64 << 20
PFLAG_OFF = 49 << 20

def gen_oproj(a, name, pol_o="", pol_w="", timing=False, skip="", order="adv", sleep=4):
    kernel_header(a, name)
    e = a.e
    sWV = 4
    SRD_O, SRD_W, SRD_OUT, SRD_P = 8, 12, 16, 60
    sO, sW, sFill, sReadO, sCnt, sT0, sT1, sT2, sBr, sB0, sCol = 20, 21, 22, 23, 24, 25, 26, 27, 28, 29, 30
    sOx, sIss, sCls, sWx, sM0o, sM0w, sLW, sReadW, sGrp, sWfill = 31, 42, 43, 52, 53, 54, 55, 56, 57, 58
    sKh, sPair, sNon, sFlag = 59, 64, 65, 66
    vLane16, vRO, vRO2, vT, vT2, vOut, vNon = 1, 2, 3, 4, 5, 6, 7
    vRW = 8
    vRW2 = 10
    vWD = 12
    ACC = 16
    FA = [80, 144]
    FB = [112, 176]
    NV = 208

    e("s_cmp_ge_u32 s2, 256")
    e(f"s_cbranch_scc1 {name}_done")
    if timing:
        ts_begin(a, 40)
    e("s_load_dwordx2 s[32:33], s[0:1], 32")
    e("s_load_dwordx2 s[34:35], s[0:1], 72")
    e("s_load_dwordx2 s[36:37], s[0:1], 80")
    e("s_load_dwordx2 s[38:39], s[0:1], 96")
    e("v_lshrrev_b32 v8, 6, v0")
    e("v_and_b32 v0, 63, v0")
    e(f"v_readfirstlane_b32 s{sWV}, v8")
    e(f"s_and_b32 s{sT0}, s2, 7")
    e(f"s_lshr_b32 s{sT1}, s2, 3")
    e(f"s_lshr_b32 s{sBr}, s{sT0}, 2")
    e(f"s_bfe_u32 s{sKh}, s{sT0}, 0x10001")
    e(f"s_lshr_b32 s{sT2}, s{sT1}, 2")
    e(f"s_lshl_b32 s{sB0}, s{sT2}, 2")
    e(f"s_mov_b32 s{sCls}, s{sT2}")
    e(f"s_and_b32 s{sT2}, s{sT1}, 3")
    e(f"s_add_u32 s{sCls}, s{sCls}, s{sT2}")
    e(f"s_and_b32 s{sCls}, s{sCls}, 3")
    e(f"s_lshl_b32 s{sT2}, s{sT2}, 7")
    e(f"s_and_b32 s{sCol}, s{sT0}, 1")
    e(f"s_lshl_b32 s{sCol}, s{sCol}, 9")
    e(f"s_add_u32 s{sCol}, s{sCol}, s{sT2}")
    e(f"s_and_b32 s{sPair}, s{sT0}, 1")
    e(f"s_lshl_b32 s{sT2}, s{sBr}, 1")
    e(f"s_add_u32 s{sPair}, s{sPair}, s{sT2}")
    e(f"s_lshl_b32 s{sPair}, s{sPair}, 5")
    e(f"s_add_u32 s{sPair}, s{sPair}, s{sT1}")
    e(f"v_lshlrev_b32 v{vLane16}, 4, v0")
    e("s_waitcnt lgkmcnt(0)")
    e(f"s_cmp_ge_u32 s{sWV}, 4")
    e(f"s_cbranch_scc1 {name}_loader")

    e(f"s_mov_b32 s{SRD_P}, s38")
    e(f"s_and_b32 s{SRD_P+1}, s39, 0xffff")
    e(f"s_mov_b32 s{SRD_P+2}, {96 << 20}")
    e(f"s_mov_b32 s{SRD_P+3}, 0x20000")
    e(f"s_lshl_b32 s{sFlag}, s{sPair}, 8")
    e(f"s_add_u32 s{sFlag}, s{sFlag}, {PFLAG_OFF}")
    e(f"v_mov_b32 v{vT}, 0")
    e(f"buffer_load_dword v{vNon}, v{vT}, s[{SRD_P}:{SRD_P+3}], s{sFlag} offen sc0 sc1")
    e(f"s_mov_b32 s{SRD_OUT}, s36")
    e(f"s_and_b32 s{SRD_OUT+1}, s37, 0xffff")
    e(f"s_mov_b32 s{SRD_OUT+2}, {1024*2048*2}")
    e(f"s_mov_b32 s{SRD_OUT+3}, 0x20000")
    e(f"s_lshr_b32 s{sT0}, s{sWV}, 1")
    e(f"s_lshl_b32 s{sT0}, s{sT0}, 13")
    e(f"v_add_u32 v{vRO}, s{sT0}, v{vLane16}")
    e(f"v_bfe_u32 v{vT}, v0, 2, 2")
    e(f"v_lshlrev_b32 v{vRW}, 6, v{vT}")
    e(f"v_bfe_u32 v{vT2}, v0, 4, 1")
    e(f"v_lshlrev_b32 v{vT2}, 5, v{vT2}")
    e(f"v_add_u32 v{vRW}, v{vRW}, v{vT2}")
    e(f"v_and_b32 v{vT2}, 1, v0")
    e(f"v_lshlrev_b32 v{vT2}, 4, v{vT2}")
    e(f"v_add_u32 v{vRW}, v{vRW}, v{vT2}")
    e(f"v_bfe_u32 v{vT2}, v0, 1, 1")
    e(f"v_lshlrev_b32 v{vT2}, 3, v{vT2}")
    e(f"v_add_u32 v{vRW}, v{vRW}, v{vT2}")
    e(f"v_lshrrev_b32 v{vT2}, 5, v0")
    e(f"v_lshlrev_b32 v{vT2}, 3, v{vT2}")
    e(f"v_add_u32 v{vT2}, v{vT2}, v{vT}")
    e(f"v_lshlrev_b32 v{vT2}, 8, v{vT2}")
    e(f"v_add_u32 v{vRW}, v{vRW}, v{vT2}")
    e(f"v_add_u32 v{vRW}, {WBASE}, v{vRW}")
    e(f"s_and_b32 s{sT0}, s{sWV}, 1")
    e(f"s_lshl_b32 s{sT0}, s{sT0}, 7")
    e(f"v_xor_b32 v{vRW}, s{sT0}, v{vRW}")
    e(f"v_xor_b32 v{vRW+1}, 64, v{vRW}")
    e(f"v_and_b32 v{vOut}, 31, v0")
    e(f"v_lshlrev_b32 v{vOut}, 12, v{vOut}")
    e(f"v_lshrrev_b32 v{vT}, 5, v0")
    e(f"v_lshlrev_b32 v{vT}, 4, v{vT}")
    e(f"v_add_u32 v{vOut}, v{vOut}, v{vT}")
    e(f"v_add_u32 v{vOut}, s{sT0}, v{vOut}")
    e(f"s_mov_b32 s{sReadO}, 0")
    e(f"s_mov_b32 s{sReadW}, 0")
    e(f"s_mov_b32 s{sCnt}, 0")
    for r in range(64):
        e(f"v_mov_b32 v{ACC+r}, 0")
    for r in range(64):
        e(f"v_mov_b32 v{FA[1]+r}, 0")
    e("s_waitcnt vmcnt(0)")

    def reads(k):
        L = []
        for u in range(4):
            for mt in range(2):
                for half in range(2):
                    r = FA[k] + 16*mt + 4*u + 2*half
                    L.append(f"ds_read_b64_tr_b16 v[{r}:{r+1}], v{vRW2+mt} offset:{(16*u + 4*half)*256}")
            for t in range(2):
                r = FB[k] + 16*t + 4*u
                L.append(f"ds_read_b128 v[{r}:{r+3}], v{vRO2} offset:{t*4096 + u*1024}")
        return L

    def mfmas(k):
        L = []
        for u in range(4):
            for t in range(2):
                for mt in range(2):
                    d = ACC + 32*t + 16*mt
                    L.append(f"v_mfma_f32_32x32x16_bf16 v[{d}:{d+15}], v[{FA[k]+16*mt+4*u}:{FA[k]+16*mt+4*u+3}], v[{FB[k]+16*t+4*u}:{FB[k]+16*t+4*u+3}], v[{d}:{d+15}]")
        return L

    a.label(f"{name}_cloop")
    for k in range(2):
        e("s_barrier")
        e(f"v_add_u32 v{vRO2}, s{sReadO}, v{vRO}")
        e(f"v_add_u32 v{vRW2}, s{sReadW}, v{vRW}")
        e(f"v_add_u32 v{vRW2+1}, s{sReadW}, v{vRW+1}")
        e("s_waitcnt lgkmcnt(0)")
        fill = reads(k) if "r" not in skip else []
        fill += [f"s_add_u32 s{sReadO}, s{sReadO}, {OSLOT}",
                 f"s_and_b32 s{sReadO}, s{sReadO}, {NO*OSLOT-1}",
                 f"s_add_u32 s{sReadW}, s{sReadW}, 16384",
                 f"s_cmp_eq_u32 s{sReadW}, {NW*WSLOT}",
                 f"s_cselect_b32 s{sReadW}, 0, s{sReadW}",
                 f"s_add_u32 s{sCnt}, s{sCnt}, 1"]
        main = mfmas(1-k) if "m" not in skip else []
        if main:
            for ln in interleave(main, fill, [2]*12 + [3, 3, 0, 0]):
                e(ln)
        else:
            for ln in fill:
                e(ln)
    e(f"s_cmp_lt_u32 s{sCnt}, {NST}")
    e(f"s_cbranch_scc1 {name}_cloop")
    e("s_waitcnt lgkmcnt(0)")
    for ln in mfmas(1):
        e(ln)
    e("s_waitcnt vmcnt(0)")
    e(f"v_readfirstlane_b32 s{sNon}, v{vNon}")
    a.nop(3)
    e(f"s_mul_i32 s{sNon}, s{sNon}, 0x9e3779b1")
    e(f"s_add_u32 s{sNon}, s{sNon}, 0x7f4a7c15")
    e(f"s_lshr_b32 s{sT0}, s{sWV}, 1")
    e(f"s_and_b32 s{sT1}, s{sWV}, 1")
    e(f"s_cmp_eq_u32 s{sT0}, s{sKh}")
    e(f"s_cbranch_scc1 {name}_recv")
    e(f"s_lshl_b32 s{sT2}, s{sPair}, 1")
    e(f"s_add_u32 s{sT2}, s{sT2}, s{sKh}")
    e(f"s_lshl_b32 s{sT2}, s{sT2}, 1")
    e(f"s_add_u32 s{sT2}, s{sT2}, s{sT1}")
    e(f"s_lshl_b32 s{sOx}, s{sT2}, 14")
    e(f"s_add_u32 s{sOx}, s{sOx}, {PART_OFF}")
    a.nop(6)
    for rq in range(16):
        e(f"buffer_store_dwordx4 v[{ACC+4*rq}:{ACC+4*rq+3}], v{vLane16}, s[{SRD_P}:{SRD_P+3}], s{sOx} offen offset:{(rq%4)*1024} sc0 sc1")
        if rq % 4 == 3 and rq != 15:
            e(f"s_add_u32 s{sOx}, s{sOx}, 4096")
    e("s_waitcnt vmcnt(0)")
    e(f"s_lshl_b32 s{sT2}, s{sKh}, 1")
    e(f"s_add_u32 s{sT2}, s{sT2}, s{sT1}")
    e(f"s_lshl_b32 s{sT2}, s{sT2}, 2")
    e(f"s_add_u32 s{sT2}, s{sT2}, s{sFlag}")
    e(f"v_mov_b32 v{vT}, 0")
    e(f"v_mov_b32 v{vT2}, s{sNon}")
    e(f"v_cmp_eq_u32 vcc, 0, v0")
    e(f"s_and_saveexec_b64 s[44:45], vcc")
    e(f"buffer_store_dword v{vT2}, v{vT}, s[{SRD_P}:{SRD_P+3}], s{sT2} offen offset:16 sc0 sc1")
    e(f"s_mov_b64 exec, s[44:45]")
    e("s_waitcnt vmcnt(0)")
    e(f"s_branch {name}_fin")
    a.label(f"{name}_recv")
    e(f"s_xor_b32 s{sT2}, s{sKh}, 1")
    e(f"s_lshl_b32 s{sT2}, s{sT2}, 1")
    e(f"s_add_u32 s{sT2}, s{sT2}, s{sT1}")
    e(f"s_lshl_b32 s{sWx}, s{sT2}, 2")
    e(f"s_add_u32 s{sWx}, s{sWx}, s{sFlag}")
    e(f"s_lshl_b32 s{sOx}, s{sPair}, 2")
    e(f"s_add_u32 s{sOx}, s{sOx}, s{sT2}")
    e(f"s_lshl_b32 s{sOx}, s{sOx}, 14")
    e(f"s_add_u32 s{sOx}, s{sOx}, {PART_OFF}")
    e(f"v_mov_b32 v{vT}, 0")
    a.label(f"{name}_poll")
    e(f"buffer_load_dword v{vT2}, v{vT}, s[{SRD_P}:{SRD_P+3}], s{sWx} offen offset:16 sc0 sc1")
    e("s_waitcnt vmcnt(0)")
    e(f"v_readfirstlane_b32 s{sT2}, v{vT2}")
    a.nop(3)
    e(f"s_cmp_eq_u32 s{sT2}, s{sNon}")
    e(f"s_cbranch_scc1 {name}_got")
    e(f"s_sleep {sleep}")
    e(f"s_branch {name}_poll")
    a.label(f"{name}_got")
    IN = FA[0]
    for rq in range(16):
        e(f"buffer_load_dwordx4 v[{IN+4*rq}:{IN+4*rq+3}], v{vLane16}, s[{SRD_P}:{SRD_P+3}], s{sOx} offen offset:{(rq%4)*1024} sc0 sc1")
        if rq % 4 == 3 and rq != 15:
            e(f"s_add_u32 s{sOx}, s{sOx}, 4096")
    e(f"s_lshl_b32 s{sT0}, s{sKh}, 1")
    e(f"s_add_u32 s{sT0}, s{sT0}, s{sB0}")
    e(f"s_lshl_b32 s{sT0}, s{sT0}, 17")
    e(f"s_lshl_b32 s{sT1}, s{sBr}, 11")
    e(f"s_add_u32 s{sT0}, s{sT0}, s{sT1}")
    e(f"s_lshl_b32 s{sT1}, s{sCol}, 1")
    e(f"s_add_u32 s{sT0}, s{sT0}, s{sT1}")
    e(f"s_add_u32 s{sT1}, s{sT0}, {32*4096}")
    e("s_waitcnt vmcnt(0)")
    for r in range(64):
        e(f"v_add_f32 v{ACC+r}, v{ACC+r}, v{IN+r}")
    P = FB[1]
    for t in range(2):
        for mt in range(2):
            for sg in range(2):
                for i in range(4):
                    src = ACC + 32*t + 16*mt + 8*sg + 2*i
                    e(f"v_cvt_pk_bf16_f32 v{P + 16*t + 8*mt + 4*sg + i}, v{src}, v{src+1}")
    for t in range(2):
        for mt in range(2):
            for sg in range(2):
                r = P + 16*t + 8*mt + 4*sg
                e(f"buffer_store_dwordx4 v[{r}:{r+3}], v{vOut}, s[{SRD_OUT}:{SRD_OUT+3}], s{sT0 if t == 0 else sT1} offen offset:{64*mt + 32*sg}")
    e(f"v_mov_b32 v{vT}, 0")
    e(f"v_mov_b32 v{vT2}, s{sNon}")
    e(f"v_cmp_eq_u32 vcc, 0, v0")
    e(f"s_and_saveexec_b64 s[44:45], vcc")
    e(f"buffer_store_dword v{vT2}, v{vT}, s[{SRD_P}:{SRD_P+3}], s{sFlag} offen sc0 sc1")
    e(f"s_mov_b64 exec, s[44:45]")
    e("s_waitcnt vmcnt(0)")
    e(f"s_branch {name}_fin")

    a.label(f"{name}_loader")
    e(f"s_sub_u32 s{sLW}, s{sWV}, 4")
    e(f"v_lshrrev_b32 v{vT}, 4, v0")
    e(f"v_and_b32 v{vT2}, 15, v0")
    e(f"v_lshlrev_b32 v{vWD}, 2, v{vT}")
    e(f"v_xor_b32 v{vWD}, v{vWD}, v{vT2}")
    e(f"v_lshlrev_b32 v{vWD}, 4, v{vWD}")
    e(f"v_lshlrev_b32 v{vT}, 11, v{vT}")
    e(f"v_add_u32 v{vWD}, v{vWD}, v{vT}")
    for k in range(1, 4):
        e(f"v_add_u32 v{vWD+k}, {k*(4*2048 - 1024)}, v{vWD}")
    e(f"s_cmp_eq_u32 s{sBr}, 0")
    e(f"s_cselect_b32 s{SRD_W}, s32, s34")
    e(f"s_cselect_b32 s{SRD_W+1}, s33, s35")
    e(f"s_and_b32 s{SRD_W+1}, s{SRD_W+1}, 0xffff")
    e(f"s_mov_b32 s{SRD_W+2}, {4096*1024*2}")
    e(f"s_mov_b32 s{SRD_W+3}, 0x20000")
    e(f"s_mov_b32 s{SRD_O}, s38")
    e(f"s_and_b32 s{SRD_O+1}, s39, 0xffff")
    e(f"s_mov_b32 s{SRD_O+2}, {2*8388608}")
    e(f"s_mov_b32 s{SRD_O+3}, 0x20000")
    e(f"s_add_u32 s{sT0}, s{sB0}, s{sLW}")
    e(f"s_lshl_b32 s{sO}, s{sT0}, 18")
    e(f"s_lshl_b32 s{sT0}, s{sBr}, 23")
    e(f"s_add_u32 s{sO}, s{sO}, s{sT0}")
    e(f"s_lshl_b32 s{sT0}, s{sKh}, 17")
    e(f"s_add_u32 s{sO}, s{sO}, s{sT0}")
    e(f"s_lshl_b32 s{sW}, s{sLW}, 16")
    e(f"s_lshl_b32 s{sT0}, s{sCol}, 1")
    e(f"s_add_u32 s{sW}, s{sW}, s{sT0}")
    e(f"s_lshl_b32 s{sT0}, s{sKh}, 22")
    e(f"s_add_u32 s{sW}, s{sW}, s{sT0}")
    e(f"s_lshl_b32 s{sM0o}, s{sLW}, 12")
    e(f"s_lshl_b32 s{sM0w}, s{sLW}, 13")
    e(f"s_add_u32 s{sM0w}, s{sM0w}, {WBASE}")

    def group_of(pos_reg, dst):
        if order == "adv":
            e(f"s_add_u32 s{sT2}, s{pos_reg}, 1")
            e(f"s_sub_u32 s{sT2}, s{sT2}, s{sCls}")
            e(f"s_and_b32 s{sT2}, s{sT2}, 3")
            e(f"s_cmp_eq_u32 s{sT2}, 0")
            e(f"s_cselect_b32 s{sT0}, 1, 0")
            e(f"s_cmp_eq_u32 s{sT2}, 1")
            e(f"s_cselect_b32 s{sT0}, -1, s{sT0}")
            e(f"s_add_u32 s{dst}, s{pos_reg}, s{sT0}")
            e(f"s_cmp_lt_u32 s{dst}, 16")
            e(f"s_cselect_b32 s{dst}, s{dst}, s{pos_reg}")
        else:
            e(f"s_mov_b32 s{dst}, s{pos_reg}")

    def issue_o():
        e(f"s_lshr_b32 s{sT1}, s{sIss}, 1")
        group_of(sT1, sOx)
        e(f"s_lshl_b32 s{sOx}, s{sOx}, 1")
        e(f"s_and_b32 s{sT0}, s{sIss}, 1")
        e(f"s_add_u32 s{sOx}, s{sOx}, s{sT0}")
        e(f"s_lshl_b32 s{sOx}, s{sOx}, 12")
        e(f"s_add_u32 s{sOx}, s{sOx}, s{sO}")
        e(f"s_cmp_lt_u32 s{sIss}, {NST}")
        e(f"s_cselect_b32 s{sOx}, s{sOx}, {OOB:#x}")
        e(f"s_add_u32 m0, s{sFill}, s{sM0o}")
        e(f"s_add_u32 s{sIss}, s{sIss}, 1")
        for k in range(4):
            e(f"buffer_load_dwordx4 v{vLane16}, s[{SRD_O}:{SRD_O+3}], s{sOx} offen offset:{k*1024} {pol_o} lds")
        e(f"s_add_u32 s{sFill}, s{sFill}, {OSLOT}")
        e(f"s_and_b32 s{sFill}, s{sFill}, {NO*OSLOT-1}")

    def issue_w():
        group_of(sGrp, sWx)
        e(f"s_lshl_b32 s{sWx}, s{sWx}, 18")
        e(f"s_add_u32 s{sWx}, s{sWx}, s{sW}")
        e(f"s_cmp_lt_u32 s{sGrp}, 16")
        e(f"s_cselect_b32 s{sWx}, s{sWx}, {OOB:#x}")
        e(f"s_add_u32 m0, s{sWfill}, s{sM0w}")
        e(f"s_add_u32 s{sGrp}, s{sGrp}, 1")
        for half in range(2):
            for k in range(4):
                e(f"buffer_load_dwordx4 v{vWD+k}, s[{SRD_W}:{SRD_W+3}], s{sWx} offen offset:{k*1024} {pol_w} lds")
            if half == 0:
                e(f"s_add_u32 m0, m0, 4096")
                e(f"s_add_u32 s{sWx}, s{sWx}, {16*2048}")
        e(f"s_add_u32 s{sWfill}, s{sWfill}, {WSLOT}")
        e(f"s_cmp_eq_u32 s{sWfill}, {NW*WSLOT}")
        e(f"s_cselect_b32 s{sWfill}, 0, s{sWfill}")

    e(f"s_mov_b32 s{sFill}, 0")
    e(f"s_mov_b32 s{sIss}, 0")
    e(f"s_mov_b32 s{sGrp}, 0")
    e(f"s_mov_b32 s{sWfill}, 0")
    issue_w()
    issue_o()
    issue_o()
    issue_w()
    e(f"s_mov_b32 s{sCnt}, 0")
    a.label(f"{name}_lloop")
    for r in range(2):
        e("s_waitcnt vmcnt(12)")
        e("s_barrier")
        if "d" not in skip:
            issue_o()
            if r == 1:
                issue_w()
    e(f"s_add_u32 s{sCnt}, s{sCnt}, 2")
    e(f"s_cmp_lt_u32 s{sCnt}, {NST}")
    e(f"s_cbranch_scc1 {name}_lloop")
    e("s_waitcnt vmcnt(0)")
    a.label(f"{name}_fin")
    if timing:
        ts_end(a, 40, 1, sWV, 44, 48, nwaves=8)
    a.label(f"{name}_done")
    e("s_endpgm")
    return dict(nv=NV, ns=72, lds=NO*OSLOT + NW*WSLOT, threads=512)
```

```python
import sys, os
sys.path.insert(0, os.path.dirname(__file__))
from asmlib import *
import oproj

HEADER = open("concat_heads__gqa_block_cached__mha_block_cached__near_ridge.s.ref").read().split("; Override launch")[0]
MAIN = "concat_heads__gqa_block_cached__mha_block_cached__near_ridge_kernel"

def build(which=("attn", "oproj"), **opt):
    a = Asm()
    launches = []
    descs = []
    body = Asm()
    if "attn" in which:
        import attn
        r = attn.gen_attn(body, MAIN, **opt.get("attn", {}))
        launches.append(f"; @launch kernel={MAIN} grid=({r.get('grid', 512)},1,1) block=({r.get('threads', 256)},1,1) lds={r['lds']}")
        descs.append((MAIN, r))
    if "oproj" in which:
        o = dict(opt.get("oproj", {}))
        mod = oproj
        ver = o.pop("v", 2)
        if ver == 2:
            import oproj2 as mod
        elif ver == 3:
            import oproj3 as mod
        elif ver == 6:
            import oproj6 as mod
        elif ver == 7:
            import oproj7 as mod
        r = mod.gen_oproj(body, "oproj_kernel", **o)
        launches.append(f"; @launch kernel=oproj_kernel grid=(256,1,1) block=({r.get('threads', 256)},1,1) lds={r['lds']}")
        descs.append(("oproj_kernel", r))
    out = HEADER + "\n".join(launches) + "\n" + '.amdgcn_target "amdgcn-amd-amdhsa--gfx950"\n' + body.text()
    d = Asm()
    for name, r in descs:
        kernel_descriptor(d, name, r["nv"], r["ns"])
    return out + d.text()

if __name__ == "__main__":
    which = sys.argv[2].split(",") if len(sys.argv) > 2 else ("attn", "oproj")
    opt = eval(sys.argv[3]) if len(sys.argv) > 3 else {}
    open(sys.argv[1], "w").write(build(which, **opt))
```

```python
from asmlib import *
import math

OOB = 0x80000000
PAIR_OFF = 50 << 20
FLAG_OFF = 48 << 20
QWS_OFF = 32 << 20
C_SCALE = math.log2(math.e) / math.sqrt(128.0)

def f32bits(x):
    import struct
    return struct.unpack("<I", struct.pack("<f", x))[0]

sWV = 4
sRole, sH, sI, sB = 5, 6, 7, 3
SRD_X, SRD_W, SRD_K, SRD_V, SRD_O = 8, 12, 16, 20, 24
sT0, sT1, sT2, sT3 = 28, 29, 30, 31
sXoff, sWoff, sWslotF, sWslotR, sXslot, sCnt = 32, 33, 34, 35, 36, 37
sKVoff, sTask, sScale, sM0a, sM0b = 38, 39, 40, 41, 42
sOoff, sT4, sT5 = 43, 44, 45
sTS = 46
sPtr = 48
sStg = 80
sX, sDbg, sBs, sHq, sCls, sSig = 81, 82, 84, 85, 86, 87
sFlag, sNonce = 92, 93
sPairN, sPairP = 74, 72
sTbase, sTstep, SRD_T = 94, 95, 96
sLB, sW8, sBarT, sWid = 100, 101, 78, 79
vL16L, vBarA = 30, 29
vNon = 31
SRD_D = 88
NS = 102
MK = [60, 62, 64, 66, 68, 70, 72, 74]
TIMING = [False]
QMARKS = [False]
QSKIP = ['']
QORDER = [None]
LOOK = [2]
SLEEPQ = [8]
XM = [False]
ALT = [False]
ASYM = [False]
PSIG = [0]
SINGLE = [False]
GB = [0]
WT = [0]
INV = [True]
QST = ['sc0 sc1', 'sc0 sc1']
def mark(a, k):
    if TIMING[0]:
        ts_mark(a, MK[k])
vLane16 = 1
vT0, vT1, vT2, vT3 = 2, 3, 4, 5
vKD = 6
vVD = 10
vKR = 11
vVR = 19
vM, vL, vMx, vF = 23, 24, 25, 26
vA0, vA1 = 27, 28
vSt = 29
QOWN, QCUR, S, O, DEF = 32, 64, 96, 160, 224
vWD = DEF
vXD = DEF + 4
vWR = DEF + 8
vXR = DEF + 12
vWR2 = DEF + 16
vXR2 = DEF + 20
vTT, vTD = DEF + 24, DEF + 25
ACC = S
FW = O
FX = QCUR

LDS_RING0, LDS_RING1, LDS_MISC = 0, 32768, 65536
LDS_BYTES = 81920

def bar(a):
    e = a.e
    if not SINGLE[0]:
        e("s_barrier")
        return
    GB[0] += 1
    L = f"gb{GB[0]}"
    e(f"s_add_u32 s{sBarT}, s{sBarT}, 1")
    e("s_waitcnt lgkmcnt(0)")
    e(f"v_mov_b32 v{vSt+2-0 if False else vT3}, 1")
    e("s_mov_b64 exec, 1")
    e(f"ds_add_u32 v{vBarA}, v{vT3}")
    e("s_mov_b64 exec, -1")
    a.label(L)
    e(f"ds_read_b32 v{vT3}, v{vBarA}")
    e("s_waitcnt lgkmcnt(0)")
    e(f"v_readfirstlane_b32 s{sT3}, v{vT3}")
    e(f"s_lshl_b32 s{sT2}, s{sBarT}, 2")
    a.nop(2)
    e(f"s_cmp_ge_u32 s{sT3}, s{sT2}")
    e(f"s_cbranch_scc1 {L}_ok")
    e("s_sleep 1")
    e(f"s_branch {L}")
    a.label(L + "_ok")


def mfma(e, d, a, b, c=None):
    cc = f"v[{d}:{d+15}]" if c is None else c
    e(f"v_mfma_f32_32x32x16_bf16 v[{d}:{d+15}], v[{a}:{a+3}], v[{b}:{b+3}], {cc}")


def gen_prologue(a, name, timing):
    e = a.e
    e(f"s_cmp_ge_u32 s2, {256 if SINGLE[0] else 512}")
    e(f"s_cbranch_scc1 {name}_done")
    if timing:
        ts_begin(a, sTS)
    e(f"s_load_dwordx8 s[{sPtr}:{sPtr+7}], s[0:1], 0")
    e(f"s_load_dwordx8 s[{sPtr+8}:{sPtr+15}], s[0:1], 40")
    e(f"s_load_dwordx2 s[{sPtr+16}:{sPtr+17}], s[0:1], 96")
    e(f"s_load_dwordx2 s[{sPtr+18}:{sPtr+19}], s[0:1], 88")
    e(f"v_lshrrev_b32 v{vT0}, 6, v0")
    e("v_and_b32 v0, 63, v0")
    e(f"v_readfirstlane_b32 s{sWid}, v{vT0}")
    a.nop(3)
    if SINGLE[0]:
        e(f"s_lshr_b32 s{sRole}, s{sWid}, 2")
        e(f"s_and_b32 s{sWV}, s{sWid}, 3")
        e(f"s_mul_i32 s{sLB}, s{sRole}, {LDS_BYTES}")
    else:
        e(f"s_mov_b32 s{sWV}, s{sWid}")
        e(f"s_lshr_b32 s{sRole}, s2, 8")
        e(f"s_mov_b32 s{sLB}, 0")
    e(f"s_lshl_b32 s{sW8}, s{sWV}, 13")
    e(f"s_and_b32 s{sT0}, s2, 7")
    e(f"s_bfe_u32 s{sT1}, s2, 0x50003")
    e(f"s_lshr_b32 s{sH}, s{sT0}, 1")
    e(f"s_lshl_b32 s{sH}, s{sH}, 3")
    e(f"s_and_b32 s{sT2}, s{sT1}, 7")
    e(f"s_add_u32 s{sH}, s{sH}, s{sT2}")
    e(f"s_and_b32 s{sI}, s{sT0}, 1")
    e(f"s_lshl_b32 s{sI}, s{sI}, 2")
    e(f"s_lshr_b32 s{sT2}, s{sT1}, 3")
    e(f"s_add_u32 s{sI}, s{sI}, s{sT2}")
    e(f"s_mov_b32 s{sX}, s{sT0}")
    e(f"s_add_u32 s{sCls}, s{sH}, s{sI}")
    e(f"s_and_b32 s{sCls}, s{sCls}, 3")
    e(f"v_lshlrev_b32 v{vLane16}, 4, v0")
    e(f"v_add_u32 v{vL16L}, s{sLB}, v{vLane16}")
    if ASYM[0]:
        e(f"s_lshl_b32 s{sT2}, s{sRole}, 6")
        e(f"s_add_u32 s{sT2}, s{sT2}, {LDS_MISC + 12288}")
    else:
        e(f"s_add_u32 s{sT2}, s{sLB}, {LDS_MISC + 12288}")
    e(f"v_mov_b32 v{vBarA}, s{sT2}")
    e(f"s_mov_b32 s{sBarT}, 0")
    e(f"v_lshrrev_b32 v{vT0}, 4, v0")
    e(f"v_and_b32 v{vT1}, 15, v0")
    e(f"v_lshlrev_b32 v{vT2}, 8, v{vT0}")
    for jj in range(4):
        e(f"v_add_u32 v{vT3}, {4*jj}, v{vT0}")
        e(f"v_xor_b32 v{vT3}, v{vT3}, v{vT1}")
        e(f"v_lshlrev_b32 v{vT3}, 4, v{vT3}")
        e(f"v_add_u32 v{vKD+jj}, v{vT3}, v{vT2}")
    e(f"v_lshlrev_b32 v{vT3}, 2, v{vT0}")
    e(f"v_xor_b32 v{vT3}, v{vT3}, v{vT1}")
    e(f"v_lshlrev_b32 v{vT3}, 4, v{vT3}")
    e(f"v_add_u32 v{vVD}, v{vT3}, v{vT2}")
    e(f"v_lshlrev_b32 v{vT2}, 13, v{vT0}")
    e(f"v_add_u32 v{vWD}, v{vT3}, v{vT2}")
    for jj in range(1, 4):
        e(f"v_add_u32 v{vWD+jj}, {jj*(4*8192-1024)}, v{vWD}")
    e(f"v_lshrrev_b32 v{vT1}, 3, v0")
    e(f"v_and_b32 v{vT2}, 7, v0")
    for jj in range(4):
        e(f"v_add_u32 v{vT3}, {4*jj}, v{vT0}")
        e(f"v_and_b32 v{vT3}, 7, v{vT3}")
        e(f"v_xor_b32 v{vT3}, v{vT3}, v{vT2}")
        e(f"v_lshlrev_b32 v{vT3}, 4, v{vT3}")
        e(f"v_lshlrev_b32 v{vXD+jj}, 11, v{vT1}")
        e(f"v_add_u32 v{vXD+jj}, v{vXD+jj}, v{vT3}")
        c = 8*jj*2048 - jj*1024
        if c:
            e(f"v_add_u32 v{vXD+jj}, {c}, v{vXD+jj}")
    e("s_waitcnt lgkmcnt(0)")
    e(f"s_cmp_eq_u32 s{sRole}, 0")
    for k, srd in enumerate((SRD_X, SRD_K, SRD_V, SRD_W)):
        e(f"s_cselect_b32 s{srd}, s{sPtr+8+2*k}, s{sPtr+2*k}")
        e(f"s_cselect_b32 s{srd+1}, s{sPtr+9+2*k}, s{sPtr+1+2*k}")
    e(f"s_mov_b32 s{sT0}, {32*32*131072}")
    e(f"s_cselect_b32 s{SRD_K+2}, s{sT0}, {32*4*131072}")
    e(f"s_mov_b32 s{SRD_V+2}, s{SRD_K+2}")
    for srd in (SRD_X, SRD_K, SRD_V, SRD_W):
        e(f"s_and_b32 s{srd+1}, s{srd+1}, 0xffff")
        e(f"s_mov_b32 s{srd+3}, 0x20000")
    e(f"s_mov_b32 s{SRD_X+2}, {1024*1024*2}")
    e(f"s_mov_b32 s{SRD_W+2}, {1024*4096*2}")
    e(f"s_mov_b32 s{sDbg}, s{sPtr+18}")
    e(f"s_mov_b32 s{sDbg+1}, s{sPtr+19}")
    e(f"s_mov_b32 s{SRD_D}, s{sPtr+18}")
    e(f"s_and_b32 s{SRD_D+1}, s{sPtr+19}, 0xffff")
    e(f"s_mov_b32 s{SRD_D+2}, 256")
    e(f"s_mov_b32 s{SRD_D+3}, 0x20000")
    e(f"s_mov_b32 s{SRD_O}, s{sPtr+16}")
    e(f"s_and_b32 s{SRD_O+1}, s{sPtr+17}, 0xffff")
    e(f"s_mov_b32 s{SRD_O+2}, {64 << 20}")
    e(f"s_mov_b32 s{SRD_O+3}, 0x20000")
    e(f"s_lshl_b32 s{sT0}, s{sWV}, 3")
    e(f"s_add_u32 s{sB}, s{sT0}, s{sI}")
    e(f"s_lshl_b32 s{sXoff}, s{sB}, 16")
    e(f"s_lshl_b32 s{sWoff}, s{sWV}, 17")
    e(f"s_lshl_b32 s{sT0}, s{sH}, 8")
    e(f"s_add_u32 s{sWoff}, s{sWoff}, s{sT0}")
    e(f"v_and_b32 v{vT0}, 31, v0")
    e(f"v_lshrrev_b32 v{vT1}, 5, v0")
    e(f"v_bfe_u32 v{vT2}, v0, 1, 3")
    e(f"v_xor_b32 v{vT2}, v{vT2}, v{vT1}")
    e(f"v_lshlrev_b32 v{vT2}, 4, v{vT2}")
    e(f"v_lshlrev_b32 v{vT3}, 7, v{vT0}")
    e(f"v_add_u32 v{vXR}, v{vT2}, v{vT3}")
    e(f"s_add_u32 s{sT0}, s{sW8}, {LDS_RING1}")
    e(f"s_add_u32 s{sT0}, s{sT0}, s{sLB}")
    e(f"v_add_u32 v{vXR}, s{sT0}, v{vXR}")
    for u in range(1, 4):
        e(f"v_xor_b32 v{vXR+u}, {u*32}, v{vXR}")
    e(f"v_and_b32 v{vT2}, 15, v0")
    e(f"v_xor_b32 v{vT2}, v{vT2}, v{vT1}")
    e(f"v_lshlrev_b32 v{vT2}, 4, v{vT2}")
    e(f"v_lshlrev_b32 v{vT3}, 8, v{vT0}")
    e(f"v_add_u32 v{vKR}, v{vT2}, v{vT3}")
    e(f"s_add_u32 s{sT0}, s{sW8}, s{sLB}")
    e(f"v_add_u32 v{vKR}, s{sT0}, v{vKR}")
    for s in range(1, 8):
        e(f"v_xor_b32 v{vKR+s}, {s*32}, v{vKR}")
    e(f"v_bfe_u32 v{vT0}, v0, 2, 2")
    e(f"v_lshlrev_b32 v{vT2}, 6, v{vT0}")
    e(f"v_bfe_u32 v{vT3}, v0, 4, 1")
    e(f"v_lshlrev_b32 v{vT3}, 5, v{vT3}")
    e(f"v_add_u32 v{vT2}, v{vT2}, v{vT3}")
    e(f"v_and_b32 v{vT3}, 1, v0")
    e(f"v_lshlrev_b32 v{vT3}, 4, v{vT3}")
    e(f"v_add_u32 v{vT2}, v{vT2}, v{vT3}")
    e(f"v_bfe_u32 v{vT3}, v0, 1, 1")
    e(f"v_lshlrev_b32 v{vT3}, 3, v{vT3}")
    e(f"v_add_u32 v{vT2}, v{vT2}, v{vT3}")
    e(f"v_lshlrev_b32 v{vT3}, 3, v{vT1}")
    e(f"v_add_u32 v{vT3}, v{vT3}, v{vT0}")
    e(f"v_lshlrev_b32 v{vT3}, 8, v{vT3}")
    e(f"v_add_u32 v{vWR}, v{vT2}, v{vT3}")
    e(f"v_add_u32 v{vWR}, s{sLB}, v{vWR}")
    e(f"v_lshlrev_b32 v{vT3}, 2, v{vT1}")
    e(f"v_add_u32 v{vT3}, v{vT3}, v{vT0}")
    e(f"v_lshlrev_b32 v{vT3}, 8, v{vT3}")
    e(f"v_add_u32 v{vVR}, v{vT2}, v{vT3}")
    for t in range(1, 4):
        e(f"v_xor_b32 v{vWR+t}, {t*64}, v{vWR}")
    e(f"s_add_u32 s{sT0}, s{sW8}, s{sLB}")
    e(f"v_add_u32 v{vT2}, s{sT0}, v{vVR}")
    for k in range(4):
        e(f"s_add_u32 s{sT0}, s{sWV}, {k}")
        e(f"s_and_b32 s{sT0}, s{sT0}, 3")
        e(f"s_lshl_b32 s{sT0}, s{sT0}, 6")
        e(f"v_xor_b32 v{vVR+k}, s{sT0}, v{vT2}")
    e(f"s_add_u32 s{sM0a}, s{sW8}, s{sLB}")
    e(f"s_add_u32 s{sM0b}, s{sM0a}, {LDS_RING1}")
    e(f"s_mov_b32 s{sScale}, {f32bits(C_SCALE):#x}")


def gen_qproj(a, name, pol_x, pol_w, after_barrier15=None, after_x15=None):
    e = a.e
    WSLOT = [LDS_MISC, 0, 16384]

    def wt_setup():
        e(f"s_and_b32 s{sT2}, s{sH}, 7")
        e(f"v_lshrrev_b32 v{vT0}, 4, v0")
        e(f"v_lshlrev_b32 v{vT0}, 13, v{vT0}")
        e(f"v_and_b32 v{vT1}, 15, v0")
        e(f"v_lshlrev_b32 v{vT1}, 7, v{vT1}")
        e(f"v_add_u32 v{vT0}, v{vT0}, v{vT1}")
        e(f"s_lshl_b32 s{sT0}, s{sT2}, 6")
        e(f"v_add_u32 v{vT1}, s{sT0}, v0")
        e(f"v_bfe_u32 v{vT2}, v{vT1}, 5, 2")
        e(f"v_lshrrev_b32 v{vT3}, 7, v{vT1}")
        e(f"v_lshlrev_b32 v{vT3}, 3, v{vT3}")
        e(f"v_add_u32 v{vT2}, v{vT2}, v{vT3}")
        e(f"v_lshlrev_b32 v{vT2}, 5, v{vT2}")
        e(f"v_and_b32 v{vT1}, 31, v{vT1}")
        e(f"v_add_u32 v{vT1}, v{vT1}, v{vT2}")
        e(f"v_lshlrev_b32 v{vT1}, 11, v{vT1}")
        e(f"s_cmp_lt_u32 s{sWV}, 2")
        e(f"s_cselect_b64 vcc, -1, 0")
        e(f"v_cndmask_b32 v{vTT}, v{vT1}, v{vT0}, vcc")
        for k in range(4):
            e(f"s_cselect_b32 s{SRD_T+k}, s{SRD_W+k}, s{SRD_X+k}")
        e(f"s_mov_b32 s{SRD_T+3}, 0x20000")
        e(f"s_lshl_b32 s{sT0}, s{sT2}, 3")
        e(f"s_lshl_b32 s{sT1}, s{sWV}, 2")
        e(f"s_add_u32 s{sT0}, s{sT0}, s{sT1}")
        e(f"s_lshl_b32 s{sT0}, s{sT0}, 13")
        e(f"s_lshr_b32 s{sT1}, s{sX}, 1")
        e(f"s_lshl_b32 s{sT1}, s{sT1}, 11")
        e(f"s_add_u32 s{sT0}, s{sT0}, s{sT1}")
        e(f"s_and_b32 s{sT1}, s{sX}, 1")
        e(f"s_lshl_b32 s{sT1}, s{sT1}, 18")
        e(f"s_cmp_lt_u32 s{sWV}, 2")
        e(f"s_cselect_b32 s{sTbase}, s{sT0}, s{sT1}")
        e(f"s_mov_b32 s{sT0}, {64*8192}")
        e(f"s_cselect_b32 s{sTstep}, s{sT0}, 128")
        e(f"s_cmp_eq_u32 s{sWV}, 3")
        e(f"s_cselect_b32 s{sTbase}, {OOB:#x}, s{sTbase}")
        e(f"s_cselect_b32 s{sTstep}, 0, s{sTstep}")

    def wt_issue(tau_reg_or_imm):
        if isinstance(tau_reg_or_imm, int):
            e(f"s_mov_b32 s{sT2}, {tau_reg_or_imm}")
        else:
            e(f"s_add_u32 s{sT2}, s{sCnt}, {WT[0]}")
        e(f"s_mul_i32 s{sT3}, s{sT2}, s{sTstep}")
        e(f"s_add_u32 s{sT3}, s{sT3}, s{sTbase}")
        e(f"s_and_b32 s{sT0}, s{sT2}, 3")
        e(f"s_cmp_eq_u32 s{sT0}, s{sCls}")
        e(f"s_cselect_b32 s{sT3}, s{sT3}, {OOB:#x}")
        e(f"s_cmp_lt_u32 s{sT2}, 16")
        e(f"s_cselect_b32 s{sT3}, s{sT3}, {OOB:#x}")
        e(f"buffer_load_dword v{vTD}, v{vTT}, s[{SRD_T}:{SRD_T+3}], s{sT3} offen {pol_w}")

    def sigma():
        if QORDER[0] == "adv":
            e(f"s_add_u32 s{sT1}, s{sStg}, 1")
            e(f"s_sub_u32 s{sT1}, s{sT1}, s{sCls}")
            e(f"s_and_b32 s{sT1}, s{sT1}, 3")
            e(f"s_cmp_eq_u32 s{sT1}, 0")
            e(f"s_cselect_b32 s{sT0}, 1, 0")
            e(f"s_cmp_eq_u32 s{sT1}, 1")
            e(f"s_cselect_b32 s{sT0}, -1, s{sT0}")
            e(f"s_add_u32 s{sSig}, s{sStg}, s{sT0}")
            e(f"s_cmp_lt_u32 s{sSig}, 16")
            e(f"s_cselect_b32 s{sSig}, s{sSig}, s{sStg}")
        else:
            e(f"s_mov_b32 s{sSig}, s{sStg}")

    def issue_w():
        sigma()
        e(f"s_lshl_b32 s{sT0}, s{sWV}, 12")
        e(f"s_add_u32 s{sT0}, s{sT0}, s{sLB}")
        e(f"s_add_u32 m0, s{sWslotF}, s{sT0}")
        e(f"s_lshl_b32 s{sT1}, s{sSig}, 19")
        e(f"s_add_u32 s{sT1}, s{sT1}, s{sWoff}")
        for jj in range(4):
            e(f"buffer_load_dwordx4 v{vWD+jj}, s[{SRD_W}:{SRD_W+3}], s{sT1} offen offset:{jj*1024} {pol_w} lds")
        e(f"s_cmp_eq_u32 s{sWslotF}, {LDS_MISC}")
        e(f"s_cselect_b32 s{sT0}, 0, {LDS_MISC}")
        e(f"s_cmp_eq_u32 s{sWslotF}, 0")
        e(f"s_cselect_b32 s{sWslotF}, 16384, s{sT0}")

    def issue_x(par):
        e(f"s_mov_b32 s{sT0}, s{sM0b}")
        if par is not None:
            e(f"s_add_u32 m0, s{sT0}, {par*4096}")
        else:
            e(f"s_add_u32 m0, s{sT0}, s{sXslot}")
        e(f"s_lshl_b32 s{sT1}, s{sSig}, 7")
        e(f"s_add_u32 s{sT1}, s{sT1}, s{sXoff}")
        for jj in range(4):
            e(f"buffer_load_dwordx4 v{vXD+jj}, s[{SRD_X}:{SRD_X+3}], s{sT1} offen offset:{jj*1024} {pol_x} lds")
        e(f"s_add_u32 s{sStg}, s{sStg}, 1")

    class Cap:
        def __init__(self): self.L = []
        def __call__(self, t=""): self.L.append(t)

    def capture(fn):
        nonlocal e
        keep = e
        c = Cap(); e = c
        fn()
        e = keep
        return c.L

    def stage(first, issue, hook_w=None, hook_x=None, last=False):
        nwait = 9 if (WT[0] and not first) else 8
        e(f"s_waitcnt vmcnt({nwait})" if not last else "s_waitcnt vmcnt(0)")
        if ASYM[0]:
            GB[0] += 1
            L = f"qb{GB[0]}"
            e(f"s_cmp_lg_u32 s{sRole}, 0")
            e(f"s_cbranch_scc1 {L}_g")
            e("s_barrier")
            e(f"s_branch {L}_d")
            a.label(L + "_g")
            bar(a)
            a.label(L + "_d")
        else:
            e("s_barrier")
        for t in range(4):
            e(f"v_add_u32 v{vWR2+t}, s{sWslotR}, v{vWR+t}")
        for u in range(4):
            e(f"v_add_u32 v{vXR2+u}, s{sXslot}, v{vXR+u}")
        if 'd' in QSKIP[0]:
            issue = False
        def rx():
            if 'r' in QSKIP[0]: return []
            return [f"ds_read_b128 v[{FX+4*u}:{FX+4*u+3}], v{vXR2+u}" for u in range(4)]
        def rw(u):
            L = []
            if 'r' in QSKIP[0]: return L
            for t in range(4):
                for half in range(2):
                    r = FW + 16*u + 4*t + 2*half
                    L.append(f"ds_read_b64_tr_b16 v[{r}:{r+1}], v{vWR2+t} offset:{(16*u+4*half)*256}")
            return L
        def mm(u):
            L = []
            for t in range(4):
                c = "0" if (first and u == 0) else f"v[{ACC+16*t}:{ACC+16*t+15}]"
                L.append(f"v_mfma_f32_32x32x16_bf16 v[{ACC+16*t}:{ACC+16*t+15}], v[{FW+16*u+4*t}:{FW+16*u+4*t+3}], v[{FX+4*u}:{FX+4*u+3}], {c}" if 'm' not in QSKIP[0] else "s_nop 0")
            return L
        for ln in rx() + rw(0):
            e(ln)
        if issue:
            issue_w()
            if WT[0]:
                wt_issue("cnt")
        if hook_w:
            hook_w()
        e("s_waitcnt lgkmcnt(0)")
        fill = rw(1) + rw(2)
        k = 0
        for m in mm(0):
            e(m)
            for ln in fill[k:k+4]:
                e(ln)
            k += 4
        xl = capture(lambda: issue_x(None)) if issue else []
        e("s_waitcnt lgkmcnt(8)")
        fill = rw(3)
        k = 0
        for m in mm(1):
            e(m)
            for ln in fill[k:k+2]:
                e(ln)
            k += 2
        e("s_waitcnt lgkmcnt(8)")
        k = 0
        per = (len(xl) + 3) // 4
        for m in mm(2):
            e(m)
            for ln in xl[k:k+per]:
                e(ln)
            k += per
        if hook_x:
            hook_x()
        e("s_waitcnt lgkmcnt(0)")
        adv = [f"s_cmp_eq_u32 s{sWslotR}, {LDS_MISC}",
               f"s_cselect_b32 s{sT0}, 0, {LDS_MISC}",
               f"s_cmp_eq_u32 s{sWslotR}, 0",
               f"s_cselect_b32 s{sWslotR}, 16384, s{sT0}",
               f"s_xor_b32 s{sXslot}, s{sXslot}, 4096"]
        k = 0
        for m in mm(3):
            e(m)
            for ln in adv[k:k+2]:
                e(ln)
            k += 2

    e(f"s_mov_b32 s{sWslotF}, {LDS_MISC}")
    e(f"s_mov_b32 s{sWslotR}, {LDS_MISC}")
    e(f"s_mov_b32 s{sXslot}, 0")
    e(f"s_mov_b32 s{sStg}, 0")
    e(f"s_mov_b32 s{sCnt}, 0")
    if WT[0]:
        wt_setup()
        for tau in range(WT[0]):
            wt_issue(tau)
    issue_w(); issue_x(0)
    issue_w(); issue_x(1)
    stage(True, True)
    e(f"s_mov_b32 s{sCnt}, 1")
    a.label(f"{name}_qloop")
    if QMARKS[0]:
        ts_mark(a, 76)
        for k, cnt in enumerate((1, 2, 4, 8, 12)):
            e(f"s_cmp_eq_u32 s{sCnt}, {cnt}")
            e(f"s_cselect_b32 s{MK[2+k]}, s76, s{MK[2+k]}")
    if ALT[0]:
        e(f"s_add_u32 s{sT0}, s{sCnt}, s{sRole}")
        e(f"s_bitcmp1_b32 s{sT0}, 0")
        e(f"s_cbranch_scc1 {name}_p1")
        e("s_setprio 0")
        e(f"s_branch {name}_p2")
        a.label(f"{name}_p1")
        e("s_setprio 1")
        a.label(f"{name}_p2")
    if PSIG[0]:
        e(f"s_cmp_lg_u32 s{sCnt}, {PSIG[0]}")
        e(f"s_cbranch_scc1 {name}_ps_d")
        e(f"s_or_b32 s{sT0}, s{sWV}, s{sRole}")
        e(f"s_cmp_lg_u32 s{sT0}, 0")
        e(f"s_cbranch_scc1 {name}_ps_d")
        e(f"s_and_b32 s{sT0}, s2, 255")
        e(f"s_lshl_b32 s{sT0}, s{sT0}, 8")
        e(f"s_add_u32 s{sT0}, s{sT0}, {PAIR_OFF}")
        e(f"s_mul_i32 s{sT1}, s{sPairN}, 0x9e3779b1")
        e(f"s_add_u32 s{sT1}, s{sT1}, 0x7f4a7c15")
        e(f"v_mov_b32 v{vT0}, 0")
        e(f"v_mov_b32 v{vT1}, s{sT1}")
        e(f"v_cmp_eq_u32 vcc, 0, v0")
        e(f"s_and_saveexec_b64 s[{sT2}:{sT3}], vcc")
        e(f"buffer_store_dword v{vT1}, v{vT0}, s[{SRD_O}:{SRD_O+3}], s{sT0} offen offset:16 sc0 sc1")
        e(f"s_mov_b64 exec, s[{sT2}:{sT3}]")
        a.label(f"{name}_ps_d")
    stage(False, True)
    e(f"s_add_u32 s{sCnt}, s{sCnt}, 1")
    e(f"s_cmp_lt_u32 s{sCnt}, 14")
    e(f"s_cbranch_scc1 {name}_qloop")
    stage(False, False)
    stage(False, False, hook_w=after_barrier15, hook_x=after_x15, last=True)
    a.nop(12)
    for s in range(8):
        t, sg = s >> 1, s & 1
        for i in range(4):
            src = ACC + 16*t + 8*sg + 2*i
            e(f"v_cvt_pk_bf16_f32 v{QOWN+4*s+i}, v{src}, v{src+1}")


def issue_tile(e, srd, slot_reg, off_reg, imm, is_k, pol):
    e(f"s_mov_b32 m0, s{slot_reg}")
    if imm:
        e(f"s_add_u32 s{sT0}, s{off_reg}, {imm}")
    else:
        e(f"s_mov_b32 s{sT0}, s{off_reg}")
    for half in range(2):
        for jj in range(4):
            v = vKD + jj if is_k else vVD
            e(f"buffer_load_dwordx4 v{v}, s[{srd}:{srd+3}], s{sT0} offen offset:{jj*1024} {pol} lds")
        if half == 0:
            e(f"s_add_u32 m0, s{slot_reg}, 4096")
            e(f"s_add_u32 s{sT0}, s{sT0}, 4096")


def k_tile(e, T, slot, hook, early=None):
    FK = O + 32*(T & 1)
    if early:
        e("s_waitcnt vmcnt(0)")
        early()
    else:
        e("s_waitcnt vmcnt(8)")
    for s in range(8):
        e(f"ds_read_b128 v[{FK+4*s}:{FK+4*s+3}], v{vKR+s} offset:{slot*LDS_RING1}")
    e("s_waitcnt lgkmcnt(0)")
    hook()
    for s in range(8):
        mfma(e, S+16*T, FK+4*s, QCUR+4*s, "0" if s == 0 else None)


def v_tile(e, T, slot, hook, early=None):
    FV = S + 32
    if early:
        e("s_waitcnt vmcnt(0)")
        early()
    else:
        e("s_waitcnt vmcnt(8)")
    for k in range(4):
        for u in range(2):
            for half in range(2):
                r = FV + 8*k + 4*u + 2*half
                e(f"ds_read_b64_tr_b16 v[{r}:{r+1}], v{vVR+k} offset:{slot*LDS_RING1 + (16*u+8*half)*256}")
    e("s_waitcnt lgkmcnt(0)")
    hook()
    for u in range(2):
        for k in range(4):
            mfma(e, O+16*k, FV+8*k+4*u, S+8*T+4*u, "0" if (T == 0 and u == 0) else None)


def softmax(a, nreg=64):
    e = a.e
    e(f"v_max3_f32 v{vMx}, v{S}, v{S+1}, v{S+2}")
    e(f"v_max3_f32 v{vT0}, v{S+3}, v{S+4}, v{S+5}")
    k = 6
    tgt = [vMx, vT0]
    n = 0
    while k + 1 < nreg:
        e(f"v_max3_f32 v{tgt[n&1]}, v{tgt[n&1]}, v{S+k}, v{S+k+1}")
        k += 2; n += 1
    e(f"v_max_f32 v{vMx}, v{vMx}, v{vT0}")
    e(f"v_mov_b32 v{vT0}, v{vMx}")
    a.nop(2)
    e(f"v_permlane32_swap_b32 v{vMx}, v{vT0}")
    a.nop(1)
    e(f"v_max_f32 v{vM}, v{vMx}, v{vT0}")
    e(f"v_mul_f32 v{vF}, s{sScale}, v{vM}")
    for k in range(nreg):
        e(f"v_fma_f32 v{S+k}, v{S+k}, s{sScale}, -v{vF}")
    for k in range(nreg):
        e(f"v_exp_f32 v{S+k}, v{S+k}")
    e(f"v_add_f32 v{vL}, v{S}, v{S+1}")
    e(f"v_add_f32 v{vT0}, v{S+2}, v{S+3}")
    for k in range(4, nreg, 2):
        e(f"v_add_f32 v{vL}, v{vL}, v{S+k}")
        e(f"v_add_f32 v{vT0}, v{vT0}, v{S+k+1}")
    for k in range(nreg//2):
        e(f"v_cvt_pk_bf16_f32 v{S+k}, v{S+2*k}, v{S+2*k+1}")
    e(f"v_add_f32 v{vL}, v{vL}, v{vT0}")
    e(f"v_mov_b32 v{vT0}, v{vL}")
    a.nop(2)
    e(f"v_permlane32_swap_b32 v{vL}, v{vT0}")
    a.nop(1)
    e(f"v_add_f32 v{vL}, v{vL}, v{vT0}")


def q_broadcast(a, name, tag, owner_reg_or_imm):
    e = a.e
    e(f"s_cmp_lg_u32 s{sWV}, {owner_reg_or_imm}")
    e(f"s_cbranch_scc1 {name}_{tag}_skip")
    e(f"v_add_u32 v{vA0}, {LDS_MISC}, v{vL16L}")
    for s in range(8):
        e(f"ds_write_b128 v{vA0}, v[{QOWN+4*s}:{QOWN+4*s+3}] offset:{s*1024}")
    e("s_waitcnt lgkmcnt(0)")
    a.label(f"{name}_{tag}_skip")
    bar(a)
    e(f"v_add_u32 v{vA0}, {LDS_MISC}, v{vL16L}")
    for s in range(8):
        e(f"ds_read_b128 v[{QCUR+4*s}:{QCUR+4*s+3}], v{vA0} offset:{s*1024}")
    e("s_waitcnt lgkmcnt(0)")


def gen_m1(a, name, pol):
    e = a.e
    sNext = sT5
    G = S + 32
    a.label(f"{name}_task")
    e(f"s_add_u32 s{sNext}, s{sKVoff}, s{sOoff}")
    e(f"s_cmp_lt_u32 s{sTask}, 3")
    e(f"s_cselect_b32 s{sNext}, s{sNext}, {OOB:#x}")
    slotreg = [sM0a, sM0b]
    none = lambda: None
    for T in range(4):
        if LOOK[0] == 2:
            if T < 2:
                hook = lambda T=T: issue_tile(e, SRD_K, slotreg[T & 1], sKVoff, (T+2)*32768, True, pol)
            else:
                hook = lambda T=T: issue_tile(e, SRD_V, slotreg[T & 1], sKVoff, (T-2)*32768, False, pol)
            k_tile(e, T, T & 1, hook)
        else:
            if T < 3:
                early = lambda T=T: issue_tile(e, SRD_K, slotreg[(T+1) & 1], sKVoff, (T+1)*32768, True, pol)
            else:
                early = lambda: issue_tile(e, SRD_V, sM0a, sKVoff, 0, False, pol)
            k_tile(e, T, T & 1, none, early)
    softmax(a)
    e(f"s_cmp_ge_u32 s{sTask}, 3")
    e(f"s_cbranch_scc1 {name}_noq")
    e(f"s_add_u32 s{sT4}, s{sTask}, 1")
    q_broadcast(a, name, "qn", f"s{sT4}")
    a.label(f"{name}_noq")
    for T in range(4):
        if LOOK[0] == 2:
            if T < 2:
                hook = lambda T=T: issue_tile(e, SRD_V, slotreg[T & 1], sKVoff, (T+2)*32768, False, pol)
            elif T == 2:
                hook = lambda: issue_tile(e, SRD_K, sM0a, sNext, 0, True, pol)
            else:
                hook = lambda: None
            v_tile(e, T, T & 1, hook)
        else:
            if T < 3:
                early = lambda T=T: issue_tile(e, SRD_V, slotreg[(T+1) & 1], sKVoff, (T+1)*32768, False, pol)
            else:
                early = lambda: issue_tile(e, SRD_K, sM0a, sNext, 0, True, pol)
            v_tile(e, T, T & 1, none, early)
    e(f"v_and_b32 v{vT0}, 31, v0")
    e(f"v_lshlrev_b32 v{vT0}, 3, v{vT0}")
    e(f"v_add_u32 v{vT0}, {LDS_MISC + 8192}, v{vT0}")
    e(f"v_add_u32 v{vT0}, s{sLB}, v{vT0}")
    e(f"s_lshl_b32 s{sT0}, s{sWV}, 8")
    e(f"v_add_u32 v{vA0}, s{sT0}, v{vT0}")
    e(f"v_add_u32 v{vA1}, s{sM0b}, v{vLane16}")
    e(f"ds_write_b32 v{vA0}, v{vM}")
    e(f"ds_write_b32 v{vA0}, v{vL} offset:4")
    a.nop(10)
    for k in (1, 2):
        for j in range(4):
            e(f"ds_write_b128 v{vA1}, v[{O+16*k+4*j}:{O+16*k+4*j+3}] offset:{(k-1)*4096 + j*1024}")
    e("s_waitcnt lgkmcnt(0)")
    bar(a)
    for k in range(4):
        e(f"s_sub_u32 s{sT0}, s{sWV}, {k}")
        e(f"s_and_b32 s{sT0}, s{sT0}, 3")
        e(f"s_lshl_b32 s{sT0}, s{sT0}, 8")
        e(f"v_add_u32 v{vA0}, s{sT0}, v{vT0}")
        e(f"ds_read_b64 v[{G+2*k}:{G+2*k+1}], v{vA0}")
    TI = S
    for k in (1, 2):
        e(f"s_sub_u32 s{sT0}, s{sWV}, {k}")
        e(f"s_and_b32 s{sT0}, s{sT0}, 3")
        e(f"s_lshl_b32 s{sT0}, s{sT0}, 13")
        e(f"s_add_u32 s{sT0}, s{sT0}, {LDS_RING1 + (k-1)*4096}")
        e(f"v_add_u32 v{vA0}, s{sT0}, v{vL16L}")
        for j in range(4):
            e(f"ds_read_b128 v[{TI+16*(k-1)+4*j}:{TI+16*(k-1)+4*j+3}], v{vA0} offset:{j*1024}")
    e("s_waitcnt lgkmcnt(8)")
    e(f"v_max3_f32 v{vMx}, v{G}, v{G+2}, v{G+4}")
    e(f"v_max_f32 v{vMx}, v{vMx}, v{G+6}")
    e(f"v_mul_f32 v{vMx}, s{sScale}, v{vMx}")
    for k in range(4):
        e(f"v_fma_f32 v{G+2*k}, v{G+2*k}, s{sScale}, -v{vMx}")
    for k in range(4):
        e(f"v_exp_f32 v{G+2*k}, v{G+2*k}")
    a.nop(1)
    e(f"v_mul_f32 v{vF}, v{G}, v{G+1}")
    for k in range(1, 4):
        e(f"v_fma_f32 v{vF}, v{G+2*k}, v{G+2*k+1}, v{vF}")
    e(f"v_rcp_f32 v{vF}, v{vF}")
    a.nop(1)
    for k in range(4):
        e(f"v_mul_f32 v{G+2*k}, v{G+2*k}, v{vF}")
    for j in range(16):
        e(f"v_mul_f32 v{O+j}, v{O+j}, v{G}")
    e("s_waitcnt lgkmcnt(0)")
    for k in (1, 2):
        for j in range(16):
            e(f"v_fma_f32 v{O+j}, v{TI+16*(k-1)+j}, v{G+2*k}, v{O+j}")
    bar(a)
    for j in range(4):
        e(f"ds_write_b128 v{vA1}, v[{O+48+4*j}:{O+48+4*j+3}] offset:{j*1024}")
    e("s_waitcnt lgkmcnt(0)")
    bar(a)
    e(f"s_sub_u32 s{sT0}, s{sWV}, 3")
    e(f"s_and_b32 s{sT0}, s{sT0}, 3")
    e(f"s_lshl_b32 s{sT0}, s{sT0}, 13")
    e(f"s_add_u32 s{sT0}, s{sT0}, {LDS_RING1}")
    e(f"v_add_u32 v{vA0}, s{sT0}, v{vL16L}")
    for j in range(4):
        e(f"ds_read_b128 v[{TI+4*j}:{TI+4*j+3}], v{vA0} offset:{j*1024}")
    e("s_waitcnt lgkmcnt(0)")
    bar(a)
    if LOOK[0] == 2:
        issue_tile(e, SRD_K, sM0b, sNext, 32768, True, pol)
    for j in range(16):
        e(f"v_fma_f32 v{O+j}, v{TI+j}, v{G+6}, v{O+j}")
    for k in range(24):
        e(f"v_mov_b32 v{DEF+k}, v{DEF+8+k}")
    for j in range(8):
        e(f"v_cvt_pk_bf16_f32 v{DEF+24+j}, v{O+2*j}, v{O+2*j+1}")
    if TIMING[0]:
        ts_mark(a, 76)
        for k in range(4):
            e(f"s_cmp_eq_u32 s{sTask}, {k}")
            e(f"s_cselect_b32 s{MK[2+k]}, s76, s{MK[2+k]}")
    e(f"s_mov_b32 s{sKVoff}, s{sNext}")
    e(f"s_add_u32 s{sTask}, s{sTask}, 1")
    e(f"s_cmp_lt_u32 s{sTask}, 4")
    e(f"s_cbranch_scc1 {name}_task")
    e("s_waitcnt vmcnt(0)")
    e(f"s_xor_b32 s{sT0}, s{sRole}, 1")
    e(f"s_lshl_b32 s{sT0}, s{sT0}, 23")
    e(f"s_lshl_b32 s{sT1}, s{sI}, 18")
    e(f"s_add_u32 s{sT0}, s{sT0}, s{sT1}")
    e(f"s_lshl_b32 s{sT1}, s{sH}, 13")
    e(f"s_add_u32 s{sT0}, s{sT0}, s{sT1}")
    e(f"s_lshl_b32 s{sT1}, s{sWV}, 11")
    e(f"s_add_u32 s{sT0}, s{sT0}, s{sT1}")
    for r in range(4):
        for sg in range(2):
            e(f"buffer_store_dwordx4 v[{DEF+8*r+4*sg}:{DEF+8*r+4*sg+3}], v{vLane16}, s[{SRD_O}:{SRD_O+3}], s{sT0} offen offset:{sg*1024}")
        if r < 3:
            e(f"s_add_u32 s{sT0}, s{sT0}, {8*262144}")


def gen_touch(a, pol):
    e = a.e
    vD = S
    e(f"s_bfe_u32 s{sT2}, s2, 0x50003")
    e(f"v_lshrrev_b32 v{vT0}, 4, v0")
    e(f"v_lshlrev_b32 v{vT0}, 13, v{vT0}")
    e(f"v_and_b32 v{vT1}, 15, v0")
    e(f"v_lshlrev_b32 v{vT1}, 7, v{vT1}")
    e(f"v_add_u32 v{vT0}, v{vT0}, v{vT1}")
    e(f"s_lshl_b32 s{sT0}, s{sWV}, 5")
    e(f"s_add_u32 s{sT0}, s{sT0}, s{sT2}")
    e(f"s_lshl_b32 s{sT0}, s{sT0}, 15")
    e(f"s_lshr_b32 s{sT1}, s{sX}, 1")
    e(f"s_lshl_b32 s{sT1}, s{sT1}, 11")
    e(f"s_add_u32 s{sT0}, s{sT0}, s{sT1}")
    e(f"s_add_u32 s{sT1}, s{sT0}, {128*4*8192}")
    e(f"s_lshl_b32 s{sT3}, s{sWV}, 5")
    e(f"s_add_u32 s{sT3}, s{sT3}, s{sT2}")
    e(f"s_and_b32 s{sT2}, s{sT3}, 7")
    e(f"s_lshl_b32 s{sT2}, s{sT2}, 6")
    e(f"v_add_u32 v{vT1}, s{sT2}, v0")
    e(f"v_bfe_u32 v{vT2}, v{vT1}, 5, 2")
    e(f"v_lshrrev_b32 v{vT3}, 7, v{vT1}")
    e(f"v_lshlrev_b32 v{vT3}, 3, v{vT3}")
    e(f"v_add_u32 v{vT2}, v{vT2}, v{vT3}")
    e(f"v_lshlrev_b32 v{vT2}, 5, v{vT2}")
    e(f"v_and_b32 v{vT1}, 31, v{vT1}")
    e(f"v_add_u32 v{vT1}, v{vT1}, v{vT2}")
    e(f"v_lshlrev_b32 v{vT1}, 11, v{vT1}")
    e(f"s_lshr_b32 s{sT3}, s{sT3}, 3")
    e(f"s_lshl_b32 s{sT3}, s{sT3}, 7")
    e(f"s_and_b32 s{sT2}, s{sX}, 1")
    e(f"s_lshl_b32 s{sT2}, s{sT2}, 18")
    e(f"s_add_u32 s{sT3}, s{sT3}, s{sT2}")
    e(f"buffer_load_dword v{vD}, v{vT0}, s[{SRD_W}:{SRD_W+3}], s{sT0} offen {pol}")
    e(f"buffer_load_dword v{vD+1}, v{vT1}, s[{SRD_X}:{SRD_X+3}], s{sT3} offen {pol}")
    e(f"buffer_load_dword v{vD+2}, v{vT0}, s[{SRD_W}:{SRD_W+3}], s{sT1} offen {pol}")


def poll_counter(a, label, off_reg, mask, shift_reg, target, bound, sleep=8):
    e = a.e
    e(f"v_mov_b32 v{vT0}, s{off_reg}")
    if bound:
        e(f"s_mov_b32 s{sT3}, {bound}")
    a.label(label)
    e(f"buffer_load_dword v{vT1}, v{vT0}, s[{SRD_D}:{SRD_D+3}], 0 offen sc1")
    e("s_waitcnt vmcnt(0)")
    e(f"v_readfirstlane_b32 s{sT1}, v{vT1}")
    a.nop(3)
    if shift_reg is not None:
        e(f"s_lshr_b32 s{sT1}, s{sT1}, s{shift_reg}")
    e(f"s_and_b32 s{sT1}, s{sT1}, {mask}")
    e(f"s_cmp_ge_u32 s{sT1}, {target}")
    e(f"s_cbranch_scc1 {label}_ok")
    if bound:
        e(f"s_sub_u32 s{sT3}, s{sT3}, 1")
        e(f"s_cmp_eq_u32 s{sT3}, 0")
        e(f"s_cbranch_scc1 {label}_ok")
    e(f"s_sleep {sleep}")
    e(f"s_branch {label}")
    a.label(label + "_ok")


def signal(a, label, off_reg, val_reg_or_imm):
    e = a.e
    e(f"s_cmp_lg_u32 s{sWV}, 0")
    e(f"s_cbranch_scc1 {label}")
    e(f"v_mov_b32 v{vT0}, s{off_reg}")
    e(f"v_mov_b32 v{vT1}, {val_reg_or_imm}")
    e(f"v_cmp_eq_u32 vcc, 0, v0")
    e(f"s_and_saveexec_b64 s[{sT2}:{sT3}], vcc")
    e(f"buffer_atomic_add v{vT1}, v{vT0}, s[{SRD_D}:{SRD_D+3}], 0 offen sc1")
    e(f"s_mov_b64 exec, s[{sT2}:{sT3}]")
    a.label(label)


def gen_flash(a, name, pol):
    e = a.e
    FK = [QOWN, DEF]
    sNextK, sNextV = sT4, sT5
    e(f"s_lshl_b32 s{sT0}, s{sB}, 5")
    e(f"s_add_u32 s{sT0}, s{sT0}, s{sH}")
    e(f"s_lshl_b32 s{sT0}, s{sT0}, 13")
    e(f"s_add_u32 s{sT0}, s{sT0}, {QWS_OFF}")
    for s in range(8):
        if s == 4:
            e(f"s_add_u32 s{sT0}, s{sT0}, 4096")
        e(f"buffer_store_dwordx4 v[{QOWN+4*s}:{QOWN+4*s+3}], v{vLane16}, s[{SRD_O}:{SRD_O+3}], s{sT0} offen offset:{(s%4)*1024} {QST[0]}")
    e("s_waitcnt vmcnt(0)")
    if XM[0]: mark(a, 3)
    bar(a)
    e(f"v_readfirstlane_b32 s{sNonce}, v{vNon}")
    a.nop(3)
    e(f"s_mul_i32 s{sNonce}, s{sNonce}, 0x9e3779b1")
    e(f"s_add_u32 s{sNonce}, s{sNonce}, 0x7f4a7c15")
    e(f"s_cmp_lg_u32 s{sWV}, 0")
    e(f"s_cbranch_scc1 {name}_qwait")
    e(f"s_and_b32 s{sT0}, s{sH}, 3")
    e(f"s_lshl_b32 s{sT0}, s{sT0}, 2")
    e(f"s_add_u32 s{sT0}, s{sT0}, s{sFlag}")
    e(f"s_add_u32 s{sT0}, s{sT0}, 16")
    e(f"v_mov_b32 v{vT0}, 0")
    e(f"v_mov_b32 v{vT1}, s{sNonce}")
    e(f"v_cmp_eq_u32 vcc, 0, v0")
    e(f"s_and_saveexec_b64 s[{sT2}:{sT3}], vcc")
    e(f"buffer_store_dword v{vT1}, v{vT0}, s[{SRD_O}:{SRD_O+3}], s{sT0} offen sc0 sc1")
    e(f"s_mov_b64 exec, s[{sT2}:{sT3}]")
    a.label(f"{name}_pollq")
    e(f"buffer_load_dwordx4 v[{S}:{S+3}], v{vT0}, s[{SRD_O}:{SRD_O+3}], s{sFlag} offen offset:16 sc0 sc1")
    e("s_waitcnt vmcnt(0)")
    for k in range(4):
        e(f"v_xor_b32 v{S+k}, s{sNonce}, v{S+k}")
    e(f"v_or3_b32 v{S}, v{S}, v{S+1}, v{S+2}")
    e(f"v_or_b32 v{S}, v{S}, v{S+3}")
    a.nop(1)
    e(f"v_readfirstlane_b32 s{sT1}, v{S}")
    a.nop(3)
    e(f"s_cmp_eq_u32 s{sT1}, 0")
    e(f"s_cbranch_scc1 {name}_pollq_ok")
    e(f"s_sleep {SLEEPQ[0]}")
    e(f"s_branch {name}_pollq")
    a.label(f"{name}_pollq_ok")
    if XM[0]: mark(a, 4)
    e(f"v_cmp_eq_u32 vcc, 0, v0")
    e(f"s_and_saveexec_b64 s[{sT2}:{sT3}], vcc")
    e(f"buffer_store_dword v{vT1}, v{vT0}, s[{SRD_O}:{SRD_O+3}], s{sFlag} offen sc0 sc1")
    e(f"s_mov_b64 exec, s[{sT2}:{sT3}]")
    if INV[0]:
        e("buffer_inv sc1")
    e("s_waitcnt vmcnt(0)")
    if XM[0]: mark(a, 5)
    a.label(f"{name}_qwait")
    bar(a)
    mark(a, 2)
    e(f"s_lshl_b32 s{sT0}, s{sBs}, 5")
    e(f"s_lshl_b32 s{sT1}, s{sHq}, 2")
    e(f"s_add_u32 s{sT1}, s{sT1}, s{sWV}")
    e(f"s_add_u32 s{sT0}, s{sT0}, s{sT1}")
    e(f"s_lshl_b32 s{sT0}, s{sT0}, 13")
    e(f"s_add_u32 s{sT0}, s{sT0}, {QWS_OFF}")
    for s in range(8):
        if s == 4:
            e(f"s_add_u32 s{sT0}, s{sT0}, 4096")
        e(f"buffer_load_dwordx4 v[{QCUR+4*s}:{QCUR+4*s+3}], v{vLane16}, s[{SRD_O}:{SRD_O+3}], s{sT0} offen offset:{(s%4)*1024} {QST[1]}")
    issue_tile(e, SRD_K, sM0a, sKVoff, 0, True, pol)
    issue_tile(e, SRD_V, sM0b, sKVoff, 0, False, pol)
    for s in range(8):
        e(f"v_subrev_u32 v{vKR+s}, s{sW8}, v{vKR+s}")
    e(f"s_lshl_b32 s{sT0}, s{sWV}, 6")
    e(f"v_subrev_u32 v{vT2}, s{sW8}, v{vVR}")
    e(f"v_xor_b32 v{vT2}, s{sT0}, v{vT2}")
    for k in range(4):
        e(f"v_xor_b32 v{vVR+k}, {k*64}, v{vT2}")
    for j in range(64):
        e(f"v_mov_b32 v{O+j}, 0")
    e(f"v_mov_b32 v{vM}, 0xff7fffff")
    e(f"v_mov_b32 v{vL}, 0")
    e(f"s_mov_b32 s{sTask}, 0")
    a.label(f"{name}_chunk")
    e(f"s_add_u32 s{sNextK}, s{sKVoff}, 32768")
    e(f"s_cmp_lt_u32 s{sTask}, 3")
    e(f"s_cselect_b32 s{sNextK}, s{sNextK}, {OOB:#x}")
    e("s_waitcnt vmcnt(8)")
    bar(a)
    def rk(T):
        for s in range(8):
            e(f"ds_read_b128 v[{FK[T&1]+4*s}:{FK[T&1]+4*s+3}], v{vKR+s} offset:{T*8192}")
    def mk(T):
        for s in range(8):
            mfma(e, S+16*T, FK[T&1]+4*s, QCUR+4*s, "0" if s == 0 else None)
    rk(0); rk(1)
    e("s_waitcnt lgkmcnt(8)")
    mk(0)
    rk(2)
    e("s_waitcnt lgkmcnt(8)")
    mk(1)
    rk(3)
    e("s_waitcnt lgkmcnt(8)")
    mk(2)
    e("s_waitcnt lgkmcnt(0)")
    bar(a)
    issue_tile(e, SRD_K, sM0a, sNextK, 0, True, pol)
    mk(3)
    e(f"v_max3_f32 v{vMx}, v{S}, v{S+1}, v{S+2}")
    e(f"v_max3_f32 v{vT0}, v{S+3}, v{S+4}, v{S+5}")
    k = 6; n = 0
    tgt = [vMx, vT0]
    while k + 1 < 64:
        e(f"v_max3_f32 v{tgt[n&1]}, v{tgt[n&1]}, v{S+k}, v{S+k+1}")
        k += 2; n += 1
    e(f"v_max3_f32 v{vMx}, v{vMx}, v{vT0}, v{vM}")
    e(f"v_mov_b32 v{vT0}, v{vMx}")
    a.nop(2)
    e(f"v_permlane32_swap_b32 v{vMx}, v{vT0}")
    a.nop(1)
    e(f"v_max_f32 v{vMx}, v{vMx}, v{vT0}")
    e(f"v_mul_f32 v{vF}, s{sScale}, v{vMx}")
    e(f"v_fma_f32 v{vT1}, v{vM}, s{sScale}, -v{vF}")
    e(f"v_exp_f32 v{vT1}, v{vT1}")
    e(f"v_mov_b32 v{vM}, v{vMx}")
    for k in range(64):
        e(f"v_fma_f32 v{S+k}, v{S+k}, s{sScale}, -v{vF}")
    for k in range(64):
        e(f"v_exp_f32 v{S+k}, v{S+k}")
    for k in range(64):
        e(f"v_mul_f32 v{O+k}, v{O+k}, v{vT1}")
    e(f"v_add_f32 v{vT2}, v{S}, v{S+1}")
    e(f"v_add_f32 v{vT0}, v{S+2}, v{S+3}")
    for k in range(4, 64, 2):
        e(f"v_add_f32 v{vT2}, v{vT2}, v{S+k}")
        e(f"v_add_f32 v{vT0}, v{vT0}, v{S+k+1}")
    for k in range(32):
        e(f"v_cvt_pk_bf16_f32 v{S+k}, v{S+2*k}, v{S+2*k+1}")
    e(f"v_add_f32 v{vT2}, v{vT2}, v{vT0}")
    e(f"v_fma_f32 v{vL}, v{vL}, v{vT1}, v{vT2}")
    e("s_waitcnt vmcnt(8)")
    bar(a)
    FV = [S+32, QOWN]
    def rv(T):
        for k in range(4):
            for u in range(2):
                for half in range(2):
                    r = FV[T&1] + 8*k + 4*u + 2*half
                    e(f"ds_read_b64_tr_b16 v[{r}:{r+1}], v{vVR+k} offset:{LDS_RING1 + T*8192 + (16*u+8*half)*256}")
    def mv(T):
        for u in range(2):
            for k in range(4):
                mfma(e, O+16*k, FV[T&1]+8*k+4*u, S+8*T+4*u)
    rv(0)
    e("s_waitcnt lgkmcnt(0)")
    rv(1); mv(0)
    e("s_waitcnt lgkmcnt(0)")
    rv(2); mv(1)
    e("s_waitcnt lgkmcnt(0)")
    rv(3); mv(2)
    e("s_waitcnt lgkmcnt(0)")
    bar(a)
    issue_tile(e, SRD_V, sM0b, sNextK, 0, False, pol)
    mv(3)
    if TIMING[0]:
        ts_mark(a, 76)
        for k in range(4):
            e(f"s_cmp_eq_u32 s{sTask}, {k}")
            if not XM[0] or k == 3:
                e(f"s_cselect_b32 s{MK[3+k]}, s76, s{MK[3+k]}")
    e(f"s_mov_b32 s{sKVoff}, s{sNextK}")
    e(f"s_add_u32 s{sTask}, s{sTask}, 1")
    e(f"s_cmp_lt_u32 s{sTask}, 4")
    e(f"s_cbranch_scc1 {name}_chunk")
    e(f"v_mov_b32 v{vT0}, v{vL}")
    a.nop(2)
    e(f"v_permlane32_swap_b32 v{vL}, v{vT0}")
    a.nop(1)
    e(f"v_add_f32 v{vL}, v{vL}, v{vT0}")
    e(f"v_rcp_f32 v{vF}, v{vL}")
    a.nop(8)
    for k in range(64):
        e(f"v_mul_f32 v{O+k}, v{O+k}, v{vF}")
    for k in range(32):
        e(f"v_cvt_pk_bf16_f32 v{S+k}, v{O+2*k}, v{O+2*k+1}")
    e("s_waitcnt vmcnt(0)")
    e(f"s_lshl_b32 s{sT0}, s{sBs}, 18")
    e(f"s_lshl_b32 s{sT1}, s{sHq}, 2")
    e(f"s_add_u32 s{sT1}, s{sT1}, s{sWV}")
    e(f"s_lshl_b32 s{sT1}, s{sT1}, 13")
    e(f"s_add_u32 s{sT0}, s{sT0}, s{sT1}")
    for f in range(8):
        if f == 4:
            e(f"s_add_u32 s{sT0}, s{sT0}, 4096")
        e(f"buffer_store_dwordx4 v[{S+4*f}:{S+4*f+3}], v{vLane16}, s[{SRD_O}:{SRD_O+3}], s{sT0} offen offset:{(f%4)*1024}")


def gen_attn(a, name, timing=False, pol_x="nt", pol_w="nt", pol_kv="nt", touch=True, delay_a=True, thresh=32, bound=64, qmarks=False, only=None, qonly=False, qskip='', qorder='adv', look=2, prio_a=0, prio_b=0, touch_a=False, sleep_q=8, sleep_b=48, xmarks=False, use_inv=False, altprio=False, psig=10, pairwait=0, wo_early=None, asym=False, pol_kv_a=None, clk=False, single=False, exp_sleep=0, wo_pf=None, wtouch=0, prio_flash=0, qst='sc0 sc1', qld='sc0 sc1'):
    kernel_header(a, name)
    e = a.e
    TIMING[0] = timing
    QMARKS[0] = qmarks
    QSKIP[0] = qskip
    QORDER[0] = qorder
    LOOK[0] = look
    SLEEPQ[0] = sleep_q
    XM[0] = xmarks
    ALT[0] = altprio
    ASYM[0] = asym
    PSIG[0] = psig if pairwait else 0
    SINGLE[0] = single
    GB[0] = 0
    WT[0] = wtouch
    INV[0] = use_inv
    QST[0] = qst
    QST[1] = qld
    gen_prologue(a, name, timing)
    if only == "B":
        e(f"s_cmp_lg_u32 s{sRole}, 0")
        e(f"s_cbranch_scc1 {name}_done")
    if only == "A":
        e(f"s_cmp_eq_u32 s{sRole}, 0")
        e(f"s_cbranch_scc1 {name}_done")
    if timing:
        for k in range(8):
            e(f"s_mov_b32 s{MK[k]}, 0")
    e(f"s_and_b32 s{sT2}, s{sH}, 3")
    e(f"s_lshl_b32 s{sT2}, s{sT2}, 3")
    e(f"s_add_u32 s{sBs}, s{sT2}, s{sI}")
    e(f"s_lshr_b32 s{sHq}, s{sH}, 2")
    e(f"s_lshl_b32 s{sT0}, s{sI}, 5")
    e(f"s_add_u32 s{sT0}, s{sT0}, s{sH}")
    e(f"s_lshl_b32 s{sT1}, s{sBs}, 2")
    e(f"s_lshr_b32 s{sT2}, s{sH}, 3")
    e(f"s_add_u32 s{sT1}, s{sT1}, s{sT2}")
    e(f"s_cmp_eq_u32 s{sRole}, 0")
    e(f"s_cselect_b32 s{sKVoff}, s{sT0}, s{sT1}")
    e(f"s_lshl_b32 s{sKVoff}, s{sKVoff}, 17")
    e(f"s_add_u32 s{sKVoff}, s{sKVoff}, s{sW8}")
    e(f"s_mov_b32 s{sOoff}, {8*32*131072}")
    if pairwait:
        e(f"s_and_b32 s{sT0}, s2, 255")
        e(f"s_lshl_b32 s{sT0}, s{sT0}, 8")
        e(f"s_add_u32 s{sT0}, s{sT0}, {PAIR_OFF}")
        e(f"s_add_u32 s{sPairP}, s{SRD_O}, s{sT0}")
        e(f"s_addc_u32 s{sPairP+1}, s{SRD_O+1}, 0")
        e(f"s_load_dword s{sPairN}, s[{sPairP}:{sPairP+1}], 0 glc")
    e(f"s_cmp_eq_u32 s{sRole}, 0")
    e(f"s_cbranch_scc1 {name}_startb")
    if pairwait:
        e("s_waitcnt lgkmcnt(0)")
        e(f"s_mul_i32 s{sPairN}, s{sPairN}, 0x9e3779b1")
        e(f"s_add_u32 s{sPairN}, s{sPairN}, 0x7f4a7c15")
        e(f"s_mov_b32 s{sT3}, {pairwait}")
        a.label(f"{name}_pw")
        e(f"s_load_dword s{sT1}, s[{sPairP}:{sPairP+1}], 16 glc")
        e("s_waitcnt lgkmcnt(0)")
        e(f"s_cmp_eq_u32 s{sT1}, s{sPairN}")
        e(f"s_cbranch_scc1 {name}_pw_ok")
        e(f"s_sub_u32 s{sT3}, s{sT3}, 1")
        e(f"s_cmp_eq_u32 s{sT3}, 0")
        e(f"s_cbranch_scc1 {name}_pw_ok")
        e("s_sleep 4")
        e(f"s_branch {name}_pw")
        a.label(f"{name}_pw_ok")
        e(f"s_cmp_lg_u32 s{sWV}, 0")
        e(f"s_cbranch_scc1 {name}_pw_d")
        e(f"s_and_b32 s{sT0}, s2, 255")
        e(f"s_lshl_b32 s{sT0}, s{sT0}, 8")
        e(f"s_add_u32 s{sT0}, s{sT0}, {PAIR_OFF}")
        e(f"v_mov_b32 v{vT0}, 0")
        e(f"v_mov_b32 v{vT1}, s{sPairN}")
        e(f"v_cmp_eq_u32 vcc, 0, v0")
        e(f"s_and_saveexec_b64 s[{sT2}:{sT3}], vcc")
        e(f"buffer_store_dword v{vT1}, v{vT0}, s[{SRD_O}:{SRD_O+3}], s{sT0} offen sc0 sc1")
        e(f"s_mov_b64 exec, s[{sT2}:{sT3}]")
        a.label(f"{name}_pw_d")
    if wo_early is not None:
        e(f"s_load_dwordx2 s[52:53], s[0:1], 32")
        e(f"s_load_dwordx2 s[54:55], s[0:1], 72")
        e(f"s_and_b32 s{sT0}, s2, 255")
        e(f"s_lshl_b32 s{sT0}, s{sT0}, 2")
        e(f"s_add_u32 s{sT0}, s{sT0}, s{sWV}")
        e(f"s_waitcnt lgkmcnt(0)")
        e(f"s_cmp_lt_u32 s{sT0}, 512")
        e(f"s_cselect_b32 s{SRD_T}, s52, s54")
        e(f"s_cselect_b32 s{SRD_T+1}, s53, s55")
        e(f"s_and_b32 s{SRD_T+1}, s{SRD_T+1}, 0xffff")
        e(f"s_mov_b32 s{SRD_T+2}, {4096*1024*2}")
        e(f"s_mov_b32 s{SRD_T+3}, 0x20000")
        e(f"s_and_b32 s{sT0}, s{sT0}, 511")
        e(f"s_lshl_b32 s{sT0}, s{sT0}, 14")
        e(f"v_lshlrev_b32 v{vT0}, 7, v0")
        e(f"buffer_load_dword v{vT2}, v{vT0}, s[{SRD_T}:{SRD_T+3}], s{sT0} offen {wo_early}")
        e(f"s_add_u32 s{sT0}, s{sT0}, 8192")
        e(f"buffer_load_dword v{vT3}, v{vT0}, s[{SRD_T}:{SRD_T+3}], s{sT0} offen {wo_early}")
        e("s_waitcnt vmcnt(0)")
    if asym:
        for k in range(16):
            e("s_barrier")
        e("s_barrier")
        e(f"v_mov_b32 v{vT3}, 0")
        e(f"ds_write_b32 v{vBarA}, v{vT3}")
        e("s_waitcnt lgkmcnt(0)")
        e("s_barrier")
    if exp_sleep:
        for k in range(exp_sleep):
            e("s_sleep 127")
    if delay_a:
        e(f"s_lshl_b32 s{sT4}, s{sX}, 2")
        e(f"s_cmp_lg_u32 s{sWV}, 0")
        e(f"s_cbranch_scc1 {name}_await")
        poll_counter(a, f"{name}_pollb", sT4, 255, None, thresh, bound, sleep=sleep_b)
        a.label(f"{name}_await")
        e("s_barrier")
    e(f"s_lshl_b32 s{sFlag}, s{sHq}, 3")
    e(f"s_add_u32 s{sFlag}, s{sFlag}, s{sI}")
    e(f"s_lshl_b32 s{sFlag}, s{sFlag}, 8")
    e(f"s_add_u32 s{sFlag}, s{sFlag}, {FLAG_OFF}")
    e(f"v_mov_b32 v{vT0}, 0")
    e(f"buffer_load_dword v{vNon}, v{vT0}, s[{SRD_O}:{SRD_O+3}], s{sFlag} offen sc0 sc1")
    if prio_a:
        e(f"s_setprio {prio_a}")
    if touch_a:
        gen_touch(a, pol_w)
    e(f"s_branch {name}_q")
    a.label(f"{name}_startb")
    if prio_b:
        e(f"s_setprio {prio_b}")
    if touch:
        gen_touch(a, pol_w)
    a.label(f"{name}_q")
    mark(a, 0)
    if clk:
        e("s_memtime s[76:77]")
        e("s_waitcnt lgkmcnt(0)")
        e(f"s_mov_b32 s{MK[5]}, s76")

    def hook_w():
        e(f"s_cmp_lg_u32 s{sRole}, 0")
        e(f"s_cbranch_scc1 {name}_hw")
        if delay_a:
            e(f"s_lshl_b32 s{sT4}, s{sX}, 2")
            signal(a, f"{name}_sigb", sT4, "1")
        issue_tile(e, SRD_K, sM0a, sKVoff, 0, True, pol_kv)
        a.label(f"{name}_hw")
    def hook_x():
        if LOOK[0] != 2:
            return
        e(f"s_cmp_lg_u32 s{sRole}, 0")
        e(f"s_cbranch_scc1 {name}_hx")
        issue_tile(e, SRD_K, sM0b, sKVoff, 32768, True, pol_kv)
        a.label(f"{name}_hx")
    gen_qproj(a, name, pol_x, pol_w, hook_w, hook_x)
    mark(a, 1)
    if clk:
        e("s_memtime s[76:77]")
        e("s_waitcnt lgkmcnt(0)")
        e(f"s_sub_u32 s{MK[6]}, s76, s{MK[5]}")
        e(f"s_mov_b32 s{MK[5]}, 0")
    if ALT[0]:
        e("s_setprio 0")
    if qonly:
        e(f"s_branch {name}_end")
    if single and asym:
        e(f"s_cmp_lg_u32 s{sRole}, 0")
        e(f"s_cbranch_scc1 {name}_rolea")
        e("s_barrier")
        e(f"v_mov_b32 v{vT3}, 0")
        e(f"ds_write_b32 v{vBarA}, v{vT3}")
        e("s_waitcnt lgkmcnt(0)")
        e("s_barrier")
    elif single:
        e("s_barrier")
        e(f"v_mov_b32 v{vT3}, 0")
        e(f"ds_write_b32 v{vBarA}, v{vT3}")
        e("s_waitcnt lgkmcnt(0)")
        e("s_barrier")
    e(f"s_cmp_lg_u32 s{sRole}, 0")
    e(f"s_cbranch_scc1 {name}_rolea")
    if not single:
        e("s_barrier")
    q_broadcast(a, name, "q0", "0")
    e(f"s_mov_b32 s{sTask}, 0")
    gen_m1(a, name, pol_kv)
    e(f"s_branch {name}_end")
    a.label(f"{name}_rolea")
    e(f"s_setprio {prio_flash}")
    gen_flash(a, name, pol_kv if pol_kv_a is None else pol_kv_a)
    a.label(f"{name}_end")
    if wo_pf is not None:
        e(f"s_load_dwordx2 s[52:53], s[0:1], 32")
        e(f"s_load_dwordx2 s[54:55], s[0:1], 72")
        e(f"s_waitcnt lgkmcnt(0)")
        e(f"s_cmp_lt_u32 s{sX}, 4")
        e(f"s_cselect_b32 s{SRD_W}, s52, s54")
        e(f"s_cselect_b32 s{SRD_W+1}, s53, s55")
        e(f"s_and_b32 s{SRD_W+1}, s{SRD_W+1}, 0xffff")
        e(f"s_mov_b32 s{SRD_W+2}, {4096*1024*2}")
        e(f"s_mov_b32 s{SRD_W+3}, 0x20000")
        if single:
            e(f"s_lshr_b32 s{sT0}, s2, 3")
            e(f"s_lshl_b32 s{sT0}, s{sT0}, 3")
            e(f"s_add_u32 s{sT0}, s{sT0}, s{sWid}")
        else:
            e(f"s_lshr_b32 s{sT0}, s2, 3")
            e(f"s_lshl_b32 s{sT0}, s{sT0}, 2")
            e(f"s_add_u32 s{sT0}, s{sT0}, s{sWV}")
        e(f"s_lshl_b32 s{sT0}, s{sT0}, 14")
        e(f"s_and_b32 s{sT1}, s{sX}, 1")
        e(f"s_lshl_b32 s{sT1}, s{sT1}, 10")
        e(f"s_add_u32 s{sT0}, s{sT0}, s{sT1}")
        e(f"s_bfe_u32 s{sT1}, s{sX}, 0x10001")
        e(f"s_lshl_b32 s{sT1}, s{sT1}, 22")
        e(f"s_add_u32 s{sT0}, s{sT0}, s{sT1}")
        e(f"v_lshrrev_b32 v{vT0}, 3, v0")
        e(f"v_lshlrev_b32 v{vT0}, 11, v{vT0}")
        e(f"v_and_b32 v{vT1}, 7, v0")
        e(f"v_lshlrev_b32 v{vT1}, 7, v{vT1}")
        e(f"v_add_u32 v{vT0}, v{vT0}, v{vT1}")
        e(f"buffer_load_dword v{vT2}, v{vT0}, s[{SRD_W}:{SRD_W+3}], s{sT0} offen {wo_pf}")
    e("s_waitcnt vmcnt(0)")
    if timing:
        mark(a, 7)
        ts_dump(a, [sTS] + MK[0:7], 0, sWid if single else sWV, 52, 8, nwaves=8 if single else 4)
        ts_end(a, sTS, 0, sWid if single else sWV, 52, 2, nwaves=8 if single else 4)
    a.label(f"{name}_done")
    e("s_endpgm")
    return dict(nv=256, ns=NS, lds=LDS_BYTES*(2 if single else 1), threads=512 if single else 256, grid=256 if single else 512)
```

```python
from asmlib import *
from oproj2 import interleave

NST = 32
OOB = 0x80000000
OSLOT, NO = 16384, 4
WSLOT, NW = 32768, 3
WBASE = NO * OSLOT
PART_OFF = 64 << 20
PFLAG_OFF = 49 << 20

def gen_oproj(a, name, pol_o="", pol_w="", timing=False, skip="", order="adv", sleep=4, prio_l=0, prio_c=0, xpol="sc0 sc1"):
    kernel_header(a, name)
    e = a.e
    sWV = 4
    SRD_O, SRD_W, SRD_OUT, SRD_P = 8, 12, 16, 60
    sO, sW, sFill, sReadO, sCnt, sT0, sT1, sT2, sBr, sB0, sCol = 20, 21, 22, 23, 24, 25, 26, 27, 28, 29, 30
    sOx, sIss, sCls, sWx, sM0o, sM0w, sLW, sReadW, sGrp, sWfill = 31, 42, 43, 52, 53, 54, 55, 56, 57, 58
    sKh, sPair, sNon, sFlag = 59, 64, 65, 66
    vLane16, vRO, vRO2, vT, vT2, vOut, vNon = 1, 2, 3, 4, 5, 6, 7
    vRW = 8
    vRW2 = 10
    vWD = 12
    ACC = 16
    FA = [80, 144]
    FB = [112, 176]
    NV = 208

    e("s_cmp_ge_u32 s2, 256")
    e(f"s_cbranch_scc1 {name}_done")
    if timing:
        ts_begin(a, 40)
    e("s_load_dwordx2 s[32:33], s[0:1], 32")
    e("s_load_dwordx2 s[34:35], s[0:1], 72")
    e("s_load_dwordx2 s[36:37], s[0:1], 80")
    e("s_load_dwordx2 s[38:39], s[0:1], 96")
    e("v_lshrrev_b32 v8, 6, v0")
    e("v_and_b32 v0, 63, v0")
    e(f"v_readfirstlane_b32 s{sWV}, v8")
    e(f"s_and_b32 s{sT0}, s2, 7")
    e(f"s_lshr_b32 s{sT1}, s2, 3")
    e(f"s_lshr_b32 s{sBr}, s{sT0}, 2")
    e(f"s_bfe_u32 s{sKh}, s{sT0}, 0x10001")
    e(f"s_lshr_b32 s{sT2}, s{sT1}, 2")
    e(f"s_lshl_b32 s{sB0}, s{sT2}, 2")
    e(f"s_mov_b32 s{sCls}, s{sT2}")
    e(f"s_and_b32 s{sT2}, s{sT1}, 3")
    e(f"s_add_u32 s{sCls}, s{sCls}, s{sT2}")
    e(f"s_and_b32 s{sCls}, s{sCls}, 3")
    e(f"s_lshl_b32 s{sT2}, s{sT2}, 7")
    e(f"s_and_b32 s{sCol}, s{sT0}, 1")
    e(f"s_lshl_b32 s{sCol}, s{sCol}, 9")
    e(f"s_add_u32 s{sCol}, s{sCol}, s{sT2}")
    e(f"s_and_b32 s{sPair}, s{sT0}, 1")
    e(f"s_lshl_b32 s{sT2}, s{sBr}, 1")
    e(f"s_add_u32 s{sPair}, s{sPair}, s{sT2}")
    e(f"s_lshl_b32 s{sPair}, s{sPair}, 5")
    e(f"s_add_u32 s{sPair}, s{sPair}, s{sT1}")
    e(f"v_lshlrev_b32 v{vLane16}, 4, v0")
    e("s_waitcnt lgkmcnt(0)")
    e(f"s_cmp_ge_u32 s{sWV}, 4")
    e(f"s_cbranch_scc1 {name}_loader")

    if prio_c:
        e(f"s_setprio {prio_c}")
    e(f"s_mov_b32 s{SRD_P}, s38")
    e(f"s_and_b32 s{SRD_P+1}, s39, 0xffff")
    e(f"s_mov_b32 s{SRD_P+2}, {96 << 20}")
    e(f"s_mov_b32 s{SRD_P+3}, 0x20000")
    e(f"s_lshl_b32 s{sFlag}, s{sPair}, 8")
    e(f"s_add_u32 s{sFlag}, s{sFlag}, {PFLAG_OFF}")
    e(f"v_mov_b32 v{vT}, 0")
    e(f"buffer_load_dword v{vNon}, v{vT}, s[{SRD_P}:{SRD_P+3}], s{sFlag} offen sc0 sc1")
    e(f"s_mov_b32 s{SRD_OUT}, s36")
    e(f"s_and_b32 s{SRD_OUT+1}, s37, 0xffff")
    e(f"s_mov_b32 s{SRD_OUT+2}, {1024*2048*2}")
    e(f"s_mov_b32 s{SRD_OUT+3}, 0x20000")
    e(f"s_lshr_b32 s{sT0}, s{sWV}, 1")
    e(f"s_lshl_b32 s{sT0}, s{sT0}, 13")
    e(f"v_add_u32 v{vRO}, s{sT0}, v{vLane16}")
    e(f"v_bfe_u32 v{vT}, v0, 2, 2")
    e(f"v_lshlrev_b32 v{vRW}, 6, v{vT}")
    e(f"v_bfe_u32 v{vT2}, v0, 4, 1")
    e(f"v_lshlrev_b32 v{vT2}, 5, v{vT2}")
    e(f"v_add_u32 v{vRW}, v{vRW}, v{vT2}")
    e(f"v_and_b32 v{vT2}, 1, v0")
    e(f"v_lshlrev_b32 v{vT2}, 4, v{vT2}")
    e(f"v_add_u32 v{vRW}, v{vRW}, v{vT2}")
    e(f"v_bfe_u32 v{vT2}, v0, 1, 1")
    e(f"v_lshlrev_b32 v{vT2}, 3, v{vT2}")
    e(f"v_add_u32 v{vRW}, v{vRW}, v{vT2}")
    e(f"v_lshrrev_b32 v{vT2}, 5, v0")
    e(f"v_lshlrev_b32 v{vT2}, 3, v{vT2}")
    e(f"v_add_u32 v{vT2}, v{vT2}, v{vT}")
    e(f"v_lshlrev_b32 v{vT2}, 8, v{vT2}")
    e(f"v_add_u32 v{vRW}, v{vRW}, v{vT2}")
    e(f"v_add_u32 v{vRW}, {WBASE}, v{vRW}")
    e(f"s_and_b32 s{sT0}, s{sWV}, 1")
    e(f"s_lshl_b32 s{sT0}, s{sT0}, 7")
    e(f"v_xor_b32 v{vRW}, s{sT0}, v{vRW}")
    e(f"v_xor_b32 v{vRW+1}, 64, v{vRW}")
    e(f"v_and_b32 v{vOut}, 31, v0")
    e(f"v_lshlrev_b32 v{vOut}, 12, v{vOut}")
    e(f"v_lshrrev_b32 v{vT}, 5, v0")
    e(f"v_lshlrev_b32 v{vT}, 4, v{vT}")
    e(f"v_add_u32 v{vOut}, v{vOut}, v{vT}")
    e(f"v_add_u32 v{vOut}, s{sT0}, v{vOut}")
    e(f"s_mov_b32 s{sReadO}, 0")
    e(f"s_mov_b32 s{sReadW}, 0")
    e(f"s_mov_b32 s{sCnt}, 0")
    for r in range(64):
        e(f"v_mov_b32 v{ACC+r}, 0")
    for r in range(64):
        e(f"v_mov_b32 v{FA[1]+r}, 0")
    e("s_waitcnt vmcnt(0)")

    def reads(k):
        L = []
        for u in range(4):
            for mt in range(2):
                for half in range(2):
                    r = FA[k] + 16*mt + 4*u + 2*half
                    L.append(f"ds_read_b64_tr_b16 v[{r}:{r+1}], v{vRW2+mt} offset:{(16*u + 4*half)*256}")
            for t in range(2):
                r = FB[k] + 16*t + 4*u
                L.append(f"ds_read_b128 v[{r}:{r+3}], v{vRO2} offset:{t*4096 + u*1024}")
        return L

    def mfmas(k):
        L = []
        for u in range(4):
            for t in range(2):
                for mt in range(2):
                    d = ACC + 32*t + 16*mt
                    L.append(f"v_mfma_f32_32x32x16_bf16 v[{d}:{d+15}], v[{FA[k]+16*mt+4*u}:{FA[k]+16*mt+4*u+3}], v[{FB[k]+16*t+4*u}:{FB[k]+16*t+4*u+3}], v[{d}:{d+15}]")
        return L

    a.label(f"{name}_cloop")
    for k in range(2):
        e("s_barrier")
        e(f"v_add_u32 v{vRO2}, s{sReadO}, v{vRO}")
        e(f"v_add_u32 v{vRW2}, s{sReadW}, v{vRW}")
        e(f"v_add_u32 v{vRW2+1}, s{sReadW}, v{vRW+1}")
        e("s_waitcnt lgkmcnt(0)")
        fill = reads(k) if "r" not in skip else []
        fill += [f"s_add_u32 s{sReadO}, s{sReadO}, {OSLOT}",
                 f"s_and_b32 s{sReadO}, s{sReadO}, {NO*OSLOT-1}",
                 f"s_add_u32 s{sReadW}, s{sReadW}, 16384",
                 f"s_cmp_eq_u32 s{sReadW}, {NW*WSLOT}",
                 f"s_cselect_b32 s{sReadW}, 0, s{sReadW}",
                 f"s_add_u32 s{sCnt}, s{sCnt}, 1"]
        main = mfmas(1-k) if "m" not in skip else []
        if main:
            for ln in interleave(main, fill, [2]*12 + [3, 3, 0, 0]):
                e(ln)
        else:
            for ln in fill:
                e(ln)
    e(f"s_cmp_lt_u32 s{sCnt}, {NST}")
    e(f"s_cbranch_scc1 {name}_cloop")
    e("s_waitcnt lgkmcnt(0)")
    for ln in mfmas(1):
        e(ln)
    e("s_waitcnt vmcnt(0)")
    e(f"v_readfirstlane_b32 s{sNon}, v{vNon}")
    a.nop(3)
    e(f"s_mul_i32 s{sNon}, s{sNon}, 0x9e3779b1")
    e(f"s_add_u32 s{sNon}, s{sNon}, 0x7f4a7c15")
    e(f"s_lshr_b32 s{sT0}, s{sWV}, 1")
    e(f"s_and_b32 s{sT1}, s{sWV}, 1")
    e(f"s_cmp_eq_u32 s{sT0}, s{sKh}")
    e(f"s_cbranch_scc1 {name}_recv")
    e(f"s_lshl_b32 s{sT2}, s{sPair}, 1")
    e(f"s_add_u32 s{sT2}, s{sT2}, s{sKh}")
    e(f"s_lshl_b32 s{sT2}, s{sT2}, 1")
    e(f"s_add_u32 s{sT2}, s{sT2}, s{sT1}")
    e(f"s_lshl_b32 s{sOx}, s{sT2}, 14")
    e(f"s_add_u32 s{sOx}, s{sOx}, {PART_OFF}")
    a.nop(6)
    for rq in range(16):
        e(f"buffer_store_dwordx4 v[{ACC+4*rq}:{ACC+4*rq+3}], v{vLane16}, s[{SRD_P}:{SRD_P+3}], s{sOx} offen offset:{(rq%4)*1024} {xpol}")
        if rq % 4 == 3 and rq != 15:
            e(f"s_add_u32 s{sOx}, s{sOx}, 4096")
    e("s_waitcnt vmcnt(0)")
    e(f"s_lshl_b32 s{sT2}, s{sKh}, 1")
    e(f"s_add_u32 s{sT2}, s{sT2}, s{sT1}")
    e(f"s_lshl_b32 s{sT2}, s{sT2}, 2")
    e(f"s_add_u32 s{sT2}, s{sT2}, s{sFlag}")
    e(f"v_mov_b32 v{vT}, 0")
    e(f"v_mov_b32 v{vT2}, s{sNon}")
    e(f"v_cmp_eq_u32 vcc, 0, v0")
    e(f"s_and_saveexec_b64 s[44:45], vcc")
    e(f"buffer_store_dword v{vT2}, v{vT}, s[{SRD_P}:{SRD_P+3}], s{sT2} offen offset:16 sc0 sc1")
    e(f"s_mov_b64 exec, s[44:45]")
    e("s_waitcnt vmcnt(0)")
    e(f"s_branch {name}_fin")
    a.label(f"{name}_recv")
    e(f"s_xor_b32 s{sT2}, s{sKh}, 1")
    e(f"s_lshl_b32 s{sT2}, s{sT2}, 1")
    e(f"s_add_u32 s{sT2}, s{sT2}, s{sT1}")
    e(f"s_lshl_b32 s{sWx}, s{sT2}, 2")
    e(f"s_add_u32 s{sWx}, s{sWx}, s{sFlag}")
    e(f"s_lshl_b32 s{sOx}, s{sPair}, 2")
    e(f"s_add_u32 s{sOx}, s{sOx}, s{sT2}")
    e(f"s_lshl_b32 s{sOx}, s{sOx}, 14")
    e(f"s_add_u32 s{sOx}, s{sOx}, {PART_OFF}")
    e(f"v_mov_b32 v{vT}, 0")
    a.label(f"{name}_poll")
    e(f"buffer_load_dword v{vT2}, v{vT}, s[{SRD_P}:{SRD_P+3}], s{sWx} offen offset:16 sc0 sc1")
    e("s_waitcnt vmcnt(0)")
    e(f"v_readfirstlane_b32 s{sT2}, v{vT2}")
    a.nop(3)
    e(f"s_cmp_eq_u32 s{sT2}, s{sNon}")
    e(f"s_cbranch_scc1 {name}_got")
    e(f"s_sleep {sleep}")
    e(f"s_branch {name}_poll")
    a.label(f"{name}_got")
    IN = FA[0]
    for rq in range(16):
        e(f"buffer_load_dwordx4 v[{IN+4*rq}:{IN+4*rq+3}], v{vLane16}, s[{SRD_P}:{SRD_P+3}], s{sOx} offen offset:{(rq%4)*1024} sc0 sc1")
        if rq % 4 == 3 and rq != 15:
            e(f"s_add_u32 s{sOx}, s{sOx}, 4096")
    e(f"s_lshl_b32 s{sT0}, s{sKh}, 1")
    e(f"s_add_u32 s{sT0}, s{sT0}, s{sB0}")
    e(f"s_lshl_b32 s{sT0}, s{sT0}, 17")
    e(f"s_lshl_b32 s{sT1}, s{sBr}, 11")
    e(f"s_add_u32 s{sT0}, s{sT0}, s{sT1}")
    e(f"s_lshl_b32 s{sT1}, s{sCol}, 1")
    e(f"s_add_u32 s{sT0}, s{sT0}, s{sT1}")
    e(f"s_add_u32 s{sT1}, s{sT0}, {32*4096}")
    e("s_waitcnt vmcnt(0)")
    for r in range(64):
        e(f"v_add_f32 v{ACC+r}, v{ACC+r}, v{IN+r}")
    P = FB[1]
    for t in range(2):
        for mt in range(2):
            for sg in range(2):
                for i in range(4):
                    src = ACC + 32*t + 16*mt + 8*sg + 2*i
                    e(f"v_cvt_pk_bf16_f32 v{P + 16*t + 8*mt + 4*sg + i}, v{src}, v{src+1}")
    for t in range(2):
        for mt in range(2):
            for sg in range(2):
                r = P + 16*t + 8*mt + 4*sg
                e(f"buffer_store_dwordx4 v[{r}:{r+3}], v{vOut}, s[{SRD_OUT}:{SRD_OUT+3}], s{sT0 if t == 0 else sT1} offen offset:{64*mt + 32*sg}")
    e(f"v_mov_b32 v{vT}, 0")
    e(f"v_mov_b32 v{vT2}, s{sNon}")
    e(f"v_cmp_eq_u32 vcc, 0, v0")
    e(f"s_and_saveexec_b64 s[44:45], vcc")
    e(f"buffer_store_dword v{vT2}, v{vT}, s[{SRD_P}:{SRD_P+3}], s{sFlag} offen sc0 sc1")
    e(f"s_mov_b64 exec, s[44:45]")
    e("s_waitcnt vmcnt(0)")
    e(f"s_branch {name}_fin")

    a.label(f"{name}_loader")
    if prio_l:
        e(f"s_setprio {prio_l}")
    e(f"s_sub_u32 s{sLW}, s{sWV}, 4")
    e(f"v_lshrrev_b32 v{vT}, 4, v0")
    e(f"v_and_b32 v{vT2}, 15, v0")
    e(f"v_lshlrev_b32 v{vWD}, 2, v{vT}")
    e(f"v_xor_b32 v{vWD}, v{vWD}, v{vT2}")
    e(f"v_lshlrev_b32 v{vWD}, 4, v{vWD}")
    e(f"v_lshlrev_b32 v{vT}, 11, v{vT}")
    e(f"v_add_u32 v{vWD}, v{vWD}, v{vT}")
    for k in range(1, 4):
        e(f"v_add_u32 v{vWD+k}, {k*(4*2048 - 1024)}, v{vWD}")
    e(f"s_cmp_eq_u32 s{sBr}, 0")
    e(f"s_cselect_b32 s{SRD_W}, s32, s34")
    e(f"s_cselect_b32 s{SRD_W+1}, s33, s35")
    e(f"s_and_b32 s{SRD_W+1}, s{SRD_W+1}, 0xffff")
    e(f"s_mov_b32 s{SRD_W+2}, {4096*1024*2}")
    e(f"s_mov_b32 s{SRD_W+3}, 0x20000")
    e(f"s_mov_b32 s{SRD_O}, s38")
    e(f"s_and_b32 s{SRD_O+1}, s39, 0xffff")
    e(f"s_mov_b32 s{SRD_O+2}, {2*8388608}")
    e(f"s_mov_b32 s{SRD_O+3}, 0x20000")
    e(f"s_add_u32 s{sT0}, s{sB0}, s{sLW}")
    e(f"s_lshl_b32 s{sO}, s{sT0}, 18")
    e(f"s_lshl_b32 s{sT0}, s{sBr}, 23")
    e(f"s_add_u32 s{sO}, s{sO}, s{sT0}")
    e(f"s_lshl_b32 s{sT0}, s{sKh}, 17")
    e(f"s_add_u32 s{sO}, s{sO}, s{sT0}")
    e(f"s_lshl_b32 s{sW}, s{sLW}, 16")
    e(f"s_lshl_b32 s{sT0}, s{sCol}, 1")
    e(f"s_add_u32 s{sW}, s{sW}, s{sT0}")
    e(f"s_lshl_b32 s{sT0}, s{sKh}, 22")
    e(f"s_add_u32 s{sW}, s{sW}, s{sT0}")
    e(f"s_lshl_b32 s{sM0o}, s{sLW}, 12")
    e(f"s_lshl_b32 s{sM0w}, s{sLW}, 13")
    e(f"s_add_u32 s{sM0w}, s{sM0w}, {WBASE}")

    def group_of(pos_reg, dst):
        if order == "adv":
            e(f"s_add_u32 s{sT2}, s{pos_reg}, 1")
            e(f"s_sub_u32 s{sT2}, s{sT2}, s{sCls}")
            e(f"s_and_b32 s{sT2}, s{sT2}, 3")
            e(f"s_cmp_eq_u32 s{sT2}, 0")
            e(f"s_cselect_b32 s{sT0}, 1, 0")
            e(f"s_cmp_eq_u32 s{sT2}, 1")
            e(f"s_cselect_b32 s{sT0}, -1, s{sT0}")
            e(f"s_add_u32 s{dst}, s{pos_reg}, s{sT0}")
            e(f"s_cmp_lt_u32 s{dst}, 16")
            e(f"s_cselect_b32 s{dst}, s{dst}, s{pos_reg}")
        else:
            e(f"s_mov_b32 s{dst}, s{pos_reg}")

    def issue_o():
        e(f"s_lshr_b32 s{sT1}, s{sIss}, 1")
        group_of(sT1, sOx)
        e(f"s_lshl_b32 s{sOx}, s{sOx}, 1")
        e(f"s_and_b32 s{sT0}, s{sIss}, 1")
        e(f"s_add_u32 s{sOx}, s{sOx}, s{sT0}")
        e(f"s_lshl_b32 s{sOx}, s{sOx}, 12")
        e(f"s_add_u32 s{sOx}, s{sOx}, s{sO}")
        e(f"s_cmp_lt_u32 s{sIss}, {NST}")
        e(f"s_cselect_b32 s{sOx}, s{sOx}, {OOB:#x}")
        e(f"s_add_u32 m0, s{sFill}, s{sM0o}")
        e(f"s_add_u32 s{sIss}, s{sIss}, 1")
        for k in range(4):
            e(f"buffer_load_dwordx4 v{vLane16}, s[{SRD_O}:{SRD_O+3}], s{sOx} offen offset:{k*1024} {pol_o} lds")
        e(f"s_add_u32 s{sFill}, s{sFill}, {OSLOT}")
        e(f"s_and_b32 s{sFill}, s{sFill}, {NO*OSLOT-1}")

    def issue_w():
        group_of(sGrp, sWx)
        e(f"s_lshl_b32 s{sWx}, s{sWx}, 18")
        e(f"s_add_u32 s{sWx}, s{sWx}, s{sW}")
        e(f"s_cmp_lt_u32 s{sGrp}, 16")
        e(f"s_cselect_b32 s{sWx}, s{sWx}, {OOB:#x}")
        e(f"s_add_u32 m0, s{sWfill}, s{sM0w}")
        e(f"s_add_u32 s{sGrp}, s{sGrp}, 1")
        for half in range(2):
            for k in range(4):
                e(f"buffer_load_dwordx4 v{vWD+k}, s[{SRD_W}:{SRD_W+3}], s{sWx} offen offset:{k*1024} {pol_w} lds")
            if half == 0:
                e(f"s_add_u32 m0, m0, 4096")
                e(f"s_add_u32 s{sWx}, s{sWx}, {16*2048}")
        e(f"s_add_u32 s{sWfill}, s{sWfill}, {WSLOT}")
        e(f"s_cmp_eq_u32 s{sWfill}, {NW*WSLOT}")
        e(f"s_cselect_b32 s{sWfill}, 0, s{sWfill}")

    e(f"s_mov_b32 s{sFill}, 0")
    e(f"s_mov_b32 s{sIss}, 0")
    e(f"s_mov_b32 s{sGrp}, 0")
    e(f"s_mov_b32 s{sWfill}, 0")
    issue_w()
    issue_o()
    issue_o()
    issue_w()
    e(f"s_mov_b32 s{sCnt}, 0")
    a.label(f"{name}_lloop")
    for r in range(2):
        e("s_waitcnt vmcnt(12)")
        e("s_barrier")
        if "d" not in skip:
            issue_o()
            if r == 1:
                issue_w()
    e(f"s_add_u32 s{sCnt}, s{sCnt}, 2")
    e(f"s_cmp_lt_u32 s{sCnt}, {NST}")
    e(f"s_cbranch_scc1 {name}_lloop")
    e("s_waitcnt vmcnt(0)")
    a.label(f"{name}_fin")
    if timing:
        ts_end(a, 40, 1, sWV, 44, 48, nwaves=8)
    a.label(f"{name}_done")
    e("s_endpgm")
    return dict(nv=NV, ns=72, lds=NO*OSLOT + NW*WSLOT, threads=512)
```

```python
from asmlib import *
import math

OOB = 0x80000000
PAIR_OFF = 50 << 20
FLAG_OFF = 48 << 20
QWS_OFF = 32 << 20
C_SCALE = math.log2(math.e) / math.sqrt(128.0)

def f32bits(x):
    import struct
    return struct.unpack("<I", struct.pack("<f", x))[0]

sWV = 4
sRole, sH, sI, sB = 5, 6, 7, 3
SRD_X, SRD_W, SRD_K, SRD_V, SRD_O = 8, 12, 16, 20, 24
sT0, sT1, sT2, sT3 = 28, 29, 30, 31
sXoff, sWoff, sWslotF, sWslotR, sXslot, sCnt = 32, 33, 34, 35, 36, 37
sKVoff, sTask, sScale, sM0a, sM0b = 38, 39, 40, 41, 42
sOoff, sT4, sT5 = 43, 44, 45
sTS = 46
sPtr = 48
sStg = 80
sX, sDbg, sBs, sHq, sCls, sSig = 81, 82, 84, 85, 86, 87
sFlag, sNonce = 92, 93
sPairN, sPairP = 74, 72
sTbase, sTstep, SRD_T = 94, 95, 96
sLB, sW8, sBarT, sWid = 100, 101, 78, 79
vL16L, vBarA = 30, 29
vNon = 31
SRD_D = 88
NS = 102
MK = [60, 62, 64, 66, 68, 70, 72, 74]
TIMING = [False]
QMARKS = [False]
QSKIP = ['']
QORDER = [None]
LOOK = [2]
SLEEPQ = [8]
XM = [False]
ALT = [False]
ASYM = [False]
OPOL = ['']
GSLEEP = [1]
PSIG = [0]
SINGLE = [False]
GB = [0]
WT = [0]
INV = [True]
QST = ['sc0 sc1', 'sc0 sc1']
def mark(a, k):
    if TIMING[0]:
        ts_mark(a, MK[k])
vLane16 = 1
vT0, vT1, vT2, vT3 = 2, 3, 4, 5
vKD = 6
vVD = 10
vKR = 11
vVR = 19
vM, vL, vMx, vF = 23, 24, 25, 26
vA0, vA1 = 27, 28
vSt = 29
QOWN, QCUR, S, O, DEF = 32, 64, 96, 160, 224
vWD = DEF
vXD = DEF + 4
vWR = DEF + 8
vXR = DEF + 12
vWR2 = DEF + 16
vXR2 = DEF + 20
vTT, vTD = DEF + 24, DEF + 25
ACC = S
FW = O
FX = QCUR

LDS_RING0, LDS_RING1, LDS_MISC = 0, 32768, 65536
LDS_BYTES = 81920

def bar(a):
    e = a.e
    if not SINGLE[0]:
        e("s_barrier")
        return
    GB[0] += 1
    L = f"gb{GB[0]}"
    e(f"s_add_u32 s{sBarT}, s{sBarT}, 1")
    e("s_waitcnt lgkmcnt(0)")
    e(f"v_mov_b32 v{vSt+2-0 if False else vT3}, 1")
    e("s_mov_b64 exec, 1")
    e(f"ds_add_u32 v{vBarA}, v{vT3}")
    e("s_mov_b64 exec, -1")
    a.label(L)
    e(f"ds_read_b32 v{vT3}, v{vBarA}")
    e("s_waitcnt lgkmcnt(0)")
    e(f"v_readfirstlane_b32 s{sT3}, v{vT3}")
    e(f"s_lshl_b32 s{sT2}, s{sBarT}, 2")
    a.nop(2)
    e(f"s_cmp_ge_u32 s{sT3}, s{sT2}")
    e(f"s_cbranch_scc1 {L}_ok")
    if GSLEEP[0] >= 0:
        e(f"s_sleep {GSLEEP[0]}")
    e(f"s_branch {L}")
    a.label(L + "_ok")


def mfma(e, d, a, b, c=None):
    cc = f"v[{d}:{d+15}]" if c is None else c
    e(f"v_mfma_f32_32x32x16_bf16 v[{d}:{d+15}], v[{a}:{a+3}], v[{b}:{b+3}], {cc}")


def gen_prologue(a, name, timing):
    e = a.e
    e(f"s_cmp_ge_u32 s2, {256 if SINGLE[0] else 512}")
    e(f"s_cbranch_scc1 {name}_done")
    if timing:
        ts_begin(a, sTS)
    e(f"s_load_dwordx8 s[{sPtr}:{sPtr+7}], s[0:1], 0")
    e(f"s_load_dwordx8 s[{sPtr+8}:{sPtr+15}], s[0:1], 40")
    e(f"s_load_dwordx2 s[{sPtr+16}:{sPtr+17}], s[0:1], 96")
    e(f"s_load_dwordx2 s[{sPtr+18}:{sPtr+19}], s[0:1], 88")
    e(f"v_lshrrev_b32 v{vT0}, 6, v0")
    e("v_and_b32 v0, 63, v0")
    e(f"v_readfirstlane_b32 s{sWid}, v{vT0}")
    a.nop(3)
    if SINGLE[0]:
        e(f"s_lshr_b32 s{sRole}, s{sWid}, 2")
        e(f"s_and_b32 s{sWV}, s{sWid}, 3")
        e(f"s_mul_i32 s{sLB}, s{sRole}, {LDS_BYTES}")
    else:
        e(f"s_mov_b32 s{sWV}, s{sWid}")
        e(f"s_lshr_b32 s{sRole}, s2, 8")
        e(f"s_mov_b32 s{sLB}, 0")
    e(f"s_lshl_b32 s{sW8}, s{sWV}, 13")
    e(f"s_and_b32 s{sT0}, s2, 7")
    e(f"s_bfe_u32 s{sT1}, s2, 0x50003")
    e(f"s_lshr_b32 s{sH}, s{sT0}, 1")
    e(f"s_lshl_b32 s{sH}, s{sH}, 3")
    e(f"s_and_b32 s{sT2}, s{sT1}, 7")
    e(f"s_add_u32 s{sH}, s{sH}, s{sT2}")
    e(f"s_and_b32 s{sI}, s{sT0}, 1")
    e(f"s_lshl_b32 s{sI}, s{sI}, 2")
    e(f"s_lshr_b32 s{sT2}, s{sT1}, 3")
    e(f"s_add_u32 s{sI}, s{sI}, s{sT2}")
    e(f"s_mov_b32 s{sX}, s{sT0}")
    e(f"s_add_u32 s{sCls}, s{sH}, s{sI}")
    e(f"s_and_b32 s{sCls}, s{sCls}, 3")
    e(f"v_lshlrev_b32 v{vLane16}, 4, v0")
    e(f"v_add_u32 v{vL16L}, s{sLB}, v{vLane16}")
    if ASYM[0]:
        e(f"s_lshl_b32 s{sT2}, s{sRole}, 6")
        e(f"s_add_u32 s{sT2}, s{sT2}, {LDS_MISC + 12288}")
    else:
        e(f"s_add_u32 s{sT2}, s{sLB}, {LDS_MISC + 12288}")
    e(f"v_mov_b32 v{vBarA}, s{sT2}")
    e(f"s_mov_b32 s{sBarT}, 0")
    e(f"v_lshrrev_b32 v{vT0}, 4, v0")
    e(f"v_and_b32 v{vT1}, 15, v0")
    e(f"v_lshlrev_b32 v{vT2}, 8, v{vT0}")
    for jj in range(4):
        e(f"v_add_u32 v{vT3}, {4*jj}, v{vT0}")
        e(f"v_xor_b32 v{vT3}, v{vT3}, v{vT1}")
        e(f"v_lshlrev_b32 v{vT3}, 4, v{vT3}")
        e(f"v_add_u32 v{vKD+jj}, v{vT3}, v{vT2}")
    e(f"v_lshlrev_b32 v{vT3}, 2, v{vT0}")
    e(f"v_xor_b32 v{vT3}, v{vT3}, v{vT1}")
    e(f"v_lshlrev_b32 v{vT3}, 4, v{vT3}")
    e(f"v_add_u32 v{vVD}, v{vT3}, v{vT2}")
    e(f"v_lshlrev_b32 v{vT2}, 13, v{vT0}")
    e(f"v_add_u32 v{vWD}, v{vT3}, v{vT2}")
    for jj in range(1, 4):
        e(f"v_add_u32 v{vWD+jj}, {jj*(4*8192-1024)}, v{vWD}")
    e(f"v_lshrrev_b32 v{vT1}, 3, v0")
    e(f"v_and_b32 v{vT2}, 7, v0")
    for jj in range(4):
        e(f"v_add_u32 v{vT3}, {4*jj}, v{vT0}")
        e(f"v_and_b32 v{vT3}, 7, v{vT3}")
        e(f"v_xor_b32 v{vT3}, v{vT3}, v{vT2}")
        e(f"v_lshlrev_b32 v{vT3}, 4, v{vT3}")
        e(f"v_lshlrev_b32 v{vXD+jj}, 11, v{vT1}")
        e(f"v_add_u32 v{vXD+jj}, v{vXD+jj}, v{vT3}")
        c = 8*jj*2048 - jj*1024
        if c:
            e(f"v_add_u32 v{vXD+jj}, {c}, v{vXD+jj}")
    e("s_waitcnt lgkmcnt(0)")
    e(f"s_cmp_eq_u32 s{sRole}, 0")
    for k, srd in enumerate((SRD_X, SRD_K, SRD_V, SRD_W)):
        e(f"s_cselect_b32 s{srd}, s{sPtr+8+2*k}, s{sPtr+2*k}")
        e(f"s_cselect_b32 s{srd+1}, s{sPtr+9+2*k}, s{sPtr+1+2*k}")
    e(f"s_mov_b32 s{sT0}, {32*32*131072}")
    e(f"s_cselect_b32 s{SRD_K+2}, s{sT0}, {32*4*131072}")
    e(f"s_mov_b32 s{SRD_V+2}, s{SRD_K+2}")
    for srd in (SRD_X, SRD_K, SRD_V, SRD_W):
        e(f"s_and_b32 s{srd+1}, s{srd+1}, 0xffff")
        e(f"s_mov_b32 s{srd+3}, 0x20000")
    e(f"s_mov_b32 s{SRD_X+2}, {1024*1024*2}")
    e(f"s_mov_b32 s{SRD_W+2}, {1024*4096*2}")
    e(f"s_mov_b32 s{sDbg}, s{sPtr+18}")
    e(f"s_mov_b32 s{sDbg+1}, s{sPtr+19}")
    e(f"s_mov_b32 s{SRD_D}, s{sPtr+18}")
    e(f"s_and_b32 s{SRD_D+1}, s{sPtr+19}, 0xffff")
    e(f"s_mov_b32 s{SRD_D+2}, 256")
    e(f"s_mov_b32 s{SRD_D+3}, 0x20000")
    e(f"s_mov_b32 s{SRD_O}, s{sPtr+16}")
    e(f"s_and_b32 s{SRD_O+1}, s{sPtr+17}, 0xffff")
    e(f"s_mov_b32 s{SRD_O+2}, {64 << 20}")
    e(f"s_mov_b32 s{SRD_O+3}, 0x20000")
    e(f"s_lshl_b32 s{sT0}, s{sWV}, 3")
    e(f"s_add_u32 s{sB}, s{sT0}, s{sI}")
    e(f"s_lshl_b32 s{sXoff}, s{sB}, 16")
    e(f"s_lshl_b32 s{sWoff}, s{sWV}, 17")
    e(f"s_lshl_b32 s{sT0}, s{sH}, 8")
    e(f"s_add_u32 s{sWoff}, s{sWoff}, s{sT0}")
    e(f"v_and_b32 v{vT0}, 31, v0")
    e(f"v_lshrrev_b32 v{vT1}, 5, v0")
    e(f"v_bfe_u32 v{vT2}, v0, 1, 3")
    e(f"v_xor_b32 v{vT2}, v{vT2}, v{vT1}")
    e(f"v_lshlrev_b32 v{vT2}, 4, v{vT2}")
    e(f"v_lshlrev_b32 v{vT3}, 7, v{vT0}")
    e(f"v_add_u32 v{vXR}, v{vT2}, v{vT3}")
    e(f"s_add_u32 s{sT0}, s{sW8}, {LDS_RING1}")
    e(f"s_add_u32 s{sT0}, s{sT0}, s{sLB}")
    e(f"v_add_u32 v{vXR}, s{sT0}, v{vXR}")
    for u in range(1, 4):
        e(f"v_xor_b32 v{vXR+u}, {u*32}, v{vXR}")
    e(f"v_and_b32 v{vT2}, 15, v0")
    e(f"v_xor_b32 v{vT2}, v{vT2}, v{vT1}")
    e(f"v_lshlrev_b32 v{vT2}, 4, v{vT2}")
    e(f"v_lshlrev_b32 v{vT3}, 8, v{vT0}")
    e(f"v_add_u32 v{vKR}, v{vT2}, v{vT3}")
    e(f"s_add_u32 s{sT0}, s{sW8}, s{sLB}")
    e(f"v_add_u32 v{vKR}, s{sT0}, v{vKR}")
    for s in range(1, 8):
        e(f"v_xor_b32 v{vKR+s}, {s*32}, v{vKR}")
    e(f"v_bfe_u32 v{vT0}, v0, 2, 2")
    e(f"v_lshlrev_b32 v{vT2}, 6, v{vT0}")
    e(f"v_bfe_u32 v{vT3}, v0, 4, 1")
    e(f"v_lshlrev_b32 v{vT3}, 5, v{vT3}")
    e(f"v_add_u32 v{vT2}, v{vT2}, v{vT3}")
    e(f"v_and_b32 v{vT3}, 1, v0")
    e(f"v_lshlrev_b32 v{vT3}, 4, v{vT3}")
    e(f"v_add_u32 v{vT2}, v{vT2}, v{vT3}")
    e(f"v_bfe_u32 v{vT3}, v0, 1, 1")
    e(f"v_lshlrev_b32 v{vT3}, 3, v{vT3}")
    e(f"v_add_u32 v{vT2}, v{vT2}, v{vT3}")
    e(f"v_lshlrev_b32 v{vT3}, 3, v{vT1}")
    e(f"v_add_u32 v{vT3}, v{vT3}, v{vT0}")
    e(f"v_lshlrev_b32 v{vT3}, 8, v{vT3}")
    e(f"v_add_u32 v{vWR}, v{vT2}, v{vT3}")
    e(f"v_add_u32 v{vWR}, s{sLB}, v{vWR}")
    e(f"v_lshlrev_b32 v{vT3}, 2, v{vT1}")
    e(f"v_add_u32 v{vT3}, v{vT3}, v{vT0}")
    e(f"v_lshlrev_b32 v{vT3}, 8, v{vT3}")
    e(f"v_add_u32 v{vVR}, v{vT2}, v{vT3}")
    for t in range(1, 4):
        e(f"v_xor_b32 v{vWR+t}, {t*64}, v{vWR}")
    e(f"s_add_u32 s{sT0}, s{sW8}, s{sLB}")
    e(f"v_add_u32 v{vT2}, s{sT0}, v{vVR}")
    for k in range(4):
        e(f"s_add_u32 s{sT0}, s{sWV}, {k}")
        e(f"s_and_b32 s{sT0}, s{sT0}, 3")
        e(f"s_lshl_b32 s{sT0}, s{sT0}, 6")
        e(f"v_xor_b32 v{vVR+k}, s{sT0}, v{vT2}")
    e(f"s_add_u32 s{sM0a}, s{sW8}, s{sLB}")
    e(f"s_add_u32 s{sM0b}, s{sM0a}, {LDS_RING1}")
    e(f"s_mov_b32 s{sScale}, {f32bits(C_SCALE):#x}")


def gen_qproj(a, name, pol_x, pol_w, after_barrier15=None, after_x15=None):
    e = a.e
    WSLOT = [LDS_MISC, 0, 16384]

    def wt_setup():
        e(f"s_and_b32 s{sT2}, s{sH}, 7")
        e(f"v_lshrrev_b32 v{vT0}, 4, v0")
        e(f"v_lshlrev_b32 v{vT0}, 13, v{vT0}")
        e(f"v_and_b32 v{vT1}, 15, v0")
        e(f"v_lshlrev_b32 v{vT1}, 7, v{vT1}")
        e(f"v_add_u32 v{vT0}, v{vT0}, v{vT1}")
        e(f"s_lshl_b32 s{sT0}, s{sT2}, 6")
        e(f"v_add_u32 v{vT1}, s{sT0}, v0")
        e(f"v_bfe_u32 v{vT2}, v{vT1}, 5, 2")
        e(f"v_lshrrev_b32 v{vT3}, 7, v{vT1}")
        e(f"v_lshlrev_b32 v{vT3}, 3, v{vT3}")
        e(f"v_add_u32 v{vT2}, v{vT2}, v{vT3}")
        e(f"v_lshlrev_b32 v{vT2}, 5, v{vT2}")
        e(f"v_and_b32 v{vT1}, 31, v{vT1}")
        e(f"v_add_u32 v{vT1}, v{vT1}, v{vT2}")
        e(f"v_lshlrev_b32 v{vT1}, 11, v{vT1}")
        e(f"s_cmp_lt_u32 s{sWV}, 2")
        e(f"s_cselect_b64 vcc, -1, 0")
        e(f"v_cndmask_b32 v{vTT}, v{vT1}, v{vT0}, vcc")
        for k in range(4):
            e(f"s_cselect_b32 s{SRD_T+k}, s{SRD_W+k}, s{SRD_X+k}")
        e(f"s_mov_b32 s{SRD_T+3}, 0x20000")
        e(f"s_lshl_b32 s{sT0}, s{sT2}, 3")
        e(f"s_lshl_b32 s{sT1}, s{sWV}, 2")
        e(f"s_add_u32 s{sT0}, s{sT0}, s{sT1}")
        e(f"s_lshl_b32 s{sT0}, s{sT0}, 13")
        e(f"s_lshr_b32 s{sT1}, s{sX}, 1")
        e(f"s_lshl_b32 s{sT1}, s{sT1}, 11")
        e(f"s_add_u32 s{sT0}, s{sT0}, s{sT1}")
        e(f"s_and_b32 s{sT1}, s{sX}, 1")
        e(f"s_lshl_b32 s{sT1}, s{sT1}, 18")
        e(f"s_cmp_lt_u32 s{sWV}, 2")
        e(f"s_cselect_b32 s{sTbase}, s{sT0}, s{sT1}")
        e(f"s_mov_b32 s{sT0}, {64*8192}")
        e(f"s_cselect_b32 s{sTstep}, s{sT0}, 128")
        e(f"s_cmp_eq_u32 s{sWV}, 3")
        e(f"s_cselect_b32 s{sTbase}, {OOB:#x}, s{sTbase}")
        e(f"s_cselect_b32 s{sTstep}, 0, s{sTstep}")

    def wt_issue(tau_reg_or_imm):
        if isinstance(tau_reg_or_imm, int):
            e(f"s_mov_b32 s{sT2}, {tau_reg_or_imm}")
        else:
            e(f"s_add_u32 s{sT2}, s{sCnt}, {WT[0]}")
        e(f"s_mul_i32 s{sT3}, s{sT2}, s{sTstep}")
        e(f"s_add_u32 s{sT3}, s{sT3}, s{sTbase}")
        e(f"s_and_b32 s{sT0}, s{sT2}, 3")
        e(f"s_cmp_eq_u32 s{sT0}, s{sCls}")
        e(f"s_cselect_b32 s{sT3}, s{sT3}, {OOB:#x}")
        e(f"s_cmp_lt_u32 s{sT2}, 16")
        e(f"s_cselect_b32 s{sT3}, s{sT3}, {OOB:#x}")
        e(f"buffer_load_dword v{vTD}, v{vTT}, s[{SRD_T}:{SRD_T+3}], s{sT3} offen {pol_w}")

    def sigma():
        if QORDER[0] == "adv":
            e(f"s_add_u32 s{sT1}, s{sStg}, 1")
            e(f"s_sub_u32 s{sT1}, s{sT1}, s{sCls}")
            e(f"s_and_b32 s{sT1}, s{sT1}, 3")
            e(f"s_cmp_eq_u32 s{sT1}, 0")
            e(f"s_cselect_b32 s{sT0}, 1, 0")
            e(f"s_cmp_eq_u32 s{sT1}, 1")
            e(f"s_cselect_b32 s{sT0}, -1, s{sT0}")
            e(f"s_add_u32 s{sSig}, s{sStg}, s{sT0}")
            e(f"s_cmp_lt_u32 s{sSig}, 16")
            e(f"s_cselect_b32 s{sSig}, s{sSig}, s{sStg}")
        else:
            e(f"s_mov_b32 s{sSig}, s{sStg}")

    def issue_w():
        sigma()
        e(f"s_lshl_b32 s{sT0}, s{sWV}, 12")
        e(f"s_add_u32 s{sT0}, s{sT0}, s{sLB}")
        e(f"s_add_u32 m0, s{sWslotF}, s{sT0}")
        e(f"s_lshl_b32 s{sT1}, s{sSig}, 19")
        e(f"s_add_u32 s{sT1}, s{sT1}, s{sWoff}")
        for jj in range(4):
            e(f"buffer_load_dwordx4 v{vWD+jj}, s[{SRD_W}:{SRD_W+3}], s{sT1} offen offset:{jj*1024} {pol_w} lds")
        e(f"s_cmp_eq_u32 s{sWslotF}, {LDS_MISC}")
        e(f"s_cselect_b32 s{sT0}, 0, {LDS_MISC}")
        e(f"s_cmp_eq_u32 s{sWslotF}, 0")
        e(f"s_cselect_b32 s{sWslotF}, 16384, s{sT0}")

    def issue_x(par):
        e(f"s_mov_b32 s{sT0}, s{sM0b}")
        if par is not None:
            e(f"s_add_u32 m0, s{sT0}, {par*4096}")
        else:
            e(f"s_add_u32 m0, s{sT0}, s{sXslot}")
        e(f"s_lshl_b32 s{sT1}, s{sSig}, 7")
        e(f"s_add_u32 s{sT1}, s{sT1}, s{sXoff}")
        for jj in range(4):
            e(f"buffer_load_dwordx4 v{vXD+jj}, s[{SRD_X}:{SRD_X+3}], s{sT1} offen offset:{jj*1024} {pol_x} lds")
        e(f"s_add_u32 s{sStg}, s{sStg}, 1")

    class Cap:
        def __init__(self): self.L = []
        def __call__(self, t=""): self.L.append(t)

    def capture(fn):
        nonlocal e
        keep = e
        c = Cap(); e = c
        fn()
        e = keep
        return c.L

    def stage(first, issue, hook_w=None, hook_x=None, last=False):
        nwait = 9 if (WT[0] and not first) else 8
        e(f"s_waitcnt vmcnt({nwait})" if not last else "s_waitcnt vmcnt(0)")
        if ASYM[0]:
            GB[0] += 1
            L = f"qb{GB[0]}"
            e(f"s_cmp_lg_u32 s{sRole}, 0")
            e(f"s_cbranch_scc1 {L}_g")
            e("s_barrier")
            e(f"s_branch {L}_d")
            a.label(L + "_g")
            bar(a)
            a.label(L + "_d")
        else:
            e("s_barrier")
        for t in range(4):
            e(f"v_add_u32 v{vWR2+t}, s{sWslotR}, v{vWR+t}")
        for u in range(4):
            e(f"v_add_u32 v{vXR2+u}, s{sXslot}, v{vXR+u}")
        if 'd' in QSKIP[0]:
            issue = False
        def rx():
            if 'r' in QSKIP[0]: return []
            return [f"ds_read_b128 v[{FX+4*u}:{FX+4*u+3}], v{vXR2+u}" for u in range(4)]
        def rw(u):
            L = []
            if 'r' in QSKIP[0]: return L
            for t in range(4):
                for half in range(2):
                    r = FW + 16*u + 4*t + 2*half
                    L.append(f"ds_read_b64_tr_b16 v[{r}:{r+1}], v{vWR2+t} offset:{(16*u+4*half)*256}")
            return L
        def mm(u):
            L = []
            for t in range(4):
                c = "0" if (first and u == 0) else f"v[{ACC+16*t}:{ACC+16*t+15}]"
                L.append(f"v_mfma_f32_32x32x16_bf16 v[{ACC+16*t}:{ACC+16*t+15}], v[{FW+16*u+4*t}:{FW+16*u+4*t+3}], v[{FX+4*u}:{FX+4*u+3}], {c}" if 'm' not in QSKIP[0] else "s_nop 0")
            return L
        for ln in rx() + rw(0):
            e(ln)
        if issue:
            issue_w()
            if WT[0]:
                wt_issue("cnt")
        if hook_w:
            hook_w()
        e("s_waitcnt lgkmcnt(0)")
        fill = rw(1) + rw(2)
        k = 0
        for m in mm(0):
            e(m)
            for ln in fill[k:k+4]:
                e(ln)
            k += 4
        xl = capture(lambda: issue_x(None)) if issue else []
        e("s_waitcnt lgkmcnt(8)")
        fill = rw(3)
        k = 0
        for m in mm(1):
            e(m)
            for ln in fill[k:k+2]:
                e(ln)
            k += 2
        e("s_waitcnt lgkmcnt(8)")
        k = 0
        per = (len(xl) + 3) // 4
        for m in mm(2):
            e(m)
            for ln in xl[k:k+per]:
                e(ln)
            k += per
        if hook_x:
            hook_x()
        e("s_waitcnt lgkmcnt(0)")
        adv = [f"s_cmp_eq_u32 s{sWslotR}, {LDS_MISC}",
               f"s_cselect_b32 s{sT0}, 0, {LDS_MISC}",
               f"s_cmp_eq_u32 s{sWslotR}, 0",
               f"s_cselect_b32 s{sWslotR}, 16384, s{sT0}",
               f"s_xor_b32 s{sXslot}, s{sXslot}, 4096"]
        k = 0
        for m in mm(3):
            e(m)
            for ln in adv[k:k+2]:
                e(ln)
            k += 2

    e(f"s_mov_b32 s{sWslotF}, {LDS_MISC}")
    e(f"s_mov_b32 s{sWslotR}, {LDS_MISC}")
    e(f"s_mov_b32 s{sXslot}, 0")
    e(f"s_mov_b32 s{sStg}, 0")
    e(f"s_mov_b32 s{sCnt}, 0")
    if WT[0]:
        wt_setup()
        for tau in range(WT[0]):
            wt_issue(tau)
    issue_w(); issue_x(0)
    issue_w(); issue_x(1)
    stage(True, True)
    e(f"s_mov_b32 s{sCnt}, 1")
    a.label(f"{name}_qloop")
    if QMARKS[0]:
        ts_mark(a, 76)
        for k, cnt in enumerate((1, 2, 4, 8, 12)):
            e(f"s_cmp_eq_u32 s{sCnt}, {cnt}")
            e(f"s_cselect_b32 s{MK[2+k]}, s76, s{MK[2+k]}")
    if ALT[0]:
        e(f"s_add_u32 s{sT0}, s{sCnt}, s{sRole}")
        e(f"s_bitcmp1_b32 s{sT0}, 0")
        e(f"s_cbranch_scc1 {name}_p1")
        e("s_setprio 0")
        e(f"s_branch {name}_p2")
        a.label(f"{name}_p1")
        e("s_setprio 1")
        a.label(f"{name}_p2")
    if PSIG[0]:
        e(f"s_cmp_lg_u32 s{sCnt}, {PSIG[0]}")
        e(f"s_cbranch_scc1 {name}_ps_d")
        e(f"s_or_b32 s{sT0}, s{sWV}, s{sRole}")
        e(f"s_cmp_lg_u32 s{sT0}, 0")
        e(f"s_cbranch_scc1 {name}_ps_d")
        e(f"s_and_b32 s{sT0}, s2, 255")
        e(f"s_lshl_b32 s{sT0}, s{sT0}, 8")
        e(f"s_add_u32 s{sT0}, s{sT0}, {PAIR_OFF}")
        e(f"s_mul_i32 s{sT1}, s{sPairN}, 0x9e3779b1")
        e(f"s_add_u32 s{sT1}, s{sT1}, 0x7f4a7c15")
        e(f"v_mov_b32 v{vT0}, 0")
        e(f"v_mov_b32 v{vT1}, s{sT1}")
        e(f"v_cmp_eq_u32 vcc, 0, v0")
        e(f"s_and_saveexec_b64 s[{sT2}:{sT3}], vcc")
        e(f"buffer_store_dword v{vT1}, v{vT0}, s[{SRD_O}:{SRD_O+3}], s{sT0} offen offset:16 sc0 sc1")
        e(f"s_mov_b64 exec, s[{sT2}:{sT3}]")
        a.label(f"{name}_ps_d")
    stage(False, True)
    e(f"s_add_u32 s{sCnt}, s{sCnt}, 1")
    e(f"s_cmp_lt_u32 s{sCnt}, 14")
    e(f"s_cbranch_scc1 {name}_qloop")
    stage(False, False)
    stage(False, False, hook_w=after_barrier15, hook_x=after_x15, last=True)
    a.nop(12)
    for s in range(8):
        t, sg = s >> 1, s & 1
        for i in range(4):
            src = ACC + 16*t + 8*sg + 2*i
            e(f"v_cvt_pk_bf16_f32 v{QOWN+4*s+i}, v{src}, v{src+1}")


def issue_tile(e, srd, slot_reg, off_reg, imm, is_k, pol):
    e(f"s_mov_b32 m0, s{slot_reg}")
    if imm:
        e(f"s_add_u32 s{sT0}, s{off_reg}, {imm}")
    else:
        e(f"s_mov_b32 s{sT0}, s{off_reg}")
    for half in range(2):
        for jj in range(4):
            v = vKD + jj if is_k else vVD
            e(f"buffer_load_dwordx4 v{v}, s[{srd}:{srd+3}], s{sT0} offen offset:{jj*1024} {pol} lds")
        if half == 0:
            e(f"s_add_u32 m0, s{slot_reg}, 4096")
            e(f"s_add_u32 s{sT0}, s{sT0}, 4096")


def k_tile(e, T, slot, hook, early=None):
    FK = O + 32*(T & 1)
    if early:
        e("s_waitcnt vmcnt(0)")
        early()
    else:
        e("s_waitcnt vmcnt(8)")
    for s in range(8):
        e(f"ds_read_b128 v[{FK+4*s}:{FK+4*s+3}], v{vKR+s} offset:{slot*LDS_RING1}")
    e("s_waitcnt lgkmcnt(0)")
    hook()
    for s in range(8):
        mfma(e, S+16*T, FK+4*s, QCUR+4*s, "0" if s == 0 else None)


def v_tile(e, T, slot, hook, early=None):
    FV = S + 32
    if early:
        e("s_waitcnt vmcnt(0)")
        early()
    else:
        e("s_waitcnt vmcnt(8)")
    for k in range(4):
        for u in range(2):
            for half in range(2):
                r = FV + 8*k + 4*u + 2*half
                e(f"ds_read_b64_tr_b16 v[{r}:{r+1}], v{vVR+k} offset:{slot*LDS_RING1 + (16*u+8*half)*256}")
    e("s_waitcnt lgkmcnt(0)")
    hook()
    for u in range(2):
        for k in range(4):
            mfma(e, O+16*k, FV+8*k+4*u, S+8*T+4*u, "0" if (T == 0 and u == 0) else None)


def softmax(a, nreg=64):
    e = a.e
    e(f"v_max3_f32 v{vMx}, v{S}, v{S+1}, v{S+2}")
    e(f"v_max3_f32 v{vT0}, v{S+3}, v{S+4}, v{S+5}")
    k = 6
    tgt = [vMx, vT0]
    n = 0
    while k + 1 < nreg:
        e(f"v_max3_f32 v{tgt[n&1]}, v{tgt[n&1]}, v{S+k}, v{S+k+1}")
        k += 2; n += 1
    e(f"v_max_f32 v{vMx}, v{vMx}, v{vT0}")
    e(f"v_mov_b32 v{vT0}, v{vMx}")
    a.nop(2)
    e(f"v_permlane32_swap_b32 v{vMx}, v{vT0}")
    a.nop(1)
    e(f"v_max_f32 v{vM}, v{vMx}, v{vT0}")
    e(f"v_mul_f32 v{vF}, s{sScale}, v{vM}")
    for k in range(nreg):
        e(f"v_fma_f32 v{S+k}, v{S+k}, s{sScale}, -v{vF}")
    for k in range(nreg):
        e(f"v_exp_f32 v{S+k}, v{S+k}")
    e(f"v_add_f32 v{vL}, v{S}, v{S+1}")
    e(f"v_add_f32 v{vT0}, v{S+2}, v{S+3}")
    for k in range(4, nreg, 2):
        e(f"v_add_f32 v{vL}, v{vL}, v{S+k}")
        e(f"v_add_f32 v{vT0}, v{vT0}, v{S+k+1}")
    for k in range(nreg//2):
        e(f"v_cvt_pk_bf16_f32 v{S+k}, v{S+2*k}, v{S+2*k+1}")
    e(f"v_add_f32 v{vL}, v{vL}, v{vT0}")
    e(f"v_mov_b32 v{vT0}, v{vL}")
    a.nop(2)
    e(f"v_permlane32_swap_b32 v{vL}, v{vT0}")
    a.nop(1)
    e(f"v_add_f32 v{vL}, v{vL}, v{vT0}")


def q_broadcast(a, name, tag, owner_reg_or_imm):
    e = a.e
    e(f"s_cmp_lg_u32 s{sWV}, {owner_reg_or_imm}")
    e(f"s_cbranch_scc1 {name}_{tag}_skip")
    e(f"v_add_u32 v{vA0}, {LDS_MISC}, v{vL16L}")
    for s in range(8):
        e(f"ds_write_b128 v{vA0}, v[{QOWN+4*s}:{QOWN+4*s+3}] offset:{s*1024}")
    e("s_waitcnt lgkmcnt(0)")
    a.label(f"{name}_{tag}_skip")
    bar(a)
    e(f"v_add_u32 v{vA0}, {LDS_MISC}, v{vL16L}")
    for s in range(8):
        e(f"ds_read_b128 v[{QCUR+4*s}:{QCUR+4*s+3}], v{vA0} offset:{s*1024}")
    e("s_waitcnt lgkmcnt(0)")


def gen_m1(a, name, pol):
    e = a.e
    sNext = sT5
    G = S + 32
    a.label(f"{name}_task")
    e(f"s_add_u32 s{sNext}, s{sKVoff}, s{sOoff}")
    e(f"s_cmp_lt_u32 s{sTask}, 3")
    e(f"s_cselect_b32 s{sNext}, s{sNext}, {OOB:#x}")
    slotreg = [sM0a, sM0b]
    none = lambda: None
    for T in range(4):
        if LOOK[0] == 2:
            if T < 2:
                hook = lambda T=T: issue_tile(e, SRD_K, slotreg[T & 1], sKVoff, (T+2)*32768, True, pol)
            else:
                hook = lambda T=T: issue_tile(e, SRD_V, slotreg[T & 1], sKVoff, (T-2)*32768, False, pol)
            k_tile(e, T, T & 1, hook)
        else:
            if T < 3:
                early = lambda T=T: issue_tile(e, SRD_K, slotreg[(T+1) & 1], sKVoff, (T+1)*32768, True, pol)
            else:
                early = lambda: issue_tile(e, SRD_V, sM0a, sKVoff, 0, False, pol)
            k_tile(e, T, T & 1, none, early)
    softmax(a)
    e(f"s_cmp_ge_u32 s{sTask}, 3")
    e(f"s_cbranch_scc1 {name}_noq")
    e(f"s_add_u32 s{sT4}, s{sTask}, 1")
    q_broadcast(a, name, "qn", f"s{sT4}")
    a.label(f"{name}_noq")
    for T in range(4):
        if LOOK[0] == 2:
            if T < 2:
                hook = lambda T=T: issue_tile(e, SRD_V, slotreg[T & 1], sKVoff, (T+2)*32768, False, pol)
            elif T == 2:
                hook = lambda: issue_tile(e, SRD_K, sM0a, sNext, 0, True, pol)
            else:
                hook = lambda: None
            v_tile(e, T, T & 1, hook)
        else:
            if T < 3:
                early = lambda T=T: issue_tile(e, SRD_V, slotreg[(T+1) & 1], sKVoff, (T+1)*32768, False, pol)
            else:
                early = lambda: issue_tile(e, SRD_K, sM0a, sNext, 0, True, pol)
            v_tile(e, T, T & 1, none, early)
    e(f"v_and_b32 v{vT0}, 31, v0")
    e(f"v_lshlrev_b32 v{vT0}, 3, v{vT0}")
    e(f"v_add_u32 v{vT0}, {LDS_MISC + 8192}, v{vT0}")
    e(f"v_add_u32 v{vT0}, s{sLB}, v{vT0}")
    e(f"s_lshl_b32 s{sT0}, s{sWV}, 8")
    e(f"v_add_u32 v{vA0}, s{sT0}, v{vT0}")
    e(f"v_add_u32 v{vA1}, s{sM0b}, v{vLane16}")
    e(f"ds_write_b32 v{vA0}, v{vM}")
    e(f"ds_write_b32 v{vA0}, v{vL} offset:4")
    a.nop(10)
    for k in (1, 2):
        for j in range(4):
            e(f"ds_write_b128 v{vA1}, v[{O+16*k+4*j}:{O+16*k+4*j+3}] offset:{(k-1)*4096 + j*1024}")
    e("s_waitcnt lgkmcnt(0)")
    bar(a)
    for k in range(4):
        e(f"s_sub_u32 s{sT0}, s{sWV}, {k}")
        e(f"s_and_b32 s{sT0}, s{sT0}, 3")
        e(f"s_lshl_b32 s{sT0}, s{sT0}, 8")
        e(f"v_add_u32 v{vA0}, s{sT0}, v{vT0}")
        e(f"ds_read_b64 v[{G+2*k}:{G+2*k+1}], v{vA0}")
    TI = S
    for k in (1, 2):
        e(f"s_sub_u32 s{sT0}, s{sWV}, {k}")
        e(f"s_and_b32 s{sT0}, s{sT0}, 3")
        e(f"s_lshl_b32 s{sT0}, s{sT0}, 13")
        e(f"s_add_u32 s{sT0}, s{sT0}, {LDS_RING1 + (k-1)*4096}")
        e(f"v_add_u32 v{vA0}, s{sT0}, v{vL16L}")
        for j in range(4):
            e(f"ds_read_b128 v[{TI+16*(k-1)+4*j}:{TI+16*(k-1)+4*j+3}], v{vA0} offset:{j*1024}")
    e("s_waitcnt lgkmcnt(8)")
    e(f"v_max3_f32 v{vMx}, v{G}, v{G+2}, v{G+4}")
    e(f"v_max_f32 v{vMx}, v{vMx}, v{G+6}")
    e(f"v_mul_f32 v{vMx}, s{sScale}, v{vMx}")
    for k in range(4):
        e(f"v_fma_f32 v{G+2*k}, v{G+2*k}, s{sScale}, -v{vMx}")
    for k in range(4):
        e(f"v_exp_f32 v{G+2*k}, v{G+2*k}")
    a.nop(1)
    e(f"v_mul_f32 v{vF}, v{G}, v{G+1}")
    for k in range(1, 4):
        e(f"v_fma_f32 v{vF}, v{G+2*k}, v{G+2*k+1}, v{vF}")
    e(f"v_rcp_f32 v{vF}, v{vF}")
    a.nop(1)
    for k in range(4):
        e(f"v_mul_f32 v{G+2*k}, v{G+2*k}, v{vF}")
    for j in range(16):
        e(f"v_mul_f32 v{O+j}, v{O+j}, v{G}")
    e("s_waitcnt lgkmcnt(0)")
    for k in (1, 2):
        for j in range(16):
            e(f"v_fma_f32 v{O+j}, v{TI+16*(k-1)+j}, v{G+2*k}, v{O+j}")
    bar(a)
    for j in range(4):
        e(f"ds_write_b128 v{vA1}, v[{O+48+4*j}:{O+48+4*j+3}] offset:{j*1024}")
    e("s_waitcnt lgkmcnt(0)")
    bar(a)
    e(f"s_sub_u32 s{sT0}, s{sWV}, 3")
    e(f"s_and_b32 s{sT0}, s{sT0}, 3")
    e(f"s_lshl_b32 s{sT0}, s{sT0}, 13")
    e(f"s_add_u32 s{sT0}, s{sT0}, {LDS_RING1}")
    e(f"v_add_u32 v{vA0}, s{sT0}, v{vL16L}")
    for j in range(4):
        e(f"ds_read_b128 v[{TI+4*j}:{TI+4*j+3}], v{vA0} offset:{j*1024}")
    e("s_waitcnt lgkmcnt(0)")
    bar(a)
    if LOOK[0] == 2:
        issue_tile(e, SRD_K, sM0b, sNext, 32768, True, pol)
    for j in range(16):
        e(f"v_fma_f32 v{O+j}, v{TI+j}, v{G+6}, v{O+j}")
    for k in range(24):
        e(f"v_mov_b32 v{DEF+k}, v{DEF+8+k}")
    for j in range(8):
        e(f"v_cvt_pk_bf16_f32 v{DEF+24+j}, v{O+2*j}, v{O+2*j+1}")
    if TIMING[0]:
        ts_mark(a, 76)
        for k in range(4):
            e(f"s_cmp_eq_u32 s{sTask}, {k}")
            e(f"s_cselect_b32 s{MK[2+k]}, s76, s{MK[2+k]}")
    e(f"s_mov_b32 s{sKVoff}, s{sNext}")
    e(f"s_add_u32 s{sTask}, s{sTask}, 1")
    e(f"s_cmp_lt_u32 s{sTask}, 4")
    e(f"s_cbranch_scc1 {name}_task")
    e("s_waitcnt vmcnt(0)")
    e(f"s_xor_b32 s{sT0}, s{sRole}, 1")
    e(f"s_lshl_b32 s{sT0}, s{sT0}, 23")
    e(f"s_lshl_b32 s{sT1}, s{sI}, 18")
    e(f"s_add_u32 s{sT0}, s{sT0}, s{sT1}")
    e(f"s_lshl_b32 s{sT1}, s{sH}, 13")
    e(f"s_add_u32 s{sT0}, s{sT0}, s{sT1}")
    e(f"s_lshl_b32 s{sT1}, s{sWV}, 11")
    e(f"s_add_u32 s{sT0}, s{sT0}, s{sT1}")
    for r in range(4):
        for sg in range(2):
            e(f"buffer_store_dwordx4 v[{DEF+8*r+4*sg}:{DEF+8*r+4*sg+3}], v{vLane16}, s[{SRD_O}:{SRD_O+3}], s{sT0} offen offset:{sg*1024} {OPOL[0]}")
        if r < 3:
            e(f"s_add_u32 s{sT0}, s{sT0}, {8*262144}")


def gen_touch(a, pol):
    e = a.e
    vD = S
    e(f"s_bfe_u32 s{sT2}, s2, 0x50003")
    e(f"v_lshrrev_b32 v{vT0}, 4, v0")
    e(f"v_lshlrev_b32 v{vT0}, 13, v{vT0}")
    e(f"v_and_b32 v{vT1}, 15, v0")
    e(f"v_lshlrev_b32 v{vT1}, 7, v{vT1}")
    e(f"v_add_u32 v{vT0}, v{vT0}, v{vT1}")
    e(f"s_lshl_b32 s{sT0}, s{sWV}, 5")
    e(f"s_add_u32 s{sT0}, s{sT0}, s{sT2}")
    e(f"s_lshl_b32 s{sT0}, s{sT0}, 15")
    e(f"s_lshr_b32 s{sT1}, s{sX}, 1")
    e(f"s_lshl_b32 s{sT1}, s{sT1}, 11")
    e(f"s_add_u32 s{sT0}, s{sT0}, s{sT1}")
    e(f"s_add_u32 s{sT1}, s{sT0}, {128*4*8192}")
    e(f"s_lshl_b32 s{sT3}, s{sWV}, 5")
    e(f"s_add_u32 s{sT3}, s{sT3}, s{sT2}")
    e(f"s_and_b32 s{sT2}, s{sT3}, 7")
    e(f"s_lshl_b32 s{sT2}, s{sT2}, 6")
    e(f"v_add_u32 v{vT1}, s{sT2}, v0")
    e(f"v_bfe_u32 v{vT2}, v{vT1}, 5, 2")
    e(f"v_lshrrev_b32 v{vT3}, 7, v{vT1}")
    e(f"v_lshlrev_b32 v{vT3}, 3, v{vT3}")
    e(f"v_add_u32 v{vT2}, v{vT2}, v{vT3}")
    e(f"v_lshlrev_b32 v{vT2}, 5, v{vT2}")
    e(f"v_and_b32 v{vT1}, 31, v{vT1}")
    e(f"v_add_u32 v{vT1}, v{vT1}, v{vT2}")
    e(f"v_lshlrev_b32 v{vT1}, 11, v{vT1}")
    e(f"s_lshr_b32 s{sT3}, s{sT3}, 3")
    e(f"s_lshl_b32 s{sT3}, s{sT3}, 7")
    e(f"s_and_b32 s{sT2}, s{sX}, 1")
    e(f"s_lshl_b32 s{sT2}, s{sT2}, 18")
    e(f"s_add_u32 s{sT3}, s{sT3}, s{sT2}")
    e(f"buffer_load_dword v{vD}, v{vT0}, s[{SRD_W}:{SRD_W+3}], s{sT0} offen {pol}")
    e(f"buffer_load_dword v{vD+1}, v{vT1}, s[{SRD_X}:{SRD_X+3}], s{sT3} offen {pol}")
    e(f"buffer_load_dword v{vD+2}, v{vT0}, s[{SRD_W}:{SRD_W+3}], s{sT1} offen {pol}")


def poll_counter(a, label, off_reg, mask, shift_reg, target, bound, sleep=8):
    e = a.e
    e(f"v_mov_b32 v{vT0}, s{off_reg}")
    if bound:
        e(f"s_mov_b32 s{sT3}, {bound}")
    a.label(label)
    e(f"buffer_load_dword v{vT1}, v{vT0}, s[{SRD_D}:{SRD_D+3}], 0 offen sc1")
    e("s_waitcnt vmcnt(0)")
    e(f"v_readfirstlane_b32 s{sT1}, v{vT1}")
    a.nop(3)
    if shift_reg is not None:
        e(f"s_lshr_b32 s{sT1}, s{sT1}, s{shift_reg}")
    e(f"s_and_b32 s{sT1}, s{sT1}, {mask}")
    e(f"s_cmp_ge_u32 s{sT1}, {target}")
    e(f"s_cbranch_scc1 {label}_ok")
    if bound:
        e(f"s_sub_u32 s{sT3}, s{sT3}, 1")
        e(f"s_cmp_eq_u32 s{sT3}, 0")
        e(f"s_cbranch_scc1 {label}_ok")
    e(f"s_sleep {sleep}")
    e(f"s_branch {label}")
    a.label(label + "_ok")


def signal(a, label, off_reg, val_reg_or_imm):
    e = a.e
    e(f"s_cmp_lg_u32 s{sWV}, 0")
    e(f"s_cbranch_scc1 {label}")
    e(f"v_mov_b32 v{vT0}, s{off_reg}")
    e(f"v_mov_b32 v{vT1}, {val_reg_or_imm}")
    e(f"v_cmp_eq_u32 vcc, 0, v0")
    e(f"s_and_saveexec_b64 s[{sT2}:{sT3}], vcc")
    e(f"buffer_atomic_add v{vT1}, v{vT0}, s[{SRD_D}:{SRD_D+3}], 0 offen sc1")
    e(f"s_mov_b64 exec, s[{sT2}:{sT3}]")
    a.label(label)


def gen_flash(a, name, pol):
    e = a.e
    FK = [QOWN, DEF]
    sNextK, sNextV = sT4, sT5
    e(f"s_lshl_b32 s{sT0}, s{sB}, 5")
    e(f"s_add_u32 s{sT0}, s{sT0}, s{sH}")
    e(f"s_lshl_b32 s{sT0}, s{sT0}, 13")
    e(f"s_add_u32 s{sT0}, s{sT0}, {QWS_OFF}")
    for s in range(8):
        if s == 4:
            e(f"s_add_u32 s{sT0}, s{sT0}, 4096")
        e(f"buffer_store_dwordx4 v[{QOWN+4*s}:{QOWN+4*s+3}], v{vLane16}, s[{SRD_O}:{SRD_O+3}], s{sT0} offen offset:{(s%4)*1024} {QST[0]}")
    e("s_waitcnt vmcnt(0)")
    if XM[0]: mark(a, 3)
    bar(a)
    e(f"v_readfirstlane_b32 s{sNonce}, v{vNon}")
    a.nop(3)
    e(f"s_mul_i32 s{sNonce}, s{sNonce}, 0x9e3779b1")
    e(f"s_add_u32 s{sNonce}, s{sNonce}, 0x7f4a7c15")
    e(f"s_cmp_lg_u32 s{sWV}, 0")
    e(f"s_cbranch_scc1 {name}_qwait")
    e(f"s_and_b32 s{sT0}, s{sH}, 3")
    e(f"s_lshl_b32 s{sT0}, s{sT0}, 2")
    e(f"s_add_u32 s{sT0}, s{sT0}, s{sFlag}")
    e(f"s_add_u32 s{sT0}, s{sT0}, 16")
    e(f"v_mov_b32 v{vT0}, 0")
    e(f"v_mov_b32 v{vT1}, s{sNonce}")
    e(f"v_cmp_eq_u32 vcc, 0, v0")
    e(f"s_and_saveexec_b64 s[{sT2}:{sT3}], vcc")
    e(f"buffer_store_dword v{vT1}, v{vT0}, s[{SRD_O}:{SRD_O+3}], s{sT0} offen sc0 sc1")
    e(f"s_mov_b64 exec, s[{sT2}:{sT3}]")
    a.label(f"{name}_pollq")
    e(f"buffer_load_dwordx4 v[{S}:{S+3}], v{vT0}, s[{SRD_O}:{SRD_O+3}], s{sFlag} offen offset:16 sc0 sc1")
    e("s_waitcnt vmcnt(0)")
    for k in range(4):
        e(f"v_xor_b32 v{S+k}, s{sNonce}, v{S+k}")
    e(f"v_or3_b32 v{S}, v{S}, v{S+1}, v{S+2}")
    e(f"v_or_b32 v{S}, v{S}, v{S+3}")
    a.nop(1)
    e(f"v_readfirstlane_b32 s{sT1}, v{S}")
    a.nop(3)
    e(f"s_cmp_eq_u32 s{sT1}, 0")
    e(f"s_cbranch_scc1 {name}_pollq_ok")
    e(f"s_sleep {SLEEPQ[0]}")
    e(f"s_branch {name}_pollq")
    a.label(f"{name}_pollq_ok")
    if XM[0]: mark(a, 4)
    e(f"v_cmp_eq_u32 vcc, 0, v0")
    e(f"s_and_saveexec_b64 s[{sT2}:{sT3}], vcc")
    e(f"buffer_store_dword v{vT1}, v{vT0}, s[{SRD_O}:{SRD_O+3}], s{sFlag} offen sc0 sc1")
    e(f"s_mov_b64 exec, s[{sT2}:{sT3}]")
    if INV[0]:
        e("buffer_inv sc1")
    e("s_waitcnt vmcnt(0)")
    if XM[0]: mark(a, 5)
    a.label(f"{name}_qwait")
    bar(a)
    mark(a, 2)
    e(f"s_lshl_b32 s{sT0}, s{sBs}, 5")
    e(f"s_lshl_b32 s{sT1}, s{sHq}, 2")
    e(f"s_add_u32 s{sT1}, s{sT1}, s{sWV}")
    e(f"s_add_u32 s{sT0}, s{sT0}, s{sT1}")
    e(f"s_lshl_b32 s{sT0}, s{sT0}, 13")
    e(f"s_add_u32 s{sT0}, s{sT0}, {QWS_OFF}")
    for s in range(8):
        if s == 4:
            e(f"s_add_u32 s{sT0}, s{sT0}, 4096")
        e(f"buffer_load_dwordx4 v[{QCUR+4*s}:{QCUR+4*s+3}], v{vLane16}, s[{SRD_O}:{SRD_O+3}], s{sT0} offen offset:{(s%4)*1024} {QST[1]}")
    issue_tile(e, SRD_K, sM0a, sKVoff, 0, True, pol)
    issue_tile(e, SRD_V, sM0b, sKVoff, 0, False, pol)
    for s in range(8):
        e(f"v_subrev_u32 v{vKR+s}, s{sW8}, v{vKR+s}")
    e(f"s_lshl_b32 s{sT0}, s{sWV}, 6")
    e(f"v_subrev_u32 v{vT2}, s{sW8}, v{vVR}")
    e(f"v_xor_b32 v{vT2}, s{sT0}, v{vT2}")
    for k in range(4):
        e(f"v_xor_b32 v{vVR+k}, {k*64}, v{vT2}")
    for j in range(64):
        e(f"v_mov_b32 v{O+j}, 0")
    e(f"v_mov_b32 v{vM}, 0xff7fffff")
    e(f"v_mov_b32 v{vL}, 0")
    e(f"s_mov_b32 s{sTask}, 0")
    a.label(f"{name}_chunk")
    e(f"s_add_u32 s{sNextK}, s{sKVoff}, 32768")
    e(f"s_cmp_lt_u32 s{sTask}, 3")
    e(f"s_cselect_b32 s{sNextK}, s{sNextK}, {OOB:#x}")
    e("s_waitcnt vmcnt(8)")
    bar(a)
    def rk(T):
        for s in range(8):
            e(f"ds_read_b128 v[{FK[T&1]+4*s}:{FK[T&1]+4*s+3}], v{vKR+s} offset:{T*8192}")
    def mk(T):
        for s in range(8):
            mfma(e, S+16*T, FK[T&1]+4*s, QCUR+4*s, "0" if s == 0 else None)
    rk(0); rk(1)
    e("s_waitcnt lgkmcnt(8)")
    mk(0)
    rk(2)
    e("s_waitcnt lgkmcnt(8)")
    mk(1)
    rk(3)
    e("s_waitcnt lgkmcnt(8)")
    mk(2)
    e("s_waitcnt lgkmcnt(0)")
    bar(a)
    issue_tile(e, SRD_K, sM0a, sNextK, 0, True, pol)
    mk(3)
    e(f"v_max3_f32 v{vMx}, v{S}, v{S+1}, v{S+2}")
    e(f"v_max3_f32 v{vT0}, v{S+3}, v{S+4}, v{S+5}")
    k = 6; n = 0
    tgt = [vMx, vT0]
    while k + 1 < 64:
        e(f"v_max3_f32 v{tgt[n&1]}, v{tgt[n&1]}, v{S+k}, v{S+k+1}")
        k += 2; n += 1
    e(f"v_max3_f32 v{vMx}, v{vMx}, v{vT0}, v{vM}")
    e(f"v_mov_b32 v{vT0}, v{vMx}")
    a.nop(2)
    e(f"v_permlane32_swap_b32 v{vMx}, v{vT0}")
    a.nop(1)
    e(f"v_max_f32 v{vMx}, v{vMx}, v{vT0}")
    e(f"v_mul_f32 v{vF}, s{sScale}, v{vMx}")
    e(f"v_fma_f32 v{vT1}, v{vM}, s{sScale}, -v{vF}")
    e(f"v_exp_f32 v{vT1}, v{vT1}")
    e(f"v_mov_b32 v{vM}, v{vMx}")
    for k in range(64):
        e(f"v_fma_f32 v{S+k}, v{S+k}, s{sScale}, -v{vF}")
    for k in range(64):
        e(f"v_exp_f32 v{S+k}, v{S+k}")
    for k in range(64):
        e(f"v_mul_f32 v{O+k}, v{O+k}, v{vT1}")
    e(f"v_add_f32 v{vT2}, v{S}, v{S+1}")
    e(f"v_add_f32 v{vT0}, v{S+2}, v{S+3}")
    for k in range(4, 64, 2):
        e(f"v_add_f32 v{vT2}, v{vT2}, v{S+k}")
        e(f"v_add_f32 v{vT0}, v{vT0}, v{S+k+1}")
    for k in range(32):
        e(f"v_cvt_pk_bf16_f32 v{S+k}, v{S+2*k}, v{S+2*k+1}")
    e(f"v_add_f32 v{vT2}, v{vT2}, v{vT0}")
    e(f"v_fma_f32 v{vL}, v{vL}, v{vT1}, v{vT2}")
    e("s_waitcnt vmcnt(8)")
    bar(a)
    FV = [S+32, QOWN]
    def rv(T):
        for k in range(4):
            for u in range(2):
                for half in range(2):
                    r = FV[T&1] + 8*k + 4*u + 2*half
                    e(f"ds_read_b64_tr_b16 v[{r}:{r+1}], v{vVR+k} offset:{LDS_RING1 + T*8192 + (16*u+8*half)*256}")
    def mv(T):
        for u in range(2):
            for k in range(4):
                mfma(e, O+16*k, FV[T&1]+8*k+4*u, S+8*T+4*u)
    rv(0)
    e("s_waitcnt lgkmcnt(0)")
    rv(1); mv(0)
    e("s_waitcnt lgkmcnt(0)")
    rv(2); mv(1)
    e("s_waitcnt lgkmcnt(0)")
    rv(3); mv(2)
    e("s_waitcnt lgkmcnt(0)")
    bar(a)
    issue_tile(e, SRD_V, sM0b, sNextK, 0, False, pol)
    mv(3)
    if TIMING[0]:
        ts_mark(a, 76)
        for k in range(4):
            e(f"s_cmp_eq_u32 s{sTask}, {k}")
            if not XM[0] or k == 3:
                e(f"s_cselect_b32 s{MK[3+k]}, s76, s{MK[3+k]}")
    e(f"s_mov_b32 s{sKVoff}, s{sNextK}")
    e(f"s_add_u32 s{sTask}, s{sTask}, 1")
    e(f"s_cmp_lt_u32 s{sTask}, 4")
    e(f"s_cbranch_scc1 {name}_chunk")
    e(f"v_mov_b32 v{vT0}, v{vL}")
    a.nop(2)
    e(f"v_permlane32_swap_b32 v{vL}, v{vT0}")
    a.nop(1)
    e(f"v_add_f32 v{vL}, v{vL}, v{vT0}")
    e(f"v_rcp_f32 v{vF}, v{vL}")
    a.nop(8)
    for k in range(64):
        e(f"v_mul_f32 v{O+k}, v{O+k}, v{vF}")
    for k in range(32):
        e(f"v_cvt_pk_bf16_f32 v{S+k}, v{O+2*k}, v{O+2*k+1}")
    e("s_waitcnt vmcnt(0)")
    e(f"s_lshl_b32 s{sT0}, s{sBs}, 18")
    e(f"s_lshl_b32 s{sT1}, s{sHq}, 2")
    e(f"s_add_u32 s{sT1}, s{sT1}, s{sWV}")
    e(f"s_lshl_b32 s{sT1}, s{sT1}, 13")
    e(f"s_add_u32 s{sT0}, s{sT0}, s{sT1}")
    for f in range(8):
        if f == 4:
            e(f"s_add_u32 s{sT0}, s{sT0}, 4096")
        e(f"buffer_store_dwordx4 v[{S+4*f}:{S+4*f+3}], v{vLane16}, s[{SRD_O}:{SRD_O+3}], s{sT0} offen offset:{(f%4)*1024} {OPOL[0]}")


def gen_attn(a, name, timing=False, pol_x="nt", pol_w="nt", pol_kv="nt", touch=True, delay_a=True, thresh=32, bound=64, qmarks=False, only=None, qonly=False, qskip='', qorder='adv', look=2, prio_a=0, prio_b=0, touch_a=False, sleep_q=8, sleep_b=48, xmarks=False, use_inv=False, altprio=False, opol='', gsleep=1, psig=10, pairwait=0, wo_early=None, asym=False, pol_kv_a=None, clk=False, single=False, exp_sleep=0, wo_pf=None, wtouch=0, prio_flash=0, qst='sc0 sc1', qld='sc0 sc1'):
    kernel_header(a, name)
    e = a.e
    TIMING[0] = timing
    QMARKS[0] = qmarks
    QSKIP[0] = qskip
    QORDER[0] = qorder
    LOOK[0] = look
    SLEEPQ[0] = sleep_q
    XM[0] = xmarks
    ALT[0] = altprio
    ASYM[0] = asym
    OPOL[0] = opol
    GSLEEP[0] = gsleep
    PSIG[0] = psig if pairwait else 0
    SINGLE[0] = single
    GB[0] = 0
    WT[0] = wtouch
    INV[0] = use_inv
    QST[0] = qst
    QST[1] = qld
    gen_prologue(a, name, timing)
    if only == "B":
        e(f"s_cmp_lg_u32 s{sRole}, 0")
        e(f"s_cbranch_scc1 {name}_done")
    if only == "A":
        e(f"s_cmp_eq_u32 s{sRole}, 0")
        e(f"s_cbranch_scc1 {name}_done")
    if timing:
        for k in range(8):
            e(f"s_mov_b32 s{MK[k]}, 0")
    e(f"s_and_b32 s{sT2}, s{sH}, 3")
    e(f"s_lshl_b32 s{sT2}, s{sT2}, 3")
    e(f"s_add_u32 s{sBs}, s{sT2}, s{sI}")
    e(f"s_lshr_b32 s{sHq}, s{sH}, 2")
    e(f"s_lshl_b32 s{sT0}, s{sI}, 5")
    e(f"s_add_u32 s{sT0}, s{sT0}, s{sH}")
    e(f"s_lshl_b32 s{sT1}, s{sBs}, 2")
    e(f"s_lshr_b32 s{sT2}, s{sH}, 3")
    e(f"s_add_u32 s{sT1}, s{sT1}, s{sT2}")
    e(f"s_cmp_eq_u32 s{sRole}, 0")
    e(f"s_cselect_b32 s{sKVoff}, s{sT0}, s{sT1}")
    e(f"s_lshl_b32 s{sKVoff}, s{sKVoff}, 17")
    e(f"s_add_u32 s{sKVoff}, s{sKVoff}, s{sW8}")
    e(f"s_mov_b32 s{sOoff}, {8*32*131072}")
    if pairwait:
        e(f"s_and_b32 s{sT0}, s2, 255")
        e(f"s_lshl_b32 s{sT0}, s{sT0}, 8")
        e(f"s_add_u32 s{sT0}, s{sT0}, {PAIR_OFF}")
        e(f"s_add_u32 s{sPairP}, s{SRD_O}, s{sT0}")
        e(f"s_addc_u32 s{sPairP+1}, s{SRD_O+1}, 0")
        e(f"s_load_dword s{sPairN}, s[{sPairP}:{sPairP+1}], 0 glc")
    e(f"s_cmp_eq_u32 s{sRole}, 0")
    e(f"s_cbranch_scc1 {name}_startb")
    if pairwait:
        e("s_waitcnt lgkmcnt(0)")
        e(f"s_mul_i32 s{sPairN}, s{sPairN}, 0x9e3779b1")
        e(f"s_add_u32 s{sPairN}, s{sPairN}, 0x7f4a7c15")
        e(f"s_mov_b32 s{sT3}, {pairwait}")
        a.label(f"{name}_pw")
        e(f"s_load_dword s{sT1}, s[{sPairP}:{sPairP+1}], 16 glc")
        e("s_waitcnt lgkmcnt(0)")
        e(f"s_cmp_eq_u32 s{sT1}, s{sPairN}")
        e(f"s_cbranch_scc1 {name}_pw_ok")
        e(f"s_sub_u32 s{sT3}, s{sT3}, 1")
        e(f"s_cmp_eq_u32 s{sT3}, 0")
        e(f"s_cbranch_scc1 {name}_pw_ok")
        e("s_sleep 4")
        e(f"s_branch {name}_pw")
        a.label(f"{name}_pw_ok")
        e(f"s_cmp_lg_u32 s{sWV}, 0")
        e(f"s_cbranch_scc1 {name}_pw_d")
        e(f"s_and_b32 s{sT0}, s2, 255")
        e(f"s_lshl_b32 s{sT0}, s{sT0}, 8")
        e(f"s_add_u32 s{sT0}, s{sT0}, {PAIR_OFF}")
        e(f"v_mov_b32 v{vT0}, 0")
        e(f"v_mov_b32 v{vT1}, s{sPairN}")
        e(f"v_cmp_eq_u32 vcc, 0, v0")
        e(f"s_and_saveexec_b64 s[{sT2}:{sT3}], vcc")
        e(f"buffer_store_dword v{vT1}, v{vT0}, s[{SRD_O}:{SRD_O+3}], s{sT0} offen sc0 sc1")
        e(f"s_mov_b64 exec, s[{sT2}:{sT3}]")
        a.label(f"{name}_pw_d")
    if wo_early is not None:
        e(f"s_load_dwordx2 s[52:53], s[0:1], 32")
        e(f"s_load_dwordx2 s[54:55], s[0:1], 72")
        e(f"s_and_b32 s{sT0}, s2, 255")
        e(f"s_lshl_b32 s{sT0}, s{sT0}, 2")
        e(f"s_add_u32 s{sT0}, s{sT0}, s{sWV}")
        e(f"s_waitcnt lgkmcnt(0)")
        e(f"s_cmp_lt_u32 s{sT0}, 512")
        e(f"s_cselect_b32 s{SRD_T}, s52, s54")
        e(f"s_cselect_b32 s{SRD_T+1}, s53, s55")
        e(f"s_and_b32 s{SRD_T+1}, s{SRD_T+1}, 0xffff")
        e(f"s_mov_b32 s{SRD_T+2}, {4096*1024*2}")
        e(f"s_mov_b32 s{SRD_T+3}, 0x20000")
        e(f"s_and_b32 s{sT0}, s{sT0}, 511")
        e(f"s_lshl_b32 s{sT0}, s{sT0}, 14")
        e(f"v_lshlrev_b32 v{vT0}, 7, v0")
        e(f"buffer_load_dword v{vT2}, v{vT0}, s[{SRD_T}:{SRD_T+3}], s{sT0} offen {wo_early}")
        e(f"s_add_u32 s{sT0}, s{sT0}, 8192")
        e(f"buffer_load_dword v{vT3}, v{vT0}, s[{SRD_T}:{SRD_T+3}], s{sT0} offen {wo_early}")
        e("s_waitcnt vmcnt(0)")
    if asym:
        for k in range(16):
            e("s_barrier")
        e("s_barrier")
        e(f"v_mov_b32 v{vT3}, 0")
        e(f"ds_write_b32 v{vBarA}, v{vT3}")
        e("s_waitcnt lgkmcnt(0)")
        e("s_barrier")
    if exp_sleep:
        for k in range(exp_sleep):
            e("s_sleep 127")
    if delay_a:
        e(f"s_lshl_b32 s{sT4}, s{sX}, 2")
        e(f"s_cmp_lg_u32 s{sWV}, 0")
        e(f"s_cbranch_scc1 {name}_await")
        poll_counter(a, f"{name}_pollb", sT4, 255, None, thresh, bound, sleep=sleep_b)
        a.label(f"{name}_await")
        e("s_barrier")
    e(f"s_lshl_b32 s{sFlag}, s{sHq}, 3")
    e(f"s_add_u32 s{sFlag}, s{sFlag}, s{sI}")
    e(f"s_lshl_b32 s{sFlag}, s{sFlag}, 8")
    e(f"s_add_u32 s{sFlag}, s{sFlag}, {FLAG_OFF}")
    e(f"v_mov_b32 v{vT0}, 0")
    e(f"buffer_load_dword v{vNon}, v{vT0}, s[{SRD_O}:{SRD_O+3}], s{sFlag} offen sc0 sc1")
    if prio_a:
        e(f"s_setprio {prio_a}")
    if touch_a:
        gen_touch(a, pol_w)
    e(f"s_branch {name}_q")
    a.label(f"{name}_startb")
    if prio_b:
        e(f"s_setprio {prio_b}")
    if touch:
        gen_touch(a, pol_w)
    a.label(f"{name}_q")
    mark(a, 0)
    if clk:
        e("s_memtime s[76:77]")
        e("s_waitcnt lgkmcnt(0)")
        e(f"s_mov_b32 s{MK[5]}, s76")

    def hook_w():
        e(f"s_cmp_lg_u32 s{sRole}, 0")
        e(f"s_cbranch_scc1 {name}_hw")
        if delay_a:
            e(f"s_lshl_b32 s{sT4}, s{sX}, 2")
            signal(a, f"{name}_sigb", sT4, "1")
        issue_tile(e, SRD_K, sM0a, sKVoff, 0, True, pol_kv)
        a.label(f"{name}_hw")
    def hook_x():
        if LOOK[0] != 2:
            return
        e(f"s_cmp_lg_u32 s{sRole}, 0")
        e(f"s_cbranch_scc1 {name}_hx")
        issue_tile(e, SRD_K, sM0b, sKVoff, 32768, True, pol_kv)
        a.label(f"{name}_hx")
    gen_qproj(a, name, pol_x, pol_w, hook_w, hook_x)
    mark(a, 1)
    if clk:
        e("s_memtime s[76:77]")
        e("s_waitcnt lgkmcnt(0)")
        e(f"s_sub_u32 s{MK[6]}, s76, s{MK[5]}")
        e(f"s_mov_b32 s{MK[5]}, 0")
    if ALT[0]:
        e("s_setprio 0")
    if qonly:
        e(f"s_branch {name}_end")
    if single and asym:
        e(f"s_cmp_lg_u32 s{sRole}, 0")
        e(f"s_cbranch_scc1 {name}_rolea")
        e("s_barrier")
        e(f"v_mov_b32 v{vT3}, 0")
        e(f"ds_write_b32 v{vBarA}, v{vT3}")
        e("s_waitcnt lgkmcnt(0)")
        e("s_barrier")
    elif single:
        e("s_barrier")
        e(f"v_mov_b32 v{vT3}, 0")
        e(f"ds_write_b32 v{vBarA}, v{vT3}")
        e("s_waitcnt lgkmcnt(0)")
        e("s_barrier")
    e(f"s_cmp_lg_u32 s{sRole}, 0")
    e(f"s_cbranch_scc1 {name}_rolea")
    if not single:
        e("s_barrier")
    q_broadcast(a, name, "q0", "0")
    e(f"s_mov_b32 s{sTask}, 0")
    gen_m1(a, name, pol_kv)
    e(f"s_branch {name}_end")
    a.label(f"{name}_rolea")
    e(f"s_setprio {prio_flash}")
    gen_flash(a, name, pol_kv if pol_kv_a is None else pol_kv_a)
    a.label(f"{name}_end")
    if wo_pf is not None:
        e(f"s_load_dwordx2 s[52:53], s[0:1], 32")
        e(f"s_load_dwordx2 s[54:55], s[0:1], 72")
        e(f"s_waitcnt lgkmcnt(0)")
        e(f"s_cmp_lt_u32 s{sX}, 4")
        e(f"s_cselect_b32 s{SRD_W}, s52, s54")
        e(f"s_cselect_b32 s{SRD_W+1}, s53, s55")
        e(f"s_and_b32 s{SRD_W+1}, s{SRD_W+1}, 0xffff")
        e(f"s_mov_b32 s{SRD_W+2}, {4096*1024*2}")
        e(f"s_mov_b32 s{SRD_W+3}, 0x20000")
        if single:
            e(f"s_lshr_b32 s{sT0}, s2, 3")
            e(f"s_lshl_b32 s{sT0}, s{sT0}, 3")
            e(f"s_add_u32 s{sT0}, s{sT0}, s{sWid}")
        else:
            e(f"s_lshr_b32 s{sT0}, s2, 3")
            e(f"s_lshl_b32 s{sT0}, s{sT0}, 2")
            e(f"s_add_u32 s{sT0}, s{sT0}, s{sWV}")
        e(f"s_lshl_b32 s{sT0}, s{sT0}, 14")
        e(f"s_and_b32 s{sT1}, s{sX}, 1")
        e(f"s_lshl_b32 s{sT1}, s{sT1}, 10")
        e(f"s_add_u32 s{sT0}, s{sT0}, s{sT1}")
        e(f"s_bfe_u32 s{sT1}, s{sX}, 0x10001")
        e(f"s_lshl_b32 s{sT1}, s{sT1}, 22")
        e(f"s_add_u32 s{sT0}, s{sT0}, s{sT1}")
        e(f"v_lshrrev_b32 v{vT0}, 3, v0")
        e(f"v_lshlrev_b32 v{vT0}, 11, v{vT0}")
        e(f"v_and_b32 v{vT1}, 7, v0")
        e(f"v_lshlrev_b32 v{vT1}, 7, v{vT1}")
        e(f"v_add_u32 v{vT0}, v{vT0}, v{vT1}")
        e(f"buffer_load_dword v{vT2}, v{vT0}, s[{SRD_W}:{SRD_W+3}], s{sT0} offen {wo_pf}")
    e("s_waitcnt vmcnt(0)")
    if timing:
        mark(a, 7)
        ts_dump(a, [sTS] + MK[0:7], 0, sWid if single else sWV, 52, 8, nwaves=8 if single else 4)
        ts_end(a, sTS, 0, sWid if single else sWV, 52, 2, nwaves=8 if single else 4)
    a.label(f"{name}_done")
    e("s_endpgm")
    return dict(nv=256, ns=NS, lds=LDS_BYTES*(2 if single else 1), threads=512 if single else 256, grid=256 if single else 512)
```

```python
from asmlib import *
from oproj2 import interleave

NST = 32
OOB = 0x80000000
OSLOT, NO = 16384, 4
WSLOT, NW = 32768, 3
WBASE = NO * OSLOT
PART_OFF = 64 << 20
PFLAG_OFF = 49 << 20

def gen_oproj(a, name, pol_o="", pol_w="", timing=False, skip="", order="adv", sleep=4, prio_l=0, prio_c=0, xpol="sc0 sc1", samex=False, fast=0):
    kernel_header(a, name)
    e = a.e
    sWV = 4
    SRD_O, SRD_W, SRD_OUT, SRD_P = 8, 12, 16, 60
    sO, sW, sFill, sReadO, sCnt, sT0, sT1, sT2, sBr, sB0, sCol = 20, 21, 22, 23, 24, 25, 26, 27, 28, 29, 30
    sOx, sIss, sCls, sWx, sM0o, sM0w, sLW, sReadW, sGrp, sWfill = 31, 42, 43, 52, 53, 54, 55, 56, 57, 58
    sKh, sPair, sNon, sFlag = 59, 64, 65, 66
    vLane16, vRO, vRO2, vT, vT2, vOut, vNon = 1, 2, 3, 4, 5, 6, 7
    vRW = 8
    vRW2 = 10
    vWD = 12
    ACC = 16
    FA = [80, 144]
    FB = [112, 176]
    NV = 208

    e("s_cmp_ge_u32 s2, 256")
    e(f"s_cbranch_scc1 {name}_done")
    if timing:
        ts_begin(a, 40)
    e("s_load_dwordx2 s[32:33], s[0:1], 32")
    e("s_load_dwordx2 s[34:35], s[0:1], 72")
    e("s_load_dwordx2 s[36:37], s[0:1], 80")
    e("s_load_dwordx2 s[38:39], s[0:1], 96")
    e("v_lshrrev_b32 v8, 6, v0")
    e("v_and_b32 v0, 63, v0")
    e(f"v_readfirstlane_b32 s{sWV}, v8")
    if not samex:
        e(f"s_and_b32 s{sT0}, s2, 7")
        e(f"s_lshr_b32 s{sT1}, s2, 3")
        e(f"s_lshr_b32 s{sBr}, s{sT0}, 2")
        e(f"s_bfe_u32 s{sKh}, s{sT0}, 0x10001")
        e(f"s_lshr_b32 s{sT2}, s{sT1}, 2")
        e(f"s_lshl_b32 s{sB0}, s{sT2}, 2")
        e(f"s_mov_b32 s{sCls}, s{sT2}")
        e(f"s_and_b32 s{sT2}, s{sT1}, 3")
        e(f"s_add_u32 s{sCls}, s{sCls}, s{sT2}")
        e(f"s_and_b32 s{sCls}, s{sCls}, 3")
        e(f"s_lshl_b32 s{sT2}, s{sT2}, 7")
        e(f"s_and_b32 s{sCol}, s{sT0}, 1")
        e(f"s_lshl_b32 s{sCol}, s{sCol}, 9")
        e(f"s_add_u32 s{sCol}, s{sCol}, s{sT2}")
        e(f"s_and_b32 s{sPair}, s{sT0}, 1")
        e(f"s_lshl_b32 s{sT2}, s{sBr}, 1")
        e(f"s_add_u32 s{sPair}, s{sPair}, s{sT2}")
        e(f"s_lshl_b32 s{sPair}, s{sPair}, 5")
        e(f"s_add_u32 s{sPair}, s{sPair}, s{sT1}")
    else:
        e(f"s_and_b32 s{sT0}, s2, 7")
        e(f"s_lshr_b32 s{sT1}, s2, 3")
        e(f"s_lshr_b32 s{sBr}, s{sT0}, 2")
        e(f"s_lshr_b32 s{sKh}, s{sT1}, 4")
        e(f"s_bfe_u32 s{sT2}, s{sT1}, 0x20002")
        e(f"s_mov_b32 s{sCls}, s{sT2}")
        e(f"s_lshl_b32 s{sB0}, s{sT2}, 2")
        e(f"s_bfe_u32 s{sT2}, s{sT0}, 0x10001")
        e(f"s_lshl_b32 s{sT2}, s{sT2}, 4")
        e(f"s_add_u32 s{sB0}, s{sB0}, s{sT2}")
        e(f"s_and_b32 s{sT2}, s{sT1}, 3")
        e(f"s_add_u32 s{sCls}, s{sCls}, s{sT2}")
        e(f"s_and_b32 s{sCls}, s{sCls}, 3")
        e(f"s_lshl_b32 s{sT2}, s{sT2}, 7")
        e(f"s_and_b32 s{sCol}, s{sT0}, 1")
        e(f"s_lshl_b32 s{sCol}, s{sCol}, 9")
        e(f"s_add_u32 s{sCol}, s{sCol}, s{sT2}")
        e(f"s_lshl_b32 s{sPair}, s{sT0}, 4")
        e(f"s_and_b32 s{sT2}, s{sT1}, 15")
        e(f"s_add_u32 s{sPair}, s{sPair}, s{sT2}")
    e(f"v_lshlrev_b32 v{vLane16}, 4, v0")
    e("s_waitcnt lgkmcnt(0)")
    e(f"s_cmp_ge_u32 s{sWV}, 4")
    e(f"s_cbranch_scc1 {name}_loader")

    if prio_c:
        e(f"s_setprio {prio_c}")
    e(f"s_mov_b32 s{SRD_P}, s38")
    e(f"s_and_b32 s{SRD_P+1}, s39, 0xffff")
    e(f"s_mov_b32 s{SRD_P+2}, {96 << 20}")
    e(f"s_mov_b32 s{SRD_P+3}, 0x20000")
    e(f"s_lshl_b32 s{sFlag}, s{sPair}, 8")
    e(f"s_add_u32 s{sFlag}, s{sFlag}, {PFLAG_OFF}")
    e(f"v_mov_b32 v{vT}, 0")
    e(f"buffer_load_dword v{vNon}, v{vT}, s[{SRD_P}:{SRD_P+3}], s{sFlag} offen sc0 sc1")
    e(f"s_mov_b32 s{SRD_OUT}, s36")
    e(f"s_and_b32 s{SRD_OUT+1}, s37, 0xffff")
    e(f"s_mov_b32 s{SRD_OUT+2}, {1024*2048*2}")
    e(f"s_mov_b32 s{SRD_OUT+3}, 0x20000")
    e(f"s_lshr_b32 s{sT0}, s{sWV}, 1")
    e(f"s_lshl_b32 s{sT0}, s{sT0}, 13")
    e(f"v_add_u32 v{vRO}, s{sT0}, v{vLane16}")
    e(f"v_bfe_u32 v{vT}, v0, 2, 2")
    e(f"v_lshlrev_b32 v{vRW}, 6, v{vT}")
    e(f"v_bfe_u32 v{vT2}, v0, 4, 1")
    e(f"v_lshlrev_b32 v{vT2}, 5, v{vT2}")
    e(f"v_add_u32 v{vRW}, v{vRW}, v{vT2}")
    e(f"v_and_b32 v{vT2}, 1, v0")
    e(f"v_lshlrev_b32 v{vT2}, 4, v{vT2}")
    e(f"v_add_u32 v{vRW}, v{vRW}, v{vT2}")
    e(f"v_bfe_u32 v{vT2}, v0, 1, 1")
    e(f"v_lshlrev_b32 v{vT2}, 3, v{vT2}")
    e(f"v_add_u32 v{vRW}, v{vRW}, v{vT2}")
    e(f"v_lshrrev_b32 v{vT2}, 5, v0")
    e(f"v_lshlrev_b32 v{vT2}, 3, v{vT2}")
    e(f"v_add_u32 v{vT2}, v{vT2}, v{vT}")
    e(f"v_lshlrev_b32 v{vT2}, 8, v{vT2}")
    e(f"v_add_u32 v{vRW}, v{vRW}, v{vT2}")
    e(f"v_add_u32 v{vRW}, {WBASE}, v{vRW}")
    e(f"s_and_b32 s{sT0}, s{sWV}, 1")
    e(f"s_lshl_b32 s{sT0}, s{sT0}, 7")
    e(f"v_xor_b32 v{vRW}, s{sT0}, v{vRW}")
    e(f"v_xor_b32 v{vRW+1}, 64, v{vRW}")
    e(f"v_and_b32 v{vOut}, 31, v0")
    e(f"v_lshlrev_b32 v{vOut}, 12, v{vOut}")
    e(f"v_lshrrev_b32 v{vT}, 5, v0")
    e(f"v_lshlrev_b32 v{vT}, 4, v{vT}")
    e(f"v_add_u32 v{vOut}, v{vOut}, v{vT}")
    e(f"v_add_u32 v{vOut}, s{sT0}, v{vOut}")
    e(f"s_mov_b32 s{sReadO}, 0")
    e(f"s_mov_b32 s{sReadW}, 0")
    e(f"s_mov_b32 s{sCnt}, 0")
    for r in range(64):
        e(f"v_mov_b32 v{ACC+r}, 0")
    for r in range(64):
        e(f"v_mov_b32 v{FA[1]+r}, 0")
    e("s_waitcnt vmcnt(0)")

    def reads(k):
        L = []
        for u in range(4):
            for mt in range(2):
                for half in range(2):
                    r = FA[k] + 16*mt + 4*u + 2*half
                    L.append(f"ds_read_b64_tr_b16 v[{r}:{r+1}], v{vRW2+mt} offset:{(16*u + 4*half)*256}")
            for t in range(2):
                r = FB[k] + 16*t + 4*u
                L.append(f"ds_read_b128 v[{r}:{r+3}], v{vRO2} offset:{t*4096 + u*1024}")
        return L

    def mfmas(k):
        L = []
        for u in range(4):
            for t in range(2):
                for mt in range(2):
                    d = ACC + 32*t + 16*mt
                    L.append(f"v_mfma_f32_32x32x16_bf16 v[{d}:{d+15}], v[{FA[k]+16*mt+4*u}:{FA[k]+16*mt+4*u+3}], v[{FB[k]+16*t+4*u}:{FB[k]+16*t+4*u+3}], v[{d}:{d+15}]")
        return L

    a.label(f"{name}_cloop")
    for k in range(2):
        e("s_barrier")
        e(f"v_add_u32 v{vRO2}, s{sReadO}, v{vRO}")
        e(f"v_add_u32 v{vRW2}, s{sReadW}, v{vRW}")
        e(f"v_add_u32 v{vRW2+1}, s{sReadW}, v{vRW+1}")
        e("s_waitcnt lgkmcnt(0)")
        fill = reads(k) if "r" not in skip else []
        fill += [f"s_add_u32 s{sReadO}, s{sReadO}, {OSLOT}",
                 f"s_and_b32 s{sReadO}, s{sReadO}, {NO*OSLOT-1}",
                 f"s_add_u32 s{sReadW}, s{sReadW}, 16384",
                 f"s_cmp_eq_u32 s{sReadW}, {NW*WSLOT}",
                 f"s_cselect_b32 s{sReadW}, 0, s{sReadW}",
                 f"s_add_u32 s{sCnt}, s{sCnt}, 1"]
        main = mfmas(1-k) if "m" not in skip else []
        if main:
            for ln in interleave(main, fill, [2]*12 + [3, 3, 0, 0]):
                e(ln)
        else:
            for ln in fill:
                e(ln)
    e(f"s_cmp_lt_u32 s{sCnt}, {NST}")
    e(f"s_cbranch_scc1 {name}_cloop")
    e("s_waitcnt lgkmcnt(0)")
    for ln in mfmas(1):
        e(ln)
    e("s_waitcnt vmcnt(0)")
    e(f"v_readfirstlane_b32 s{sNon}, v{vNon}")
    a.nop(3)
    e(f"s_mul_i32 s{sNon}, s{sNon}, 0x9e3779b1")
    e(f"s_add_u32 s{sNon}, s{sNon}, 0x7f4a7c15")
    sTag = [68, 69, 70, 71]
    for k in range(4):
        e(f"s_bfe_u32 s{sTag[k]}, s{sNon}, {(8 << 16) | (8*k):#x}")
    e(f"s_mov_b32 s{sT2}, 0xffffff00")
    e(f"v_mov_b32 v{vT}, s{sT2}")
    e(f"s_lshl_b32 s{sOx}, s{sPair}, 1")
    e(f"s_add_u32 s{sWx}, s{sOx}, s{sKh}")
    e(f"s_xor_b32 s{sT0}, s{sKh}, 1")
    e(f"s_add_u32 s{sOx}, s{sOx}, s{sT0}")
    for r in (sWx, sOx):
        e(f"s_lshl_b32 s{r}, s{r}, 2")
        e(f"s_add_u32 s{r}, s{r}, s{sWV}")
        e(f"s_lshl_b32 s{r}, s{r}, 13")
        e(f"s_add_u32 s{r}, s{r}, {PART_OFF}")
    IN = FA[0]
    vBad = vT2
    e(f"s_cmp_eq_u32 s{sKh}, 0")
    e(f"s_cbranch_scc0 {name}_x1")
    for kh in range(2):
        if kh == 1:
            a.label(f"{name}_x1")
        SND = ACC + 32*(1-kh)
        KEEP = ACC + 32*kh
        for r in range(32):
            e(f"v_and_or_b32 v{SND+r}, v{SND+r}, v{vT}, s{sTag[r & 3]}")
        MIRROR = 8 << 20
        def stores(off_extra, pol):
            e(f"s_add_u32 s{sT0}, s{sWx}, {off_extra}")
            for rq in range(8):
                e(f"buffer_store_dwordx4 v[{SND+4*rq}:{SND+4*rq+3}], v{vLane16}, s[{SRD_P}:{SRD_P+3}], s{sT0} offen offset:{(rq%4)*1024} {pol}")
                if rq == 3:
                    e(f"s_add_u32 s{sT0}, s{sT0}, 4096")
        def loads(off_extra, pol):
            e(f"s_add_u32 s{sT0}, s{sOx}, {off_extra}")
            for rq in range(8):
                e(f"buffer_load_dwordx4 v[{IN+4*rq}:{IN+4*rq+3}], v{vLane16}, s[{SRD_P}:{SRD_P+3}], s{sT0} offen offset:{(rq%4)*1024} {pol}")
                if rq == 3:
                    e(f"s_add_u32 s{sT0}, s{sT0}, 4096")
        if fast:
            stores(0, "")
            loads(0, "sc1")
            stores(MIRROR, "sc0 sc1")
            e(f"s_mov_b32 s{sT1}, {fast}")
            e("s_waitcnt vmcnt(8)")
            e(f"s_branch {name}_chk{kh}")
            a.label(f"{name}_poll{kh}")
            e(f"s_cmp_eq_u32 s{sT1}, 0")
            e(f"s_cbranch_scc1 {name}_slow{kh}")
            e(f"s_sub_u32 s{sT1}, s{sT1}, 1")
            loads(0, "sc1")
            e(f"s_branch {name}_wait{kh}")
            a.label(f"{name}_slow{kh}")
            loads(MIRROR, "sc0 sc1")
            a.label(f"{name}_wait{kh}")
            e("s_waitcnt vmcnt(0)")
            a.label(f"{name}_chk{kh}")
        else:
            stores(0, xpol)
            a.label(f"{name}_poll{kh}")
            loads(0, "sc0 sc1")
            e("s_waitcnt vmcnt(0)")
        e(f"v_xor_b32 v{vBad}, s{sTag[0]}, v{IN}")
        for r in range(1, 32):
            e(f"v_xor_b32 v{vRO2}, s{sTag[r & 3]}, v{IN+r}")
            e(f"v_or_b32 v{vBad}, v{vBad}, v{vRO2}")
        e(f"v_and_b32 v{vBad}, 0xff, v{vBad}")
        e(f"v_cmp_ne_u32 vcc, 0, v{vBad}")
        a.nop(4)
        e(f"s_cmp_eq_u64 vcc, 0")
        e(f"s_cbranch_scc1 {name}_got{kh}")
        e(f"s_sleep {sleep}")
        e(f"s_branch {name}_poll{kh}")
        a.label(f"{name}_got{kh}")
        for r in range(32):
            e(f"v_add_f32 v{KEEP+r}, v{KEEP+r}, v{IN+r}")
        P = FB[1]
        for mt in range(2):
            for sg in range(2):
                for i in range(4):
                    src = KEEP + 16*mt + 8*sg + 2*i
                    e(f"v_cvt_pk_bf16_f32 v{P + 8*mt + 4*sg + i}, v{src}, v{src+1}")
        if kh == 0:
            e(f"s_branch {name}_xout")
    a.label(f"{name}_xout")
    e(f"s_lshr_b32 s{sT0}, s{sWV}, 1")
    e(f"s_lshl_b32 s{sT0}, s{sT0}, 1")
    e(f"s_add_u32 s{sT0}, s{sT0}, s{sKh}")
    e(f"s_add_u32 s{sT0}, s{sT0}, s{sB0}")
    e(f"s_lshl_b32 s{sT0}, s{sT0}, 17")
    e(f"s_lshl_b32 s{sT1}, s{sBr}, 11")
    e(f"s_add_u32 s{sT0}, s{sT0}, s{sT1}")
    e(f"s_lshl_b32 s{sT1}, s{sCol}, 1")
    e(f"s_add_u32 s{sT0}, s{sT0}, s{sT1}")
    P = FB[1]
    for mt in range(2):
        for sg in range(2):
            r = P + 8*mt + 4*sg
            e(f"buffer_store_dwordx4 v[{r}:{r+3}], v{vOut}, s[{SRD_OUT}:{SRD_OUT+3}], s{sT0} offen offset:{64*mt + 32*sg}")
    e(f"v_mov_b32 v{vT}, 0")
    e(f"v_mov_b32 v{vT2}, s{sNon}")
    e(f"v_cmp_eq_u32 vcc, 0, v0")
    e(f"s_and_saveexec_b64 s[44:45], vcc")
    e(f"buffer_store_dword v{vT2}, v{vT}, s[{SRD_P}:{SRD_P+3}], s{sFlag} offen sc0 sc1")
    e(f"s_mov_b64 exec, s[44:45]")
    e("s_waitcnt vmcnt(0)")
    e(f"s_branch {name}_fin")

    a.label(f"{name}_loader")
    if prio_l:
        e(f"s_setprio {prio_l}")
    e(f"s_sub_u32 s{sLW}, s{sWV}, 4")
    e(f"v_lshrrev_b32 v{vT}, 4, v0")
    e(f"v_and_b32 v{vT2}, 15, v0")
    e(f"v_lshlrev_b32 v{vWD}, 2, v{vT}")
    e(f"v_xor_b32 v{vWD}, v{vWD}, v{vT2}")
    e(f"v_lshlrev_b32 v{vWD}, 4, v{vWD}")
    e(f"v_lshlrev_b32 v{vT}, 11, v{vT}")
    e(f"v_add_u32 v{vWD}, v{vWD}, v{vT}")
    for k in range(1, 4):
        e(f"v_add_u32 v{vWD+k}, {k*(4*2048 - 1024)}, v{vWD}")
    e(f"s_cmp_eq_u32 s{sBr}, 0")
    e(f"s_cselect_b32 s{SRD_W}, s32, s34")
    e(f"s_cselect_b32 s{SRD_W+1}, s33, s35")
    e(f"s_and_b32 s{SRD_W+1}, s{SRD_W+1}, 0xffff")
    e(f"s_mov_b32 s{SRD_W+2}, {4096*1024*2}")
    e(f"s_mov_b32 s{SRD_W+3}, 0x20000")
    e(f"s_mov_b32 s{SRD_O}, s38")
    e(f"s_and_b32 s{SRD_O+1}, s39, 0xffff")
    e(f"s_mov_b32 s{SRD_O+2}, {2*8388608}")
    e(f"s_mov_b32 s{SRD_O+3}, 0x20000")
    e(f"s_add_u32 s{sT0}, s{sB0}, s{sLW}")
    e(f"s_lshl_b32 s{sO}, s{sT0}, 18")
    e(f"s_lshl_b32 s{sT0}, s{sBr}, 23")
    e(f"s_add_u32 s{sO}, s{sO}, s{sT0}")
    e(f"s_lshl_b32 s{sT0}, s{sKh}, 17")
    e(f"s_add_u32 s{sO}, s{sO}, s{sT0}")
    e(f"s_lshl_b32 s{sW}, s{sLW}, 16")
    e(f"s_lshl_b32 s{sT0}, s{sCol}, 1")
    e(f"s_add_u32 s{sW}, s{sW}, s{sT0}")
    e(f"s_lshl_b32 s{sT0}, s{sKh}, 22")
    e(f"s_add_u32 s{sW}, s{sW}, s{sT0}")
    e(f"s_lshl_b32 s{sM0o}, s{sLW}, 12")
    e(f"s_lshl_b32 s{sM0w}, s{sLW}, 13")
    e(f"s_add_u32 s{sM0w}, s{sM0w}, {WBASE}")

    def group_of(pos_reg, dst):
        if order == "adv":
            e(f"s_add_u32 s{sT2}, s{pos_reg}, 1")
            e(f"s_sub_u32 s{sT2}, s{sT2}, s{sCls}")
            e(f"s_and_b32 s{sT2}, s{sT2}, 3")
            e(f"s_cmp_eq_u32 s{sT2}, 0")
            e(f"s_cselect_b32 s{sT0}, 1, 0")
            e(f"s_cmp_eq_u32 s{sT2}, 1")
            e(f"s_cselect_b32 s{sT0}, -1, s{sT0}")
            e(f"s_add_u32 s{dst}, s{pos_reg}, s{sT0}")
            e(f"s_cmp_lt_u32 s{dst}, 16")
            e(f"s_cselect_b32 s{dst}, s{dst}, s{pos_reg}")
        else:
            e(f"s_mov_b32 s{dst}, s{pos_reg}")

    def issue_o():
        e(f"s_lshr_b32 s{sT1}, s{sIss}, 1")
        group_of(sT1, sOx)
        e(f"s_lshl_b32 s{sOx}, s{sOx}, 1")
        e(f"s_and_b32 s{sT0}, s{sIss}, 1")
        e(f"s_add_u32 s{sOx}, s{sOx}, s{sT0}")
        e(f"s_lshl_b32 s{sOx}, s{sOx}, 12")
        e(f"s_add_u32 s{sOx}, s{sOx}, s{sO}")
        e(f"s_cmp_lt_u32 s{sIss}, {NST}")
        e(f"s_cselect_b32 s{sOx}, s{sOx}, {OOB:#x}")
        e(f"s_add_u32 m0, s{sFill}, s{sM0o}")
        e(f"s_add_u32 s{sIss}, s{sIss}, 1")
        for k in range(4):
            e(f"buffer_load_dwordx4 v{vLane16}, s[{SRD_O}:{SRD_O+3}], s{sOx} offen offset:{k*1024} {pol_o} lds")
        e(f"s_add_u32 s{sFill}, s{sFill}, {OSLOT}")
        e(f"s_and_b32 s{sFill}, s{sFill}, {NO*OSLOT-1}")

    def issue_w():
        group_of(sGrp, sWx)
        e(f"s_lshl_b32 s{sWx}, s{sWx}, 18")
        e(f"s_add_u32 s{sWx}, s{sWx}, s{sW}")
        e(f"s_cmp_lt_u32 s{sGrp}, 16")
        e(f"s_cselect_b32 s{sWx}, s{sWx}, {OOB:#x}")
        e(f"s_add_u32 m0, s{sWfill}, s{sM0w}")
        e(f"s_add_u32 s{sGrp}, s{sGrp}, 1")
        for half in range(2):
            for k in range(4):
                e(f"buffer_load_dwordx4 v{vWD+k}, s[{SRD_W}:{SRD_W+3}], s{sWx} offen offset:{k*1024} {pol_w} lds")
            if half == 0:
                e(f"s_add_u32 m0, m0, 4096")
                e(f"s_add_u32 s{sWx}, s{sWx}, {16*2048}")
        e(f"s_add_u32 s{sWfill}, s{sWfill}, {WSLOT}")
        e(f"s_cmp_eq_u32 s{sWfill}, {NW*WSLOT}")
        e(f"s_cselect_b32 s{sWfill}, 0, s{sWfill}")

    e(f"s_mov_b32 s{sFill}, 0")
    e(f"s_mov_b32 s{sIss}, 0")
    e(f"s_mov_b32 s{sGrp}, 0")
    e(f"s_mov_b32 s{sWfill}, 0")
    issue_w()
    issue_o()
    issue_o()
    issue_w()
    e(f"s_mov_b32 s{sCnt}, 0")
    a.label(f"{name}_lloop")
    for r in range(2):
        e("s_waitcnt vmcnt(12)")
        e("s_barrier")
        if "d" not in skip:
            issue_o()
            if r == 1:
                issue_w()
    e(f"s_add_u32 s{sCnt}, s{sCnt}, 2")
    e(f"s_cmp_lt_u32 s{sCnt}, {NST}")
    e(f"s_cbranch_scc1 {name}_lloop")
    e("s_waitcnt vmcnt(0)")
    a.label(f"{name}_fin")
    if timing:
        ts_end(a, 40, 1, sWV, 44, 48, nwaves=8)
    a.label(f"{name}_done")
    e("s_endpgm")
    return dict(nv=NV, ns=76, lds=NO*OSLOT + NW*WSLOT, threads=512)
```

```python
from asmlib import *

NST = 64
OOB = 0x80000000
WSLOT = 32768
NW = 3

def gen_oproj(a, name, pol_o="", pol_w="", timing=False, order="adv", D=8, prio=0):
    assert D % 4 == 0
    kernel_header(a, name)
    e = a.e
    sWV = 4
    SRD_O, SRD_W, SRD_OUT = 8, 12, 16
    sO, sW, sT0, sT1, sT2, sBr, sB0, sCol = 20, 21, 25, 26, 27, 28, 29, 30
    sOx, sIss, sCls, sWx, sM0w, sReadW, sGrp, sWfill, sCnt, sWr, sKq = 31, 42, 43, 52, 54, 56, 57, 58, 24, 22, 23
    vLane16, vT, vT2, vOut, vWD = 1, 4, 5, 6, 7
    vRW, vRW2 = 8, 10
    ACC = 16
    FO = 80
    FW = FO + 8*D
    NV = FW + 16

    e("s_cmp_ge_u32 s2, 256")
    e(f"s_cbranch_scc1 {name}_done")
    if timing:
        ts_begin(a, 40)
    e("s_load_dwordx2 s[32:33], s[0:1], 32")
    e("s_load_dwordx2 s[34:35], s[0:1], 72")
    e("s_load_dwordx2 s[36:37], s[0:1], 80")
    e("s_load_dwordx2 s[38:39], s[0:1], 96")
    e("v_lshrrev_b32 v8, 6, v0")
    e("v_and_b32 v0, 63, v0")
    e(f"v_readfirstlane_b32 s{sWV}, v8")
    e(f"s_and_b32 s{sT0}, s2, 7")
    e(f"s_lshr_b32 s{sT1}, s2, 3")
    e(f"s_lshr_b32 s{sBr}, s{sT0}, 2")
    e(f"s_bfe_u32 s{sT2}, s{sT0}, 0x10001")
    e(f"s_lshl_b32 s{sB0}, s{sT2}, 4")
    e(f"s_lshr_b32 s{sT2}, s{sT1}, 3")
    e(f"s_mov_b32 s{sCls}, s{sT2}")
    e(f"s_lshl_b32 s{sT2}, s{sT2}, 2")
    e(f"s_add_u32 s{sB0}, s{sB0}, s{sT2}")
    e(f"s_and_b32 s{sT2}, s{sT0}, 1")
    e(f"s_lshl_b32 s{sCol}, s{sT2}, 9")
    e(f"s_and_b32 s{sT2}, s{sT1}, 7")
    e(f"s_add_u32 s{sCls}, s{sCls}, s{sT2}")
    e(f"s_and_b32 s{sCls}, s{sCls}, 3")
    e(f"s_lshl_b32 s{sT2}, s{sT2}, 6")
    e(f"s_add_u32 s{sCol}, s{sCol}, s{sT2}")
    e(f"s_lshr_b32 s{sWr}, s{sWV}, 2")
    e(f"s_and_b32 s{sKq}, s{sWV}, 3")
    e(f"v_lshlrev_b32 v{vLane16}, 4, v0")
    e(f"v_lshrrev_b32 v{vT}, 3, v0")
    e(f"v_and_b32 v{vT2}, 7, v0")
    e(f"v_lshlrev_b32 v{vWD}, 1, v{vT}")
    e(f"v_and_b32 v{vWD}, 4, v{vWD}")
    e(f"v_xor_b32 v{vWD}, v{vWD}, v{vT2}")
    e(f"v_lshlrev_b32 v{vWD}, 4, v{vWD}")
    e(f"v_lshlrev_b32 v{vT}, 11, v{vT}")
    e(f"v_add_u32 v{vWD}, v{vWD}, v{vT}")
    e("s_waitcnt lgkmcnt(0)")
    e(f"s_cmp_eq_u32 s{sBr}, 0")
    e(f"s_cselect_b32 s{SRD_W}, s32, s34")
    e(f"s_cselect_b32 s{SRD_W+1}, s33, s35")
    e(f"s_and_b32 s{SRD_W+1}, s{SRD_W+1}, 0xffff")
    e(f"s_mov_b32 s{SRD_W+2}, {4096*1024*2}")
    e(f"s_mov_b32 s{SRD_W+3}, 0x20000")
    e(f"s_mov_b32 s{SRD_O}, s38")
    e(f"s_and_b32 s{SRD_O+1}, s39, 0xffff")
    e(f"s_mov_b32 s{SRD_O+2}, {2*8388608}")
    e(f"s_mov_b32 s{SRD_O+3}, 0x20000")
    e(f"s_mov_b32 s{SRD_OUT}, s36")
    e(f"s_and_b32 s{SRD_OUT+1}, s37, 0xffff")
    e(f"s_mov_b32 s{SRD_OUT+2}, {1024*2048*2}")
    e(f"s_mov_b32 s{SRD_OUT+3}, 0x20000")
    e(f"s_lshl_b32 s{sT0}, s{sWr}, 1")
    e(f"s_add_u32 s{sT0}, s{sT0}, s{sB0}")
    e(f"s_lshl_b32 s{sO}, s{sT0}, 18")
    e(f"s_lshl_b32 s{sT0}, s{sBr}, 23")
    e(f"s_add_u32 s{sO}, s{sO}, s{sT0}")
    e(f"s_lshl_b32 s{sT0}, s{sKq}, 10")
    e(f"s_add_u32 s{sO}, s{sO}, s{sT0}")
    e(f"s_lshl_b32 s{sW}, s{sWV}, 16")
    e(f"s_lshl_b32 s{sT0}, s{sCol}, 1")
    e(f"s_add_u32 s{sW}, s{sW}, s{sT0}")
    e(f"s_lshl_b32 s{sM0w}, s{sWV}, 12")

    def group_of(pos_reg, dst):
        if order == "adv":
            e(f"s_add_u32 s{sT2}, s{pos_reg}, 1")
            e(f"s_sub_u32 s{sT2}, s{sT2}, s{sCls}")
            e(f"s_and_b32 s{sT2}, s{sT2}, 3")
            e(f"s_cmp_eq_u32 s{sT2}, 0")
            e(f"s_cselect_b32 s{sT0}, 1, 0")
            e(f"s_cmp_eq_u32 s{sT2}, 1")
            e(f"s_cselect_b32 s{sT0}, -1, s{sT0}")
            e(f"s_add_u32 s{dst}, s{pos_reg}, s{sT0}")
            e(f"s_cmp_lt_u32 s{dst}, 16")
            e(f"s_cselect_b32 s{dst}, s{dst}, s{pos_reg}")
        else:
            e(f"s_mov_b32 s{dst}, s{pos_reg}")

    def o_base():
        group_of(sIss, sOx)
        e(f"s_lshl_b32 s{sOx}, s{sOx}, 14")
        e(f"s_add_u32 s{sOx}, s{sOx}, s{sO}")
        e(f"s_cmp_lt_u32 s{sIss}, 16")
        e(f"s_cselect_b32 s{sOx}, s{sOx}, {OOB:#x}")
        e(f"s_add_u32 s{sIss}, s{sIss}, 1")

    def issue_o(slot, r):
        for t in range(2):
            d = FO + 8*slot + 4*t
            if r == 0 and t == 0:
                e(f"buffer_load_dwordx4 v[{d}:{d+3}], v{vLane16}, s[{SRD_O}:{SRD_O+3}], s{sOx} offen {pol_o}")
                e(f"s_add_u32 s{sWx}, s{sOx}, 262144")
            elif t == 0:
                e(f"s_add_u32 s{sOx}, s{sOx}, 4096")
                e(f"s_add_u32 s{sWx}, s{sOx}, 262144")
                e(f"buffer_load_dwordx4 v[{d}:{d+3}], v{vLane16}, s[{SRD_O}:{SRD_O+3}], s{sOx} offen {pol_o}")
            else:
                e(f"buffer_load_dwordx4 v[{d}:{d+3}], v{vLane16}, s[{SRD_O}:{SRD_O+3}], s{sWx} offen {pol_o}")

    sWa = 53
    def issue_w():
        group_of(sGrp, sWa)
        e(f"s_lshl_b32 s{sWa}, s{sWa}, 19")
        e(f"s_add_u32 s{sWa}, s{sWa}, s{sW}")
        e(f"s_cmp_lt_u32 s{sGrp}, 16")
        e(f"s_cselect_b32 s{sWa}, s{sWa}, {OOB:#x}")
        e(f"s_add_u32 m0, s{sWfill}, s{sM0w}")
        e(f"s_add_u32 s{sGrp}, s{sGrp}, 1")
        for k in range(4):
            e(f"buffer_load_dwordx4 v{vWD}, s[{SRD_W}:{SRD_W+3}], s{sWa} offen {pol_w} lds")
            if k < 3:
                e(f"s_add_u32 m0, m0, 1024")
                e(f"s_add_u32 s{sWa}, s{sWa}, {8*2048}")
        e(f"s_add_u32 s{sWfill}, s{sWfill}, {WSLOT}")
        e(f"s_cmp_eq_u32 s{sWfill}, {NW*WSLOT}")
        e(f"s_cselect_b32 s{sWfill}, 0, s{sWfill}")

    e(f"s_mov_b32 s{sIss}, 0")
    e(f"s_mov_b32 s{sGrp}, 0")
    e(f"s_mov_b32 s{sWfill}, 0")
    issue_w()
    o_base()
    for r in range(4):
        issue_o(r, r)
    issue_w()
    for g in range(1, D // 4):
        o_base()
        for r in range(4):
            issue_o(4*g + r, r)
    e(f"v_lshrrev_b32 v{vT}, 5, v0")
    e(f"v_lshlrev_b32 v{vT}, 3, v{vT}")
    e(f"v_bfe_u32 v{vT2}, v0, 2, 2")
    e(f"v_add_u32 v{vT}, v{vT}, v{vT2}")
    e(f"s_lshl_b32 s{sT0}, s{sKq}, 4")
    e(f"v_add_u32 v{vT}, s{sT0}, v{vT}")
    e(f"v_lshlrev_b32 v{vRW}, 7, v{vT}")
    e(f"v_bfe_u32 v{vT}, v0, 4, 1")
    e(f"v_lshlrev_b32 v{vT}, 1, v{vT}")
    e(f"v_and_b32 v{vT2}, 1, v0")
    e(f"v_add_u32 v{vT}, v{vT}, v{vT2}")
    e(f"v_bfe_u32 v{vT2}, v0, 3, 1")
    e(f"v_lshlrev_b32 v{vT2}, 2, v{vT2}")
    e(f"v_xor_b32 v{vT}, v{vT}, v{vT2}")
    e(f"v_lshlrev_b32 v{vT}, 4, v{vT}")
    e(f"v_add_u32 v{vRW}, v{vRW}, v{vT}")
    e(f"v_bfe_u32 v{vT2}, v0, 1, 1")
    e(f"v_lshlrev_b32 v{vT2}, 3, v{vT2}")
    e(f"v_add_u32 v{vRW}, v{vRW}, v{vT2}")
    e(f"v_xor_b32 v{vRW+1}, 64, v{vRW}")
    for r in range(64):
        e(f"v_mov_b32 v{ACC+r}, 0")
    e(f"s_mov_b32 s{sReadW}, 0")
    e(f"s_mov_b32 s{sCnt}, 0")
    if prio:
        e(f"s_setprio {prio}")

    ng = D // 4
    a.label(f"{name}_loop")
    for gg in range(ng):
        e("s_waitcnt vmcnt(20)")
        e("s_barrier")
        issue_w()
        for mt in range(2):
            e(f"v_add_u32 v{vRW2+mt}, s{sReadW}, v{vRW+mt}")
        o_base()
        def rd(r):
            k = r & 1
            for mt in range(2):
                for half in range(2):
                    d = FW + 8*k + 4*mt + 2*half
                    e(f"ds_read_b64_tr_b16 v[{d}:{d+1}], v{vRW2+mt} offset:{r*8192 + half*512}")
        rd(0)
        for r in range(4):
            slot = 4*gg + r
            if r < 3:
                rd(r+1)
            nW = sum(1 for q in range(1, D) if ((slot + q) % 4) == 0) + (1 if False else 0)
            starts = 0
            for q in range(slot - D + 1, slot + 1):
                if q % 4 == 0:
                    starts += 1
            e(f"s_waitcnt vmcnt({2*(D-1) + 4*starts}) lgkmcnt({4 if r < 3 else 0})")
            k = r & 1
            for t in range(2):
                for mt in range(2):
                    dd = ACC + 32*t + 16*mt
                    e(f"v_mfma_f32_32x32x16_bf16 v[{dd}:{dd+15}], v[{FW+8*k+4*mt}:{FW+8*k+4*mt+3}], v[{FO+8*slot+4*t}:{FO+8*slot+4*t+3}], v[{dd}:{dd+15}]")
            issue_o(slot, r)
        e(f"s_add_u32 s{sReadW}, s{sReadW}, {WSLOT}")
        e(f"s_cmp_eq_u32 s{sReadW}, {NW*WSLOT}")
        e(f"s_cselect_b32 s{sReadW}, 0, s{sReadW}")
    e(f"s_add_u32 s{sCnt}, s{sCnt}, {D}")
    e(f"s_cmp_lt_u32 s{sCnt}, {NST}")
    e(f"s_cbranch_scc1 {name}_loop")
    e("s_waitcnt vmcnt(0)")
    e("s_barrier")
    a.nop(8)
    e(f"s_lshl_b32 s{sT0}, s{sWV}, 14")
    e(f"v_add_u32 v{vT}, s{sT0}, v{vLane16}")
    for rq in range(16):
        e(f"ds_write_b128 v{vT}, v[{ACC+4*rq}:{ACC+4*rq+3}] offset:{rq*1024}")
    e("s_waitcnt lgkmcnt(0)")
    e("s_barrier")
    e(f"s_lshl_b32 s{sT0}, s{sWr}, 16")
    e(f"s_lshl_b32 s{sT1}, s{sKq}, 12")
    e(f"s_add_u32 s{sT0}, s{sT0}, s{sT1}")
    e(f"v_add_u32 v{vT}, s{sT0}, v{vLane16}")
    IN = ACC
    for q in range(4):
        for j in range(4):
            e(f"ds_read_b128 v[{IN+16*q+4*j}:{IN+16*q+4*j+3}], v{vT} offset:{q*16384 + j*1024}")
    e(f"v_and_b32 v{vOut}, 31, v0")
    e(f"v_lshlrev_b32 v{vOut}, 12, v{vOut}")
    e(f"v_lshrrev_b32 v{vT2}, 5, v0")
    e(f"v_lshlrev_b32 v{vT2}, 4, v{vT2}")
    e(f"v_add_u32 v{vOut}, v{vOut}, v{vT2}")
    e(f"s_lshr_b32 s{sT0}, s{sKq}, 1")
    e(f"s_lshl_b32 s{sT1}, s{sWr}, 1")
    e(f"s_add_u32 s{sT0}, s{sT0}, s{sT1}")
    e(f"s_add_u32 s{sT0}, s{sT0}, s{sB0}")
    e(f"s_lshl_b32 s{sT0}, s{sT0}, 17")
    e(f"s_lshl_b32 s{sT1}, s{sBr}, 11")
    e(f"s_add_u32 s{sT0}, s{sT0}, s{sT1}")
    e(f"s_lshl_b32 s{sT1}, s{sCol}, 1")
    e(f"s_add_u32 s{sT0}, s{sT0}, s{sT1}")
    e(f"s_and_b32 s{sT1}, s{sKq}, 1")
    e(f"s_lshl_b32 s{sT1}, s{sT1}, 6")
    e(f"s_add_u32 s{sT0}, s{sT0}, s{sT1}")
    e("s_waitcnt lgkmcnt(0)")
    for j in range(16):
        e(f"v_add_f32 v{IN+j}, v{IN+j}, v{IN+16+j}")
        e(f"v_add_f32 v{IN+32+j}, v{IN+32+j}, v{IN+48+j}")
    for j in range(16):
        e(f"v_add_f32 v{IN+j}, v{IN+j}, v{IN+32+j}")
    P = FO
    for sg in range(2):
        for i in range(4):
            e(f"v_cvt_pk_bf16_f32 v{P+4*sg+i}, v{IN+8*sg+2*i}, v{IN+8*sg+2*i+1}")
    for sg in range(2):
        e(f"buffer_store_dwordx4 v[{P+4*sg}:{P+4*sg+3}], v{vOut}, s[{SRD_OUT}:{SRD_OUT+3}], s{sT0} offen offset:{32*sg}")
    e("s_waitcnt vmcnt(0)")
    if timing:
        ts_end(a, 40, 1, sWV, 44, 48, nwaves=8)
    a.label(f"{name}_done")
    e("s_endpgm")
    return dict(nv=NV, ns=64, lds=131072, threads=512)
```

```python
from asmlib import *
import math

OOB = 0x80000000
PAIR_OFF = 50 << 20
FLAG_OFF = 48 << 20
QWS_OFF = 32 << 20
C_SCALE = math.log2(math.e) / math.sqrt(128.0)

def f32bits(x):
    import struct
    return struct.unpack("<I", struct.pack("<f", x))[0]

sWV = 4
sRole, sH, sI, sB = 5, 6, 7, 3
SRD_X, SRD_W, SRD_K, SRD_V, SRD_O = 8, 12, 16, 20, 24
sT0, sT1, sT2, sT3 = 28, 29, 30, 31
sXoff, sWoff, sWslotF, sWslotR, sXslot, sCnt = 32, 33, 34, 35, 36, 37
sKVoff, sTask, sScale, sM0a, sM0b = 38, 39, 40, 41, 42
sOoff, sT4, sT5 = 43, 44, 45
sTS = 46
sPtr = 48
sStg = 80
sX, sDbg, sBs, sHq, sCls, sSig = 81, 82, 84, 85, 86, 87
sFlag, sNonce = 92, 93
sPairN, sPairP = 74, 72
sTbase, sTstep, SRD_T = 94, 95, 96
sLB, sW8, sBarT, sWid = 100, 101, 78, 79
vL16L, vBarA = 30, 29
vNon = 31
SRD_D = 88
NS = 102
MK = [60, 62, 64, 66, 68, 70, 72, 74]
TIMING = [False]
QMARKS = [False]
QSKIP = ['']
QORDER = [None]
LOOK = [2]
SLEEPQ = [8]
XM = [False]
ALT = [False]
ASYM = [False]
SPOLL = [False]
OPOL = ['']
GSLEEP = [1]
PSIG = [0]
SINGLE = [False]
GB = [0]
WT = [0]
INV = [True]
QST = ['sc0 sc1', 'sc0 sc1']
def mark(a, k):
    if TIMING[0]:
        ts_mark(a, MK[k])
vLane16 = 1
vT0, vT1, vT2, vT3 = 2, 3, 4, 5
vKD = 6
vVD = 10
vKR = 11
vVR = 19
vM, vL, vMx, vF = 23, 24, 25, 26
vA0, vA1 = 27, 28
vSt = 29
QOWN, QCUR, S, O, DEF = 32, 64, 96, 160, 224
vWD = DEF
vXD = DEF + 4
vWR = DEF + 8
vXR = DEF + 12
vWR2 = DEF + 16
vXR2 = DEF + 20
vTT, vTD = DEF + 24, DEF + 25
ACC = S
FW = O
FX = QCUR

LDS_RING0, LDS_RING1, LDS_MISC = 0, 32768, 65536
LDS_BYTES = 81920

def bar(a):
    e = a.e
    if not SINGLE[0]:
        e("s_barrier")
        return
    GB[0] += 1
    L = f"gb{GB[0]}"
    e(f"s_add_u32 s{sBarT}, s{sBarT}, 1")
    e("s_waitcnt lgkmcnt(0)")
    e(f"v_mov_b32 v{vSt+2-0 if False else vT3}, 1")
    e("s_mov_b64 exec, 1")
    e(f"ds_add_u32 v{vBarA}, v{vT3}")
    e("s_mov_b64 exec, -1")
    a.label(L)
    e(f"ds_read_b32 v{vT3}, v{vBarA}")
    e("s_waitcnt lgkmcnt(0)")
    e(f"v_readfirstlane_b32 s{sT3}, v{vT3}")
    e(f"s_lshl_b32 s{sT2}, s{sBarT}, 2")
    a.nop(2)
    e(f"s_cmp_ge_u32 s{sT3}, s{sT2}")
    e(f"s_cbranch_scc1 {L}_ok")
    if GSLEEP[0] >= 0:
        e(f"s_sleep {GSLEEP[0]}")
    e(f"s_branch {L}")
    a.label(L + "_ok")


def mfma(e, d, a, b, c=None):
    cc = f"v[{d}:{d+15}]" if c is None else c
    e(f"v_mfma_f32_32x32x16_bf16 v[{d}:{d+15}], v[{a}:{a+3}], v[{b}:{b+3}], {cc}")


def gen_prologue(a, name, timing):
    e = a.e
    e(f"s_cmp_ge_u32 s2, {256 if SINGLE[0] else 512}")
    e(f"s_cbranch_scc1 {name}_done")
    if timing:
        ts_begin(a, sTS)
    e(f"s_load_dwordx8 s[{sPtr}:{sPtr+7}], s[0:1], 0")
    e(f"s_load_dwordx8 s[{sPtr+8}:{sPtr+15}], s[0:1], 40")
    e(f"s_load_dwordx2 s[{sPtr+16}:{sPtr+17}], s[0:1], 96")
    e(f"s_load_dwordx2 s[{sPtr+18}:{sPtr+19}], s[0:1], 88")
    e(f"v_lshrrev_b32 v{vT0}, 6, v0")
    e("v_and_b32 v0, 63, v0")
    e(f"v_readfirstlane_b32 s{sWid}, v{vT0}")
    a.nop(3)
    if SINGLE[0]:
        e(f"s_lshr_b32 s{sRole}, s{sWid}, 2")
        e(f"s_and_b32 s{sWV}, s{sWid}, 3")
        e(f"s_mul_i32 s{sLB}, s{sRole}, {LDS_BYTES}")
    else:
        e(f"s_mov_b32 s{sWV}, s{sWid}")
        e(f"s_lshr_b32 s{sRole}, s2, 8")
        e(f"s_mov_b32 s{sLB}, 0")
    e(f"s_lshl_b32 s{sW8}, s{sWV}, 13")
    e(f"s_and_b32 s{sT0}, s2, 7")
    e(f"s_bfe_u32 s{sT1}, s2, 0x50003")
    e(f"s_lshr_b32 s{sH}, s{sT0}, 1")
    e(f"s_lshl_b32 s{sH}, s{sH}, 3")
    e(f"s_and_b32 s{sT2}, s{sT1}, 7")
    e(f"s_add_u32 s{sH}, s{sH}, s{sT2}")
    e(f"s_and_b32 s{sI}, s{sT0}, 1")
    e(f"s_lshl_b32 s{sI}, s{sI}, 2")
    e(f"s_lshr_b32 s{sT2}, s{sT1}, 3")
    e(f"s_add_u32 s{sI}, s{sI}, s{sT2}")
    e(f"s_mov_b32 s{sX}, s{sT0}")
    e(f"s_add_u32 s{sCls}, s{sH}, s{sI}")
    e(f"s_and_b32 s{sCls}, s{sCls}, 3")
    e(f"v_lshlrev_b32 v{vLane16}, 4, v0")
    e(f"v_add_u32 v{vL16L}, s{sLB}, v{vLane16}")
    if ASYM[0]:
        e(f"s_lshl_b32 s{sT2}, s{sRole}, 6")
        e(f"s_add_u32 s{sT2}, s{sT2}, {LDS_MISC + 12288}")
    else:
        e(f"s_add_u32 s{sT2}, s{sLB}, {LDS_MISC + 12288}")
    e(f"v_mov_b32 v{vBarA}, s{sT2}")
    e(f"s_mov_b32 s{sBarT}, 0")
    e(f"v_lshrrev_b32 v{vT0}, 4, v0")
    e(f"v_and_b32 v{vT1}, 15, v0")
    e(f"v_lshlrev_b32 v{vT2}, 8, v{vT0}")
    for jj in range(4):
        e(f"v_add_u32 v{vT3}, {4*jj}, v{vT0}")
        e(f"v_xor_b32 v{vT3}, v{vT3}, v{vT1}")
        e(f"v_lshlrev_b32 v{vT3}, 4, v{vT3}")
        e(f"v_add_u32 v{vKD+jj}, v{vT3}, v{vT2}")
    e(f"v_lshlrev_b32 v{vT3}, 2, v{vT0}")
    e(f"v_xor_b32 v{vT3}, v{vT3}, v{vT1}")
    e(f"v_lshlrev_b32 v{vT3}, 4, v{vT3}")
    e(f"v_add_u32 v{vVD}, v{vT3}, v{vT2}")
    e(f"v_lshlrev_b32 v{vT2}, 13, v{vT0}")
    e(f"v_add_u32 v{vWD}, v{vT3}, v{vT2}")
    for jj in range(1, 4):
        e(f"v_add_u32 v{vWD+jj}, {jj*(4*8192-1024)}, v{vWD}")
    e(f"v_lshrrev_b32 v{vT1}, 3, v0")
    e(f"v_and_b32 v{vT2}, 7, v0")
    for jj in range(4):
        e(f"v_add_u32 v{vT3}, {4*jj}, v{vT0}")
        e(f"v_and_b32 v{vT3}, 7, v{vT3}")
        e(f"v_xor_b32 v{vT3}, v{vT3}, v{vT2}")
        e(f"v_lshlrev_b32 v{vT3}, 4, v{vT3}")
        e(f"v_lshlrev_b32 v{vXD+jj}, 11, v{vT1}")
        e(f"v_add_u32 v{vXD+jj}, v{vXD+jj}, v{vT3}")
        c = 8*jj*2048 - jj*1024
        if c:
            e(f"v_add_u32 v{vXD+jj}, {c}, v{vXD+jj}")
    e("s_waitcnt lgkmcnt(0)")
    e(f"s_cmp_eq_u32 s{sRole}, 0")
    for k, srd in enumerate((SRD_X, SRD_K, SRD_V, SRD_W)):
        e(f"s_cselect_b32 s{srd}, s{sPtr+8+2*k}, s{sPtr+2*k}")
        e(f"s_cselect_b32 s{srd+1}, s{sPtr+9+2*k}, s{sPtr+1+2*k}")
    e(f"s_mov_b32 s{sT0}, {32*32*131072}")
    e(f"s_cselect_b32 s{SRD_K+2}, s{sT0}, {32*4*131072}")
    e(f"s_mov_b32 s{SRD_V+2}, s{SRD_K+2}")
    for srd in (SRD_X, SRD_K, SRD_V, SRD_W):
        e(f"s_and_b32 s{srd+1}, s{srd+1}, 0xffff")
        e(f"s_mov_b32 s{srd+3}, 0x20000")
    e(f"s_mov_b32 s{SRD_X+2}, {1024*1024*2}")
    e(f"s_mov_b32 s{SRD_W+2}, {1024*4096*2}")
    e(f"s_mov_b32 s{sDbg}, s{sPtr+18}")
    e(f"s_mov_b32 s{sDbg+1}, s{sPtr+19}")
    e(f"s_mov_b32 s{SRD_D}, s{sPtr+18}")
    e(f"s_and_b32 s{SRD_D+1}, s{sPtr+19}, 0xffff")
    e(f"s_mov_b32 s{SRD_D+2}, 256")
    e(f"s_mov_b32 s{SRD_D+3}, 0x20000")
    e(f"s_mov_b32 s{SRD_O}, s{sPtr+16}")
    e(f"s_and_b32 s{SRD_O+1}, s{sPtr+17}, 0xffff")
    e(f"s_mov_b32 s{SRD_O+2}, {64 << 20}")
    e(f"s_mov_b32 s{SRD_O+3}, 0x20000")
    e(f"s_lshl_b32 s{sT0}, s{sWV}, 3")
    e(f"s_add_u32 s{sB}, s{sT0}, s{sI}")
    e(f"s_lshl_b32 s{sXoff}, s{sB}, 16")
    e(f"s_lshl_b32 s{sWoff}, s{sWV}, 17")
    e(f"s_lshl_b32 s{sT0}, s{sH}, 8")
    e(f"s_add_u32 s{sWoff}, s{sWoff}, s{sT0}")
    e(f"v_and_b32 v{vT0}, 31, v0")
    e(f"v_lshrrev_b32 v{vT1}, 5, v0")
    e(f"v_bfe_u32 v{vT2}, v0, 1, 3")
    e(f"v_xor_b32 v{vT2}, v{vT2}, v{vT1}")
    e(f"v_lshlrev_b32 v{vT2}, 4, v{vT2}")
    e(f"v_lshlrev_b32 v{vT3}, 7, v{vT0}")
    e(f"v_add_u32 v{vXR}, v{vT2}, v{vT3}")
    e(f"s_add_u32 s{sT0}, s{sW8}, {LDS_RING1}")
    e(f"s_add_u32 s{sT0}, s{sT0}, s{sLB}")
    e(f"v_add_u32 v{vXR}, s{sT0}, v{vXR}")
    for u in range(1, 4):
        e(f"v_xor_b32 v{vXR+u}, {u*32}, v{vXR}")
    e(f"v_and_b32 v{vT2}, 15, v0")
    e(f"v_xor_b32 v{vT2}, v{vT2}, v{vT1}")
    e(f"v_lshlrev_b32 v{vT2}, 4, v{vT2}")
    e(f"v_lshlrev_b32 v{vT3}, 8, v{vT0}")
    e(f"v_add_u32 v{vKR}, v{vT2}, v{vT3}")
    e(f"s_add_u32 s{sT0}, s{sW8}, s{sLB}")
    e(f"v_add_u32 v{vKR}, s{sT0}, v{vKR}")
    for s in range(1, 8):
        e(f"v_xor_b32 v{vKR+s}, {s*32}, v{vKR}")
    e(f"v_bfe_u32 v{vT0}, v0, 2, 2")
    e(f"v_lshlrev_b32 v{vT2}, 6, v{vT0}")
    e(f"v_bfe_u32 v{vT3}, v0, 4, 1")
    e(f"v_lshlrev_b32 v{vT3}, 5, v{vT3}")
    e(f"v_add_u32 v{vT2}, v{vT2}, v{vT3}")
    e(f"v_and_b32 v{vT3}, 1, v0")
    e(f"v_lshlrev_b32 v{vT3}, 4, v{vT3}")
    e(f"v_add_u32 v{vT2}, v{vT2}, v{vT3}")
    e(f"v_bfe_u32 v{vT3}, v0, 1, 1")
    e(f"v_lshlrev_b32 v{vT3}, 3, v{vT3}")
    e(f"v_add_u32 v{vT2}, v{vT2}, v{vT3}")
    e(f"v_lshlrev_b32 v{vT3}, 3, v{vT1}")
    e(f"v_add_u32 v{vT3}, v{vT3}, v{vT0}")
    e(f"v_lshlrev_b32 v{vT3}, 8, v{vT3}")
    e(f"v_add_u32 v{vWR}, v{vT2}, v{vT3}")
    e(f"v_add_u32 v{vWR}, s{sLB}, v{vWR}")
    e(f"v_lshlrev_b32 v{vT3}, 2, v{vT1}")
    e(f"v_add_u32 v{vT3}, v{vT3}, v{vT0}")
    e(f"v_lshlrev_b32 v{vT3}, 8, v{vT3}")
    e(f"v_add_u32 v{vVR}, v{vT2}, v{vT3}")
    for t in range(1, 4):
        e(f"v_xor_b32 v{vWR+t}, {t*64}, v{vWR}")
    e(f"s_add_u32 s{sT0}, s{sW8}, s{sLB}")
    e(f"v_add_u32 v{vT2}, s{sT0}, v{vVR}")
    for k in range(4):
        e(f"s_add_u32 s{sT0}, s{sWV}, {k}")
        e(f"s_and_b32 s{sT0}, s{sT0}, 3")
        e(f"s_lshl_b32 s{sT0}, s{sT0}, 6")
        e(f"v_xor_b32 v{vVR+k}, s{sT0}, v{vT2}")
    e(f"s_add_u32 s{sM0a}, s{sW8}, s{sLB}")
    e(f"s_add_u32 s{sM0b}, s{sM0a}, {LDS_RING1}")
    e(f"s_mov_b32 s{sScale}, {f32bits(C_SCALE):#x}")


def gen_qproj(a, name, pol_x, pol_w, after_barrier15=None, after_x15=None):
    e = a.e
    WSLOT = [LDS_MISC, 0, 16384]

    def wt_setup():
        e(f"s_and_b32 s{sT2}, s{sH}, 7")
        e(f"v_lshrrev_b32 v{vT0}, 4, v0")
        e(f"v_lshlrev_b32 v{vT0}, 13, v{vT0}")
        e(f"v_and_b32 v{vT1}, 15, v0")
        e(f"v_lshlrev_b32 v{vT1}, 7, v{vT1}")
        e(f"v_add_u32 v{vT0}, v{vT0}, v{vT1}")
        e(f"s_lshl_b32 s{sT0}, s{sT2}, 6")
        e(f"v_add_u32 v{vT1}, s{sT0}, v0")
        e(f"v_bfe_u32 v{vT2}, v{vT1}, 5, 2")
        e(f"v_lshrrev_b32 v{vT3}, 7, v{vT1}")
        e(f"v_lshlrev_b32 v{vT3}, 3, v{vT3}")
        e(f"v_add_u32 v{vT2}, v{vT2}, v{vT3}")
        e(f"v_lshlrev_b32 v{vT2}, 5, v{vT2}")
        e(f"v_and_b32 v{vT1}, 31, v{vT1}")
        e(f"v_add_u32 v{vT1}, v{vT1}, v{vT2}")
        e(f"v_lshlrev_b32 v{vT1}, 11, v{vT1}")
        e(f"s_cmp_lt_u32 s{sWV}, 2")
        e(f"s_cselect_b64 vcc, -1, 0")
        e(f"v_cndmask_b32 v{vTT}, v{vT1}, v{vT0}, vcc")
        for k in range(4):
            e(f"s_cselect_b32 s{SRD_T+k}, s{SRD_W+k}, s{SRD_X+k}")
        e(f"s_mov_b32 s{SRD_T+3}, 0x20000")
        e(f"s_lshl_b32 s{sT0}, s{sT2}, 3")
        e(f"s_lshl_b32 s{sT1}, s{sWV}, 2")
        e(f"s_add_u32 s{sT0}, s{sT0}, s{sT1}")
        e(f"s_lshl_b32 s{sT0}, s{sT0}, 13")
        e(f"s_lshr_b32 s{sT1}, s{sX}, 1")
        e(f"s_lshl_b32 s{sT1}, s{sT1}, 11")
        e(f"s_add_u32 s{sT0}, s{sT0}, s{sT1}")
        e(f"s_and_b32 s{sT1}, s{sX}, 1")
        e(f"s_lshl_b32 s{sT1}, s{sT1}, 18")
        e(f"s_cmp_lt_u32 s{sWV}, 2")
        e(f"s_cselect_b32 s{sTbase}, s{sT0}, s{sT1}")
        e(f"s_mov_b32 s{sT0}, {64*8192}")
        e(f"s_cselect_b32 s{sTstep}, s{sT0}, 128")
        e(f"s_cmp_eq_u32 s{sWV}, 3")
        e(f"s_cselect_b32 s{sTbase}, {OOB:#x}, s{sTbase}")
        e(f"s_cselect_b32 s{sTstep}, 0, s{sTstep}")

    def wt_issue(tau_reg_or_imm):
        if isinstance(tau_reg_or_imm, int):
            e(f"s_mov_b32 s{sT2}, {tau_reg_or_imm}")
        else:
            e(f"s_add_u32 s{sT2}, s{sCnt}, {WT[0]}")
        e(f"s_mul_i32 s{sT3}, s{sT2}, s{sTstep}")
        e(f"s_add_u32 s{sT3}, s{sT3}, s{sTbase}")
        e(f"s_and_b32 s{sT0}, s{sT2}, 3")
        e(f"s_cmp_eq_u32 s{sT0}, s{sCls}")
        e(f"s_cselect_b32 s{sT3}, s{sT3}, {OOB:#x}")
        e(f"s_cmp_lt_u32 s{sT2}, 16")
        e(f"s_cselect_b32 s{sT3}, s{sT3}, {OOB:#x}")
        e(f"buffer_load_dword v{vTD}, v{vTT}, s[{SRD_T}:{SRD_T+3}], s{sT3} offen {pol_w}")

    def sigma():
        if QORDER[0] == "adv":
            e(f"s_add_u32 s{sT1}, s{sStg}, 1")
            e(f"s_sub_u32 s{sT1}, s{sT1}, s{sCls}")
            e(f"s_and_b32 s{sT1}, s{sT1}, 3")
            e(f"s_cmp_eq_u32 s{sT1}, 0")
            e(f"s_cselect_b32 s{sT0}, 1, 0")
            e(f"s_cmp_eq_u32 s{sT1}, 1")
            e(f"s_cselect_b32 s{sT0}, -1, s{sT0}")
            e(f"s_add_u32 s{sSig}, s{sStg}, s{sT0}")
            e(f"s_cmp_lt_u32 s{sSig}, 16")
            e(f"s_cselect_b32 s{sSig}, s{sSig}, s{sStg}")
        else:
            e(f"s_mov_b32 s{sSig}, s{sStg}")

    def issue_w():
        sigma()
        e(f"s_lshl_b32 s{sT0}, s{sWV}, 12")
        e(f"s_add_u32 s{sT0}, s{sT0}, s{sLB}")
        e(f"s_add_u32 m0, s{sWslotF}, s{sT0}")
        e(f"s_lshl_b32 s{sT1}, s{sSig}, 19")
        e(f"s_add_u32 s{sT1}, s{sT1}, s{sWoff}")
        for jj in range(4):
            e(f"buffer_load_dwordx4 v{vWD+jj}, s[{SRD_W}:{SRD_W+3}], s{sT1} offen offset:{jj*1024} {pol_w} lds")
        e(f"s_cmp_eq_u32 s{sWslotF}, {LDS_MISC}")
        e(f"s_cselect_b32 s{sT0}, 0, {LDS_MISC}")
        e(f"s_cmp_eq_u32 s{sWslotF}, 0")
        e(f"s_cselect_b32 s{sWslotF}, 16384, s{sT0}")

    def issue_x(par):
        e(f"s_mov_b32 s{sT0}, s{sM0b}")
        if par is not None:
            e(f"s_add_u32 m0, s{sT0}, {par*4096}")
        else:
            e(f"s_add_u32 m0, s{sT0}, s{sXslot}")
        e(f"s_lshl_b32 s{sT1}, s{sSig}, 7")
        e(f"s_add_u32 s{sT1}, s{sT1}, s{sXoff}")
        for jj in range(4):
            e(f"buffer_load_dwordx4 v{vXD+jj}, s[{SRD_X}:{SRD_X+3}], s{sT1} offen offset:{jj*1024} {pol_x} lds")
        e(f"s_add_u32 s{sStg}, s{sStg}, 1")

    class Cap:
        def __init__(self): self.L = []
        def __call__(self, t=""): self.L.append(t)

    def capture(fn):
        nonlocal e
        keep = e
        c = Cap(); e = c
        fn()
        e = keep
        return c.L

    def stage(first, issue, hook_w=None, hook_x=None, last=False):
        nwait = 9 if (WT[0] and not first) else 8
        e(f"s_waitcnt vmcnt({nwait})" if not last else "s_waitcnt vmcnt(0)")
        if ASYM[0]:
            GB[0] += 1
            L = f"qb{GB[0]}"
            e(f"s_cmp_lg_u32 s{sRole}, 0")
            e(f"s_cbranch_scc1 {L}_g")
            e("s_barrier")
            e(f"s_branch {L}_d")
            a.label(L + "_g")
            bar(a)
            a.label(L + "_d")
        else:
            e("s_barrier")
        for t in range(4):
            e(f"v_add_u32 v{vWR2+t}, s{sWslotR}, v{vWR+t}")
        for u in range(4):
            e(f"v_add_u32 v{vXR2+u}, s{sXslot}, v{vXR+u}")
        if 'd' in QSKIP[0]:
            issue = False
        def rx():
            if 'r' in QSKIP[0]: return []
            return [f"ds_read_b128 v[{FX+4*u}:{FX+4*u+3}], v{vXR2+u}" for u in range(4)]
        def rw(u):
            L = []
            if 'r' in QSKIP[0]: return L
            for t in range(4):
                for half in range(2):
                    r = FW + 16*u + 4*t + 2*half
                    L.append(f"ds_read_b64_tr_b16 v[{r}:{r+1}], v{vWR2+t} offset:{(16*u+4*half)*256}")
            return L
        def mm(u):
            L = []
            for t in range(4):
                c = "0" if (first and u == 0) else f"v[{ACC+16*t}:{ACC+16*t+15}]"
                L.append(f"v_mfma_f32_32x32x16_bf16 v[{ACC+16*t}:{ACC+16*t+15}], v[{FW+16*u+4*t}:{FW+16*u+4*t+3}], v[{FX+4*u}:{FX+4*u+3}], {c}" if 'm' not in QSKIP[0] else "s_nop 0")
            return L
        for ln in rx() + rw(0):
            e(ln)
        if issue:
            issue_w()
            if WT[0]:
                wt_issue("cnt")
        if hook_w:
            hook_w()
        e("s_waitcnt lgkmcnt(0)")
        fill = rw(1) + rw(2)
        k = 0
        for m in mm(0):
            e(m)
            for ln in fill[k:k+4]:
                e(ln)
            k += 4
        xl = capture(lambda: issue_x(None)) if issue else []
        e("s_waitcnt lgkmcnt(8)")
        fill = rw(3)
        k = 0
        for m in mm(1):
            e(m)
            for ln in fill[k:k+2]:
                e(ln)
            k += 2
        e("s_waitcnt lgkmcnt(8)")
        k = 0
        per = (len(xl) + 3) // 4
        for m in mm(2):
            e(m)
            for ln in xl[k:k+per]:
                e(ln)
            k += per
        if hook_x:
            hook_x()
        e("s_waitcnt lgkmcnt(0)")
        adv = [f"s_cmp_eq_u32 s{sWslotR}, {LDS_MISC}",
               f"s_cselect_b32 s{sT0}, 0, {LDS_MISC}",
               f"s_cmp_eq_u32 s{sWslotR}, 0",
               f"s_cselect_b32 s{sWslotR}, 16384, s{sT0}",
               f"s_xor_b32 s{sXslot}, s{sXslot}, 4096"]
        k = 0
        for m in mm(3):
            e(m)
            for ln in adv[k:k+2]:
                e(ln)
            k += 2

    e(f"s_mov_b32 s{sWslotF}, {LDS_MISC}")
    e(f"s_mov_b32 s{sWslotR}, {LDS_MISC}")
    e(f"s_mov_b32 s{sXslot}, 0")
    e(f"s_mov_b32 s{sStg}, 0")
    e(f"s_mov_b32 s{sCnt}, 0")
    if WT[0]:
        wt_setup()
        for tau in range(WT[0]):
            wt_issue(tau)
    issue_w(); issue_x(0)
    issue_w(); issue_x(1)
    stage(True, True)
    e(f"s_mov_b32 s{sCnt}, 1")
    a.label(f"{name}_qloop")
    if QMARKS[0]:
        ts_mark(a, 76)
        for k, cnt in enumerate((1, 2, 4, 8, 12)):
            e(f"s_cmp_eq_u32 s{sCnt}, {cnt}")
            e(f"s_cselect_b32 s{MK[2+k]}, s76, s{MK[2+k]}")
    if ALT[0]:
        e(f"s_add_u32 s{sT0}, s{sCnt}, s{sRole}")
        e(f"s_bitcmp1_b32 s{sT0}, 0")
        e(f"s_cbranch_scc1 {name}_p1")
        e("s_setprio 0")
        e(f"s_branch {name}_p2")
        a.label(f"{name}_p1")
        e("s_setprio 1")
        a.label(f"{name}_p2")
    if PSIG[0]:
        e(f"s_cmp_lg_u32 s{sCnt}, {PSIG[0]}")
        e(f"s_cbranch_scc1 {name}_ps_d")
        e(f"s_or_b32 s{sT0}, s{sWV}, s{sRole}")
        e(f"s_cmp_lg_u32 s{sT0}, 0")
        e(f"s_cbranch_scc1 {name}_ps_d")
        e(f"s_and_b32 s{sT0}, s2, 255")
        e(f"s_lshl_b32 s{sT0}, s{sT0}, 8")
        e(f"s_add_u32 s{sT0}, s{sT0}, {PAIR_OFF}")
        e(f"s_mul_i32 s{sT1}, s{sPairN}, 0x9e3779b1")
        e(f"s_add_u32 s{sT1}, s{sT1}, 0x7f4a7c15")
        e(f"v_mov_b32 v{vT0}, 0")
        e(f"v_mov_b32 v{vT1}, s{sT1}")
        e(f"v_cmp_eq_u32 vcc, 0, v0")
        e(f"s_and_saveexec_b64 s[{sT2}:{sT3}], vcc")
        e(f"buffer_store_dword v{vT1}, v{vT0}, s[{SRD_O}:{SRD_O+3}], s{sT0} offen offset:16 sc0 sc1")
        e(f"s_mov_b64 exec, s[{sT2}:{sT3}]")
        a.label(f"{name}_ps_d")
    stage(False, True)
    e(f"s_add_u32 s{sCnt}, s{sCnt}, 1")
    e(f"s_cmp_lt_u32 s{sCnt}, 14")
    e(f"s_cbranch_scc1 {name}_qloop")
    stage(False, False)
    stage(False, False, hook_w=after_barrier15, hook_x=after_x15, last=True)
    a.nop(12)
    for s in range(8):
        t, sg = s >> 1, s & 1
        for i in range(4):
            src = ACC + 16*t + 8*sg + 2*i
            e(f"v_cvt_pk_bf16_f32 v{QOWN+4*s+i}, v{src}, v{src+1}")


def issue_tile(e, srd, slot_reg, off_reg, imm, is_k, pol):
    e(f"s_mov_b32 m0, s{slot_reg}")
    if imm:
        e(f"s_add_u32 s{sT0}, s{off_reg}, {imm}")
    else:
        e(f"s_mov_b32 s{sT0}, s{off_reg}")
    for half in range(2):
        for jj in range(4):
            v = vKD + jj if is_k else vVD
            e(f"buffer_load_dwordx4 v{v}, s[{srd}:{srd+3}], s{sT0} offen offset:{jj*1024} {pol} lds")
        if half == 0:
            e(f"s_add_u32 m0, s{slot_reg}, 4096")
            e(f"s_add_u32 s{sT0}, s{sT0}, 4096")


def k_tile(e, T, slot, hook, early=None):
    FK = O + 32*(T & 1)
    if early:
        e("s_waitcnt vmcnt(0)")
        early()
    else:
        e("s_waitcnt vmcnt(8)")
    for s in range(8):
        e(f"ds_read_b128 v[{FK+4*s}:{FK+4*s+3}], v{vKR+s} offset:{slot*LDS_RING1}")
    e("s_waitcnt lgkmcnt(0)")
    hook()
    for s in range(8):
        mfma(e, S+16*T, FK+4*s, QCUR+4*s, "0" if s == 0 else None)


def v_tile(e, T, slot, hook, early=None):
    FV = S + 32
    if early:
        e("s_waitcnt vmcnt(0)")
        early()
    else:
        e("s_waitcnt vmcnt(8)")
    for k in range(4):
        for u in range(2):
            for half in range(2):
                r = FV + 8*k + 4*u + 2*half
                e(f"ds_read_b64_tr_b16 v[{r}:{r+1}], v{vVR+k} offset:{slot*LDS_RING1 + (16*u+8*half)*256}")
    e("s_waitcnt lgkmcnt(0)")
    hook()
    for u in range(2):
        for k in range(4):
            mfma(e, O+16*k, FV+8*k+4*u, S+8*T+4*u, "0" if (T == 0 and u == 0) else None)


def softmax(a, nreg=64):
    e = a.e
    e(f"v_max3_f32 v{vMx}, v{S}, v{S+1}, v{S+2}")
    e(f"v_max3_f32 v{vT0}, v{S+3}, v{S+4}, v{S+5}")
    k = 6
    tgt = [vMx, vT0]
    n = 0
    while k + 1 < nreg:
        e(f"v_max3_f32 v{tgt[n&1]}, v{tgt[n&1]}, v{S+k}, v{S+k+1}")
        k += 2; n += 1
    e(f"v_max_f32 v{vMx}, v{vMx}, v{vT0}")
    e(f"v_mov_b32 v{vT0}, v{vMx}")
    a.nop(2)
    e(f"v_permlane32_swap_b32 v{vMx}, v{vT0}")
    a.nop(1)
    e(f"v_max_f32 v{vM}, v{vMx}, v{vT0}")
    e(f"v_mul_f32 v{vF}, s{sScale}, v{vM}")
    for k in range(nreg):
        e(f"v_fma_f32 v{S+k}, v{S+k}, s{sScale}, -v{vF}")
    for k in range(nreg):
        e(f"v_exp_f32 v{S+k}, v{S+k}")
    e(f"v_add_f32 v{vL}, v{S}, v{S+1}")
    e(f"v_add_f32 v{vT0}, v{S+2}, v{S+3}")
    for k in range(4, nreg, 2):
        e(f"v_add_f32 v{vL}, v{vL}, v{S+k}")
        e(f"v_add_f32 v{vT0}, v{vT0}, v{S+k+1}")
    for k in range(nreg//2):
        e(f"v_cvt_pk_bf16_f32 v{S+k}, v{S+2*k}, v{S+2*k+1}")
    e(f"v_add_f32 v{vL}, v{vL}, v{vT0}")
    e(f"v_mov_b32 v{vT0}, v{vL}")
    a.nop(2)
    e(f"v_permlane32_swap_b32 v{vL}, v{vT0}")
    a.nop(1)
    e(f"v_add_f32 v{vL}, v{vL}, v{vT0}")


def q_broadcast(a, name, tag, owner_reg_or_imm):
    e = a.e
    e(f"s_cmp_lg_u32 s{sWV}, {owner_reg_or_imm}")
    e(f"s_cbranch_scc1 {name}_{tag}_skip")
    e(f"v_add_u32 v{vA0}, {LDS_MISC}, v{vL16L}")
    for s in range(8):
        e(f"ds_write_b128 v{vA0}, v[{QOWN+4*s}:{QOWN+4*s+3}] offset:{s*1024}")
    e("s_waitcnt lgkmcnt(0)")
    a.label(f"{name}_{tag}_skip")
    bar(a)
    e(f"v_add_u32 v{vA0}, {LDS_MISC}, v{vL16L}")
    for s in range(8):
        e(f"ds_read_b128 v[{QCUR+4*s}:{QCUR+4*s+3}], v{vA0} offset:{s*1024}")
    e("s_waitcnt lgkmcnt(0)")


def gen_m1(a, name, pol):
    e = a.e
    sNext = sT5
    G = S + 32
    a.label(f"{name}_task")
    e(f"s_add_u32 s{sNext}, s{sKVoff}, s{sOoff}")
    e(f"s_cmp_lt_u32 s{sTask}, 3")
    e(f"s_cselect_b32 s{sNext}, s{sNext}, {OOB:#x}")
    slotreg = [sM0a, sM0b]
    none = lambda: None
    for T in range(4):
        if LOOK[0] == 2:
            if T < 2:
                hook = lambda T=T: issue_tile(e, SRD_K, slotreg[T & 1], sKVoff, (T+2)*32768, True, pol)
            else:
                hook = lambda T=T: issue_tile(e, SRD_V, slotreg[T & 1], sKVoff, (T-2)*32768, False, pol)
            k_tile(e, T, T & 1, hook)
        else:
            if T < 3:
                early = lambda T=T: issue_tile(e, SRD_K, slotreg[(T+1) & 1], sKVoff, (T+1)*32768, True, pol)
            else:
                early = lambda: issue_tile(e, SRD_V, sM0a, sKVoff, 0, False, pol)
            k_tile(e, T, T & 1, none, early)
    softmax(a)
    e(f"s_cmp_ge_u32 s{sTask}, 3")
    e(f"s_cbranch_scc1 {name}_noq")
    e(f"s_add_u32 s{sT4}, s{sTask}, 1")
    q_broadcast(a, name, "qn", f"s{sT4}")
    a.label(f"{name}_noq")
    for T in range(4):
        if LOOK[0] == 2:
            if T < 2:
                hook = lambda T=T: issue_tile(e, SRD_V, slotreg[T & 1], sKVoff, (T+2)*32768, False, pol)
            elif T == 2:
                hook = lambda: issue_tile(e, SRD_K, sM0a, sNext, 0, True, pol)
            else:
                hook = lambda: None
            v_tile(e, T, T & 1, hook)
        else:
            if T < 3:
                early = lambda T=T: issue_tile(e, SRD_V, slotreg[(T+1) & 1], sKVoff, (T+1)*32768, False, pol)
            else:
                early = lambda: issue_tile(e, SRD_K, sM0a, sNext, 0, True, pol)
            v_tile(e, T, T & 1, none, early)
    e(f"v_and_b32 v{vT0}, 31, v0")
    e(f"v_lshlrev_b32 v{vT0}, 3, v{vT0}")
    e(f"v_add_u32 v{vT0}, {LDS_MISC + 8192}, v{vT0}")
    e(f"v_add_u32 v{vT0}, s{sLB}, v{vT0}")
    e(f"s_lshl_b32 s{sT0}, s{sWV}, 8")
    e(f"v_add_u32 v{vA0}, s{sT0}, v{vT0}")
    e(f"v_add_u32 v{vA1}, s{sM0b}, v{vLane16}")
    e(f"ds_write_b32 v{vA0}, v{vM}")
    e(f"ds_write_b32 v{vA0}, v{vL} offset:4")
    a.nop(10)
    for k in (1, 2):
        for j in range(4):
            e(f"ds_write_b128 v{vA1}, v[{O+16*k+4*j}:{O+16*k+4*j+3}] offset:{(k-1)*4096 + j*1024}")
    e("s_waitcnt lgkmcnt(0)")
    bar(a)
    for k in range(4):
        e(f"s_sub_u32 s{sT0}, s{sWV}, {k}")
        e(f"s_and_b32 s{sT0}, s{sT0}, 3")
        e(f"s_lshl_b32 s{sT0}, s{sT0}, 8")
        e(f"v_add_u32 v{vA0}, s{sT0}, v{vT0}")
        e(f"ds_read_b64 v[{G+2*k}:{G+2*k+1}], v{vA0}")
    TI = S
    for k in (1, 2):
        e(f"s_sub_u32 s{sT0}, s{sWV}, {k}")
        e(f"s_and_b32 s{sT0}, s{sT0}, 3")
        e(f"s_lshl_b32 s{sT0}, s{sT0}, 13")
        e(f"s_add_u32 s{sT0}, s{sT0}, {LDS_RING1 + (k-1)*4096}")
        e(f"v_add_u32 v{vA0}, s{sT0}, v{vL16L}")
        for j in range(4):
            e(f"ds_read_b128 v[{TI+16*(k-1)+4*j}:{TI+16*(k-1)+4*j+3}], v{vA0} offset:{j*1024}")
    e("s_waitcnt lgkmcnt(8)")
    e(f"v_max3_f32 v{vMx}, v{G}, v{G+2}, v{G+4}")
    e(f"v_max_f32 v{vMx}, v{vMx}, v{G+6}")
    e(f"v_mul_f32 v{vMx}, s{sScale}, v{vMx}")
    for k in range(4):
        e(f"v_fma_f32 v{G+2*k}, v{G+2*k}, s{sScale}, -v{vMx}")
    for k in range(4):
        e(f"v_exp_f32 v{G+2*k}, v{G+2*k}")
    a.nop(1)
    e(f"v_mul_f32 v{vF}, v{G}, v{G+1}")
    for k in range(1, 4):
        e(f"v_fma_f32 v{vF}, v{G+2*k}, v{G+2*k+1}, v{vF}")
    e(f"v_rcp_f32 v{vF}, v{vF}")
    a.nop(1)
    for k in range(4):
        e(f"v_mul_f32 v{G+2*k}, v{G+2*k}, v{vF}")
    for j in range(16):
        e(f"v_mul_f32 v{O+j}, v{O+j}, v{G}")
    e("s_waitcnt lgkmcnt(0)")
    for k in (1, 2):
        for j in range(16):
            e(f"v_fma_f32 v{O+j}, v{TI+16*(k-1)+j}, v{G+2*k}, v{O+j}")
    bar(a)
    for j in range(4):
        e(f"ds_write_b128 v{vA1}, v[{O+48+4*j}:{O+48+4*j+3}] offset:{j*1024}")
    e("s_waitcnt lgkmcnt(0)")
    bar(a)
    e(f"s_sub_u32 s{sT0}, s{sWV}, 3")
    e(f"s_and_b32 s{sT0}, s{sT0}, 3")
    e(f"s_lshl_b32 s{sT0}, s{sT0}, 13")
    e(f"s_add_u32 s{sT0}, s{sT0}, {LDS_RING1}")
    e(f"v_add_u32 v{vA0}, s{sT0}, v{vL16L}")
    for j in range(4):
        e(f"ds_read_b128 v[{TI+4*j}:{TI+4*j+3}], v{vA0} offset:{j*1024}")
    e("s_waitcnt lgkmcnt(0)")
    bar(a)
    if LOOK[0] == 2:
        issue_tile(e, SRD_K, sM0b, sNext, 32768, True, pol)
    for j in range(16):
        e(f"v_fma_f32 v{O+j}, v{TI+j}, v{G+6}, v{O+j}")
    for k in range(24):
        e(f"v_mov_b32 v{DEF+k}, v{DEF+8+k}")
    for j in range(8):
        e(f"v_cvt_pk_bf16_f32 v{DEF+24+j}, v{O+2*j}, v{O+2*j+1}")
    if TIMING[0]:
        ts_mark(a, 76)
        for k in range(4):
            e(f"s_cmp_eq_u32 s{sTask}, {k}")
            e(f"s_cselect_b32 s{MK[2+k]}, s76, s{MK[2+k]}")
    e(f"s_mov_b32 s{sKVoff}, s{sNext}")
    e(f"s_add_u32 s{sTask}, s{sTask}, 1")
    e(f"s_cmp_lt_u32 s{sTask}, 4")
    e(f"s_cbranch_scc1 {name}_task")
    e("s_waitcnt vmcnt(0)")
    e(f"s_xor_b32 s{sT0}, s{sRole}, 1")
    e(f"s_lshl_b32 s{sT0}, s{sT0}, 23")
    e(f"s_lshl_b32 s{sT1}, s{sI}, 18")
    e(f"s_add_u32 s{sT0}, s{sT0}, s{sT1}")
    e(f"s_lshl_b32 s{sT1}, s{sH}, 13")
    e(f"s_add_u32 s{sT0}, s{sT0}, s{sT1}")
    e(f"s_lshl_b32 s{sT1}, s{sWV}, 11")
    e(f"s_add_u32 s{sT0}, s{sT0}, s{sT1}")
    for r in range(4):
        for sg in range(2):
            e(f"buffer_store_dwordx4 v[{DEF+8*r+4*sg}:{DEF+8*r+4*sg+3}], v{vLane16}, s[{SRD_O}:{SRD_O+3}], s{sT0} offen offset:{sg*1024} {OPOL[0]}")
        if r < 3:
            e(f"s_add_u32 s{sT0}, s{sT0}, {8*262144}")


def gen_touch(a, pol):
    e = a.e
    vD = S
    e(f"s_bfe_u32 s{sT2}, s2, 0x50003")
    e(f"v_lshrrev_b32 v{vT0}, 4, v0")
    e(f"v_lshlrev_b32 v{vT0}, 13, v{vT0}")
    e(f"v_and_b32 v{vT1}, 15, v0")
    e(f"v_lshlrev_b32 v{vT1}, 7, v{vT1}")
    e(f"v_add_u32 v{vT0}, v{vT0}, v{vT1}")
    e(f"s_lshl_b32 s{sT0}, s{sWV}, 5")
    e(f"s_add_u32 s{sT0}, s{sT0}, s{sT2}")
    e(f"s_lshl_b32 s{sT0}, s{sT0}, 15")
    e(f"s_lshr_b32 s{sT1}, s{sX}, 1")
    e(f"s_lshl_b32 s{sT1}, s{sT1}, 11")
    e(f"s_add_u32 s{sT0}, s{sT0}, s{sT1}")
    e(f"s_add_u32 s{sT1}, s{sT0}, {128*4*8192}")
    e(f"s_lshl_b32 s{sT3}, s{sWV}, 5")
    e(f"s_add_u32 s{sT3}, s{sT3}, s{sT2}")
    e(f"s_and_b32 s{sT2}, s{sT3}, 7")
    e(f"s_lshl_b32 s{sT2}, s{sT2}, 6")
    e(f"v_add_u32 v{vT1}, s{sT2}, v0")
    e(f"v_bfe_u32 v{vT2}, v{vT1}, 5, 2")
    e(f"v_lshrrev_b32 v{vT3}, 7, v{vT1}")
    e(f"v_lshlrev_b32 v{vT3}, 3, v{vT3}")
    e(f"v_add_u32 v{vT2}, v{vT2}, v{vT3}")
    e(f"v_lshlrev_b32 v{vT2}, 5, v{vT2}")
    e(f"v_and_b32 v{vT1}, 31, v{vT1}")
    e(f"v_add_u32 v{vT1}, v{vT1}, v{vT2}")
    e(f"v_lshlrev_b32 v{vT1}, 11, v{vT1}")
    e(f"s_lshr_b32 s{sT3}, s{sT3}, 3")
    e(f"s_lshl_b32 s{sT3}, s{sT3}, 7")
    e(f"s_and_b32 s{sT2}, s{sX}, 1")
    e(f"s_lshl_b32 s{sT2}, s{sT2}, 18")
    e(f"s_add_u32 s{sT3}, s{sT3}, s{sT2}")
    e(f"buffer_load_dword v{vD}, v{vT0}, s[{SRD_W}:{SRD_W+3}], s{sT0} offen {pol}")
    e(f"buffer_load_dword v{vD+1}, v{vT1}, s[{SRD_X}:{SRD_X+3}], s{sT3} offen {pol}")
    e(f"buffer_load_dword v{vD+2}, v{vT0}, s[{SRD_W}:{SRD_W+3}], s{sT1} offen {pol}")


def poll_counter(a, label, off_reg, mask, shift_reg, target, bound, sleep=8):
    e = a.e
    e(f"v_mov_b32 v{vT0}, s{off_reg}")
    if bound:
        e(f"s_mov_b32 s{sT3}, {bound}")
    a.label(label)
    e(f"buffer_load_dword v{vT1}, v{vT0}, s[{SRD_D}:{SRD_D+3}], 0 offen sc1")
    e("s_waitcnt vmcnt(0)")
    e(f"v_readfirstlane_b32 s{sT1}, v{vT1}")
    a.nop(3)
    if shift_reg is not None:
        e(f"s_lshr_b32 s{sT1}, s{sT1}, s{shift_reg}")
    e(f"s_and_b32 s{sT1}, s{sT1}, {mask}")
    e(f"s_cmp_ge_u32 s{sT1}, {target}")
    e(f"s_cbranch_scc1 {label}_ok")
    if bound:
        e(f"s_sub_u32 s{sT3}, s{sT3}, 1")
        e(f"s_cmp_eq_u32 s{sT3}, 0")
        e(f"s_cbranch_scc1 {label}_ok")
    e(f"s_sleep {sleep}")
    e(f"s_branch {label}")
    a.label(label + "_ok")


def signal(a, label, off_reg, val_reg_or_imm):
    e = a.e
    e(f"s_cmp_lg_u32 s{sWV}, 0")
    e(f"s_cbranch_scc1 {label}")
    e(f"v_mov_b32 v{vT0}, s{off_reg}")
    e(f"v_mov_b32 v{vT1}, {val_reg_or_imm}")
    e(f"v_cmp_eq_u32 vcc, 0, v0")
    e(f"s_and_saveexec_b64 s[{sT2}:{sT3}], vcc")
    e(f"buffer_atomic_add v{vT1}, v{vT0}, s[{SRD_D}:{SRD_D+3}], 0 offen sc1")
    e(f"s_mov_b64 exec, s[{sT2}:{sT3}]")
    a.label(label)


def gen_flash(a, name, pol):
    e = a.e
    FK = [QOWN, DEF]
    sNextK, sNextV = sT4, sT5
    e(f"s_lshl_b32 s{sT0}, s{sB}, 5")
    e(f"s_add_u32 s{sT0}, s{sT0}, s{sH}")
    e(f"s_lshl_b32 s{sT0}, s{sT0}, 13")
    e(f"s_add_u32 s{sT0}, s{sT0}, {QWS_OFF}")
    for s in range(8):
        if s == 4:
            e(f"s_add_u32 s{sT0}, s{sT0}, 4096")
        e(f"buffer_store_dwordx4 v[{QOWN+4*s}:{QOWN+4*s+3}], v{vLane16}, s[{SRD_O}:{SRD_O+3}], s{sT0} offen offset:{(s%4)*1024} {QST[0]}")
    e("s_waitcnt vmcnt(0)")
    if XM[0]: mark(a, 3)
    bar(a)
    e(f"v_readfirstlane_b32 s{sNonce}, v{vNon}")
    a.nop(3)
    e(f"s_mul_i32 s{sNonce}, s{sNonce}, 0x9e3779b1")
    e(f"s_add_u32 s{sNonce}, s{sNonce}, 0x7f4a7c15")
    e(f"s_cmp_lg_u32 s{sWV}, 0")
    e(f"s_cbranch_scc1 {name}_qwait")
    e(f"s_and_b32 s{sT0}, s{sH}, 3")
    e(f"s_lshl_b32 s{sT0}, s{sT0}, 2")
    e(f"s_add_u32 s{sT0}, s{sT0}, s{sFlag}")
    e(f"s_add_u32 s{sT0}, s{sT0}, 16")
    e(f"v_mov_b32 v{vT0}, 0")
    e(f"v_mov_b32 v{vT1}, s{sNonce}")
    e(f"v_cmp_eq_u32 vcc, 0, v0")
    e(f"s_and_saveexec_b64 s[{sT2}:{sT3}], vcc")
    e(f"buffer_store_dword v{vT1}, v{vT0}, s[{SRD_O}:{SRD_O+3}], s{sT0} offen sc0 sc1")
    e(f"s_mov_b64 exec, s[{sT2}:{sT3}]")
    if SPOLL[0]:
        e(f"s_add_u32 s56, s{SRD_O}, s{sFlag}")
        e(f"s_addc_u32 s57, s{SRD_O+1}, 0")
        a.label(f"{name}_spinq")
        e(f"s_load_dwordx4 s[52:55], s[56:57], 16 glc")
        e("s_waitcnt lgkmcnt(0)")
        e(f"s_xor_b32 s{sT0}, s52, s{sNonce}")
        for k in range(1, 4):
            e(f"s_xor_b32 s{sT1}, s{52+k}, s{sNonce}")
            e(f"s_or_b32 s{sT0}, s{sT0}, s{sT1}")
        e(f"s_cmp_eq_u32 s{sT0}, 0")
        e(f"s_cbranch_scc1 {name}_pollq")
        e("s_sleep 2")
        e(f"s_branch {name}_spinq")
    a.label(f"{name}_pollq")
    e(f"buffer_load_dwordx4 v[{S}:{S+3}], v{vT0}, s[{SRD_O}:{SRD_O+3}], s{sFlag} offen offset:16 sc0 sc1")
    e("s_waitcnt vmcnt(0)")
    for k in range(4):
        e(f"v_xor_b32 v{S+k}, s{sNonce}, v{S+k}")
    e(f"v_or3_b32 v{S}, v{S}, v{S+1}, v{S+2}")
    e(f"v_or_b32 v{S}, v{S}, v{S+3}")
    a.nop(1)
    e(f"v_readfirstlane_b32 s{sT1}, v{S}")
    a.nop(3)
    e(f"s_cmp_eq_u32 s{sT1}, 0")
    e(f"s_cbranch_scc1 {name}_pollq_ok")
    e(f"s_sleep {SLEEPQ[0]}")
    e(f"s_branch {name}_pollq")
    a.label(f"{name}_pollq_ok")
    if XM[0]: mark(a, 4)
    e(f"v_cmp_eq_u32 vcc, 0, v0")
    e(f"s_and_saveexec_b64 s[{sT2}:{sT3}], vcc")
    e(f"buffer_store_dword v{vT1}, v{vT0}, s[{SRD_O}:{SRD_O+3}], s{sFlag} offen sc0 sc1")
    e(f"s_mov_b64 exec, s[{sT2}:{sT3}]")
    if INV[0]:
        e("buffer_inv sc1")
    e("s_waitcnt vmcnt(0)")
    if XM[0]: mark(a, 5)
    a.label(f"{name}_qwait")
    bar(a)
    mark(a, 2)
    e(f"s_lshl_b32 s{sT0}, s{sBs}, 5")
    e(f"s_lshl_b32 s{sT1}, s{sHq}, 2")
    e(f"s_add_u32 s{sT1}, s{sT1}, s{sWV}")
    e(f"s_add_u32 s{sT0}, s{sT0}, s{sT1}")
    e(f"s_lshl_b32 s{sT0}, s{sT0}, 13")
    e(f"s_add_u32 s{sT0}, s{sT0}, {QWS_OFF}")
    for s in range(8):
        if s == 4:
            e(f"s_add_u32 s{sT0}, s{sT0}, 4096")
        e(f"buffer_load_dwordx4 v[{QCUR+4*s}:{QCUR+4*s+3}], v{vLane16}, s[{SRD_O}:{SRD_O+3}], s{sT0} offen offset:{(s%4)*1024} {QST[1]}")
    issue_tile(e, SRD_K, sM0a, sKVoff, 0, True, pol)
    issue_tile(e, SRD_V, sM0b, sKVoff, 0, False, pol)
    for s in range(8):
        e(f"v_subrev_u32 v{vKR+s}, s{sW8}, v{vKR+s}")
    e(f"s_lshl_b32 s{sT0}, s{sWV}, 6")
    e(f"v_subrev_u32 v{vT2}, s{sW8}, v{vVR}")
    e(f"v_xor_b32 v{vT2}, s{sT0}, v{vT2}")
    for k in range(4):
        e(f"v_xor_b32 v{vVR+k}, {k*64}, v{vT2}")
    for j in range(64):
        e(f"v_mov_b32 v{O+j}, 0")
    e(f"v_mov_b32 v{vM}, 0xff7fffff")
    e(f"v_mov_b32 v{vL}, 0")
    e(f"s_mov_b32 s{sTask}, 0")
    a.label(f"{name}_chunk")
    e(f"s_add_u32 s{sNextK}, s{sKVoff}, 32768")
    e(f"s_cmp_lt_u32 s{sTask}, 3")
    e(f"s_cselect_b32 s{sNextK}, s{sNextK}, {OOB:#x}")
    e("s_waitcnt vmcnt(8)")
    bar(a)
    def rk(T):
        for s in range(8):
            e(f"ds_read_b128 v[{FK[T&1]+4*s}:{FK[T&1]+4*s+3}], v{vKR+s} offset:{T*8192}")
    def mk(T):
        for s in range(8):
            mfma(e, S+16*T, FK[T&1]+4*s, QCUR+4*s, "0" if s == 0 else None)
    rk(0); rk(1)
    e("s_waitcnt lgkmcnt(8)")
    mk(0)
    rk(2)
    e("s_waitcnt lgkmcnt(8)")
    mk(1)
    rk(3)
    e("s_waitcnt lgkmcnt(8)")
    mk(2)
    e("s_waitcnt lgkmcnt(0)")
    bar(a)
    issue_tile(e, SRD_K, sM0a, sNextK, 0, True, pol)
    mk(3)
    e(f"v_max3_f32 v{vMx}, v{S}, v{S+1}, v{S+2}")
    e(f"v_max3_f32 v{vT0}, v{S+3}, v{S+4}, v{S+5}")
    k = 6; n = 0
    tgt = [vMx, vT0]
    while k + 1 < 64:
        e(f"v_max3_f32 v{tgt[n&1]}, v{tgt[n&1]}, v{S+k}, v{S+k+1}")
        k += 2; n += 1
    e(f"v_max3_f32 v{vMx}, v{vMx}, v{vT0}, v{vM}")
    e(f"v_mov_b32 v{vT0}, v{vMx}")
    a.nop(2)
    e(f"v_permlane32_swap_b32 v{vMx}, v{vT0}")
    a.nop(1)
    e(f"v_max_f32 v{vMx}, v{vMx}, v{vT0}")
    e(f"v_mul_f32 v{vF}, s{sScale}, v{vMx}")
    e(f"v_fma_f32 v{vT1}, v{vM}, s{sScale}, -v{vF}")
    e(f"v_exp_f32 v{vT1}, v{vT1}")
    e(f"v_mov_b32 v{vM}, v{vMx}")
    for k in range(64):
        e(f"v_fma_f32 v{S+k}, v{S+k}, s{sScale}, -v{vF}")
    for k in range(64):
        e(f"v_exp_f32 v{S+k}, v{S+k}")
    for k in range(64):
        e(f"v_mul_f32 v{O+k}, v{O+k}, v{vT1}")
    e(f"v_add_f32 v{vT2}, v{S}, v{S+1}")
    e(f"v_add_f32 v{vT0}, v{S+2}, v{S+3}")
    for k in range(4, 64, 2):
        e(f"v_add_f32 v{vT2}, v{vT2}, v{S+k}")
        e(f"v_add_f32 v{vT0}, v{vT0}, v{S+k+1}")
    for k in range(32):
        e(f"v_cvt_pk_bf16_f32 v{S+k}, v{S+2*k}, v{S+2*k+1}")
    e(f"v_add_f32 v{vT2}, v{vT2}, v{vT0}")
    e(f"v_fma_f32 v{vL}, v{vL}, v{vT1}, v{vT2}")
    e("s_waitcnt vmcnt(8)")
    bar(a)
    FV = [S+32, QOWN]
    def rv(T):
        for k in range(4):
            for u in range(2):
                for half in range(2):
                    r = FV[T&1] + 8*k + 4*u + 2*half
                    e(f"ds_read_b64_tr_b16 v[{r}:{r+1}], v{vVR+k} offset:{LDS_RING1 + T*8192 + (16*u+8*half)*256}")
    def mv(T):
        for u in range(2):
            for k in range(4):
                mfma(e, O+16*k, FV[T&1]+8*k+4*u, S+8*T+4*u)
    rv(0)
    e("s_waitcnt lgkmcnt(0)")
    rv(1); mv(0)
    e("s_waitcnt lgkmcnt(0)")
    rv(2); mv(1)
    e("s_waitcnt lgkmcnt(0)")
    rv(3); mv(2)
    e("s_waitcnt lgkmcnt(0)")
    bar(a)
    issue_tile(e, SRD_V, sM0b, sNextK, 0, False, pol)
    mv(3)
    if TIMING[0]:
        ts_mark(a, 76)
        for k in range(4):
            e(f"s_cmp_eq_u32 s{sTask}, {k}")
            if not XM[0] or k == 3:
                e(f"s_cselect_b32 s{MK[3+k]}, s76, s{MK[3+k]}")
    e(f"s_mov_b32 s{sKVoff}, s{sNextK}")
    e(f"s_add_u32 s{sTask}, s{sTask}, 1")
    e(f"s_cmp_lt_u32 s{sTask}, 4")
    e(f"s_cbranch_scc1 {name}_chunk")
    e(f"v_mov_b32 v{vT0}, v{vL}")
    a.nop(2)
    e(f"v_permlane32_swap_b32 v{vL}, v{vT0}")
    a.nop(1)
    e(f"v_add_f32 v{vL}, v{vL}, v{vT0}")
    e(f"v_rcp_f32 v{vF}, v{vL}")
    a.nop(8)
    for k in range(64):
        e(f"v_mul_f32 v{O+k}, v{O+k}, v{vF}")
    for k in range(32):
        e(f"v_cvt_pk_bf16_f32 v{S+k}, v{O+2*k}, v{O+2*k+1}")
    e("s_waitcnt vmcnt(0)")
    e(f"s_lshl_b32 s{sT0}, s{sBs}, 18")
    e(f"s_lshl_b32 s{sT1}, s{sHq}, 2")
    e(f"s_add_u32 s{sT1}, s{sT1}, s{sWV}")
    e(f"s_lshl_b32 s{sT1}, s{sT1}, 13")
    e(f"s_add_u32 s{sT0}, s{sT0}, s{sT1}")
    for f in range(8):
        if f == 4:
            e(f"s_add_u32 s{sT0}, s{sT0}, 4096")
        e(f"buffer_store_dwordx4 v[{S+4*f}:{S+4*f+3}], v{vLane16}, s[{SRD_O}:{SRD_O+3}], s{sT0} offen offset:{(f%4)*1024} {OPOL[0]}")


def gen_attn(a, name, timing=False, pol_x="nt", pol_w="nt", pol_kv="nt", touch=True, delay_a=True, thresh=32, bound=64, qmarks=False, only=None, qonly=False, qskip='', qorder='adv', look=2, prio_a=0, prio_b=0, touch_a=False, sleep_q=8, sleep_b=48, xmarks=False, use_inv=False, altprio=False, spoll=False, fuse=False, p3opt=None, opol='', gsleep=1, psig=10, pairwait=0, wo_early=None, asym=False, pol_kv_a=None, clk=False, single=False, exp_sleep=0, wo_pf=None, wtouch=0, prio_flash=0, qst='sc0 sc1', qld='sc0 sc1'):
    kernel_header(a, name)
    e = a.e
    TIMING[0] = timing
    QMARKS[0] = qmarks
    QSKIP[0] = qskip
    QORDER[0] = qorder
    LOOK[0] = look
    SLEEPQ[0] = sleep_q
    XM[0] = xmarks
    ALT[0] = altprio
    ASYM[0] = asym
    SPOLL[0] = spoll
    OPOL[0] = opol
    GSLEEP[0] = gsleep
    PSIG[0] = psig if pairwait else 0
    SINGLE[0] = single
    GB[0] = 0
    WT[0] = wtouch
    INV[0] = use_inv
    QST[0] = qst
    QST[1] = qld
    gen_prologue(a, name, timing)
    if only == "B":
        e(f"s_cmp_lg_u32 s{sRole}, 0")
        e(f"s_cbranch_scc1 {name}_done")
    if only == "A":
        e(f"s_cmp_eq_u32 s{sRole}, 0")
        e(f"s_cbranch_scc1 {name}_done")
    if timing:
        for k in range(8):
            e(f"s_mov_b32 s{MK[k]}, 0")
    e(f"s_and_b32 s{sT2}, s{sH}, 3")
    e(f"s_lshl_b32 s{sT2}, s{sT2}, 3")
    e(f"s_add_u32 s{sBs}, s{sT2}, s{sI}")
    e(f"s_lshr_b32 s{sHq}, s{sH}, 2")
    e(f"s_lshl_b32 s{sT0}, s{sI}, 5")
    e(f"s_add_u32 s{sT0}, s{sT0}, s{sH}")
    e(f"s_lshl_b32 s{sT1}, s{sBs}, 2")
    e(f"s_lshr_b32 s{sT2}, s{sH}, 3")
    e(f"s_add_u32 s{sT1}, s{sT1}, s{sT2}")
    e(f"s_cmp_eq_u32 s{sRole}, 0")
    e(f"s_cselect_b32 s{sKVoff}, s{sT0}, s{sT1}")
    e(f"s_lshl_b32 s{sKVoff}, s{sKVoff}, 17")
    e(f"s_add_u32 s{sKVoff}, s{sKVoff}, s{sW8}")
    e(f"s_mov_b32 s{sOoff}, {8*32*131072}")
    if pairwait:
        e(f"s_and_b32 s{sT0}, s2, 255")
        e(f"s_lshl_b32 s{sT0}, s{sT0}, 8")
        e(f"s_add_u32 s{sT0}, s{sT0}, {PAIR_OFF}")
        e(f"s_add_u32 s{sPairP}, s{SRD_O}, s{sT0}")
        e(f"s_addc_u32 s{sPairP+1}, s{SRD_O+1}, 0")
        e(f"s_load_dword s{sPairN}, s[{sPairP}:{sPairP+1}], 0 glc")
    if fuse:
        import phase3
        phase3.entry_loads(a)
    e(f"s_cmp_eq_u32 s{sRole}, 0")
    e(f"s_cbranch_scc1 {name}_startb")
    if pairwait:
        e("s_waitcnt lgkmcnt(0)")
        e(f"s_mul_i32 s{sPairN}, s{sPairN}, 0x9e3779b1")
        e(f"s_add_u32 s{sPairN}, s{sPairN}, 0x7f4a7c15")
        e(f"s_mov_b32 s{sT3}, {pairwait}")
        a.label(f"{name}_pw")
        e(f"s_load_dword s{sT1}, s[{sPairP}:{sPairP+1}], 16 glc")
        e("s_waitcnt lgkmcnt(0)")
        e(f"s_cmp_eq_u32 s{sT1}, s{sPairN}")
        e(f"s_cbranch_scc1 {name}_pw_ok")
        e(f"s_sub_u32 s{sT3}, s{sT3}, 1")
        e(f"s_cmp_eq_u32 s{sT3}, 0")
        e(f"s_cbranch_scc1 {name}_pw_ok")
        e("s_sleep 4")
        e(f"s_branch {name}_pw")
        a.label(f"{name}_pw_ok")
        e(f"s_cmp_lg_u32 s{sWV}, 0")
        e(f"s_cbranch_scc1 {name}_pw_d")
        e(f"s_and_b32 s{sT0}, s2, 255")
        e(f"s_lshl_b32 s{sT0}, s{sT0}, 8")
        e(f"s_add_u32 s{sT0}, s{sT0}, {PAIR_OFF}")
        e(f"v_mov_b32 v{vT0}, 0")
        e(f"v_mov_b32 v{vT1}, s{sPairN}")
        e(f"v_cmp_eq_u32 vcc, 0, v0")
        e(f"s_and_saveexec_b64 s[{sT2}:{sT3}], vcc")
        e(f"buffer_store_dword v{vT1}, v{vT0}, s[{SRD_O}:{SRD_O+3}], s{sT0} offen sc0 sc1")
        e(f"s_mov_b64 exec, s[{sT2}:{sT3}]")
        a.label(f"{name}_pw_d")
    if wo_early is not None:
        e(f"s_load_dwordx2 s[52:53], s[0:1], 32")
        e(f"s_load_dwordx2 s[54:55], s[0:1], 72")
        e(f"s_and_b32 s{sT0}, s2, 255")
        e(f"s_lshl_b32 s{sT0}, s{sT0}, 2")
        e(f"s_add_u32 s{sT0}, s{sT0}, s{sWV}")
        e(f"s_waitcnt lgkmcnt(0)")
        e(f"s_cmp_lt_u32 s{sT0}, 512")
        e(f"s_cselect_b32 s{SRD_T}, s52, s54")
        e(f"s_cselect_b32 s{SRD_T+1}, s53, s55")
        e(f"s_and_b32 s{SRD_T+1}, s{SRD_T+1}, 0xffff")
        e(f"s_mov_b32 s{SRD_T+2}, {4096*1024*2}")
        e(f"s_mov_b32 s{SRD_T+3}, 0x20000")
        e(f"s_and_b32 s{sT0}, s{sT0}, 511")
        e(f"s_lshl_b32 s{sT0}, s{sT0}, 14")
        e(f"v_lshlrev_b32 v{vT0}, 7, v0")
        e(f"buffer_load_dword v{vT2}, v{vT0}, s[{SRD_T}:{SRD_T+3}], s{sT0} offen {wo_early}")
        e(f"s_add_u32 s{sT0}, s{sT0}, 8192")
        e(f"buffer_load_dword v{vT3}, v{vT0}, s[{SRD_T}:{SRD_T+3}], s{sT0} offen {wo_early}")
        e("s_waitcnt vmcnt(0)")
    if asym:
        for k in range(16):
            e("s_barrier")
        e("s_barrier")
        e(f"v_mov_b32 v{vT3}, 0")
        e(f"ds_write_b32 v{vBarA}, v{vT3}")
        e("s_waitcnt lgkmcnt(0)")
        e("s_barrier")
    if exp_sleep:
        for k in range(exp_sleep):
            e("s_sleep 127")
    if delay_a:
        e(f"s_lshl_b32 s{sT4}, s{sX}, 2")
        e(f"s_cmp_lg_u32 s{sWV}, 0")
        e(f"s_cbranch_scc1 {name}_await")
        poll_counter(a, f"{name}_pollb", sT4, 255, None, thresh, bound, sleep=sleep_b)
        a.label(f"{name}_await")
        e("s_barrier")
    e(f"s_lshl_b32 s{sFlag}, s{sHq}, 3")
    e(f"s_add_u32 s{sFlag}, s{sFlag}, s{sI}")
    e(f"s_lshl_b32 s{sFlag}, s{sFlag}, 8")
    e(f"s_add_u32 s{sFlag}, s{sFlag}, {FLAG_OFF}")
    e(f"v_mov_b32 v{vT0}, 0")
    e(f"buffer_load_dword v{vNon}, v{vT0}, s[{SRD_O}:{SRD_O+3}], s{sFlag} offen sc0 sc1")
    if prio_a:
        e(f"s_setprio {prio_a}")
    if touch_a:
        gen_touch(a, pol_w)
    e(f"s_branch {name}_q")
    a.label(f"{name}_startb")
    if prio_b:
        e(f"s_setprio {prio_b}")
    if touch:
        gen_touch(a, pol_w)
    a.label(f"{name}_q")
    mark(a, 0)
    if clk:
        e("s_memtime s[76:77]")
        e("s_waitcnt lgkmcnt(0)")
        e(f"s_mov_b32 s{MK[5]}, s76")

    def hook_w():
        e(f"s_cmp_lg_u32 s{sRole}, 0")
        e(f"s_cbranch_scc1 {name}_hw")
        if delay_a:
            e(f"s_lshl_b32 s{sT4}, s{sX}, 2")
            signal(a, f"{name}_sigb", sT4, "1")
        issue_tile(e, SRD_K, sM0a, sKVoff, 0, True, pol_kv)
        a.label(f"{name}_hw")
    def hook_x():
        if LOOK[0] != 2:
            return
        e(f"s_cmp_lg_u32 s{sRole}, 0")
        e(f"s_cbranch_scc1 {name}_hx")
        issue_tile(e, SRD_K, sM0b, sKVoff, 32768, True, pol_kv)
        a.label(f"{name}_hx")
    gen_qproj(a, name, pol_x, pol_w, hook_w, hook_x)
    if fuse:
        phase3.pick_tags(a)
    mark(a, 1)
    if clk:
        e("s_memtime s[76:77]")
        e("s_waitcnt lgkmcnt(0)")
        e(f"s_sub_u32 s{MK[6]}, s76, s{MK[5]}")
        e(f"s_mov_b32 s{MK[5]}, 0")
    if ALT[0]:
        e("s_setprio 0")
    if qonly:
        e(f"s_branch {name}_end")
    if single and asym:
        e(f"s_cmp_lg_u32 s{sRole}, 0")
        e(f"s_cbranch_scc1 {name}_rolea")
        e("s_barrier")
        e(f"v_mov_b32 v{vT3}, 0")
        e(f"ds_write_b32 v{vBarA}, v{vT3}")
        e("s_waitcnt lgkmcnt(0)")
        e("s_barrier")
    elif single:
        e("s_barrier")
        e(f"v_mov_b32 v{vT3}, 0")
        e(f"ds_write_b32 v{vBarA}, v{vT3}")
        e("s_waitcnt lgkmcnt(0)")
        e("s_barrier")
    e(f"s_cmp_lg_u32 s{sRole}, 0")
    e(f"s_cbranch_scc1 {name}_rolea")
    if not single:
        e("s_barrier")
    q_broadcast(a, name, "q0", "0")
    e(f"s_mov_b32 s{sTask}, 0")
    gen_m1(a, name, pol_kv)
    e(f"s_branch {name}_end")
    a.label(f"{name}_rolea")
    e(f"s_setprio {prio_flash}")
    gen_flash(a, name, pol_kv if pol_kv_a is None else pol_kv_a)
    a.label(f"{name}_end")
    if fuse:
        if timing:
            ts_mark(a, 76)
            e(f"s_mov_b32 s{MK[6]}, s76")
        phase3.gen_phase3(a, name, **(p3opt or {}))
    if wo_pf is not None:
        e(f"s_load_dwordx2 s[52:53], s[0:1], 32")
        e(f"s_load_dwordx2 s[54:55], s[0:1], 72")
        e(f"s_waitcnt lgkmcnt(0)")
        e(f"s_cmp_lt_u32 s{sX}, 4")
        e(f"s_cselect_b32 s{SRD_W}, s52, s54")
        e(f"s_cselect_b32 s{SRD_W+1}, s53, s55")
        e(f"s_and_b32 s{SRD_W+1}, s{SRD_W+1}, 0xffff")
        e(f"s_mov_b32 s{SRD_W+2}, {4096*1024*2}")
        e(f"s_mov_b32 s{SRD_W+3}, 0x20000")
        if single:
            e(f"s_lshr_b32 s{sT0}, s2, 3")
            e(f"s_lshl_b32 s{sT0}, s{sT0}, 3")
            e(f"s_add_u32 s{sT0}, s{sT0}, s{sWid}")
        else:
            e(f"s_lshr_b32 s{sT0}, s2, 3")
            e(f"s_lshl_b32 s{sT0}, s{sT0}, 2")
            e(f"s_add_u32 s{sT0}, s{sT0}, s{sWV}")
        e(f"s_lshl_b32 s{sT0}, s{sT0}, 14")
        e(f"s_and_b32 s{sT1}, s{sX}, 1")
        e(f"s_lshl_b32 s{sT1}, s{sT1}, 10")
        e(f"s_add_u32 s{sT0}, s{sT0}, s{sT1}")
        e(f"s_bfe_u32 s{sT1}, s{sX}, 0x10001")
        e(f"s_lshl_b32 s{sT1}, s{sT1}, 22")
        e(f"s_add_u32 s{sT0}, s{sT0}, s{sT1}")
        e(f"v_lshrrev_b32 v{vT0}, 3, v0")
        e(f"v_lshlrev_b32 v{vT0}, 11, v{vT0}")
        e(f"v_and_b32 v{vT1}, 7, v0")
        e(f"v_lshlrev_b32 v{vT1}, 7, v{vT1}")
        e(f"v_add_u32 v{vT0}, v{vT0}, v{vT1}")
        e(f"buffer_load_dword v{vT2}, v{vT0}, s[{SRD_W}:{SRD_W+3}], s{sT0} offen {wo_pf}")
    e("s_waitcnt vmcnt(0)")
    if timing:
        mark(a, 7)
        ts_dump(a, [sTS] + MK[0:7], 0, sWid if single else sWV, 52, 8, nwaves=8 if single else 4)
        ts_end(a, sTS, 0, sWid if single else sWV, 52, 2, nwaves=8 if single else 4)
    a.label(f"{name}_done")
    e("s_endpgm")
    return dict(nv=256, ns=NS, lds=LDS_BYTES*(2 if single else 1), threads=512 if single else 256, grid=256 if single else 512)
```

```python
from asmlib import *
import attn as A

G1_OFF = 51 << 20
G2_OFF = 52 << 20
X_OFF = 64 << 20
OOB = 0x80000000
sN1, sN2 = 82, 83
vN1, vN2 = A.DEF + 26, A.DEF + 27

def entry_loads(a):
    e = a.e
    sT0, sT1, sT2 = A.sT0, A.sT1, A.sT2
    line_offsets(a, sT0, sT1)
    e(f"s_lshl_b32 s{sT1}, s{sT1}, 8")
    e(f"s_add_u32 s{sT1}, s{sT1}, {G2_OFF}")
    e(f"v_mov_b32 v{A.vT0}, 0")
    e(f"buffer_load_dword v{vN1}, v{A.vT0}, s[{A.SRD_O}:{A.SRD_O+3}], s{sT0} offen sc0 sc1")
    e(f"buffer_load_dword v{vN2}, v{A.vT0}, s[{A.SRD_O}:{A.SRD_O+3}], s{sT1} offen sc0 sc1")

def line_offsets(a, d1, d2):
    e = a.e
    sT2, sT3 = A.sT2, A.sT3
    e(f"s_lshl_b32 s{d1}, s{A.sRole}, 3")
    e(f"s_add_u32 s{d1}, s{d1}, s{A.sX}")
    e(f"s_lshl_b32 s{d1}, s{d1}, 2")
    e(f"s_and_b32 s{sT2}, s{A.sI}, 3")
    e(f"s_add_u32 s{d1}, s{d1}, s{sT2}")
    e(f"s_lshl_b32 s{d1}, s{d1}, 8")
    e(f"s_add_u32 s{d1}, s{d1}, {G1_OFF}")
    e(f"s_lshl_b32 s{d2}, s{A.sRole}, 1")
    e(f"s_and_b32 s{sT3}, s{A.sX}, 1")
    e(f"s_add_u32 s{d2}, s{d2}, s{sT3}")
    e(f"s_lshl_b32 s{d2}, s{d2}, 3")
    e(f"s_and_b32 s{sT3}, s{A.sH}, 7")
    e(f"s_add_u32 s{d2}, s{d2}, s{sT3}")
    e(f"s_lshl_b32 s{d2}, s{d2}, 2")
    e(f"s_add_u32 s{d2}, s{d2}, s{sT2}")

def pick_tags(a):
    e = a.e
    e(f"v_readfirstlane_b32 s{sN1}, v{vN1}")
    e(f"v_readfirstlane_b32 s{sN2}, v{vN2}")
    a.nop(3)
    for r in (sN1, sN2):
        e(f"s_mul_i32 s{r}, s{r}, 0x9e3779b1")
        e(f"s_add_u32 s{r}, s{r}, 0x7f4a7c15")

def gen_phase3(a, name, pol_w="", sleep=2, sleep_x=1, marks=False, opol="sc1", order=None, prio=None, grp=1, skip=""):
    e = a.e
    sT0, sT1, sT2, sT3, sT4, sT5 = A.sT0, A.sT1, A.sT2, A.sT3, A.sT4, A.sT5
    sWV, sRole, sH, sI, sX, sB = A.sWV, A.sRole, A.sH, A.sI, A.sX, A.sB
    SRD_W, SRD_O, SRD_OUT = A.SRD_W, A.SRD_O, A.SRD_X
    sHg, sWo, sOo, sPos, sCnt, sL1, sL2 = 32, 33, 34, 35, 36, 37, 38
    vT0, vT1, vT2, vT3, vLane16 = A.vT0, A.vT1, A.vT2, A.vT3, A.vLane16
    vWD = A.DEF
    vWR = A.DEF + 4
    ACC, FW, FO = A.S, A.O, A.QOWN
    e("s_barrier")
    e(f"s_load_dwordx2 s[52:53], s[0:1], 32")
    e(f"s_load_dwordx2 s[54:55], s[0:1], 72")
    e(f"s_load_dwordx2 s[56:57], s[0:1], 80")
    e(f"s_lshr_b32 s{sHg}, s{sX}, 1")
    e(f"v_lshrrev_b32 v{vT0}, 4, v0")
    e(f"v_and_b32 v{vT1}, 15, v0")
    e(f"v_lshlrev_b32 v{vT2}, 2, v{vT0}")
    e(f"v_xor_b32 v{vT2}, v{vT2}, v{vT1}")
    e(f"v_lshlrev_b32 v{vT2}, 4, v{vT2}")
    e(f"v_lshlrev_b32 v{vT0}, 11, v{vT0}")
    e(f"v_add_u32 v{vWD}, v{vT2}, v{vT0}")
    for jj in range(1, 4):
        e(f"v_add_u32 v{vWD+jj}, {jj*(4*2048-1024)}, v{vWD}")
    e("s_waitcnt lgkmcnt(0)")
    e(f"s_cmp_eq_u32 s{sRole}, 0")
    e(f"s_cselect_b32 s{SRD_W}, s54, s52")
    e(f"s_cselect_b32 s{SRD_W+1}, s55, s53")
    e(f"s_and_b32 s{SRD_W+1}, s{SRD_W+1}, 0xffff")
    e(f"s_mov_b32 s{SRD_W+2}, {4096*1024*2}")
    e(f"s_mov_b32 s{SRD_W+3}, 0x20000")
    e(f"s_mov_b32 s{SRD_OUT}, s56")
    e(f"s_and_b32 s{SRD_OUT+1}, s57, 0xffff")
    e(f"s_mov_b32 s{SRD_OUT+2}, {1024*2048*2}")
    e(f"s_mov_b32 s{SRD_OUT+3}, 0x20000")
    e(f"s_mov_b32 s{SRD_O+2}, {128 << 20}")
    e(f"s_lshl_b32 s{sWo}, s{sHg}, 21")
    e(f"s_lshl_b32 s{sT0}, s{sWV}, 15")
    e(f"s_add_u32 s{sWo}, s{sWo}, s{sT0}")
    e(f"s_and_b32 s{sT0}, s{sH}, 7")
    e(f"s_lshl_b32 s{sT0}, s{sT0}, 8")
    e(f"s_add_u32 s{sWo}, s{sWo}, s{sT0}")
    e(f"s_xor_b32 s{sOo}, s{sRole}, 1")
    e(f"s_lshl_b32 s{sOo}, s{sOo}, 23")
    e(f"s_lshl_b32 s{sT0}, s{sB}, 18")
    e(f"s_add_u32 s{sOo}, s{sOo}, s{sT0}")
    e(f"s_lshl_b32 s{sT0}, s{sHg}, 16")
    e(f"s_add_u32 s{sOo}, s{sOo}, s{sT0}")

    sSg = 40
    def sigma(pos_expr_reg):
        if order == "adv":
            e(f"s_add_u32 s{sT1}, s{pos_expr_reg}, 1")
            e(f"s_sub_u32 s{sT1}, s{sT1}, s{A.sCls}")
            e(f"s_and_b32 s{sT1}, s{sT1}, 3")
            e(f"s_cmp_eq_u32 s{sT1}, 0")
            e(f"s_cselect_b32 s{sT0}, 1, 0")
            e(f"s_cmp_eq_u32 s{sT1}, 1")
            e(f"s_cselect_b32 s{sT0}, -1, s{sT0}")
            e(f"s_add_u32 s{sSg}, s{pos_expr_reg}, s{sT0}")
            e(f"s_cmp_lt_u32 s{sSg}, 16")
            e(f"s_cselect_b32 s{sSg}, s{sSg}, s{pos_expr_reg}")
        else:
            e(f"s_mov_b32 s{sSg}, s{pos_expr_reg}")

    def issue_w(slot):
        sigma(sPos)
        e(f"s_lshl_b32 s{sT0}, s{sWV}, 12")
        e(f"s_add_u32 m0, s{sT0}, {slot*16384}")
        e(f"s_lshl_b32 s{sT1}, s{sSg}, 17")
        e(f"s_add_u32 s{sT1}, s{sT1}, s{sWo}")
        e(f"s_cmp_lt_u32 s{sPos}, 16")
        e(f"s_cselect_b32 s{sT1}, s{sT1}, {OOB:#x}")
        for jj in range(4):
            e(f"buffer_load_dwordx4 v{vWD+jj}, s[{SRD_W}:{SRD_W+3}], s{sT1} offen offset:{jj*1024} {pol_w} lds")

    def issue_o(slot, pos_delta=0):
        e(f"s_add_u32 s{sT2}, s{sPos}, {pos_delta}") if pos_delta else e(f"s_mov_b32 s{sT2}, s{sPos}")
        sigma(sT2)
        e(f"s_lshl_b32 s{sT1}, s{sSg}, 12")
        e(f"s_add_u32 s{sT1}, s{sT1}, s{sOo}")
        e(f"s_cmp_lt_u32 s{sT2}, 16")
        e(f"s_cselect_b32 s{sT1}, s{sT1}, {OOB:#x}")
        for u in range(4):
            d = FO + 16*slot + 4*u
            e(f"buffer_load_dwordx4 v[{d}:{d+3}], v{vLane16}, s[{SRD_O}:{SRD_O+3}], s{sT1} offen offset:{u*1024} {opol}")

    if prio is not None:
        e(f"s_setprio {prio}")
    for s in range(3):
        e(f"s_mov_b32 s{sPos}, {s}")
        issue_w(s)
    e(f"v_bfe_u32 v{vT0}, v0, 2, 2")
    e(f"v_lshlrev_b32 v{vT2}, 6, v{vT0}")
    e(f"v_bfe_u32 v{vT3}, v0, 4, 1")
    e(f"v_lshlrev_b32 v{vT3}, 5, v{vT3}")
    e(f"v_add_u32 v{vT2}, v{vT2}, v{vT3}")
    e(f"v_and_b32 v{vT3}, 1, v0")
    e(f"v_lshlrev_b32 v{vT3}, 4, v{vT3}")
    e(f"v_add_u32 v{vT2}, v{vT2}, v{vT3}")
    e(f"v_bfe_u32 v{vT3}, v0, 1, 1")
    e(f"v_lshlrev_b32 v{vT3}, 3, v{vT3}")
    e(f"v_add_u32 v{vT2}, v{vT2}, v{vT3}")
    e(f"v_lshrrev_b32 v{vT1}, 5, v0")
    e(f"v_lshlrev_b32 v{vT3}, 3, v{vT1}")
    e(f"v_add_u32 v{vT3}, v{vT3}, v{vT0}")
    e(f"v_lshlrev_b32 v{vT3}, 8, v{vT3}")
    e(f"v_add_u32 v{vT2}, v{vT2}, v{vT3}")
    for k in range(4):
        e(f"s_add_u32 s{sT0}, s{sHg}, {k}")
        e(f"s_and_b32 s{sT0}, s{sT0}, 3")
        e(f"s_lshl_b32 s{sT0}, s{sT0}, 6")
        e(f"v_xor_b32 v{vWR+k}, s{sT0}, v{vT2}")
    line_offsets(a, sL1, sL2)
    e("s_waitcnt vmcnt(0)")
    e("s_barrier")
    e(f"s_cmp_lg_u32 s{sWV}, 0")
    e(f"s_cbranch_scc1 {name}_p3w")
    e(f"s_and_b32 s{sT0}, s{sH}, 7")
    e(f"s_lshl_b32 s{sT0}, s{sT0}, 2")
    e(f"s_add_u32 s{sT0}, s{sT0}, s{sL1}")
    e(f"v_mov_b32 v{vT0}, 0")
    e(f"v_mov_b32 v{vT1}, s{sN1}")
    e(f"v_cmp_eq_u32 vcc, 0, v0")
    e(f"s_and_saveexec_b64 s[{sT2}:{sT3}], vcc")
    e(f"buffer_store_dword v{vT1}, v{vT0}, s[{SRD_O}:{SRD_O+3}], s{sT0} offen offset:32 sc1")
    e(f"s_mov_b64 exec, s[{sT2}:{sT3}]")
    e(f"v_and_b32 v{vT2}, 7, v0")
    e(f"v_lshlrev_b32 v{vT2}, 2, v{vT2}")
    e(f"s_add_u32 s92, s{SRD_O}, s{sL1}")
    e(f"s_addc_u32 s93, s{SRD_O+1}, 0")
    a.label(f"{name}_p3spin")
    e(f"s_load_dwordx4 s[88:91], s[92:93], 32 glc")
    e(f"s_load_dwordx4 s[96:99], s[92:93], 48 glc")
    e("s_waitcnt lgkmcnt(0)")
    e(f"s_xor_b32 s{sT0}, s88, s{sN1}")
    for r in (89, 90, 91, 96, 97, 98, 99):
        e(f"s_xor_b32 s{sT1}, s{r}, s{sN1}")
        e(f"s_or_b32 s{sT0}, s{sT0}, s{sT1}")
    e(f"s_cmp_eq_u32 s{sT0}, 0")
    e(f"s_cbranch_scc1 {name}_p3poll")
    e(f"s_sleep {sleep}")
    e(f"s_branch {name}_p3spin")
    a.label(f"{name}_p3poll")
    e(f"buffer_load_dword v{vT3}, v{vT2}, s[{SRD_O}:{SRD_O+3}], s{sL1} offen offset:32 sc1")
    e("s_waitcnt vmcnt(0)")
    e(f"v_cmp_ne_u32 vcc, s{sN1}, v{vT3}")
    a.nop(4)
    e("s_cmp_eq_u64 vcc, 0")
    e(f"s_cbranch_scc1 {name}_p3ok")
    e(f"s_branch {name}_p3spin")
    a.label(f"{name}_p3ok")
    e(f"v_cmp_eq_u32 vcc, 0, v0")
    e(f"s_and_saveexec_b64 s[{sT2}:{sT3}], vcc")
    e(f"buffer_store_dword v{vT1}, v{vT0}, s[{SRD_O}:{SRD_O+3}], s{sL1} offen sc0 sc1")
    e(f"s_mov_b64 exec, s[{sT2}:{sT3}]")
    a.label(f"{name}_p3w")
    e("s_barrier")
    if marks:
        ts_mark(a, 76); e(f"s_mov_b32 s{A.MK[2]}, s76")
    e(f"s_mov_b32 s{sPos}, 0")
    for s in range(3):
        issue_o(s, s)
    e("s_waitcnt vmcnt(0)")
    e(f"s_mov_b32 s{sPos}, 3")
    e(f"s_mov_b32 s{sCnt}, 0")
    for j in range(64):
        e(f"v_mov_b32 v{ACC+j}, 0")

    def stage(slot):
        e(f"s_waitcnt vmcnt({16 - (8 if 'w' in skip else 0) - (8 if 'o' in skip else 0)})")
        e("s_barrier")
        def rw(u):
            L = []
            for t in range(4):
                for half in range(2):
                    r = FW + 16*u + 4*t + 2*half
                    L.append(f"ds_read_b64_tr_b16 v[{r}:{r+1}], v{vWR+t} offset:{slot*16384 + (16*u+4*half)*256}")
            return L
        def mm(u):
            return [f"v_mfma_f32_32x32x16_bf16 v[{ACC+16*t}:{ACC+16*t+15}], v[{FW+16*u+4*t}:{FW+16*u+4*t+3}], v[{FO+16*slot+4*u}:{FO+16*slot+4*u+3}], v[{ACC+16*t}:{ACC+16*t+15}]" for t in range(4)]
        if "r" in skip:
            rw = lambda u: []
        if "m" in skip:
            mm = lambda u: ["s_nop 0"]*4
        for ln in rw(0):
            e(ln)
        if "w" not in skip:
            issue_w((slot + 3) & 3)
        if "o" not in skip:
            issue_o((slot + 3) & 3)
        e(f"s_add_u32 s{sPos}, s{sPos}, 1")
        e("s_waitcnt lgkmcnt(0)")
        fill = rw(1) + rw(2)
        for n, m in enumerate(mm(0)):
            e(m)
            for ln in fill[4*n:4*n+4]:
                e(ln)
        e("s_waitcnt lgkmcnt(8)")
        fill = rw(3)
        for n, m in enumerate(mm(1)):
            e(m)
            for ln in fill[2*n:2*n+2]:
                e(ln)
        e("s_waitcnt lgkmcnt(8)")
        for m in mm(2):
            e(m)
        e("s_waitcnt lgkmcnt(0)")
        for m in mm(3):
            e(m)

    a.label(f"{name}_p3loop")
    for slot in range(4):
        stage(slot)
    e(f"s_add_u32 s{sCnt}, s{sCnt}, 4")
    e(f"s_cmp_lt_u32 s{sCnt}, 16")
    e(f"s_cbranch_scc1 {name}_p3loop")
    if marks:
        ts_mark(a, 76); e(f"s_mov_b32 s{A.MK[3]}, s76")
    sTag = [52, 53, 54, 55]
    for k in range(4):
        e(f"s_bfe_u32 s{sTag[k]}, s{sN2}, {(8 << 16) | (8*k):#x}")
    e(f"s_mov_b32 s{sT2}, 0xffffff00")
    e(f"v_mov_b32 v{vT0}, s{sT2}")
    sSnd = [56, 57, 58]
    sRcv = [44, 45, 39]
    for k in range(1, 4):
        e(f"s_add_u32 s{sT0}, s{sHg}, {k}")
        e(f"s_and_b32 s{sT0}, s{sT0}, 3")
        e(f"s_lshl_b32 s{sT1}, s{sL2}, 2")
        e(f"s_add_u32 s{sT1}, s{sT1}, s{sT0}")
        e(f"s_lshl_b32 s{sT1}, s{sT1}, 2")
        e(f"s_add_u32 s{sT1}, s{sT1}, s{sHg}")
        e(f"s_lshl_b32 s{sT1}, s{sT1}, 2")
        e(f"s_add_u32 s{sT1}, s{sT1}, s{sWV}")
        e(f"s_lshl_b32 s{sT1}, s{sT1}, 12")
        e(f"s_add_u32 s{sSnd[k-1]}, s{sT1}, {X_OFF}")
        e(f"s_sub_u32 s{sT0}, s{sHg}, {k}")
        e(f"s_and_b32 s{sT0}, s{sT0}, 3")
        e(f"s_lshl_b32 s{sT1}, s{sL2}, 2")
        e(f"s_add_u32 s{sT1}, s{sT1}, s{sHg}")
        e(f"s_lshl_b32 s{sT1}, s{sT1}, 2")
        e(f"s_add_u32 s{sT1}, s{sT1}, s{sT0}")
        e(f"s_lshl_b32 s{sT1}, s{sT1}, 2")
        e(f"s_add_u32 s{sT1}, s{sT1}, s{sWV}")
        e(f"s_lshl_b32 s{sT1}, s{sT1}, 12")
        e(f"s_add_u32 s{sRcv[k-1]}, s{sT1}, {X_OFF}")
    e("s_waitcnt vmcnt(0)")
    for k in range(1, 4):
        for r in range(16):
            e(f"v_and_or_b32 v{ACC+16*k+r}, v{ACC+16*k+r}, v{vT0}, s{sTag[r & 3]}")
        for rq in range(4):
            e(f"buffer_store_dwordx4 v[{ACC+16*k+4*rq}:{ACC+16*k+4*rq+3}], v{vLane16}, s[{SRD_O}:{SRD_O+3}], s{sSnd[k-1]} offen offset:{rq*1024} sc0 sc1")
    IN = FW
    for k in range(3):
        e(f"s_add_u32 s{88+2*k}, s{SRD_O}, s{sRcv[k]}")
        e(f"s_addc_u32 s{89+2*k}, s{SRD_O+1}, 0")
    a.label(f"{name}_xspin")
    for k in range(3):
        e(f"s_load_dword s{96+k}, s[{88+2*k}:{89+2*k}], 3072 glc")
    e("s_waitcnt lgkmcnt(0)")
    e(f"s_xor_b32 s{sT0}, s96, s{sTag[0]}")
    for k in range(1, 3):
        e(f"s_xor_b32 s{sT1}, s{96+k}, s{sTag[0]}")
        e(f"s_or_b32 s{sT0}, s{sT0}, s{sT1}")
    e(f"s_and_b32 s{sT0}, s{sT0}, 0xff")
    e(f"s_cmp_eq_u32 s{sT0}, 0")
    e(f"s_cbranch_scc1 {name}_xpoll")
    e(f"s_sleep {sleep_x}")
    e(f"s_branch {name}_xspin")
    a.label(f"{name}_xpoll")
    for k in range(1, 4):
        for rq in range(4):
            d = IN + 16*(k-1) + 4*rq
            e(f"buffer_load_dwordx4 v[{d}:{d+3}], v{vLane16}, s[{SRD_O}:{SRD_O+3}], s{sRcv[k-1]} offen offset:{rq*1024} sc0 sc1")
    e("s_waitcnt vmcnt(0)")
    e(f"v_xor_b32 v{vT1}, s{sTag[0]}, v{IN}")
    for r in range(1, 48):
        e(f"v_xor_b32 v{vT2}, s{sTag[r & 3]}, v{IN+r}")
        e(f"v_or_b32 v{vT1}, v{vT1}, v{vT2}")
    e(f"v_and_b32 v{vT1}, 0xff, v{vT1}")
    e(f"v_cmp_ne_u32 vcc, 0, v{vT1}")
    a.nop(4)
    e("s_cmp_eq_u64 vcc, 0")
    e(f"s_cbranch_scc1 {name}_xgot")
    e(f"s_branch {name}_xspin")
    a.label(f"{name}_xgot")
    if marks:
        ts_mark(a, 76); e(f"s_mov_b32 s{A.MK[4]}, s76")
    for k in range(3):
        for r in range(16):
            e(f"v_add_f32 v{ACC+r}, v{ACC+r}, v{IN+16*k+r}")
    P = FO
    for sg in range(2):
        for i in range(4):
            e(f"v_cvt_pk_bf16_f32 v{P+4*sg+i}, v{ACC+8*sg+2*i}, v{ACC+8*sg+2*i+1}")
    e(f"v_and_b32 v{vT0}, 31, v0")
    e(f"v_lshlrev_b32 v{vT0}, 12, v{vT0}")
    e(f"v_lshrrev_b32 v{vT1}, 5, v0")
    e(f"v_lshlrev_b32 v{vT1}, 4, v{vT1}")
    e(f"v_add_u32 v{vT0}, v{vT0}, v{vT1}")
    e(f"s_lshl_b32 s{sT0}, s{sB}, 17")
    e(f"s_xor_b32 s{sT1}, s{sRole}, 1")
    e(f"s_lshl_b32 s{sT1}, s{sT1}, 11")
    e(f"s_add_u32 s{sT0}, s{sT0}, s{sT1}")
    e(f"s_and_b32 s{sT1}, s{sH}, 7")
    e(f"s_lshl_b32 s{sT1}, s{sT1}, 8")
    e(f"s_add_u32 s{sT0}, s{sT0}, s{sT1}")
    e(f"s_lshl_b32 s{sT1}, s{sHg}, 6")
    e(f"s_add_u32 s{sT0}, s{sT0}, s{sT1}")
    for sg in range(2):
        e(f"buffer_store_dwordx4 v[{P+4*sg}:{P+4*sg+3}], v{vT0}, s[{SRD_OUT}:{SRD_OUT+3}], s{sT0} offen offset:{32*sg}")
    e(f"s_lshl_b32 s{sT0}, s{sL2}, 8")
    e(f"s_add_u32 s{sT0}, s{sT0}, {G2_OFF}")
    e(f"v_mov_b32 v{vT1}, 0")
    e(f"v_mov_b32 v{vT2}, s{sN2}")
    e(f"v_cmp_eq_u32 vcc, 0, v0")
    e(f"s_and_saveexec_b64 s[{sT2}:{sT3}], vcc")
    e(f"buffer_store_dword v{vT2}, v{vT1}, s[{SRD_O}:{SRD_O+3}], s{sT0} offen sc0 sc1")
    e(f"s_mov_b64 exec, s[{sT2}:{sT3}]")
```

```python
import sys, os
sys.path.insert(0, os.path.dirname(__file__))
from asmlib import *
import oproj

HEADER = open("concat_heads__gqa_block_cached__mha_block_cached__near_ridge.s.ref").read().split("; Override launch")[0]
MAIN = "concat_heads__gqa_block_cached__mha_block_cached__near_ridge_kernel"

def build(which=("attn", "oproj"), **opt):
    a = Asm()
    launches = []
    descs = []
    body = Asm()
    if "attn" in which:
        import attn
        r = attn.gen_attn(body, MAIN, **opt.get("attn", {}))
        if "oproj" in which:
            launches.append(f"; @launch kernel={MAIN} grid=({r.get('grid', 512)},1,1) block=({r.get('threads', 256)},1,1) lds={r['lds']}")
        else:
            launches.append(f"; @launch grid=({r.get('grid', 512)},1,1) block=({r.get('threads', 256)},1,1) lds={r['lds']}")
        descs.append((MAIN, r))
    if "oproj" in which:
        o = dict(opt.get("oproj", {}))
        mod = oproj
        ver = o.pop("v", 2)
        if ver == 2:
            import oproj2 as mod
        elif ver == 3:
            import oproj3 as mod
        elif ver == 6:
            import oproj6 as mod
        elif ver == 7:
            import oproj7 as mod
        r = mod.gen_oproj(body, "oproj_kernel", **o)
        launches.append(f"; @launch kernel=oproj_kernel grid=(256,1,1) block=({r.get('threads', 256)},1,1) lds={r['lds']}")
        descs.append(("oproj_kernel", r))
    out = HEADER + "\n".join(launches) + "\n" + '.amdgcn_target "amdgcn-amd-amdhsa--gfx950"\n' + body.text()
    d = Asm()
    for name, r in descs:
        kernel_descriptor(d, name, r["nv"], r["ns"])
    return out + d.text()

if __name__ == "__main__":
    which = sys.argv[2].split(",") if len(sys.argv) > 2 else ("attn", "oproj")
    opt = eval(sys.argv[3]) if len(sys.argv) > 3 else {}
    open(sys.argv[1], "w").write(build(which, **opt))
```

```python
from asmlib import *
import math

OOB = 0x80000000
PAIR_OFF = 50 << 20
FLAG_OFF = 48 << 20
QWS_OFF = 32 << 20
C_SCALE = math.log2(math.e) / math.sqrt(128.0)

def f32bits(x):
    import struct
    return struct.unpack("<I", struct.pack("<f", x))[0]

sWV = 4
sRole, sH, sI, sB = 5, 6, 7, 3
SRD_X, SRD_W, SRD_K, SRD_V, SRD_O = 8, 12, 16, 20, 24
sT0, sT1, sT2, sT3 = 28, 29, 30, 31
sXoff, sWoff, sWslotF, sWslotR, sXslot, sCnt = 32, 33, 34, 35, 36, 37
sKVoff, sTask, sScale, sM0a, sM0b = 38, 39, 40, 41, 42
sOoff, sT4, sT5 = 43, 44, 45
sTS = 46
sPtr = 48
sStg = 80
sX, sDbg, sBs, sHq, sCls, sSig = 81, 82, 84, 85, 86, 87
sFlag, sNonce = 92, 93
sPairN, sPairP = 74, 72
sTbase, sTstep, SRD_T = 94, 95, 96
sLB, sW8, sBarT, sWid = 100, 101, 78, 79
vL16L, vBarA = 30, 29
vNon = 31
SRD_D = 88
NS = 102
MK = [60, 62, 64, 66, 68, 70, 72, 74]
TIMING = [False]
QMARKS = [False]
QSKIP = ['']
QORDER = [None]
LOOK = [2]
SLEEPQ = [8]
XM = [False]
ALT = [False]
ASYM = [False]
SPOLL = [False]
OPOL = ['']
GSLEEP = [1]
PSIG = [0]
SINGLE = [False]
GB = [0]
WT = [0]
INV = [True]
QST = ['sc0 sc1', 'sc0 sc1']
def mark(a, k):
    if TIMING[0]:
        ts_mark(a, MK[k])
vLane16 = 1
vT0, vT1, vT2, vT3 = 2, 3, 4, 5
vKD = 6
vVD = 10
vKR = 11
vVR = 19
vM, vL, vMx, vF = 23, 24, 25, 26
vA0, vA1 = 27, 28
vSt = 29
QOWN, QCUR, S, O, DEF = 32, 64, 96, 160, 224
vWD = DEF
vXD = DEF + 4
vWR = DEF + 8
vXR = DEF + 12
vWR2 = DEF + 16
vXR2 = DEF + 20
vTT, vTD = DEF + 24, DEF + 25
ACC = S
FW = O
FX = QCUR

LDS_RING0, LDS_RING1, LDS_MISC = 0, 32768, 65536
LDS_BYTES = 81920

def bar(a):
    e = a.e
    if not SINGLE[0]:
        e("s_barrier")
        return
    GB[0] += 1
    L = f"gb{GB[0]}"
    e(f"s_add_u32 s{sBarT}, s{sBarT}, 1")
    e("s_waitcnt lgkmcnt(0)")
    e(f"v_mov_b32 v{vSt+2-0 if False else vT3}, 1")
    e("s_mov_b64 exec, 1")
    e(f"ds_add_u32 v{vBarA}, v{vT3}")
    e("s_mov_b64 exec, -1")
    a.label(L)
    e(f"ds_read_b32 v{vT3}, v{vBarA}")
    e("s_waitcnt lgkmcnt(0)")
    e(f"v_readfirstlane_b32 s{sT3}, v{vT3}")
    e(f"s_lshl_b32 s{sT2}, s{sBarT}, 2")
    a.nop(2)
    e(f"s_cmp_ge_u32 s{sT3}, s{sT2}")
    e(f"s_cbranch_scc1 {L}_ok")
    if GSLEEP[0] >= 0:
        e(f"s_sleep {GSLEEP[0]}")
    e(f"s_branch {L}")
    a.label(L + "_ok")


def mfma(e, d, a, b, c=None):
    cc = f"v[{d}:{d+15}]" if c is None else c
    e(f"v_mfma_f32_32x32x16_bf16 v[{d}:{d+15}], v[{a}:{a+3}], v[{b}:{b+3}], {cc}")


def gen_prologue(a, name, timing):
    e = a.e
    e(f"s_cmp_ge_u32 s2, {256 if SINGLE[0] else 512}")
    e(f"s_cbranch_scc1 {name}_done")
    if timing:
        ts_begin(a, sTS)
    e(f"s_load_dwordx8 s[{sPtr}:{sPtr+7}], s[0:1], 0")
    e(f"s_load_dwordx8 s[{sPtr+8}:{sPtr+15}], s[0:1], 40")
    e(f"s_load_dwordx2 s[{sPtr+16}:{sPtr+17}], s[0:1], 96")
    e(f"s_load_dwordx2 s[{sPtr+18}:{sPtr+19}], s[0:1], 88")
    e(f"v_lshrrev_b32 v{vT0}, 6, v0")
    e("v_and_b32 v0, 63, v0")
    e(f"v_readfirstlane_b32 s{sWid}, v{vT0}")
    a.nop(3)
    if SINGLE[0]:
        e(f"s_lshr_b32 s{sRole}, s{sWid}, 2")
        e(f"s_and_b32 s{sWV}, s{sWid}, 3")
        e(f"s_mul_i32 s{sLB}, s{sRole}, {LDS_BYTES}")
    else:
        e(f"s_mov_b32 s{sWV}, s{sWid}")
        e(f"s_lshr_b32 s{sRole}, s2, 8")
        e(f"s_mov_b32 s{sLB}, 0")
    e(f"s_lshl_b32 s{sW8}, s{sWV}, 13")
    e(f"s_and_b32 s{sT0}, s2, 7")
    e(f"s_bfe_u32 s{sT1}, s2, 0x50003")
    e(f"s_lshr_b32 s{sH}, s{sT0}, 1")
    e(f"s_lshl_b32 s{sH}, s{sH}, 3")
    e(f"s_and_b32 s{sT2}, s{sT1}, 7")
    e(f"s_add_u32 s{sH}, s{sH}, s{sT2}")
    e(f"s_and_b32 s{sI}, s{sT0}, 1")
    e(f"s_lshl_b32 s{sI}, s{sI}, 2")
    e(f"s_lshr_b32 s{sT2}, s{sT1}, 3")
    e(f"s_add_u32 s{sI}, s{sI}, s{sT2}")
    e(f"s_mov_b32 s{sX}, s{sT0}")
    e(f"s_add_u32 s{sCls}, s{sH}, s{sI}")
    e(f"s_and_b32 s{sCls}, s{sCls}, 3")
    e(f"v_lshlrev_b32 v{vLane16}, 4, v0")
    e(f"v_add_u32 v{vL16L}, s{sLB}, v{vLane16}")
    if ASYM[0]:
        e(f"s_lshl_b32 s{sT2}, s{sRole}, 6")
        e(f"s_add_u32 s{sT2}, s{sT2}, {LDS_MISC + 12288}")
    else:
        e(f"s_add_u32 s{sT2}, s{sLB}, {LDS_MISC + 12288}")
    e(f"v_mov_b32 v{vBarA}, s{sT2}")
    e(f"s_mov_b32 s{sBarT}, 0")
    e(f"v_lshrrev_b32 v{vT0}, 4, v0")
    e(f"v_and_b32 v{vT1}, 15, v0")
    e(f"v_lshlrev_b32 v{vT2}, 8, v{vT0}")
    for jj in range(4):
        e(f"v_add_u32 v{vT3}, {4*jj}, v{vT0}")
        e(f"v_xor_b32 v{vT3}, v{vT3}, v{vT1}")
        e(f"v_lshlrev_b32 v{vT3}, 4, v{vT3}")
        e(f"v_add_u32 v{vKD+jj}, v{vT3}, v{vT2}")
    e(f"v_lshlrev_b32 v{vT3}, 2, v{vT0}")
    e(f"v_xor_b32 v{vT3}, v{vT3}, v{vT1}")
    e(f"v_lshlrev_b32 v{vT3}, 4, v{vT3}")
    e(f"v_add_u32 v{vVD}, v{vT3}, v{vT2}")
    e(f"v_lshlrev_b32 v{vT2}, 13, v{vT0}")
    e(f"v_add_u32 v{vWD}, v{vT3}, v{vT2}")
    for jj in range(1, 4):
        e(f"v_add_u32 v{vWD+jj}, {jj*(4*8192-1024)}, v{vWD}")
    e(f"v_lshrrev_b32 v{vT1}, 3, v0")
    e(f"v_and_b32 v{vT2}, 7, v0")
    for jj in range(4):
        e(f"v_add_u32 v{vT3}, {4*jj}, v{vT0}")
        e(f"v_and_b32 v{vT3}, 7, v{vT3}")
        e(f"v_xor_b32 v{vT3}, v{vT3}, v{vT2}")
        e(f"v_lshlrev_b32 v{vT3}, 4, v{vT3}")
        e(f"v_lshlrev_b32 v{vXD+jj}, 11, v{vT1}")
        e(f"v_add_u32 v{vXD+jj}, v{vXD+jj}, v{vT3}")
        c = 8*jj*2048 - jj*1024
        if c:
            e(f"v_add_u32 v{vXD+jj}, {c}, v{vXD+jj}")
    e("s_waitcnt lgkmcnt(0)")
    e(f"s_cmp_eq_u32 s{sRole}, 0")
    for k, srd in enumerate((SRD_X, SRD_K, SRD_V, SRD_W)):
        e(f"s_cselect_b32 s{srd}, s{sPtr+8+2*k}, s{sPtr+2*k}")
        e(f"s_cselect_b32 s{srd+1}, s{sPtr+9+2*k}, s{sPtr+1+2*k}")
    e(f"s_mov_b32 s{sT0}, {32*32*131072}")
    e(f"s_cselect_b32 s{SRD_K+2}, s{sT0}, {32*4*131072}")
    e(f"s_mov_b32 s{SRD_V+2}, s{SRD_K+2}")
    for srd in (SRD_X, SRD_K, SRD_V, SRD_W):
        e(f"s_and_b32 s{srd+1}, s{srd+1}, 0xffff")
        e(f"s_mov_b32 s{srd+3}, 0x20000")
    e(f"s_mov_b32 s{SRD_X+2}, {1024*1024*2}")
    e(f"s_mov_b32 s{SRD_W+2}, {1024*4096*2}")
    e(f"s_mov_b32 s{sDbg}, s{sPtr+18}")
    e(f"s_mov_b32 s{sDbg+1}, s{sPtr+19}")
    e(f"s_mov_b32 s{SRD_D}, s{sPtr+18}")
    e(f"s_and_b32 s{SRD_D+1}, s{sPtr+19}, 0xffff")
    e(f"s_mov_b32 s{SRD_D+2}, 256")
    e(f"s_mov_b32 s{SRD_D+3}, 0x20000")
    e(f"s_mov_b32 s{SRD_O}, s{sPtr+16}")
    e(f"s_and_b32 s{SRD_O+1}, s{sPtr+17}, 0xffff")
    e(f"s_mov_b32 s{SRD_O+2}, {64 << 20}")
    e(f"s_mov_b32 s{SRD_O+3}, 0x20000")
    e(f"s_lshl_b32 s{sT0}, s{sWV}, 3")
    e(f"s_add_u32 s{sB}, s{sT0}, s{sI}")
    e(f"s_lshl_b32 s{sXoff}, s{sB}, 16")
    e(f"s_lshl_b32 s{sWoff}, s{sWV}, 17")
    e(f"s_lshl_b32 s{sT0}, s{sH}, 8")
    e(f"s_add_u32 s{sWoff}, s{sWoff}, s{sT0}")
    e(f"v_and_b32 v{vT0}, 31, v0")
    e(f"v_lshrrev_b32 v{vT1}, 5, v0")
    e(f"v_bfe_u32 v{vT2}, v0, 1, 3")
    e(f"v_xor_b32 v{vT2}, v{vT2}, v{vT1}")
    e(f"v_lshlrev_b32 v{vT2}, 4, v{vT2}")
    e(f"v_lshlrev_b32 v{vT3}, 7, v{vT0}")
    e(f"v_add_u32 v{vXR}, v{vT2}, v{vT3}")
    e(f"s_add_u32 s{sT0}, s{sW8}, {LDS_RING1}")
    e(f"s_add_u32 s{sT0}, s{sT0}, s{sLB}")
    e(f"v_add_u32 v{vXR}, s{sT0}, v{vXR}")
    for u in range(1, 4):
        e(f"v_xor_b32 v{vXR+u}, {u*32}, v{vXR}")
    e(f"v_and_b32 v{vT2}, 15, v0")
    e(f"v_xor_b32 v{vT2}, v{vT2}, v{vT1}")
    e(f"v_lshlrev_b32 v{vT2}, 4, v{vT2}")
    e(f"v_lshlrev_b32 v{vT3}, 8, v{vT0}")
    e(f"v_add_u32 v{vKR}, v{vT2}, v{vT3}")
    e(f"s_add_u32 s{sT0}, s{sW8}, s{sLB}")
    e(f"v_add_u32 v{vKR}, s{sT0}, v{vKR}")
    for s in range(1, 8):
        e(f"v_xor_b32 v{vKR+s}, {s*32}, v{vKR}")
    e(f"v_bfe_u32 v{vT0}, v0, 2, 2")
    e(f"v_lshlrev_b32 v{vT2}, 6, v{vT0}")
    e(f"v_bfe_u32 v{vT3}, v0, 4, 1")
    e(f"v_lshlrev_b32 v{vT3}, 5, v{vT3}")
    e(f"v_add_u32 v{vT2}, v{vT2}, v{vT3}")
    e(f"v_and_b32 v{vT3}, 1, v0")
    e(f"v_lshlrev_b32 v{vT3}, 4, v{vT3}")
    e(f"v_add_u32 v{vT2}, v{vT2}, v{vT3}")
    e(f"v_bfe_u32 v{vT3}, v0, 1, 1")
    e(f"v_lshlrev_b32 v{vT3}, 3, v{vT3}")
    e(f"v_add_u32 v{vT2}, v{vT2}, v{vT3}")
    e(f"v_lshlrev_b32 v{vT3}, 3, v{vT1}")
    e(f"v_add_u32 v{vT3}, v{vT3}, v{vT0}")
    e(f"v_lshlrev_b32 v{vT3}, 8, v{vT3}")
    e(f"v_add_u32 v{vWR}, v{vT2}, v{vT3}")
    e(f"v_add_u32 v{vWR}, s{sLB}, v{vWR}")
    e(f"v_lshlrev_b32 v{vT3}, 2, v{vT1}")
    e(f"v_add_u32 v{vT3}, v{vT3}, v{vT0}")
    e(f"v_lshlrev_b32 v{vT3}, 8, v{vT3}")
    e(f"v_add_u32 v{vVR}, v{vT2}, v{vT3}")
    for t in range(1, 4):
        e(f"v_xor_b32 v{vWR+t}, {t*64}, v{vWR}")
    e(f"s_add_u32 s{sT0}, s{sW8}, s{sLB}")
    e(f"v_add_u32 v{vT2}, s{sT0}, v{vVR}")
    for k in range(4):
        e(f"s_add_u32 s{sT0}, s{sWV}, {k}")
        e(f"s_and_b32 s{sT0}, s{sT0}, 3")
        e(f"s_lshl_b32 s{sT0}, s{sT0}, 6")
        e(f"v_xor_b32 v{vVR+k}, s{sT0}, v{vT2}")
    e(f"s_add_u32 s{sM0a}, s{sW8}, s{sLB}")
    e(f"s_add_u32 s{sM0b}, s{sM0a}, {LDS_RING1}")
    e(f"s_mov_b32 s{sScale}, {f32bits(C_SCALE):#x}")


def gen_qproj(a, name, pol_x, pol_w, after_barrier15=None, after_x15=None):
    e = a.e
    WSLOT = [LDS_MISC, 0, 16384]

    def wt_setup():
        e(f"s_and_b32 s{sT2}, s{sH}, 7")
        e(f"v_lshrrev_b32 v{vT0}, 4, v0")
        e(f"v_lshlrev_b32 v{vT0}, 13, v{vT0}")
        e(f"v_and_b32 v{vT1}, 15, v0")
        e(f"v_lshlrev_b32 v{vT1}, 7, v{vT1}")
        e(f"v_add_u32 v{vT0}, v{vT0}, v{vT1}")
        e(f"s_lshl_b32 s{sT0}, s{sT2}, 6")
        e(f"v_add_u32 v{vT1}, s{sT0}, v0")
        e(f"v_bfe_u32 v{vT2}, v{vT1}, 5, 2")
        e(f"v_lshrrev_b32 v{vT3}, 7, v{vT1}")
        e(f"v_lshlrev_b32 v{vT3}, 3, v{vT3}")
        e(f"v_add_u32 v{vT2}, v{vT2}, v{vT3}")
        e(f"v_lshlrev_b32 v{vT2}, 5, v{vT2}")
        e(f"v_and_b32 v{vT1}, 31, v{vT1}")
        e(f"v_add_u32 v{vT1}, v{vT1}, v{vT2}")
        e(f"v_lshlrev_b32 v{vT1}, 11, v{vT1}")
        e(f"s_cmp_lt_u32 s{sWV}, 2")
        e(f"s_cselect_b64 vcc, -1, 0")
        e(f"v_cndmask_b32 v{vTT}, v{vT1}, v{vT0}, vcc")
        for k in range(4):
            e(f"s_cselect_b32 s{SRD_T+k}, s{SRD_W+k}, s{SRD_X+k}")
        e(f"s_mov_b32 s{SRD_T+3}, 0x20000")
        e(f"s_lshl_b32 s{sT0}, s{sT2}, 3")
        e(f"s_lshl_b32 s{sT1}, s{sWV}, 2")
        e(f"s_add_u32 s{sT0}, s{sT0}, s{sT1}")
        e(f"s_lshl_b32 s{sT0}, s{sT0}, 13")
        e(f"s_lshr_b32 s{sT1}, s{sX}, 1")
        e(f"s_lshl_b32 s{sT1}, s{sT1}, 11")
        e(f"s_add_u32 s{sT0}, s{sT0}, s{sT1}")
        e(f"s_and_b32 s{sT1}, s{sX}, 1")
        e(f"s_lshl_b32 s{sT1}, s{sT1}, 18")
        e(f"s_cmp_lt_u32 s{sWV}, 2")
        e(f"s_cselect_b32 s{sTbase}, s{sT0}, s{sT1}")
        e(f"s_mov_b32 s{sT0}, {64*8192}")
        e(f"s_cselect_b32 s{sTstep}, s{sT0}, 128")
        e(f"s_cmp_eq_u32 s{sWV}, 3")
        e(f"s_cselect_b32 s{sTbase}, {OOB:#x}, s{sTbase}")
        e(f"s_cselect_b32 s{sTstep}, 0, s{sTstep}")

    def wt_issue(tau_reg_or_imm):
        if isinstance(tau_reg_or_imm, int):
            e(f"s_mov_b32 s{sT2}, {tau_reg_or_imm}")
        else:
            e(f"s_add_u32 s{sT2}, s{sCnt}, {WT[0]}")
        e(f"s_mul_i32 s{sT3}, s{sT2}, s{sTstep}")
        e(f"s_add_u32 s{sT3}, s{sT3}, s{sTbase}")
        e(f"s_and_b32 s{sT0}, s{sT2}, 3")
        e(f"s_cmp_eq_u32 s{sT0}, s{sCls}")
        e(f"s_cselect_b32 s{sT3}, s{sT3}, {OOB:#x}")
        e(f"s_cmp_lt_u32 s{sT2}, 16")
        e(f"s_cselect_b32 s{sT3}, s{sT3}, {OOB:#x}")
        e(f"buffer_load_dword v{vTD}, v{vTT}, s[{SRD_T}:{SRD_T+3}], s{sT3} offen {pol_w}")

    def sigma():
        if QORDER[0] == "adv":
            e(f"s_add_u32 s{sT1}, s{sStg}, 1")
            e(f"s_sub_u32 s{sT1}, s{sT1}, s{sCls}")
            e(f"s_and_b32 s{sT1}, s{sT1}, 3")
            e(f"s_cmp_eq_u32 s{sT1}, 0")
            e(f"s_cselect_b32 s{sT0}, 1, 0")
            e(f"s_cmp_eq_u32 s{sT1}, 1")
            e(f"s_cselect_b32 s{sT0}, -1, s{sT0}")
            e(f"s_add_u32 s{sSig}, s{sStg}, s{sT0}")
            e(f"s_cmp_lt_u32 s{sSig}, 16")
            e(f"s_cselect_b32 s{sSig}, s{sSig}, s{sStg}")
        elif QORDER[0] == "rot4":
            e(f"s_add_u32 s{sT1}, s{sStg}, s{sCls}")
            e(f"s_and_b32 s{sT1}, s{sT1}, 3")
            e(f"s_andn2_b32 s{sSig}, s{sStg}, 3")
            e(f"s_or_b32 s{sSig}, s{sSig}, s{sT1}")
        elif QORDER[0] == "rot8":
            e(f"s_lshl_b32 s{sT1}, s{sCls}, 1")
            e(f"s_add_u32 s{sT1}, s{sT1}, s{sStg}")
            e(f"s_and_b32 s{sT1}, s{sT1}, 7")
            e(f"s_andn2_b32 s{sSig}, s{sStg}, 7")
            e(f"s_or_b32 s{sSig}, s{sSig}, s{sT1}")
        elif QORDER[0] == "rot16":
            e(f"s_lshl_b32 s{sT1}, s{sCls}, 2")
            e(f"s_add_u32 s{sT1}, s{sT1}, s{sStg}")
            e(f"s_and_b32 s{sSig}, s{sT1}, 15")
        else:
            e(f"s_mov_b32 s{sSig}, s{sStg}")

    def issue_w():
        sigma()
        e(f"s_lshl_b32 s{sT0}, s{sWV}, 12")
        e(f"s_add_u32 s{sT0}, s{sT0}, s{sLB}")
        e(f"s_add_u32 m0, s{sWslotF}, s{sT0}")
        e(f"s_lshl_b32 s{sT1}, s{sSig}, 19")
        e(f"s_add_u32 s{sT1}, s{sT1}, s{sWoff}")
        for jj in range(4):
            e(f"buffer_load_dwordx4 v{vWD+jj}, s[{SRD_W}:{SRD_W+3}], s{sT1} offen offset:{jj*1024} {pol_w} lds")
        e(f"s_cmp_eq_u32 s{sWslotF}, {LDS_MISC}")
        e(f"s_cselect_b32 s{sT0}, 0, {LDS_MISC}")
        e(f"s_cmp_eq_u32 s{sWslotF}, 0")
        e(f"s_cselect_b32 s{sWslotF}, 16384, s{sT0}")

    def issue_x(par):
        e(f"s_mov_b32 s{sT0}, s{sM0b}")
        if par is not None:
            e(f"s_add_u32 m0, s{sT0}, {par*4096}")
        else:
            e(f"s_add_u32 m0, s{sT0}, s{sXslot}")
        e(f"s_lshl_b32 s{sT1}, s{sSig}, 7")
        e(f"s_add_u32 s{sT1}, s{sT1}, s{sXoff}")
        for jj in range(4):
            e(f"buffer_load_dwordx4 v{vXD+jj}, s[{SRD_X}:{SRD_X+3}], s{sT1} offen offset:{jj*1024} {pol_x} lds")
        e(f"s_add_u32 s{sStg}, s{sStg}, 1")

    class Cap:
        def __init__(self): self.L = []
        def __call__(self, t=""): self.L.append(t)

    def capture(fn):
        nonlocal e
        keep = e
        c = Cap(); e = c
        fn()
        e = keep
        return c.L

    def stage(first, issue, hook_w=None, hook_x=None, last=False):
        nwait = 9 if (WT[0] and not first) else 8
        e(f"s_waitcnt vmcnt({nwait})" if not last else "s_waitcnt vmcnt(0)")
        if ASYM[0]:
            GB[0] += 1
            L = f"qb{GB[0]}"
            e(f"s_cmp_lg_u32 s{sRole}, 0")
            e(f"s_cbranch_scc1 {L}_g")
            e("s_barrier")
            e(f"s_branch {L}_d")
            a.label(L + "_g")
            bar(a)
            a.label(L + "_d")
        else:
            e("s_barrier")
        for t in range(4):
            e(f"v_add_u32 v{vWR2+t}, s{sWslotR}, v{vWR+t}")
        for u in range(4):
            e(f"v_add_u32 v{vXR2+u}, s{sXslot}, v{vXR+u}")
        if 'd' in QSKIP[0]:
            issue = False
        def rx():
            if 'r' in QSKIP[0]: return []
            return [f"ds_read_b128 v[{FX+4*u}:{FX+4*u+3}], v{vXR2+u}" for u in range(4)]
        def rw(u):
            L = []
            if 'r' in QSKIP[0]: return L
            for t in range(4):
                for half in range(2):
                    r = FW + 16*u + 4*t + 2*half
                    L.append(f"ds_read_b64_tr_b16 v[{r}:{r+1}], v{vWR2+t} offset:{(16*u+4*half)*256}")
            return L
        def mm(u):
            L = []
            for t in range(4):
                c = "0" if (first and u == 0) else f"v[{ACC+16*t}:{ACC+16*t+15}]"
                L.append(f"v_mfma_f32_32x32x16_bf16 v[{ACC+16*t}:{ACC+16*t+15}], v[{FW+16*u+4*t}:{FW+16*u+4*t+3}], v[{FX+4*u}:{FX+4*u+3}], {c}" if 'm' not in QSKIP[0] else "s_nop 0")
            return L
        for ln in rx() + rw(0):
            e(ln)
        if issue:
            issue_w()
            if WT[0]:
                wt_issue("cnt")
        if hook_w:
            hook_w()
        e("s_waitcnt lgkmcnt(0)")
        fill = rw(1) + rw(2)
        k = 0
        for m in mm(0):
            e(m)
            for ln in fill[k:k+4]:
                e(ln)
            k += 4
        xl = capture(lambda: issue_x(None)) if issue else []
        e("s_waitcnt lgkmcnt(8)")
        fill = rw(3)
        k = 0
        for m in mm(1):
            e(m)
            for ln in fill[k:k+2]:
                e(ln)
            k += 2
        e("s_waitcnt lgkmcnt(8)")
        k = 0
        per = (len(xl) + 3) // 4
        for m in mm(2):
            e(m)
            for ln in xl[k:k+per]:
                e(ln)
            k += per
        if hook_x:
            hook_x()
        e("s_waitcnt lgkmcnt(0)")
        adv = [f"s_cmp_eq_u32 s{sWslotR}, {LDS_MISC}",
               f"s_cselect_b32 s{sT0}, 0, {LDS_MISC}",
               f"s_cmp_eq_u32 s{sWslotR}, 0",
               f"s_cselect_b32 s{sWslotR}, 16384, s{sT0}",
               f"s_xor_b32 s{sXslot}, s{sXslot}, 4096"]
        k = 0
        for m in mm(3):
            e(m)
            for ln in adv[k:k+2]:
                e(ln)
            k += 2

    e(f"s_mov_b32 s{sWslotF}, {LDS_MISC}")
    e(f"s_mov_b32 s{sWslotR}, {LDS_MISC}")
    e(f"s_mov_b32 s{sXslot}, 0")
    e(f"s_mov_b32 s{sStg}, 0")
    e(f"s_mov_b32 s{sCnt}, 0")
    if WT[0]:
        wt_setup()
        for tau in range(WT[0]):
            wt_issue(tau)
    issue_w(); issue_x(0)
    issue_w(); issue_x(1)
    stage(True, True)
    e(f"s_mov_b32 s{sCnt}, 1")
    a.label(f"{name}_qloop")
    if QMARKS[0]:
        ts_mark(a, 76)
        for k, cnt in enumerate((1, 2, 4, 8, 12)):
            e(f"s_cmp_eq_u32 s{sCnt}, {cnt}")
            e(f"s_cselect_b32 s{MK[2+k]}, s76, s{MK[2+k]}")
    if ALT[0]:
        e(f"s_add_u32 s{sT0}, s{sCnt}, s{sRole}")
        e(f"s_bitcmp1_b32 s{sT0}, 0")
        e(f"s_cbranch_scc1 {name}_p1")
        e("s_setprio 0")
        e(f"s_branch {name}_p2")
        a.label(f"{name}_p1")
        e("s_setprio 1")
        a.label(f"{name}_p2")
    if PSIG[0]:
        e(f"s_cmp_lg_u32 s{sCnt}, {PSIG[0]}")
        e(f"s_cbranch_scc1 {name}_ps_d")
        e(f"s_or_b32 s{sT0}, s{sWV}, s{sRole}")
        e(f"s_cmp_lg_u32 s{sT0}, 0")
        e(f"s_cbranch_scc1 {name}_ps_d")
        e(f"s_and_b32 s{sT0}, s2, 255")
        e(f"s_lshl_b32 s{sT0}, s{sT0}, 8")
        e(f"s_add_u32 s{sT0}, s{sT0}, {PAIR_OFF}")
        e(f"s_mul_i32 s{sT1}, s{sPairN}, 0x9e3779b1")
        e(f"s_add_u32 s{sT1}, s{sT1}, 0x7f4a7c15")
        e(f"v_mov_b32 v{vT0}, 0")
        e(f"v_mov_b32 v{vT1}, s{sT1}")
        e(f"v_cmp_eq_u32 vcc, 0, v0")
        e(f"s_and_saveexec_b64 s[{sT2}:{sT3}], vcc")
        e(f"buffer_store_dword v{vT1}, v{vT0}, s[{SRD_O}:{SRD_O+3}], s{sT0} offen offset:16 sc0 sc1")
        e(f"s_mov_b64 exec, s[{sT2}:{sT3}]")
        a.label(f"{name}_ps_d")
    stage(False, True)
    e(f"s_add_u32 s{sCnt}, s{sCnt}, 1")
    e(f"s_cmp_lt_u32 s{sCnt}, 14")
    e(f"s_cbranch_scc1 {name}_qloop")
    stage(False, False)
    stage(False, False, hook_w=after_barrier15, hook_x=after_x15, last=True)
    a.nop(12)
    for s in range(8):
        t, sg = s >> 1, s & 1
        for i in range(4):
            src = ACC + 16*t + 8*sg + 2*i
            e(f"v_cvt_pk_bf16_f32 v{QOWN+4*s+i}, v{src}, v{src+1}")


def gen_qproj_pipe(a, name, pol_x, pol_w, hook_w=None, hook_x=None):
    e = a.e
    FXs = [QCUR, QCUR + 16]
    WR = [vWR2, vXR2]

    def sigma_of(reg):
        if QORDER[0] == "adv":
            return [f"s_add_u32 s{sT1}, s{reg}, 1", f"s_sub_u32 s{sT1}, s{sT1}, s{sCls}", f"s_and_b32 s{sT1}, s{sT1}, 3",
                    f"s_cmp_eq_u32 s{sT1}, 0", f"s_cselect_b32 s{sT0}, 1, 0", f"s_cmp_eq_u32 s{sT1}, 1",
                    f"s_cselect_b32 s{sT0}, -1, s{sT0}", f"s_add_u32 s{sSig}, s{reg}, s{sT0}",
                    f"s_cmp_lt_u32 s{sSig}, 16", f"s_cselect_b32 s{sSig}, s{sSig}, s{reg}"]
        return [f"s_mov_b32 s{sSig}, s{reg}"]

    sPW, sPX = sStg, sXslot
    def w_lines():
        L = sigma_of(sPW)
        L += [f"s_lshl_b32 s{sT0}, s{sWV}, 12", f"s_add_u32 s{sT0}, s{sT0}, s{sLB}", f"s_add_u32 m0, s{sWslotF}, s{sT0}",
              f"s_lshl_b32 s{sT1}, s{sSig}, 19", f"s_add_u32 s{sT1}, s{sT1}, s{sWoff}"]
        L += [f"buffer_load_dwordx4 v{vWD+jj}, s[{SRD_W}:{SRD_W+3}], s{sT1} offen offset:{jj*1024} {pol_w} lds" for jj in range(4)]
        L += [f"s_cmp_eq_u32 s{sWslotF}, {LDS_MISC}", f"s_cselect_b32 s{sT0}, 0, {LDS_MISC}", f"s_cmp_eq_u32 s{sWslotF}, 0",
              f"s_cselect_b32 s{sWslotF}, 16384, s{sT0}", f"s_add_u32 s{sPW}, s{sPW}, 1"]
        return L
    def x_lines(par):
        L = [f"s_add_u32 m0, s{sM0b}, {par*4096}", f"s_lshl_b32 s{sT1}, s{sSig}, 7", f"s_add_u32 s{sT1}, s{sT1}, s{sXoff}"]
        L += [f"buffer_load_dwordx4 v{vXD+jj}, s[{SRD_X}:{SRD_X+3}], s{sT1} offen offset:{jj*1024} {pol_x} lds" for jj in range(4)]
        return L
    def rw(u, par):
        L = []
        for t in range(4):
            for half in range(2):
                r = FW + 16*u + 4*t + 2*half
                L.append(f"ds_read_b64_tr_b16 v[{r}:{r+1}], v{WR[par]+t} offset:{(16*u+4*half)*256}")
        return L
    def rx(par):
        return [f"ds_read_b128 v[{FXs[par]+4*u}:{FXs[par]+4*u+3}], v{vXR+u} offset:{par*4096}" for u in range(4)]
    def mm(u, par):
        return [f"v_mfma_f32_32x32x16_bf16 v[{ACC+16*t}:{ACC+16*t+15}], v[{FW+16*u+4*t}:{FW+16*u+4*t+3}], v[{FXs[par]+4*u}:{FXs[par]+4*u+3}], v[{ACC+16*t}:{ACC+16*t+15}]" for t in range(4)]
    def wr_set(par):
        L = [f"v_add_u32 v{WR[par]+t}, s{sWslotR}, v{vWR+t}" for t in range(4)]
        L += [f"s_cmp_eq_u32 s{sWslotR}, {LDS_MISC}", f"s_cselect_b32 s{sT0}, 0, {LDS_MISC}", f"s_cmp_eq_u32 s{sWslotR}, 0",
              f"s_cselect_b32 s{sWslotR}, 16384, s{sT0}"]
        return L
    def weave(main, fill):
        per = -(-len(fill) // len(main))
        k = 0
        for m in main:
            e(m)
            for ln in fill[k:k+per]:
                e(ln)
            k += per

    e(f"s_mov_b32 s{sWslotF}, {LDS_MISC}")
    e(f"s_mov_b32 s{sWslotR}, {LDS_MISC}")
    e(f"s_mov_b32 s{sPW}, 0")
    e(f"s_mov_b32 s{sPX}, 0")
    for ln in w_lines() + x_lines(0) + w_lines() + x_lines(1) + w_lines():
        e(ln)
    for j in range(64):
        e(f"v_mov_b32 v{ACC+j}, 0")
    for ln in wr_set(0):
        e(ln)
    e("s_waitcnt vmcnt(12)")
    e("s_barrier")
    for ln in rx(0) + rw(0, 0) + rw(1, 0):
        e(ln)

    def stage(par, xiss, wiss, nwait, last=False, hw=None, hx=None):
        e("s_waitcnt lgkmcnt(8)")
        if hx:
            hx()
        xl = x_lines(par) if xiss else []
        weave(mm(0, par), rw(2, par) + xl[:3])
        e("s_waitcnt lgkmcnt(8)")
        weave(mm(1, par), rw(3, par) + xl[3:])
        if last:
            e("s_waitcnt lgkmcnt(8)")
            weave(mm(2, par), [])
            e("s_waitcnt lgkmcnt(0)")
            weave(mm(3, par), [])
            return
        for ln in wr_set(par ^ 1):
            e(ln)
        e(f"s_waitcnt vmcnt({nwait}) lgkmcnt(0)")
        e("s_barrier")
        if hw:
            hw()
        wl = w_lines() if wiss else []
        cut = len(wl) - 9 if wiss else 0
        weave(mm(2, par), rx(par ^ 1) + rw(0, par ^ 1) + wl[:cut // 2])
        weave(mm(3, par), rw(1, par ^ 1) + wl[cut // 2:])

    e(f"s_mov_b32 s{sCnt}, 0")
    a.label(f"{name}_qloop")
    if PSIG[0]:
        e(f"s_cmp_lg_u32 s{sCnt}, {PSIG[0] & ~1}")
        e(f"s_cbranch_scc1 {name}_ps_d")
        e(f"s_or_b32 s{sT0}, s{sWV}, s{sRole}")
        e(f"s_cmp_lg_u32 s{sT0}, 0")
        e(f"s_cbranch_scc1 {name}_ps_d")
        e(f"s_and_b32 s{sT0}, s2, 255")
        e(f"s_lshl_b32 s{sT0}, s{sT0}, 8")
        e(f"s_add_u32 s{sT0}, s{sT0}, {PAIR_OFF}")
        e(f"s_mul_i32 s{sT1}, s{sPairN}, 0x9e3779b1")
        e(f"s_add_u32 s{sT1}, s{sT1}, 0x7f4a7c15")
        e(f"v_mov_b32 v{vT0}, 0")
        e(f"v_mov_b32 v{vT1}, s{sT1}")
        e(f"v_cmp_eq_u32 vcc, 0, v0")
        e(f"s_and_saveexec_b64 s[{sT2}:{sT3}], vcc")
        e(f"buffer_store_dword v{vT1}, v{vT0}, s[{SRD_O}:{SRD_O+3}], s{sT0} offen offset:16 sc0 sc1")
        e(f"s_mov_b64 exec, s[{sT2}:{sT3}]")
        a.label(f"{name}_ps_d")
    stage(0, True, True, 8)
    stage(1, True, True, 8)
    e(f"s_add_u32 s{sCnt}, s{sCnt}, 2")
    e(f"s_cmp_lt_u32 s{sCnt}, 12")
    e(f"s_cbranch_scc1 {name}_qloop")
    stage(0, True, True, 8)
    stage(1, True, False, 8)
    stage(0, False, False, 0, hw=hook_w)
    stage(1, False, False, 0, last=True, hx=hook_x)
    a.nop(12)
    for s in range(8):
        t, sg = s >> 1, s & 1
        for i in range(4):
            src = ACC + 16*t + 8*sg + 2*i
            e(f"v_cvt_pk_bf16_f32 v{QOWN+4*s+i}, v{src}, v{src+1}")


def issue_tile(e, srd, slot_reg, off_reg, imm, is_k, pol):
    e(f"s_mov_b32 m0, s{slot_reg}")
    if imm:
        e(f"s_add_u32 s{sT0}, s{off_reg}, {imm}")
    else:
        e(f"s_mov_b32 s{sT0}, s{off_reg}")
    for half in range(2):
        for jj in range(4):
            v = vKD + jj if is_k else vVD
            e(f"buffer_load_dwordx4 v{v}, s[{srd}:{srd+3}], s{sT0} offen offset:{jj*1024} {pol} lds")
        if half == 0:
            e(f"s_add_u32 m0, s{slot_reg}, 4096")
            e(f"s_add_u32 s{sT0}, s{sT0}, 4096")


def k_tile(e, T, slot, hook, early=None):
    FK = O + 32*(T & 1)
    if early:
        e("s_waitcnt vmcnt(0)")
        early()
    else:
        e("s_waitcnt vmcnt(8)")
    for s in range(8):
        e(f"ds_read_b128 v[{FK+4*s}:{FK+4*s+3}], v{vKR+s} offset:{slot*LDS_RING1}")
    e("s_waitcnt lgkmcnt(0)")
    hook()
    for s in range(8):
        mfma(e, S+16*T, FK+4*s, QCUR+4*s, "0" if s == 0 else None)


def v_tile(e, T, slot, hook, early=None):
    FV = S + 32
    if early:
        e("s_waitcnt vmcnt(0)")
        early()
    else:
        e("s_waitcnt vmcnt(8)")
    for k in range(4):
        for u in range(2):
            for half in range(2):
                r = FV + 8*k + 4*u + 2*half
                e(f"ds_read_b64_tr_b16 v[{r}:{r+1}], v{vVR+k} offset:{slot*LDS_RING1 + (16*u+8*half)*256}")
    e("s_waitcnt lgkmcnt(0)")
    hook()
    for u in range(2):
        for k in range(4):
            mfma(e, O+16*k, FV+8*k+4*u, S+8*T+4*u, "0" if (T == 0 and u == 0) else None)


def softmax(a, nreg=64):
    e = a.e
    e(f"v_max3_f32 v{vMx}, v{S}, v{S+1}, v{S+2}")
    e(f"v_max3_f32 v{vT0}, v{S+3}, v{S+4}, v{S+5}")
    k = 6
    tgt = [vMx, vT0]
    n = 0
    while k + 1 < nreg:
        e(f"v_max3_f32 v{tgt[n&1]}, v{tgt[n&1]}, v{S+k}, v{S+k+1}")
        k += 2; n += 1
    e(f"v_max_f32 v{vMx}, v{vMx}, v{vT0}")
    e(f"v_mov_b32 v{vT0}, v{vMx}")
    a.nop(2)
    e(f"v_permlane32_swap_b32 v{vMx}, v{vT0}")
    a.nop(1)
    e(f"v_max_f32 v{vM}, v{vMx}, v{vT0}")
    e(f"v_mul_f32 v{vF}, s{sScale}, v{vM}")
    for k in range(nreg):
        e(f"v_fma_f32 v{S+k}, v{S+k}, s{sScale}, -v{vF}")
    for k in range(nreg):
        e(f"v_exp_f32 v{S+k}, v{S+k}")
    e(f"v_add_f32 v{vL}, v{S}, v{S+1}")
    e(f"v_add_f32 v{vT0}, v{S+2}, v{S+3}")
    for k in range(4, nreg, 2):
        e(f"v_add_f32 v{vL}, v{vL}, v{S+k}")
        e(f"v_add_f32 v{vT0}, v{vT0}, v{S+k+1}")
    for k in range(nreg//2):
        e(f"v_cvt_pk_bf16_f32 v{S+k}, v{S+2*k}, v{S+2*k+1}")
    e(f"v_add_f32 v{vL}, v{vL}, v{vT0}")
    e(f"v_mov_b32 v{vT0}, v{vL}")
    a.nop(2)
    e(f"v_permlane32_swap_b32 v{vL}, v{vT0}")
    a.nop(1)
    e(f"v_add_f32 v{vL}, v{vL}, v{vT0}")


def q_broadcast(a, name, tag, owner_reg_or_imm):
    e = a.e
    e(f"s_cmp_lg_u32 s{sWV}, {owner_reg_or_imm}")
    e(f"s_cbranch_scc1 {name}_{tag}_skip")
    e(f"v_add_u32 v{vA0}, {LDS_MISC}, v{vL16L}")
    for s in range(8):
        e(f"ds_write_b128 v{vA0}, v[{QOWN+4*s}:{QOWN+4*s+3}] offset:{s*1024}")
    e("s_waitcnt lgkmcnt(0)")
    a.label(f"{name}_{tag}_skip")
    bar(a)
    e(f"v_add_u32 v{vA0}, {LDS_MISC}, v{vL16L}")
    for s in range(8):
        e(f"ds_read_b128 v[{QCUR+4*s}:{QCUR+4*s+3}], v{vA0} offset:{s*1024}")
    e("s_waitcnt lgkmcnt(0)")


def gen_m1(a, name, pol):
    e = a.e
    sNext = sT5
    G = S + 32
    a.label(f"{name}_task")
    e(f"s_add_u32 s{sNext}, s{sKVoff}, s{sOoff}")
    e(f"s_cmp_lt_u32 s{sTask}, 3")
    e(f"s_cselect_b32 s{sNext}, s{sNext}, {OOB:#x}")
    slotreg = [sM0a, sM0b]
    none = lambda: None
    for T in range(4):
        if LOOK[0] == 2:
            if T < 2:
                hook = lambda T=T: issue_tile(e, SRD_K, slotreg[T & 1], sKVoff, (T+2)*32768, True, pol)
            else:
                hook = lambda T=T: issue_tile(e, SRD_V, slotreg[T & 1], sKVoff, (T-2)*32768, False, pol)
            k_tile(e, T, T & 1, hook)
        else:
            if T < 3:
                early = lambda T=T: issue_tile(e, SRD_K, slotreg[(T+1) & 1], sKVoff, (T+1)*32768, True, pol)
            else:
                early = lambda: issue_tile(e, SRD_V, sM0a, sKVoff, 0, False, pol)
            k_tile(e, T, T & 1, none, early)
    softmax(a)
    e(f"s_cmp_ge_u32 s{sTask}, 3")
    e(f"s_cbranch_scc1 {name}_noq")
    e(f"s_add_u32 s{sT4}, s{sTask}, 1")
    q_broadcast(a, name, "qn", f"s{sT4}")
    a.label(f"{name}_noq")
    for T in range(4):
        if LOOK[0] == 2:
            if T < 2:
                hook = lambda T=T: issue_tile(e, SRD_V, slotreg[T & 1], sKVoff, (T+2)*32768, False, pol)
            elif T == 2:
                hook = lambda: issue_tile(e, SRD_K, sM0a, sNext, 0, True, pol)
            else:
                hook = lambda: None
            v_tile(e, T, T & 1, hook)
        else:
            if T < 3:
                early = lambda T=T: issue_tile(e, SRD_V, slotreg[(T+1) & 1], sKVoff, (T+1)*32768, False, pol)
            else:
                early = lambda: issue_tile(e, SRD_K, sM0a, sNext, 0, True, pol)
            v_tile(e, T, T & 1, none, early)
    e(f"v_and_b32 v{vT0}, 31, v0")
    e(f"v_lshlrev_b32 v{vT0}, 3, v{vT0}")
    e(f"v_add_u32 v{vT0}, {LDS_MISC + 8192}, v{vT0}")
    e(f"v_add_u32 v{vT0}, s{sLB}, v{vT0}")
    e(f"s_lshl_b32 s{sT0}, s{sWV}, 8")
    e(f"v_add_u32 v{vA0}, s{sT0}, v{vT0}")
    e(f"v_add_u32 v{vA1}, s{sM0b}, v{vLane16}")
    e(f"ds_write_b32 v{vA0}, v{vM}")
    e(f"ds_write_b32 v{vA0}, v{vL} offset:4")
    a.nop(10)
    for k in (1, 2):
        for j in range(4):
            e(f"ds_write_b128 v{vA1}, v[{O+16*k+4*j}:{O+16*k+4*j+3}] offset:{(k-1)*4096 + j*1024}")
    e("s_waitcnt lgkmcnt(0)")
    bar(a)
    for k in range(4):
        e(f"s_sub_u32 s{sT0}, s{sWV}, {k}")
        e(f"s_and_b32 s{sT0}, s{sT0}, 3")
        e(f"s_lshl_b32 s{sT0}, s{sT0}, 8")
        e(f"v_add_u32 v{vA0}, s{sT0}, v{vT0}")
        e(f"ds_read_b64 v[{G+2*k}:{G+2*k+1}], v{vA0}")
    TI = S
    for k in (1, 2):
        e(f"s_sub_u32 s{sT0}, s{sWV}, {k}")
        e(f"s_and_b32 s{sT0}, s{sT0}, 3")
        e(f"s_lshl_b32 s{sT0}, s{sT0}, 13")
        e(f"s_add_u32 s{sT0}, s{sT0}, {LDS_RING1 + (k-1)*4096}")
        e(f"v_add_u32 v{vA0}, s{sT0}, v{vL16L}")
        for j in range(4):
            e(f"ds_read_b128 v[{TI+16*(k-1)+4*j}:{TI+16*(k-1)+4*j+3}], v{vA0} offset:{j*1024}")
    e("s_waitcnt lgkmcnt(8)")
    e(f"v_max3_f32 v{vMx}, v{G}, v{G+2}, v{G+4}")
    e(f"v_max_f32 v{vMx}, v{vMx}, v{G+6}")
    e(f"v_mul_f32 v{vMx}, s{sScale}, v{vMx}")
    for k in range(4):
        e(f"v_fma_f32 v{G+2*k}, v{G+2*k}, s{sScale}, -v{vMx}")
    for k in range(4):
        e(f"v_exp_f32 v{G+2*k}, v{G+2*k}")
    a.nop(1)
    e(f"v_mul_f32 v{vF}, v{G}, v{G+1}")
    for k in range(1, 4):
        e(f"v_fma_f32 v{vF}, v{G+2*k}, v{G+2*k+1}, v{vF}")
    e(f"v_rcp_f32 v{vF}, v{vF}")
    a.nop(1)
    for k in range(4):
        e(f"v_mul_f32 v{G+2*k}, v{G+2*k}, v{vF}")
    for j in range(16):
        e(f"v_mul_f32 v{O+j}, v{O+j}, v{G}")
    e("s_waitcnt lgkmcnt(0)")
    for k in (1, 2):
        for j in range(16):
            e(f"v_fma_f32 v{O+j}, v{TI+16*(k-1)+j}, v{G+2*k}, v{O+j}")
    bar(a)
    for j in range(4):
        e(f"ds_write_b128 v{vA1}, v[{O+48+4*j}:{O+48+4*j+3}] offset:{j*1024}")
    e("s_waitcnt lgkmcnt(0)")
    bar(a)
    e(f"s_sub_u32 s{sT0}, s{sWV}, 3")
    e(f"s_and_b32 s{sT0}, s{sT0}, 3")
    e(f"s_lshl_b32 s{sT0}, s{sT0}, 13")
    e(f"s_add_u32 s{sT0}, s{sT0}, {LDS_RING1}")
    e(f"v_add_u32 v{vA0}, s{sT0}, v{vL16L}")
    for j in range(4):
        e(f"ds_read_b128 v[{TI+4*j}:{TI+4*j+3}], v{vA0} offset:{j*1024}")
    e("s_waitcnt lgkmcnt(0)")
    bar(a)
    if LOOK[0] == 2:
        issue_tile(e, SRD_K, sM0b, sNext, 32768, True, pol)
    for j in range(16):
        e(f"v_fma_f32 v{O+j}, v{TI+j}, v{G+6}, v{O+j}")
    for k in range(24):
        e(f"v_mov_b32 v{DEF+k}, v{DEF+8+k}")
    for j in range(8):
        e(f"v_cvt_pk_bf16_f32 v{DEF+24+j}, v{O+2*j}, v{O+2*j+1}")
    if TIMING[0]:
        ts_mark(a, 76)
        for k in range(4):
            e(f"s_cmp_eq_u32 s{sTask}, {k}")
            e(f"s_cselect_b32 s{MK[2+k]}, s76, s{MK[2+k]}")
    e(f"s_mov_b32 s{sKVoff}, s{sNext}")
    e(f"s_add_u32 s{sTask}, s{sTask}, 1")
    e(f"s_cmp_lt_u32 s{sTask}, 4")
    e(f"s_cbranch_scc1 {name}_task")
    e("s_waitcnt vmcnt(0)")
    e(f"s_xor_b32 s{sT0}, s{sRole}, 1")
    e(f"s_lshl_b32 s{sT0}, s{sT0}, 23")
    e(f"s_lshl_b32 s{sT1}, s{sI}, 18")
    e(f"s_add_u32 s{sT0}, s{sT0}, s{sT1}")
    e(f"s_lshl_b32 s{sT1}, s{sH}, 13")
    e(f"s_add_u32 s{sT0}, s{sT0}, s{sT1}")
    e(f"s_lshl_b32 s{sT1}, s{sWV}, 11")
    e(f"s_add_u32 s{sT0}, s{sT0}, s{sT1}")
    for r in range(4):
        for sg in range(2):
            e(f"buffer_store_dwordx4 v[{DEF+8*r+4*sg}:{DEF+8*r+4*sg+3}], v{vLane16}, s[{SRD_O}:{SRD_O+3}], s{sT0} offen offset:{sg*1024} {OPOL[0]}")
        if r < 3:
            e(f"s_add_u32 s{sT0}, s{sT0}, {8*262144}")


def gen_touch(a, pol):
    e = a.e
    vD = S
    e(f"s_bfe_u32 s{sT2}, s2, 0x50003")
    e(f"v_lshrrev_b32 v{vT0}, 4, v0")
    e(f"v_lshlrev_b32 v{vT0}, 13, v{vT0}")
    e(f"v_and_b32 v{vT1}, 15, v0")
    e(f"v_lshlrev_b32 v{vT1}, 7, v{vT1}")
    e(f"v_add_u32 v{vT0}, v{vT0}, v{vT1}")
    e(f"s_lshl_b32 s{sT0}, s{sWV}, 5")
    e(f"s_add_u32 s{sT0}, s{sT0}, s{sT2}")
    e(f"s_lshl_b32 s{sT0}, s{sT0}, 15")
    e(f"s_lshr_b32 s{sT1}, s{sX}, 1")
    e(f"s_lshl_b32 s{sT1}, s{sT1}, 11")
    e(f"s_add_u32 s{sT0}, s{sT0}, s{sT1}")
    e(f"s_add_u32 s{sT1}, s{sT0}, {128*4*8192}")
    e(f"s_lshl_b32 s{sT3}, s{sWV}, 5")
    e(f"s_add_u32 s{sT3}, s{sT3}, s{sT2}")
    e(f"s_and_b32 s{sT2}, s{sT3}, 7")
    e(f"s_lshl_b32 s{sT2}, s{sT2}, 6")
    e(f"v_add_u32 v{vT1}, s{sT2}, v0")
    e(f"v_bfe_u32 v{vT2}, v{vT1}, 5, 2")
    e(f"v_lshrrev_b32 v{vT3}, 7, v{vT1}")
    e(f"v_lshlrev_b32 v{vT3}, 3, v{vT3}")
    e(f"v_add_u32 v{vT2}, v{vT2}, v{vT3}")
    e(f"v_lshlrev_b32 v{vT2}, 5, v{vT2}")
    e(f"v_and_b32 v{vT1}, 31, v{vT1}")
    e(f"v_add_u32 v{vT1}, v{vT1}, v{vT2}")
    e(f"v_lshlrev_b32 v{vT1}, 11, v{vT1}")
    e(f"s_lshr_b32 s{sT3}, s{sT3}, 3")
    e(f"s_lshl_b32 s{sT3}, s{sT3}, 7")
    e(f"s_and_b32 s{sT2}, s{sX}, 1")
    e(f"s_lshl_b32 s{sT2}, s{sT2}, 18")
    e(f"s_add_u32 s{sT3}, s{sT3}, s{sT2}")
    e(f"buffer_load_dword v{vD}, v{vT0}, s[{SRD_W}:{SRD_W+3}], s{sT0} offen {pol}")
    e(f"buffer_load_dword v{vD+1}, v{vT1}, s[{SRD_X}:{SRD_X+3}], s{sT3} offen {pol}")
    e(f"buffer_load_dword v{vD+2}, v{vT0}, s[{SRD_W}:{SRD_W+3}], s{sT1} offen {pol}")


def poll_counter(a, label, off_reg, mask, shift_reg, target, bound, sleep=8):
    e = a.e
    e(f"v_mov_b32 v{vT0}, s{off_reg}")
    if bound:
        e(f"s_mov_b32 s{sT3}, {bound}")
    a.label(label)
    e(f"buffer_load_dword v{vT1}, v{vT0}, s[{SRD_D}:{SRD_D+3}], 0 offen sc1")
    e("s_waitcnt vmcnt(0)")
    e(f"v_readfirstlane_b32 s{sT1}, v{vT1}")
    a.nop(3)
    if shift_reg is not None:
        e(f"s_lshr_b32 s{sT1}, s{sT1}, s{shift_reg}")
    e(f"s_and_b32 s{sT1}, s{sT1}, {mask}")
    e(f"s_cmp_ge_u32 s{sT1}, {target}")
    e(f"s_cbranch_scc1 {label}_ok")
    if bound:
        e(f"s_sub_u32 s{sT3}, s{sT3}, 1")
        e(f"s_cmp_eq_u32 s{sT3}, 0")
        e(f"s_cbranch_scc1 {label}_ok")
    e(f"s_sleep {sleep}")
    e(f"s_branch {label}")
    a.label(label + "_ok")


def signal(a, label, off_reg, val_reg_or_imm):
    e = a.e
    e(f"s_cmp_lg_u32 s{sWV}, 0")
    e(f"s_cbranch_scc1 {label}")
    e(f"v_mov_b32 v{vT0}, s{off_reg}")
    e(f"v_mov_b32 v{vT1}, {val_reg_or_imm}")
    e(f"v_cmp_eq_u32 vcc, 0, v0")
    e(f"s_and_saveexec_b64 s[{sT2}:{sT3}], vcc")
    e(f"buffer_atomic_add v{vT1}, v{vT0}, s[{SRD_D}:{SRD_D+3}], 0 offen sc1")
    e(f"s_mov_b64 exec, s[{sT2}:{sT3}]")
    a.label(label)


def gen_flash(a, name, pol):
    e = a.e
    FK = [QOWN, DEF]
    sNextK, sNextV = sT4, sT5
    e(f"s_lshl_b32 s{sT0}, s{sB}, 5")
    e(f"s_add_u32 s{sT0}, s{sT0}, s{sH}")
    e(f"s_lshl_b32 s{sT0}, s{sT0}, 13")
    e(f"s_add_u32 s{sT0}, s{sT0}, {QWS_OFF}")
    for s in range(8):
        if s == 4:
            e(f"s_add_u32 s{sT0}, s{sT0}, 4096")
        e(f"buffer_store_dwordx4 v[{QOWN+4*s}:{QOWN+4*s+3}], v{vLane16}, s[{SRD_O}:{SRD_O+3}], s{sT0} offen offset:{(s%4)*1024} {QST[0]}")
    e("s_waitcnt vmcnt(0)")
    if XM[0]: mark(a, 3)
    bar(a)
    e(f"v_readfirstlane_b32 s{sNonce}, v{vNon}")
    a.nop(3)
    e(f"s_mul_i32 s{sNonce}, s{sNonce}, 0x9e3779b1")
    e(f"s_add_u32 s{sNonce}, s{sNonce}, 0x7f4a7c15")
    e(f"s_cmp_lg_u32 s{sWV}, 0")
    e(f"s_cbranch_scc1 {name}_qwait")
    e(f"s_and_b32 s{sT0}, s{sH}, 3")
    e(f"s_lshl_b32 s{sT0}, s{sT0}, 2")
    e(f"s_add_u32 s{sT0}, s{sT0}, s{sFlag}")
    e(f"s_add_u32 s{sT0}, s{sT0}, 16")
    e(f"v_mov_b32 v{vT0}, 0")
    e(f"v_mov_b32 v{vT1}, s{sNonce}")
    e(f"v_cmp_eq_u32 vcc, 0, v0")
    e(f"s_and_saveexec_b64 s[{sT2}:{sT3}], vcc")
    e(f"buffer_store_dword v{vT1}, v{vT0}, s[{SRD_O}:{SRD_O+3}], s{sT0} offen sc0 sc1")
    e(f"s_mov_b64 exec, s[{sT2}:{sT3}]")
    if SPOLL[0]:
        e(f"s_add_u32 s56, s{SRD_O}, s{sFlag}")
        e(f"s_addc_u32 s57, s{SRD_O+1}, 0")
        a.label(f"{name}_spinq")
        e(f"s_load_dwordx4 s[52:55], s[56:57], 16 glc")
        e("s_waitcnt lgkmcnt(0)")
        e(f"s_xor_b32 s{sT0}, s52, s{sNonce}")
        for k in range(1, 4):
            e(f"s_xor_b32 s{sT1}, s{52+k}, s{sNonce}")
            e(f"s_or_b32 s{sT0}, s{sT0}, s{sT1}")
        e(f"s_cmp_eq_u32 s{sT0}, 0")
        e(f"s_cbranch_scc1 {name}_pollq")
        e("s_sleep 2")
        e(f"s_branch {name}_spinq")
    a.label(f"{name}_pollq")
    e(f"buffer_load_dwordx4 v[{S}:{S+3}], v{vT0}, s[{SRD_O}:{SRD_O+3}], s{sFlag} offen offset:16 sc0 sc1")
    e("s_waitcnt vmcnt(0)")
    for k in range(4):
        e(f"v_xor_b32 v{S+k}, s{sNonce}, v{S+k}")
    e(f"v_or3_b32 v{S}, v{S}, v{S+1}, v{S+2}")
    e(f"v_or_b32 v{S}, v{S}, v{S+3}")
    a.nop(1)
    e(f"v_readfirstlane_b32 s{sT1}, v{S}")
    a.nop(3)
    e(f"s_cmp_eq_u32 s{sT1}, 0")
    e(f"s_cbranch_scc1 {name}_pollq_ok")
    e(f"s_sleep {SLEEPQ[0]}")
    e(f"s_branch {name}_pollq")
    a.label(f"{name}_pollq_ok")
    if XM[0]: mark(a, 4)
    e(f"v_cmp_eq_u32 vcc, 0, v0")
    e(f"s_and_saveexec_b64 s[{sT2}:{sT3}], vcc")
    e(f"buffer_store_dword v{vT1}, v{vT0}, s[{SRD_O}:{SRD_O+3}], s{sFlag} offen sc0 sc1")
    e(f"s_mov_b64 exec, s[{sT2}:{sT3}]")
    if INV[0]:
        e("buffer_inv sc1")
    e("s_waitcnt vmcnt(0)")
    if XM[0]: mark(a, 5)
    a.label(f"{name}_qwait")
    bar(a)
    mark(a, 2)
    e(f"s_lshl_b32 s{sT0}, s{sBs}, 5")
    e(f"s_lshl_b32 s{sT1}, s{sHq}, 2")
    e(f"s_add_u32 s{sT1}, s{sT1}, s{sWV}")
    e(f"s_add_u32 s{sT0}, s{sT0}, s{sT1}")
    e(f"s_lshl_b32 s{sT0}, s{sT0}, 13")
    e(f"s_add_u32 s{sT0}, s{sT0}, {QWS_OFF}")
    for s in range(8):
        if s == 4:
            e(f"s_add_u32 s{sT0}, s{sT0}, 4096")
        e(f"buffer_load_dwordx4 v[{QCUR+4*s}:{QCUR+4*s+3}], v{vLane16}, s[{SRD_O}:{SRD_O+3}], s{sT0} offen offset:{(s%4)*1024} {QST[1]}")
    issue_tile(e, SRD_K, sM0a, sKVoff, 0, True, pol)
    issue_tile(e, SRD_V, sM0b, sKVoff, 0, False, pol)
    for s in range(8):
        e(f"v_subrev_u32 v{vKR+s}, s{sW8}, v{vKR+s}")
    e(f"s_lshl_b32 s{sT0}, s{sWV}, 6")
    e(f"v_subrev_u32 v{vT2}, s{sW8}, v{vVR}")
    e(f"v_xor_b32 v{vT2}, s{sT0}, v{vT2}")
    for k in range(4):
        e(f"v_xor_b32 v{vVR+k}, {k*64}, v{vT2}")
    for j in range(64):
        e(f"v_mov_b32 v{O+j}, 0")
    e(f"v_mov_b32 v{vM}, 0xff7fffff")
    e(f"v_mov_b32 v{vL}, 0")
    e(f"s_mov_b32 s{sTask}, 0")
    a.label(f"{name}_chunk")
    e(f"s_add_u32 s{sNextK}, s{sKVoff}, 32768")
    e(f"s_cmp_lt_u32 s{sTask}, 3")
    e(f"s_cselect_b32 s{sNextK}, s{sNextK}, {OOB:#x}")
    e("s_waitcnt vmcnt(8)")
    bar(a)
    def rk(T):
        for s in range(8):
            e(f"ds_read_b128 v[{FK[T&1]+4*s}:{FK[T&1]+4*s+3}], v{vKR+s} offset:{T*8192}")
    def mk(T):
        for s in range(8):
            mfma(e, S+16*T, FK[T&1]+4*s, QCUR+4*s, "0" if s == 0 else None)
    rk(0); rk(1)
    e("s_waitcnt lgkmcnt(8)")
    mk(0)
    rk(2)
    e("s_waitcnt lgkmcnt(8)")
    mk(1)
    rk(3)
    e("s_waitcnt lgkmcnt(8)")
    mk(2)
    e("s_waitcnt lgkmcnt(0)")
    bar(a)
    issue_tile(e, SRD_K, sM0a, sNextK, 0, True, pol)
    mk(3)
    e(f"v_max3_f32 v{vMx}, v{S}, v{S+1}, v{S+2}")
    e(f"v_max3_f32 v{vT0}, v{S+3}, v{S+4}, v{S+5}")
    k = 6; n = 0
    tgt = [vMx, vT0]
    while k + 1 < 64:
        e(f"v_max3_f32 v{tgt[n&1]}, v{tgt[n&1]}, v{S+k}, v{S+k+1}")
        k += 2; n += 1
    e(f"v_max3_f32 v{vMx}, v{vMx}, v{vT0}, v{vM}")
    e(f"v_mov_b32 v{vT0}, v{vMx}")
    a.nop(2)
    e(f"v_permlane32_swap_b32 v{vMx}, v{vT0}")
    a.nop(1)
    e(f"v_max_f32 v{vMx}, v{vMx}, v{vT0}")
    e(f"v_mul_f32 v{vF}, s{sScale}, v{vMx}")
    e(f"v_fma_f32 v{vT1}, v{vM}, s{sScale}, -v{vF}")
    e(f"v_exp_f32 v{vT1}, v{vT1}")
    e(f"v_mov_b32 v{vM}, v{vMx}")
    for k in range(64):
        e(f"v_fma_f32 v{S+k}, v{S+k}, s{sScale}, -v{vF}")
    for k in range(64):
        e(f"v_exp_f32 v{S+k}, v{S+k}")
    for k in range(64):
        e(f"v_mul_f32 v{O+k}, v{O+k}, v{vT1}")
    e(f"v_add_f32 v{vT2}, v{S}, v{S+1}")
    e(f"v_add_f32 v{vT0}, v{S+2}, v{S+3}")
    for k in range(4, 64, 2):
        e(f"v_add_f32 v{vT2}, v{vT2}, v{S+k}")
        e(f"v_add_f32 v{vT0}, v{vT0}, v{S+k+1}")
    for k in range(32):
        e(f"v_cvt_pk_bf16_f32 v{S+k}, v{S+2*k}, v{S+2*k+1}")
    e(f"v_add_f32 v{vT2}, v{vT2}, v{vT0}")
    e(f"v_fma_f32 v{vL}, v{vL}, v{vT1}, v{vT2}")
    e("s_waitcnt vmcnt(8)")
    bar(a)
    FV = [S+32, QOWN]
    def rv(T):
        for k in range(4):
            for u in range(2):
                for half in range(2):
                    r = FV[T&1] + 8*k + 4*u + 2*half
                    e(f"ds_read_b64_tr_b16 v[{r}:{r+1}], v{vVR+k} offset:{LDS_RING1 + T*8192 + (16*u+8*half)*256}")
    def mv(T):
        for u in range(2):
            for k in range(4):
                mfma(e, O+16*k, FV[T&1]+8*k+4*u, S+8*T+4*u)
    rv(0)
    e("s_waitcnt lgkmcnt(0)")
    rv(1); mv(0)
    e("s_waitcnt lgkmcnt(0)")
    rv(2); mv(1)
    e("s_waitcnt lgkmcnt(0)")
    rv(3); mv(2)
    e("s_waitcnt lgkmcnt(0)")
    bar(a)
    issue_tile(e, SRD_V, sM0b, sNextK, 0, False, pol)
    mv(3)
    if TIMING[0]:
        ts_mark(a, 76)
        for k in range(4):
            e(f"s_cmp_eq_u32 s{sTask}, {k}")
            if not XM[0] or k == 3:
                e(f"s_cselect_b32 s{MK[3+k]}, s76, s{MK[3+k]}")
    e(f"s_mov_b32 s{sKVoff}, s{sNextK}")
    e(f"s_add_u32 s{sTask}, s{sTask}, 1")
    e(f"s_cmp_lt_u32 s{sTask}, 4")
    e(f"s_cbranch_scc1 {name}_chunk")
    e(f"v_mov_b32 v{vT0}, v{vL}")
    a.nop(2)
    e(f"v_permlane32_swap_b32 v{vL}, v{vT0}")
    a.nop(1)
    e(f"v_add_f32 v{vL}, v{vL}, v{vT0}")
    e(f"v_rcp_f32 v{vF}, v{vL}")
    a.nop(8)
    for k in range(64):
        e(f"v_mul_f32 v{O+k}, v{O+k}, v{vF}")
    for k in range(32):
        e(f"v_cvt_pk_bf16_f32 v{S+k}, v{O+2*k}, v{O+2*k+1}")
    e("s_waitcnt vmcnt(0)")
    e(f"s_lshl_b32 s{sT0}, s{sBs}, 18")
    e(f"s_lshl_b32 s{sT1}, s{sHq}, 2")
    e(f"s_add_u32 s{sT1}, s{sT1}, s{sWV}")
    e(f"s_lshl_b32 s{sT1}, s{sT1}, 13")
    e(f"s_add_u32 s{sT0}, s{sT0}, s{sT1}")
    for f in range(8):
        if f == 4:
            e(f"s_add_u32 s{sT0}, s{sT0}, 4096")
        e(f"buffer_store_dwordx4 v[{S+4*f}:{S+4*f+3}], v{vLane16}, s[{SRD_O}:{SRD_O+3}], s{sT0} offen offset:{(f%4)*1024} {OPOL[0]}")


def gen_attn(a, name, timing=False, pol_x="nt", pol_w="nt", pol_kv="nt", touch=True, delay_a=True, thresh=32, bound=64, qmarks=False, only=None, qonly=False, qskip='', qorder='adv', look=2, prio_a=0, prio_b=0, touch_a=False, sleep_q=8, sleep_b=48, xmarks=False, use_inv=False, altprio=False, qpipe=False, endwb=False, spoll=False, fuse=False, p3opt=None, opol='', gsleep=1, psig=10, pairwait=0, wo_early=None, asym=False, pol_kv_a=None, clk=False, single=False, exp_sleep=0, wo_pf=None, wtouch=0, prio_flash=0, qst='sc0 sc1', qld='sc0 sc1'):
    kernel_header(a, name)
    e = a.e
    TIMING[0] = timing
    QMARKS[0] = qmarks
    QSKIP[0] = qskip
    QORDER[0] = qorder
    LOOK[0] = look
    SLEEPQ[0] = sleep_q
    XM[0] = xmarks
    ALT[0] = altprio
    ASYM[0] = asym
    SPOLL[0] = spoll
    OPOL[0] = opol
    GSLEEP[0] = gsleep
    PSIG[0] = psig if pairwait else 0
    SINGLE[0] = single
    GB[0] = 0
    WT[0] = wtouch
    INV[0] = use_inv
    QST[0] = qst
    QST[1] = qld
    gen_prologue(a, name, timing)
    if only == "B":
        e(f"s_cmp_lg_u32 s{sRole}, 0")
        e(f"s_cbranch_scc1 {name}_done")
    if only == "A":
        e(f"s_cmp_eq_u32 s{sRole}, 0")
        e(f"s_cbranch_scc1 {name}_done")
    if timing:
        for k in range(8):
            e(f"s_mov_b32 s{MK[k]}, 0")
    e(f"s_and_b32 s{sT2}, s{sH}, 3")
    e(f"s_lshl_b32 s{sT2}, s{sT2}, 3")
    e(f"s_add_u32 s{sBs}, s{sT2}, s{sI}")
    e(f"s_lshr_b32 s{sHq}, s{sH}, 2")
    e(f"s_lshl_b32 s{sT0}, s{sI}, 5")
    e(f"s_add_u32 s{sT0}, s{sT0}, s{sH}")
    e(f"s_lshl_b32 s{sT1}, s{sBs}, 2")
    e(f"s_lshr_b32 s{sT2}, s{sH}, 3")
    e(f"s_add_u32 s{sT1}, s{sT1}, s{sT2}")
    e(f"s_cmp_eq_u32 s{sRole}, 0")
    e(f"s_cselect_b32 s{sKVoff}, s{sT0}, s{sT1}")
    e(f"s_lshl_b32 s{sKVoff}, s{sKVoff}, 17")
    e(f"s_add_u32 s{sKVoff}, s{sKVoff}, s{sW8}")
    e(f"s_mov_b32 s{sOoff}, {8*32*131072}")
    if pairwait:
        e(f"s_and_b32 s{sT0}, s2, 255")
        e(f"s_lshl_b32 s{sT0}, s{sT0}, 8")
        e(f"s_add_u32 s{sT0}, s{sT0}, {PAIR_OFF}")
        e(f"s_add_u32 s{sPairP}, s{SRD_O}, s{sT0}")
        e(f"s_addc_u32 s{sPairP+1}, s{SRD_O+1}, 0")
        e(f"s_load_dword s{sPairN}, s[{sPairP}:{sPairP+1}], 0 glc")
    if fuse:
        import phase3
        phase3.entry_loads(a)
    e(f"s_cmp_eq_u32 s{sRole}, 0")
    e(f"s_cbranch_scc1 {name}_startb")
    if pairwait:
        e("s_waitcnt lgkmcnt(0)")
        e(f"s_mul_i32 s{sPairN}, s{sPairN}, 0x9e3779b1")
        e(f"s_add_u32 s{sPairN}, s{sPairN}, 0x7f4a7c15")
        e(f"s_mov_b32 s{sT3}, {pairwait}")
        a.label(f"{name}_pw")
        e(f"s_load_dword s{sT1}, s[{sPairP}:{sPairP+1}], 16 glc")
        e("s_waitcnt lgkmcnt(0)")
        e(f"s_cmp_eq_u32 s{sT1}, s{sPairN}")
        e(f"s_cbranch_scc1 {name}_pw_ok")
        e(f"s_sub_u32 s{sT3}, s{sT3}, 1")
        e(f"s_cmp_eq_u32 s{sT3}, 0")
        e(f"s_cbranch_scc1 {name}_pw_ok")
        e("s_sleep 4")
        e(f"s_branch {name}_pw")
        a.label(f"{name}_pw_ok")
        e(f"s_cmp_lg_u32 s{sWV}, 0")
        e(f"s_cbranch_scc1 {name}_pw_d")
        e(f"s_and_b32 s{sT0}, s2, 255")
        e(f"s_lshl_b32 s{sT0}, s{sT0}, 8")
        e(f"s_add_u32 s{sT0}, s{sT0}, {PAIR_OFF}")
        e(f"v_mov_b32 v{vT0}, 0")
        e(f"v_mov_b32 v{vT1}, s{sPairN}")
        e(f"v_cmp_eq_u32 vcc, 0, v0")
        e(f"s_and_saveexec_b64 s[{sT2}:{sT3}], vcc")
        e(f"buffer_store_dword v{vT1}, v{vT0}, s[{SRD_O}:{SRD_O+3}], s{sT0} offen sc0 sc1")
        e(f"s_mov_b64 exec, s[{sT2}:{sT3}]")
        a.label(f"{name}_pw_d")
    if wo_early is not None:
        e(f"s_load_dwordx2 s[52:53], s[0:1], 32")
        e(f"s_load_dwordx2 s[54:55], s[0:1], 72")
        e(f"s_and_b32 s{sT0}, s2, 255")
        e(f"s_lshl_b32 s{sT0}, s{sT0}, 2")
        e(f"s_add_u32 s{sT0}, s{sT0}, s{sWV}")
        e(f"s_waitcnt lgkmcnt(0)")
        e(f"s_cmp_lt_u32 s{sT0}, 512")
        e(f"s_cselect_b32 s{SRD_T}, s52, s54")
        e(f"s_cselect_b32 s{SRD_T+1}, s53, s55")
        e(f"s_and_b32 s{SRD_T+1}, s{SRD_T+1}, 0xffff")
        e(f"s_mov_b32 s{SRD_T+2}, {4096*1024*2}")
        e(f"s_mov_b32 s{SRD_T+3}, 0x20000")
        e(f"s_and_b32 s{sT0}, s{sT0}, 511")
        e(f"s_lshl_b32 s{sT0}, s{sT0}, 14")
        e(f"v_lshlrev_b32 v{vT0}, 7, v0")
        e(f"buffer_load_dword v{vT2}, v{vT0}, s[{SRD_T}:{SRD_T+3}], s{sT0} offen {wo_early}")
        e(f"s_add_u32 s{sT0}, s{sT0}, 8192")
        e(f"buffer_load_dword v{vT3}, v{vT0}, s[{SRD_T}:{SRD_T+3}], s{sT0} offen {wo_early}")
        e("s_waitcnt vmcnt(0)")
    if asym:
        for k in range(16):
            e("s_barrier")
        e("s_barrier")
        e(f"v_mov_b32 v{vT3}, 0")
        e(f"ds_write_b32 v{vBarA}, v{vT3}")
        e("s_waitcnt lgkmcnt(0)")
        e("s_barrier")
    if exp_sleep:
        for k in range(exp_sleep):
            e("s_sleep 127")
    if delay_a:
        e(f"s_lshl_b32 s{sT4}, s{sX}, 2")
        e(f"s_cmp_lg_u32 s{sWV}, 0")
        e(f"s_cbranch_scc1 {name}_await")
        poll_counter(a, f"{name}_pollb", sT4, 255, None, thresh, bound, sleep=sleep_b)
        a.label(f"{name}_await")
        e("s_barrier")
    e(f"s_lshl_b32 s{sFlag}, s{sHq}, 3")
    e(f"s_add_u32 s{sFlag}, s{sFlag}, s{sI}")
    e(f"s_lshl_b32 s{sFlag}, s{sFlag}, 8")
    e(f"s_add_u32 s{sFlag}, s{sFlag}, {FLAG_OFF}")
    e(f"v_mov_b32 v{vT0}, 0")
    e(f"buffer_load_dword v{vNon}, v{vT0}, s[{SRD_O}:{SRD_O+3}], s{sFlag} offen sc0 sc1")
    if prio_a:
        e(f"s_setprio {prio_a}")
    if touch_a:
        gen_touch(a, pol_w)
    e(f"s_branch {name}_q")
    a.label(f"{name}_startb")
    if prio_b:
        e(f"s_setprio {prio_b}")
    if touch:
        gen_touch(a, pol_w)
    a.label(f"{name}_q")
    mark(a, 0)
    if clk:
        e("s_memtime s[76:77]")
        e("s_waitcnt lgkmcnt(0)")
        e(f"s_mov_b32 s{MK[5]}, s76")

    def hook_w():
        e(f"s_cmp_lg_u32 s{sRole}, 0")
        e(f"s_cbranch_scc1 {name}_hw")
        if delay_a:
            e(f"s_lshl_b32 s{sT4}, s{sX}, 2")
            signal(a, f"{name}_sigb", sT4, "1")
        issue_tile(e, SRD_K, sM0a, sKVoff, 0, True, pol_kv)
        a.label(f"{name}_hw")
    def hook_x():
        if LOOK[0] != 2:
            return
        e(f"s_cmp_lg_u32 s{sRole}, 0")
        e(f"s_cbranch_scc1 {name}_hx")
        issue_tile(e, SRD_K, sM0b, sKVoff, 32768, True, pol_kv)
        a.label(f"{name}_hx")
    (gen_qproj_pipe if qpipe else gen_qproj)(a, name, pol_x, pol_w, hook_w, hook_x)
    if fuse:
        phase3.pick_tags(a)
    mark(a, 1)
    if clk:
        e("s_memtime s[76:77]")
        e("s_waitcnt lgkmcnt(0)")
        e(f"s_sub_u32 s{MK[6]}, s76, s{MK[5]}")
        e(f"s_mov_b32 s{MK[5]}, 0")
    if ALT[0]:
        e("s_setprio 0")
    if qonly:
        e(f"s_branch {name}_end")
    if single and asym:
        e(f"s_cmp_lg_u32 s{sRole}, 0")
        e(f"s_cbranch_scc1 {name}_rolea")
        e("s_barrier")
        e(f"v_mov_b32 v{vT3}, 0")
        e(f"ds_write_b32 v{vBarA}, v{vT3}")
        e("s_waitcnt lgkmcnt(0)")
        e("s_barrier")
    elif single:
        e("s_barrier")
        e(f"v_mov_b32 v{vT3}, 0")
        e(f"ds_write_b32 v{vBarA}, v{vT3}")
        e("s_waitcnt lgkmcnt(0)")
        e("s_barrier")
    e(f"s_cmp_lg_u32 s{sRole}, 0")
    e(f"s_cbranch_scc1 {name}_rolea")
    if not single:
        e("s_barrier")
    q_broadcast(a, name, "q0", "0")
    e(f"s_mov_b32 s{sTask}, 0")
    gen_m1(a, name, pol_kv)
    e(f"s_branch {name}_end")
    a.label(f"{name}_rolea")
    e(f"s_setprio {prio_flash}")
    gen_flash(a, name, pol_kv if pol_kv_a is None else pol_kv_a)
    a.label(f"{name}_end")
    if fuse:
        if timing:
            ts_mark(a, 76)
            e(f"s_mov_b32 s{MK[6]}, s76")
        phase3.gen_phase3(a, name, **(p3opt or {}))
    if endwb:
        e("s_waitcnt vmcnt(0)")
        e("s_barrier")
        e(f"s_cmp_lg_u32 s{sWV}, 0")
        e(f"s_cbranch_scc1 {name}_nowb")
        e("buffer_wbl2 sc1")
        a.label(f"{name}_nowb")
    if wo_pf is not None:
        e(f"s_load_dwordx2 s[52:53], s[0:1], 32")
        e(f"s_load_dwordx2 s[54:55], s[0:1], 72")
        e(f"s_waitcnt lgkmcnt(0)")
        e(f"s_cmp_lt_u32 s{sX}, 4")
        e(f"s_cselect_b32 s{SRD_W}, s52, s54")
        e(f"s_cselect_b32 s{SRD_W+1}, s53, s55")
        e(f"s_and_b32 s{SRD_W+1}, s{SRD_W+1}, 0xffff")
        e(f"s_mov_b32 s{SRD_W+2}, {4096*1024*2}")
        e(f"s_mov_b32 s{SRD_W+3}, 0x20000")
        if single:
            e(f"s_lshr_b32 s{sT0}, s2, 3")
            e(f"s_lshl_b32 s{sT0}, s{sT0}, 3")
            e(f"s_add_u32 s{sT0}, s{sT0}, s{sWid}")
        else:
            e(f"s_lshr_b32 s{sT0}, s2, 3")
            e(f"s_lshl_b32 s{sT0}, s{sT0}, 2")
            e(f"s_add_u32 s{sT0}, s{sT0}, s{sWV}")
        e(f"s_lshl_b32 s{sT0}, s{sT0}, 14")
        e(f"s_and_b32 s{sT1}, s{sX}, 1")
        e(f"s_lshl_b32 s{sT1}, s{sT1}, 10")
        e(f"s_add_u32 s{sT0}, s{sT0}, s{sT1}")
        e(f"s_bfe_u32 s{sT1}, s{sX}, 0x10001")
        e(f"s_lshl_b32 s{sT1}, s{sT1}, 22")
        e(f"s_add_u32 s{sT0}, s{sT0}, s{sT1}")
        e(f"v_lshrrev_b32 v{vT0}, 3, v0")
        e(f"v_lshlrev_b32 v{vT0}, 11, v{vT0}")
        e(f"v_and_b32 v{vT1}, 7, v0")
        e(f"v_lshlrev_b32 v{vT1}, 7, v{vT1}")
        e(f"v_add_u32 v{vT0}, v{vT0}, v{vT1}")
        e(f"buffer_load_dword v{vT2}, v{vT0}, s[{SRD_W}:{SRD_W+3}], s{sT0} offen {wo_pf}")
    e("s_waitcnt vmcnt(0)")
    if timing:
        mark(a, 7)
        ts_dump(a, [sTS] + MK[0:7], 0, sWid if single else sWV, 52, 8, nwaves=8 if single else 4)
        ts_end(a, sTS, 0, sWid if single else sWV, 52, 2, nwaves=8 if single else 4)
    a.label(f"{name}_done")
    e("s_endpgm")
    return dict(nv=256, ns=NS, lds=LDS_BYTES*(2 if single else 1), threads=512 if single else 256, grid=256 if single else 512)
```

```python
from asmlib import *
import attn as A

G1_OFF = 51 << 20
G2_OFF = 52 << 20
X_OFF = 64 << 20
OOB = 0x80000000
sN1, sN2 = 82, 83
vN1, vN2 = A.DEF + 26, A.DEF + 27

def entry_loads(a):
    e = a.e
    sT0, sT1, sT2 = A.sT0, A.sT1, A.sT2
    line_offsets(a, sT0, sT1)
    e(f"s_lshl_b32 s{sT1}, s{sT1}, 8")
    e(f"s_add_u32 s{sT1}, s{sT1}, {G2_OFF}")
    e(f"v_mov_b32 v{A.vT0}, 0")
    e(f"buffer_load_dword v{vN1}, v{A.vT0}, s[{A.SRD_O}:{A.SRD_O+3}], s{sT0} offen sc0 sc1")
    e(f"buffer_load_dword v{vN2}, v{A.vT0}, s[{A.SRD_O}:{A.SRD_O+3}], s{sT1} offen sc0 sc1")

def line_offsets(a, d1, d2):
    e = a.e
    sT2, sT3 = A.sT2, A.sT3
    e(f"s_lshl_b32 s{d1}, s{A.sRole}, 3")
    e(f"s_add_u32 s{d1}, s{d1}, s{A.sX}")
    e(f"s_lshl_b32 s{d1}, s{d1}, 2")
    e(f"s_and_b32 s{sT2}, s{A.sI}, 3")
    e(f"s_add_u32 s{d1}, s{d1}, s{sT2}")
    e(f"s_lshl_b32 s{d1}, s{d1}, 8")
    e(f"s_add_u32 s{d1}, s{d1}, {G1_OFF}")
    e(f"s_lshl_b32 s{d2}, s{A.sRole}, 1")
    e(f"s_and_b32 s{sT3}, s{A.sX}, 1")
    e(f"s_add_u32 s{d2}, s{d2}, s{sT3}")
    e(f"s_lshl_b32 s{d2}, s{d2}, 3")
    e(f"s_and_b32 s{sT3}, s{A.sH}, 7")
    e(f"s_add_u32 s{d2}, s{d2}, s{sT3}")
    e(f"s_lshl_b32 s{d2}, s{d2}, 2")
    e(f"s_add_u32 s{d2}, s{d2}, s{sT2}")

def pick_tags(a):
    e = a.e
    e(f"v_readfirstlane_b32 s{sN1}, v{vN1}")
    e(f"v_readfirstlane_b32 s{sN2}, v{vN2}")
    a.nop(3)
    for r in (sN1, sN2):
        e(f"s_mul_i32 s{r}, s{r}, 0x9e3779b1")
        e(f"s_add_u32 s{r}, s{r}, 0x7f4a7c15")

def gen_phase3(a, name, pol_w="", sleep=2, sleep_x=1, marks=False, opol="sc1", order=None, prio=None, grp=1, skip="", itmarks=False, wtouch=None, late=False, xpol="sc1", outpol="", lean=False, mprio=False):
    e = a.e
    sT0, sT1, sT2, sT3, sT4, sT5 = A.sT0, A.sT1, A.sT2, A.sT3, A.sT4, A.sT5
    sWV, sRole, sH, sI, sX, sB = A.sWV, A.sRole, A.sH, A.sI, A.sX, A.sB
    SRD_W, SRD_O, SRD_OUT = A.SRD_W, A.SRD_O, A.SRD_X
    sHg, sWo, sOo, sPos, sCnt, sL1, sL2 = 32, 33, 34, 35, 36, 37, 38
    vT0, vT1, vT2, vT3, vLane16 = A.vT0, A.vT1, A.vT2, A.vT3, A.vLane16
    vWD = A.DEF
    vWR = A.DEF + 4
    ACC, FW, FO = A.S, A.O, A.QOWN
    e("s_barrier")
    e(f"s_load_dwordx2 s[52:53], s[0:1], 32")
    e(f"s_load_dwordx2 s[54:55], s[0:1], 72")
    e(f"s_load_dwordx2 s[56:57], s[0:1], 80")
    e(f"s_lshr_b32 s{sHg}, s{sX}, 1")
    e(f"v_lshrrev_b32 v{vT0}, 4, v0")
    e(f"v_and_b32 v{vT1}, 15, v0")
    e(f"v_lshlrev_b32 v{vT2}, 2, v{vT0}")
    e(f"v_xor_b32 v{vT2}, v{vT2}, v{vT1}")
    e(f"v_lshlrev_b32 v{vT2}, 4, v{vT2}")
    e(f"v_lshlrev_b32 v{vT0}, 11, v{vT0}")
    e(f"v_add_u32 v{vWD}, v{vT2}, v{vT0}")
    for jj in range(1, 4):
        e(f"v_add_u32 v{vWD+jj}, {jj*(4*2048-1024)}, v{vWD}")
    e("s_waitcnt lgkmcnt(0)")
    e(f"s_cmp_eq_u32 s{sRole}, 0")
    e(f"s_cselect_b32 s{SRD_W}, s54, s52")
    e(f"s_cselect_b32 s{SRD_W+1}, s55, s53")
    e(f"s_and_b32 s{SRD_W+1}, s{SRD_W+1}, 0xffff")
    e(f"s_mov_b32 s{SRD_W+2}, {4096*1024*2}")
    e(f"s_mov_b32 s{SRD_W+3}, 0x20000")
    e(f"s_mov_b32 s{SRD_OUT}, s56")
    e(f"s_and_b32 s{SRD_OUT+1}, s57, 0xffff")
    e(f"s_mov_b32 s{SRD_OUT+2}, {1024*2048*2}")
    e(f"s_mov_b32 s{SRD_OUT+3}, 0x20000")
    e(f"s_mov_b32 s{SRD_O+2}, {128 << 20}")
    e(f"s_lshl_b32 s{sWo}, s{sHg}, 21")
    e(f"s_lshl_b32 s{sT0}, s{sWV}, 15")
    e(f"s_add_u32 s{sWo}, s{sWo}, s{sT0}")
    e(f"s_and_b32 s{sT0}, s{sH}, 7")
    e(f"s_lshl_b32 s{sT0}, s{sT0}, 8")
    e(f"s_add_u32 s{sWo}, s{sWo}, s{sT0}")
    e(f"s_xor_b32 s{sOo}, s{sRole}, 1")
    e(f"s_lshl_b32 s{sOo}, s{sOo}, 23")
    e(f"s_lshl_b32 s{sT0}, s{sB}, 18")
    e(f"s_add_u32 s{sOo}, s{sOo}, s{sT0}")
    e(f"s_lshl_b32 s{sT0}, s{sHg}, 16")
    e(f"s_add_u32 s{sOo}, s{sOo}, s{sT0}")

    sSg = 40
    def sigma(pos_expr_reg):
        if order == "adv":
            e(f"s_add_u32 s{sT1}, s{pos_expr_reg}, 1")
            e(f"s_sub_u32 s{sT1}, s{sT1}, s{A.sCls}")
            e(f"s_and_b32 s{sT1}, s{sT1}, 3")
            e(f"s_cmp_eq_u32 s{sT1}, 0")
            e(f"s_cselect_b32 s{sT0}, 1, 0")
            e(f"s_cmp_eq_u32 s{sT1}, 1")
            e(f"s_cselect_b32 s{sT0}, -1, s{sT0}")
            e(f"s_add_u32 s{sSg}, s{pos_expr_reg}, s{sT0}")
            e(f"s_cmp_lt_u32 s{sSg}, 16")
            e(f"s_cselect_b32 s{sSg}, s{sSg}, s{pos_expr_reg}")
        else:
            e(f"s_mov_b32 s{sSg}, s{pos_expr_reg}")

    def issue_w(slot):
        sigma(sPos)
        e(f"s_lshl_b32 s{sT0}, s{sWV}, 12")
        e(f"s_add_u32 m0, s{sT0}, {slot*16384}")
        e(f"s_lshl_b32 s{sT1}, s{sSg}, 17")
        e(f"s_add_u32 s{sT1}, s{sT1}, s{sWo}")
        e(f"s_cmp_lt_u32 s{sPos}, 16")
        e(f"s_cselect_b32 s{sT1}, s{sT1}, {OOB:#x}")
        for jj in range(4):
            e(f"buffer_load_dwordx4 v{vWD+jj}, s[{SRD_W}:{SRD_W+3}], s{sT1} offen offset:{jj*1024} {pol_w} lds")

    def issue_o(slot, pos_delta=0):
        e(f"s_add_u32 s{sT2}, s{sPos}, {pos_delta}") if pos_delta else e(f"s_mov_b32 s{sT2}, s{sPos}")
        sigma(sT2)
        e(f"s_lshl_b32 s{sT1}, s{sSg}, 12")
        e(f"s_add_u32 s{sT1}, s{sT1}, s{sOo}")
        e(f"s_cmp_lt_u32 s{sT2}, 16")
        e(f"s_cselect_b32 s{sT1}, s{sT1}, {OOB:#x}")
        for u in range(4):
            d = FO + 16*slot + 4*u
            e(f"buffer_load_dwordx4 v[{d}:{d+3}], v{vLane16}, s[{SRD_O}:{SRD_O+3}], s{sT1} offen offset:{u*1024} {opol}")

    if prio is not None:
        e(f"s_cmp_eq_u32 s{sRole}, 0")
        e(f"s_cbranch_scc1 {name}_p3pb")
        e(f"s_setprio {prio[1]}")
        e(f"s_branch {name}_p3pd")
        a.label(f"{name}_p3pb")
        e(f"s_setprio {prio[0]}")
        a.label(f"{name}_p3pd")
    for s in range(3):
        e(f"s_mov_b32 s{sPos}, {s}")
        issue_w(s)
    if wtouch is not None:
        e(f"v_lshrrev_b32 v{vT0}, 5, v0")
        e(f"v_lshlrev_b32 v{vT0}, 6, v{vT0}")
        e(f"v_bfe_u32 v{vT1}, v0, 1, 4")
        e(f"v_add_u32 v{vT0}, v{vT0}, v{vT1}")
        e(f"v_lshlrev_b32 v{vT0}, 11, v{vT0}")
        e(f"v_and_b32 v{vT1}, 1, v0")
        e(f"v_lshlrev_b32 v{vT1}, 7, v{vT1}")
        e(f"v_add_u32 v{vT0}, v{vT0}, v{vT1}")
        e(f"s_lshl_b32 s{sT0}, s{sHg}, 21")
        e(f"s_and_b32 s{sT1}, s{sI}, 3")
        e(f"s_lshl_b32 s{sT1}, s{sT1}, 15")
        e(f"s_add_u32 s{sT0}, s{sT0}, s{sT1}")
        e(f"s_and_b32 s{sT1}, s{sH}, 7")
        e(f"s_lshl_b32 s{sT1}, s{sT1}, 8")
        e(f"s_add_u32 s{sT0}, s{sT0}, s{sT1}")
        e(f"s_lshl_b32 s{sT1}, s{sWV}, 18")
        e(f"s_add_u32 s{sT0}, s{sT0}, s{sT1}")
        e(f"buffer_load_dword v{vT2}, v{vT0}, s[{SRD_W}:{SRD_W+3}], s{sT0} offen {wtouch}")
        e(f"s_add_u32 s{sT0}, s{sT0}, {4 << 18}")
        e(f"buffer_load_dword v{vT3}, v{vT0}, s[{SRD_W}:{SRD_W+3}], s{sT0} offen {wtouch}")
        e("s_waitcnt vmcnt(0)")
    e(f"v_bfe_u32 v{vT0}, v0, 2, 2")
    e(f"v_lshlrev_b32 v{vT2}, 6, v{vT0}")
    e(f"v_bfe_u32 v{vT3}, v0, 4, 1")
    e(f"v_lshlrev_b32 v{vT3}, 5, v{vT3}")
    e(f"v_add_u32 v{vT2}, v{vT2}, v{vT3}")
    e(f"v_and_b32 v{vT3}, 1, v0")
    e(f"v_lshlrev_b32 v{vT3}, 4, v{vT3}")
    e(f"v_add_u32 v{vT2}, v{vT2}, v{vT3}")
    e(f"v_bfe_u32 v{vT3}, v0, 1, 1")
    e(f"v_lshlrev_b32 v{vT3}, 3, v{vT3}")
    e(f"v_add_u32 v{vT2}, v{vT2}, v{vT3}")
    e(f"v_lshrrev_b32 v{vT1}, 5, v0")
    e(f"v_lshlrev_b32 v{vT3}, 3, v{vT1}")
    e(f"v_add_u32 v{vT3}, v{vT3}, v{vT0}")
    e(f"v_lshlrev_b32 v{vT3}, 8, v{vT3}")
    e(f"v_add_u32 v{vT2}, v{vT2}, v{vT3}")
    for k in range(4):
        e(f"s_add_u32 s{sT0}, s{sHg}, {k}")
        e(f"s_and_b32 s{sT0}, s{sT0}, 3")
        e(f"s_lshl_b32 s{sT0}, s{sT0}, 6")
        e(f"v_xor_b32 v{vWR+k}, s{sT0}, v{vT2}")
    line_offsets(a, sL1, sL2)
    e("s_waitcnt vmcnt(0)")
    e("s_barrier")
    e(f"s_cmp_lg_u32 s{sWV}, 0")
    e(f"s_cbranch_scc1 {name}_p3w")
    e(f"s_and_b32 s{sT0}, s{sH}, 7")
    e(f"s_lshl_b32 s{sT0}, s{sT0}, 2")
    e(f"s_add_u32 s{sT0}, s{sT0}, s{sL1}")
    e(f"v_mov_b32 v{vT0}, 0")
    e(f"v_mov_b32 v{vT1}, s{sN1}")
    e(f"v_cmp_eq_u32 vcc, 0, v0")
    e(f"s_and_saveexec_b64 s[{sT2}:{sT3}], vcc")
    e(f"buffer_store_dword v{vT1}, v{vT0}, s[{SRD_O}:{SRD_O+3}], s{sT0} offen offset:32 sc1")
    e(f"s_mov_b64 exec, s[{sT2}:{sT3}]")
    e(f"v_and_b32 v{vT2}, 7, v0")
    e(f"v_lshlrev_b32 v{vT2}, 2, v{vT2}")
    e(f"s_add_u32 s92, s{SRD_O}, s{sL1}")
    e(f"s_addc_u32 s93, s{SRD_O+1}, 0")
    a.label(f"{name}_p3spin")
    e(f"s_load_dwordx4 s[88:91], s[92:93], 32 glc")
    e(f"s_load_dwordx4 s[96:99], s[92:93], 48 glc")
    e("s_waitcnt lgkmcnt(0)")
    e(f"s_xor_b32 s{sT0}, s88, s{sN1}")
    for r in (89, 90, 91, 96, 97, 98, 99):
        e(f"s_xor_b32 s{sT1}, s{r}, s{sN1}")
        e(f"s_or_b32 s{sT0}, s{sT0}, s{sT1}")
    e(f"s_cmp_eq_u32 s{sT0}, 0")
    e(f"s_cbranch_scc1 {name}_p3poll")
    e(f"s_sleep {sleep}")
    e(f"s_branch {name}_p3spin")
    a.label(f"{name}_p3poll")
    e(f"buffer_load_dword v{vT3}, v{vT2}, s[{SRD_O}:{SRD_O+3}], s{sL1} offen offset:32 sc1")
    e("s_waitcnt vmcnt(0)")
    e(f"v_cmp_ne_u32 vcc, s{sN1}, v{vT3}")
    a.nop(4)
    e("s_cmp_eq_u64 vcc, 0")
    e(f"s_cbranch_scc1 {name}_p3ok")
    e(f"s_branch {name}_p3spin")
    a.label(f"{name}_p3ok")
    e(f"v_cmp_eq_u32 vcc, 0, v0")
    e(f"s_and_saveexec_b64 s[{sT2}:{sT3}], vcc")
    e(f"buffer_store_dword v{vT1}, v{vT0}, s[{SRD_O}:{SRD_O+3}], s{sL1} offen sc0 sc1")
    e(f"s_mov_b64 exec, s[{sT2}:{sT3}]")
    a.label(f"{name}_p3w")
    e("s_barrier")
    if marks:
        ts_mark(a, 76); e(f"s_mov_b32 s{A.MK[2]}, s76")
    e(f"s_mov_b32 s{sPos}, 0")
    for s in range(3):
        issue_o(s, s)
    e("s_waitcnt vmcnt(0)")
    e(f"s_mov_b32 s{sPos}, 3")
    e(f"s_mov_b32 s{sCnt}, 0")
    for j in range(64):
        e(f"v_mov_b32 v{ACC+j}, 0")

    if lean:
        sWc, sOc, sWb = 41, 42, 43
        e(f"s_add_u32 s{sWc}, s{sWo}, {3*131072}")
        e(f"s_add_u32 s{sOc}, s{sOo}, {3*4096}")
        e(f"s_lshl_b32 s{sWb}, s{sWV}, 12")
        def lstage(slot, issue, nwait):
            e(f"s_waitcnt vmcnt({nwait})")
            e("s_barrier")
            def rw(u):
                L = []
                for t in range(4):
                    for half in range(2):
                        r = FW + 16*u + 4*t + 2*half
                        L.append(f"ds_read_b64_tr_b16 v[{r}:{r+1}], v{vWR+t} offset:{slot*16384 + (16*u+4*half)*256}")
                return L
            def mm(u):
                return [f"v_mfma_f32_32x32x16_bf16 v[{ACC+16*t}:{ACC+16*t+15}], v[{FW+16*u+4*t}:{FW+16*u+4*t+3}], v[{FO+16*slot+4*u}:{FO+16*slot+4*u+3}], v[{ACC+16*t}:{ACC+16*t+15}]" for t in range(4)]
            ns = (slot + 3) & 3
            iss = []
            if issue:
                iss.append(f"s_add_u32 m0, s{sWb}, {ns*16384}")
                iss.append("s_nop 0")
                for jj in range(4):
                    iss.append(f"buffer_load_dwordx4 v{vWD+jj}, s[{SRD_W}:{SRD_W+3}], s{sWc} offen offset:{jj*1024} {pol_w} lds")
                for u in range(4):
                    d = FO + 16*ns + 4*u
                    iss.append(f"buffer_load_dwordx4 v[{d}:{d+3}], v{vLane16}, s[{SRD_O}:{SRD_O+3}], s{sOc} offen offset:{u*1024} {opol}")
                iss.append(f"s_add_u32 s{sWc}, s{sWc}, 131072")
                iss.append(f"s_add_u32 s{sOc}, s{sOc}, 4096")
            for ln in rw(0) + rw(1)[:7]:
                e(ln)
            if lean == "early":
                for ln in iss:
                    e(ln)
                iss = []
            e("s_waitcnt lgkmcnt(7)")
            if mprio:
                e("s_setprio 1")
            fill = rw(1)[7:] + rw(2)
            k = 0
            for n, m in enumerate(mm(0)):
                e(m)
                take = 3 if n == 0 else 2
                for ln in fill[k:k+take]:
                    e(ln)
                k += take
            e("s_waitcnt lgkmcnt(8)")
            fill = rw(3)
            for n, m in enumerate(mm(1)):
                e(m)
                for ln in fill[2*n:2*n+2]:
                    e(ln)
            e("s_waitcnt lgkmcnt(8)")
            k = 0
            for n, m in enumerate(mm(2)):
                e(m)
                for ln in iss[k:k+2]:
                    e(ln)
                k += 2
            e("s_waitcnt lgkmcnt(0)")
            for n, m in enumerate(mm(3)):
                e(m)
                for ln in iss[k:k+1]:
                    e(ln)
                k += 1
            if mprio:
                e("s_setprio 0")
            for ln in iss[k:]:
                e(ln)
        a.label(f"{name}_p3loop")
        for slot in range(4):
            lstage(slot, True, 16)
        e(f"s_add_u32 s{sCnt}, s{sCnt}, 4")
        e(f"s_cmp_lt_u32 s{sCnt}, 12")
        e(f"s_cbranch_scc1 {name}_p3loop")
        lstage(0, True, 16)
        lstage(1, False, 16)
        lstage(2, False, 8)
        lstage(3, False, 0)
    else:
        def stage(slot):
            e(f"s_waitcnt vmcnt({16 - (8 if 'w' in skip else 0) - (8 if 'o' in skip else 0)})")
            e("s_barrier")
            def rw(u):
                L = []
                for t in range(4):
                    for half in range(2):
                        r = FW + 16*u + 4*t + 2*half
                        L.append(f"ds_read_b64_tr_b16 v[{r}:{r+1}], v{vWR+t} offset:{slot*16384 + (16*u+4*half)*256}")
                return L
            def mm(u):
                return [f"v_mfma_f32_32x32x16_bf16 v[{ACC+16*t}:{ACC+16*t+15}], v[{FW+16*u+4*t}:{FW+16*u+4*t+3}], v[{FO+16*slot+4*u}:{FO+16*slot+4*u+3}], v[{ACC+16*t}:{ACC+16*t+15}]" for t in range(4)]
            if "r" in skip:
                rw = lambda u: []
            if "m" in skip:
                mm = lambda u: ["s_nop 0"]*4
            class Cap:
                def __init__(self): self.L = []
                def __call__(self, t=""): self.L.append(t)
            def capture(fn):
                nonlocal e
                keep = e; c = Cap(); e = c
                fn(); e = keep
                return c.L
            def both():
                if "w" not in skip:
                    issue_w((slot + 3) & 3)
                if "o" not in skip:
                    issue_o((slot + 3) & 3)
                e(f"s_add_u32 s{sPos}, s{sPos}, 1")
            for ln in rw(0):
                e(ln)
            if not late:
                both()
                iss = []
            else:
                iss = capture(both)
            e("s_waitcnt lgkmcnt(0)")
            fill = rw(1) + rw(2)
            for n, m in enumerate(mm(0)):
                e(m)
                for ln in fill[4*n:4*n+4]:
                    e(ln)
            e("s_waitcnt lgkmcnt(8)")
            fill = rw(3)
            for n, m in enumerate(mm(1)):
                e(m)
                for ln in fill[2*n:2*n+2]:
                    e(ln)
            e("s_waitcnt lgkmcnt(8)")
            per = (len(iss) + 7) // 8
            k = 0
            for m in mm(2):
                e(m)
                for ln in iss[k:k+per]:
                    e(ln)
                k += per
            e("s_waitcnt lgkmcnt(0)")
            for m in mm(3):
                e(m)
                for ln in iss[k:k+per]:
                    e(ln)
                k += per
            for ln in iss[k:]:
                e(ln)

        a.label(f"{name}_p3loop")
        for slot in range(4):
            stage(slot)
        if itmarks:
            ts_mark(a, 76)
            for k, cnt in enumerate((0, 4, 8, 12)):
                e(f"s_cmp_eq_u32 s{sCnt}, {cnt}")
                e(f"s_cselect_b32 s{A.MK[[0, 1, 3, 4][k]]}, s76, s{A.MK[[0, 1, 3, 4][k]]}")
        e(f"s_add_u32 s{sCnt}, s{sCnt}, 4")
        e(f"s_cmp_lt_u32 s{sCnt}, 16")
        e(f"s_cbranch_scc1 {name}_p3loop")
    if marks and not itmarks:
        ts_mark(a, 76); e(f"s_mov_b32 s{A.MK[3]}, s76")
    sTag = [52, 53, 54, 55]
    for k in range(4):
        e(f"s_bfe_u32 s{sTag[k]}, s{sN2}, {(8 << 16) | (8*k):#x}")
    e(f"s_mov_b32 s{sT2}, 0xffffff00")
    e(f"v_mov_b32 v{vT0}, s{sT2}")
    sSnd = [56, 57, 58]
    sRcv = [44, 45, 39]
    for k in range(1, 4):
        e(f"s_add_u32 s{sT0}, s{sHg}, {k}")
        e(f"s_and_b32 s{sT0}, s{sT0}, 3")
        e(f"s_lshl_b32 s{sT1}, s{sL2}, 2")
        e(f"s_add_u32 s{sT1}, s{sT1}, s{sT0}")
        e(f"s_lshl_b32 s{sT1}, s{sT1}, 2")
        e(f"s_add_u32 s{sT1}, s{sT1}, s{sHg}")
        e(f"s_lshl_b32 s{sT1}, s{sT1}, 2")
        e(f"s_add_u32 s{sT1}, s{sT1}, s{sWV}")
        e(f"s_lshl_b32 s{sT1}, s{sT1}, 12")
        e(f"s_add_u32 s{sSnd[k-1]}, s{sT1}, {X_OFF}")
        e(f"s_sub_u32 s{sT0}, s{sHg}, {k}")
        e(f"s_and_b32 s{sT0}, s{sT0}, 3")
        e(f"s_lshl_b32 s{sT1}, s{sL2}, 2")
        e(f"s_add_u32 s{sT1}, s{sT1}, s{sHg}")
        e(f"s_lshl_b32 s{sT1}, s{sT1}, 2")
        e(f"s_add_u32 s{sT1}, s{sT1}, s{sT0}")
        e(f"s_lshl_b32 s{sT1}, s{sT1}, 2")
        e(f"s_add_u32 s{sT1}, s{sT1}, s{sWV}")
        e(f"s_lshl_b32 s{sT1}, s{sT1}, 12")
        e(f"s_add_u32 s{sRcv[k-1]}, s{sT1}, {X_OFF}")
    e("s_waitcnt vmcnt(0)")
    for k in range(1, 4):
        for r in range(16):
            e(f"v_and_or_b32 v{ACC+16*k+r}, v{ACC+16*k+r}, v{vT0}, s{sTag[r & 3]}")
        for rq in range(4):
            e(f"buffer_store_dwordx4 v[{ACC+16*k+4*rq}:{ACC+16*k+4*rq+3}], v{vLane16}, s[{SRD_O}:{SRD_O+3}], s{sSnd[k-1]} offen offset:{rq*1024} {xpol}")
    IN = FW
    for k in range(3):
        e(f"s_add_u32 s{88+2*k}, s{SRD_O}, s{sRcv[k]}")
        e(f"s_addc_u32 s{89+2*k}, s{SRD_O+1}, 0")
    a.label(f"{name}_xspin")
    for k in range(3):
        e(f"s_load_dword s{96+k}, s[{88+2*k}:{89+2*k}], 3072 glc")
    e("s_waitcnt lgkmcnt(0)")
    e(f"s_xor_b32 s{sT0}, s96, s{sTag[0]}")
    for k in range(1, 3):
        e(f"s_xor_b32 s{sT1}, s{96+k}, s{sTag[0]}")
        e(f"s_or_b32 s{sT0}, s{sT0}, s{sT1}")
    e(f"s_and_b32 s{sT0}, s{sT0}, 0xff")
    e(f"s_cmp_eq_u32 s{sT0}, 0")
    e(f"s_cbranch_scc1 {name}_xpoll")
    e(f"s_sleep {sleep_x}")
    e(f"s_branch {name}_xspin")
    a.label(f"{name}_xpoll")
    for k in range(1, 4):
        for rq in range(4):
            d = IN + 16*(k-1) + 4*rq
            e(f"buffer_load_dwordx4 v[{d}:{d+3}], v{vLane16}, s[{SRD_O}:{SRD_O+3}], s{sRcv[k-1]} offen offset:{rq*1024} {xpol}")
    e("s_waitcnt vmcnt(0)")
    e(f"v_xor_b32 v{vT1}, s{sTag[0]}, v{IN}")
    for r in range(1, 48):
        e(f"v_xor_b32 v{vT2}, s{sTag[r & 3]}, v{IN+r}")
        e(f"v_or_b32 v{vT1}, v{vT1}, v{vT2}")
    e(f"v_and_b32 v{vT1}, 0xff, v{vT1}")
    e(f"v_cmp_ne_u32 vcc, 0, v{vT1}")
    a.nop(4)
    e("s_cmp_eq_u64 vcc, 0")
    e(f"s_cbranch_scc1 {name}_xgot")
    e(f"s_branch {name}_xspin")
    a.label(f"{name}_xgot")
    if marks:
        ts_mark(a, 76); e(f"s_mov_b32 s{A.MK[5 if itmarks else 4]}, s76")
    for k in range(3):
        for r in range(16):
            e(f"v_add_f32 v{ACC+r}, v{ACC+r}, v{IN+16*k+r}")
    P = FO
    for sg in range(2):
        for i in range(4):
            e(f"v_cvt_pk_bf16_f32 v{P+4*sg+i}, v{ACC+8*sg+2*i}, v{ACC+8*sg+2*i+1}")
    e(f"v_and_b32 v{vT0}, 31, v0")
    e(f"v_lshlrev_b32 v{vT0}, 12, v{vT0}")
    e(f"v_lshrrev_b32 v{vT1}, 5, v0")
    e(f"v_lshlrev_b32 v{vT1}, 4, v{vT1}")
    e(f"v_add_u32 v{vT0}, v{vT0}, v{vT1}")
    e(f"s_lshl_b32 s{sT0}, s{sB}, 17")
    e(f"s_xor_b32 s{sT1}, s{sRole}, 1")
    e(f"s_lshl_b32 s{sT1}, s{sT1}, 11")
    e(f"s_add_u32 s{sT0}, s{sT0}, s{sT1}")
    e(f"s_and_b32 s{sT1}, s{sH}, 7")
    e(f"s_lshl_b32 s{sT1}, s{sT1}, 8")
    e(f"s_add_u32 s{sT0}, s{sT0}, s{sT1}")
    e(f"s_lshl_b32 s{sT1}, s{sHg}, 6")
    e(f"s_add_u32 s{sT0}, s{sT0}, s{sT1}")
    for sg in range(2):
        e(f"buffer_store_dwordx4 v[{P+4*sg}:{P+4*sg+3}], v{vT0}, s[{SRD_OUT}:{SRD_OUT+3}], s{sT0} offen offset:{32*sg} {outpol}")
    e(f"s_lshl_b32 s{sT0}, s{sL2}, 8")
    e(f"s_add_u32 s{sT0}, s{sT0}, {G2_OFF}")
    e(f"v_mov_b32 v{vT1}, 0")
    e(f"v_mov_b32 v{vT2}, s{sN2}")
    e(f"v_cmp_eq_u32 vcc, 0, v0")
    e(f"s_and_saveexec_b64 s[{sT2}:{sT3}], vcc")
    e(f"buffer_store_dword v{vT2}, v{vT1}, s[{SRD_O}:{SRD_O+3}], s{sT0} offen sc0 sc1")
    e(f"s_mov_b64 exec, s[{sT2}:{sT3}]")
```

```python
from asmlib import *
import math

OOB = 0x80000000
PAIR_OFF = 50 << 20
FLAG_OFF = 48 << 20
QWS_OFF = 32 << 20
C_SCALE = math.log2(math.e) / math.sqrt(128.0)

def f32bits(x):
    import struct
    return struct.unpack("<I", struct.pack("<f", x))[0]

sWV = 4
sRole, sH, sI, sB = 5, 6, 7, 3
SRD_X, SRD_W, SRD_K, SRD_V, SRD_O = 8, 12, 16, 20, 24
sT0, sT1, sT2, sT3 = 28, 29, 30, 31
sXoff, sWoff, sWslotF, sWslotR, sXslot, sCnt = 32, 33, 34, 35, 36, 37
sKVoff, sTask, sScale, sM0a, sM0b = 38, 39, 40, 41, 42
sOoff, sT4, sT5 = 43, 44, 45
sTS = 46
sPtr = 48
sStg = 80
sX, sDbg, sBs, sHq, sCls, sSig = 81, 82, 84, 85, 86, 87
sFlag, sNonce = 92, 93
sPairN, sPairP = 74, 72
sTbase, sTstep, SRD_T = 94, 95, 96
sLB, sW8, sBarT, sWid = 100, 101, 78, 79
vL16L, vBarA = 30, 29
vNon = 31
SRD_D = 88
NS = 102
MK = [60, 62, 64, 66, 68, 70, 72, 74]
TIMING = [False]
QMARKS = [False]
QSKIP = ['']
QORDER = [None]
LOOK = [2]
SLEEPQ = [8]
XM = [False]
ALT = [False]
ASYM = [False]
KROT = [0]
GRAN = [8192]
SPOLL = [False]
OPOL = ['']
GSLEEP = [1]
PSIG = [0]
SINGLE = [False]
GB = [0]
WT = [0]
INV = [True]
QST = ['sc0 sc1', 'sc0 sc1']
def mark(a, k):
    if TIMING[0]:
        ts_mark(a, MK[k])
vLane16 = 1
vT0, vT1, vT2, vT3 = 2, 3, 4, 5
vKD = 6
vVD = 10
vKR = 11
vVR = 19
vM, vL, vMx, vF = 23, 24, 25, 26
vA0, vA1 = 27, 28
vSt = 29
QOWN, QCUR, S, O, DEF = 32, 64, 96, 160, 224
vWD = DEF
vXD = DEF + 4
vWR = DEF + 8
vXR = DEF + 12
vWR2 = DEF + 16
vXR2 = DEF + 20
vTT, vTD = DEF + 24, DEF + 25
ACC = S
FW = O
FX = QCUR

LDS_RING0, LDS_RING1, LDS_MISC = 0, 32768, 65536
LDS_BYTES = 81920

def bar(a):
    e = a.e
    if not SINGLE[0]:
        e("s_barrier")
        return
    GB[0] += 1
    L = f"gb{GB[0]}"
    e(f"s_add_u32 s{sBarT}, s{sBarT}, 1")
    e("s_waitcnt lgkmcnt(0)")
    e(f"v_mov_b32 v{vSt+2-0 if False else vT3}, 1")
    e("s_mov_b64 exec, 1")
    e(f"ds_add_u32 v{vBarA}, v{vT3}")
    e("s_mov_b64 exec, -1")
    a.label(L)
    e(f"ds_read_b32 v{vT3}, v{vBarA}")
    e("s_waitcnt lgkmcnt(0)")
    e(f"v_readfirstlane_b32 s{sT3}, v{vT3}")
    e(f"s_lshl_b32 s{sT2}, s{sBarT}, 2")
    a.nop(2)
    e(f"s_cmp_ge_u32 s{sT3}, s{sT2}")
    e(f"s_cbranch_scc1 {L}_ok")
    if GSLEEP[0] >= 0:
        e(f"s_sleep {GSLEEP[0]}")
    e(f"s_branch {L}")
    a.label(L + "_ok")


def mfma(e, d, a, b, c=None):
    cc = f"v[{d}:{d+15}]" if c is None else c
    e(f"v_mfma_f32_32x32x16_bf16 v[{d}:{d+15}], v[{a}:{a+3}], v[{b}:{b+3}], {cc}")


def gen_prologue(a, name, timing):
    e = a.e
    e(f"s_cmp_ge_u32 s2, {256 if SINGLE[0] else 512}")
    e(f"s_cbranch_scc1 {name}_done")
    if timing:
        ts_begin(a, sTS)
    e(f"s_load_dwordx8 s[{sPtr}:{sPtr+7}], s[0:1], 0")
    e(f"s_load_dwordx8 s[{sPtr+8}:{sPtr+15}], s[0:1], 40")
    e(f"s_load_dwordx2 s[{sPtr+16}:{sPtr+17}], s[0:1], 96")
    e(f"s_load_dwordx2 s[{sPtr+18}:{sPtr+19}], s[0:1], 88")
    e(f"v_lshrrev_b32 v{vT0}, 6, v0")
    e("v_and_b32 v0, 63, v0")
    e(f"v_readfirstlane_b32 s{sWid}, v{vT0}")
    a.nop(3)
    if SINGLE[0]:
        e(f"s_lshr_b32 s{sRole}, s{sWid}, 2")
        e(f"s_and_b32 s{sWV}, s{sWid}, 3")
        e(f"s_mul_i32 s{sLB}, s{sRole}, {LDS_BYTES}")
    else:
        e(f"s_mov_b32 s{sWV}, s{sWid}")
        e(f"s_lshr_b32 s{sRole}, s2, 8")
        e(f"s_mov_b32 s{sLB}, 0")
    e(f"s_lshl_b32 s{sW8}, s{sWV}, 13")
    e(f"s_and_b32 s{sT0}, s2, 7")
    e(f"s_bfe_u32 s{sT1}, s2, 0x50003")
    e(f"s_lshr_b32 s{sH}, s{sT0}, 1")
    e(f"s_lshl_b32 s{sH}, s{sH}, 3")
    e(f"s_and_b32 s{sT2}, s{sT1}, 7")
    e(f"s_add_u32 s{sH}, s{sH}, s{sT2}")
    e(f"s_and_b32 s{sI}, s{sT0}, 1")
    e(f"s_lshl_b32 s{sI}, s{sI}, 2")
    e(f"s_lshr_b32 s{sT2}, s{sT1}, 3")
    e(f"s_add_u32 s{sI}, s{sI}, s{sT2}")
    e(f"s_mov_b32 s{sX}, s{sT0}")
    e(f"s_add_u32 s{sCls}, s{sH}, s{sI}")
    e(f"s_and_b32 s{sCls}, s{sCls}, 3")
    e(f"v_lshlrev_b32 v{vLane16}, 4, v0")
    e(f"v_add_u32 v{vL16L}, s{sLB}, v{vLane16}")
    if ASYM[0]:
        e(f"s_lshl_b32 s{sT2}, s{sRole}, 6")
        e(f"s_add_u32 s{sT2}, s{sT2}, {LDS_MISC + 12288}")
    else:
        e(f"s_add_u32 s{sT2}, s{sLB}, {LDS_MISC + 12288}")
    e(f"v_mov_b32 v{vBarA}, s{sT2}")
    e(f"s_mov_b32 s{sBarT}, 0")
    e(f"v_lshrrev_b32 v{vT0}, 4, v0")
    e(f"v_and_b32 v{vT1}, 15, v0")
    e(f"v_lshlrev_b32 v{vT2}, 8, v{vT0}")
    for jj in range(4):
        e(f"v_add_u32 v{vT3}, {4*jj}, v{vT0}")
        e(f"v_xor_b32 v{vT3}, v{vT3}, v{vT1}")
        e(f"v_lshlrev_b32 v{vT3}, 4, v{vT3}")
        e(f"v_add_u32 v{vKD+jj}, v{vT3}, v{vT2}")
    e(f"v_lshlrev_b32 v{vT3}, 2, v{vT0}")
    e(f"v_xor_b32 v{vT3}, v{vT3}, v{vT1}")
    e(f"v_lshlrev_b32 v{vT3}, 4, v{vT3}")
    e(f"v_add_u32 v{vVD}, v{vT3}, v{vT2}")
    e(f"v_lshlrev_b32 v{vT2}, 13, v{vT0}")
    e(f"v_add_u32 v{vWD}, v{vT3}, v{vT2}")
    for jj in range(1, 4):
        e(f"v_add_u32 v{vWD+jj}, {jj*(4*8192-1024)}, v{vWD}")
    e(f"v_lshrrev_b32 v{vT1}, 3, v0")
    e(f"v_and_b32 v{vT2}, 7, v0")
    for jj in range(4):
        e(f"v_add_u32 v{vT3}, {4*jj}, v{vT0}")
        e(f"v_and_b32 v{vT3}, 7, v{vT3}")
        e(f"v_xor_b32 v{vT3}, v{vT3}, v{vT2}")
        e(f"v_lshlrev_b32 v{vT3}, 4, v{vT3}")
        e(f"v_lshlrev_b32 v{vXD+jj}, 11, v{vT1}")
        e(f"v_add_u32 v{vXD+jj}, v{vXD+jj}, v{vT3}")
        c = 8*jj*2048 - jj*1024
        if c:
            e(f"v_add_u32 v{vXD+jj}, {c}, v{vXD+jj}")
    e("s_waitcnt lgkmcnt(0)")
    e(f"s_cmp_eq_u32 s{sRole}, 0")
    for k, srd in enumerate((SRD_X, SRD_K, SRD_V, SRD_W)):
        e(f"s_cselect_b32 s{srd}, s{sPtr+8+2*k}, s{sPtr+2*k}")
        e(f"s_cselect_b32 s{srd+1}, s{sPtr+9+2*k}, s{sPtr+1+2*k}")
    e(f"s_mov_b32 s{sT0}, {32*32*131072}")
    e(f"s_cselect_b32 s{SRD_K+2}, s{sT0}, {32*4*131072}")
    e(f"s_mov_b32 s{SRD_V+2}, s{SRD_K+2}")
    for srd in (SRD_X, SRD_K, SRD_V, SRD_W):
        e(f"s_and_b32 s{srd+1}, s{srd+1}, 0xffff")
        e(f"s_mov_b32 s{srd+3}, 0x20000")
    e(f"s_mov_b32 s{SRD_X+2}, {1024*1024*2}")
    e(f"s_mov_b32 s{SRD_W+2}, {1024*4096*2}")
    e(f"s_mov_b32 s{sDbg}, s{sPtr+18}")
    e(f"s_mov_b32 s{sDbg+1}, s{sPtr+19}")
    e(f"s_mov_b32 s{SRD_D}, s{sPtr+18}")
    e(f"s_and_b32 s{SRD_D+1}, s{sPtr+19}, 0xffff")
    e(f"s_mov_b32 s{SRD_D+2}, 256")
    e(f"s_mov_b32 s{SRD_D+3}, 0x20000")
    e(f"s_mov_b32 s{SRD_O}, s{sPtr+16}")
    e(f"s_and_b32 s{SRD_O+1}, s{sPtr+17}, 0xffff")
    e(f"s_mov_b32 s{SRD_O+2}, {64 << 20}")
    e(f"s_mov_b32 s{SRD_O+3}, 0x20000")
    e(f"s_lshl_b32 s{sT0}, s{sWV}, 3")
    e(f"s_add_u32 s{sB}, s{sT0}, s{sI}")
    e(f"s_lshl_b32 s{sXoff}, s{sB}, 16")
    e(f"s_lshl_b32 s{sWoff}, s{sWV}, 17")
    e(f"s_lshl_b32 s{sT0}, s{sH}, 8")
    e(f"s_add_u32 s{sWoff}, s{sWoff}, s{sT0}")
    e(f"v_and_b32 v{vT0}, 31, v0")
    e(f"v_lshrrev_b32 v{vT1}, 5, v0")
    e(f"v_bfe_u32 v{vT2}, v0, 1, 3")
    e(f"v_xor_b32 v{vT2}, v{vT2}, v{vT1}")
    e(f"v_lshlrev_b32 v{vT2}, 4, v{vT2}")
    e(f"v_lshlrev_b32 v{vT3}, 7, v{vT0}")
    e(f"v_add_u32 v{vXR}, v{vT2}, v{vT3}")
    e(f"s_add_u32 s{sT0}, s{sW8}, {LDS_RING1}")
    e(f"s_add_u32 s{sT0}, s{sT0}, s{sLB}")
    e(f"v_add_u32 v{vXR}, s{sT0}, v{vXR}")
    for u in range(1, 4):
        e(f"v_xor_b32 v{vXR+u}, {u*32}, v{vXR}")
    e(f"v_and_b32 v{vT2}, 15, v0")
    e(f"v_xor_b32 v{vT2}, v{vT2}, v{vT1}")
    e(f"v_lshlrev_b32 v{vT2}, 4, v{vT2}")
    e(f"v_lshlrev_b32 v{vT3}, 8, v{vT0}")
    e(f"v_add_u32 v{vKR}, v{vT2}, v{vT3}")
    e(f"s_add_u32 s{sT0}, s{sW8}, s{sLB}")
    e(f"v_add_u32 v{vKR}, s{sT0}, v{vKR}")
    for s in range(1, 8):
        e(f"v_xor_b32 v{vKR+s}, {s*32}, v{vKR}")
    e(f"v_bfe_u32 v{vT0}, v0, 2, 2")
    e(f"v_lshlrev_b32 v{vT2}, 6, v{vT0}")
    e(f"v_bfe_u32 v{vT3}, v0, 4, 1")
    e(f"v_lshlrev_b32 v{vT3}, 5, v{vT3}")
    e(f"v_add_u32 v{vT2}, v{vT2}, v{vT3}")
    e(f"v_and_b32 v{vT3}, 1, v0")
    e(f"v_lshlrev_b32 v{vT3}, 4, v{vT3}")
    e(f"v_add_u32 v{vT2}, v{vT2}, v{vT3}")
    e(f"v_bfe_u32 v{vT3}, v0, 1, 1")
    e(f"v_lshlrev_b32 v{vT3}, 3, v{vT3}")
    e(f"v_add_u32 v{vT2}, v{vT2}, v{vT3}")
    e(f"v_lshlrev_b32 v{vT3}, 3, v{vT1}")
    e(f"v_add_u32 v{vT3}, v{vT3}, v{vT0}")
    e(f"v_lshlrev_b32 v{vT3}, 8, v{vT3}")
    e(f"v_add_u32 v{vWR}, v{vT2}, v{vT3}")
    e(f"v_add_u32 v{vWR}, s{sLB}, v{vWR}")
    e(f"v_lshlrev_b32 v{vT3}, 2, v{vT1}")
    e(f"v_add_u32 v{vT3}, v{vT3}, v{vT0}")
    e(f"v_lshlrev_b32 v{vT3}, 8, v{vT3}")
    e(f"v_add_u32 v{vVR}, v{vT2}, v{vT3}")
    for t in range(1, 4):
        e(f"v_xor_b32 v{vWR+t}, {t*64}, v{vWR}")
    e(f"s_add_u32 s{sT0}, s{sW8}, s{sLB}")
    e(f"v_add_u32 v{vT2}, s{sT0}, v{vVR}")
    for k in range(4):
        e(f"s_add_u32 s{sT0}, s{sWV}, {k}")
        e(f"s_and_b32 s{sT0}, s{sT0}, 3")
        e(f"s_lshl_b32 s{sT0}, s{sT0}, 6")
        e(f"v_xor_b32 v{vVR+k}, s{sT0}, v{vT2}")
    e(f"s_add_u32 s{sM0a}, s{sW8}, s{sLB}")
    e(f"s_add_u32 s{sM0b}, s{sM0a}, {LDS_RING1}")
    e(f"s_mov_b32 s{sScale}, {f32bits(C_SCALE):#x}")


def gen_qproj(a, name, pol_x, pol_w, after_barrier15=None, after_x15=None):
    e = a.e
    WSLOT = [LDS_MISC, 0, 16384]

    def wt_setup():
        e(f"s_and_b32 s{sT2}, s{sH}, 7")
        e(f"v_lshrrev_b32 v{vT0}, 4, v0")
        e(f"v_lshlrev_b32 v{vT0}, 13, v{vT0}")
        e(f"v_and_b32 v{vT1}, 15, v0")
        e(f"v_lshlrev_b32 v{vT1}, 7, v{vT1}")
        e(f"v_add_u32 v{vT0}, v{vT0}, v{vT1}")
        e(f"s_lshl_b32 s{sT0}, s{sT2}, 6")
        e(f"v_add_u32 v{vT1}, s{sT0}, v0")
        e(f"v_bfe_u32 v{vT2}, v{vT1}, 5, 2")
        e(f"v_lshrrev_b32 v{vT3}, 7, v{vT1}")
        e(f"v_lshlrev_b32 v{vT3}, 3, v{vT3}")
        e(f"v_add_u32 v{vT2}, v{vT2}, v{vT3}")
        e(f"v_lshlrev_b32 v{vT2}, 5, v{vT2}")
        e(f"v_and_b32 v{vT1}, 31, v{vT1}")
        e(f"v_add_u32 v{vT1}, v{vT1}, v{vT2}")
        e(f"v_lshlrev_b32 v{vT1}, 11, v{vT1}")
        e(f"s_cmp_lt_u32 s{sWV}, 2")
        e(f"s_cselect_b64 vcc, -1, 0")
        e(f"v_cndmask_b32 v{vTT}, v{vT1}, v{vT0}, vcc")
        for k in range(4):
            e(f"s_cselect_b32 s{SRD_T+k}, s{SRD_W+k}, s{SRD_X+k}")
        e(f"s_mov_b32 s{SRD_T+3}, 0x20000")
        e(f"s_lshl_b32 s{sT0}, s{sT2}, 3")
        e(f"s_lshl_b32 s{sT1}, s{sWV}, 2")
        e(f"s_add_u32 s{sT0}, s{sT0}, s{sT1}")
        e(f"s_lshl_b32 s{sT0}, s{sT0}, 13")
        e(f"s_lshr_b32 s{sT1}, s{sX}, 1")
        e(f"s_lshl_b32 s{sT1}, s{sT1}, 11")
        e(f"s_add_u32 s{sT0}, s{sT0}, s{sT1}")
        e(f"s_and_b32 s{sT1}, s{sX}, 1")
        e(f"s_lshl_b32 s{sT1}, s{sT1}, 18")
        e(f"s_cmp_lt_u32 s{sWV}, 2")
        e(f"s_cselect_b32 s{sTbase}, s{sT0}, s{sT1}")
        e(f"s_mov_b32 s{sT0}, {64*8192}")
        e(f"s_cselect_b32 s{sTstep}, s{sT0}, 128")
        e(f"s_cmp_eq_u32 s{sWV}, 3")
        e(f"s_cselect_b32 s{sTbase}, {OOB:#x}, s{sTbase}")
        e(f"s_cselect_b32 s{sTstep}, 0, s{sTstep}")

    def wt_issue(tau_reg_or_imm):
        if isinstance(tau_reg_or_imm, int):
            e(f"s_mov_b32 s{sT2}, {tau_reg_or_imm}")
        else:
            e(f"s_add_u32 s{sT2}, s{sCnt}, {WT[0]}")
        e(f"s_mul_i32 s{sT3}, s{sT2}, s{sTstep}")
        e(f"s_add_u32 s{sT3}, s{sT3}, s{sTbase}")
        e(f"s_and_b32 s{sT0}, s{sT2}, 3")
        e(f"s_cmp_eq_u32 s{sT0}, s{sCls}")
        e(f"s_cselect_b32 s{sT3}, s{sT3}, {OOB:#x}")
        e(f"s_cmp_lt_u32 s{sT2}, 16")
        e(f"s_cselect_b32 s{sT3}, s{sT3}, {OOB:#x}")
        e(f"buffer_load_dword v{vTD}, v{vTT}, s[{SRD_T}:{SRD_T+3}], s{sT3} offen {pol_w}")

    def sigma():
        if QORDER[0] == "adv":
            e(f"s_add_u32 s{sT1}, s{sStg}, 1")
            e(f"s_sub_u32 s{sT1}, s{sT1}, s{sCls}")
            e(f"s_and_b32 s{sT1}, s{sT1}, 3")
            e(f"s_cmp_eq_u32 s{sT1}, 0")
            e(f"s_cselect_b32 s{sT0}, 1, 0")
            e(f"s_cmp_eq_u32 s{sT1}, 1")
            e(f"s_cselect_b32 s{sT0}, -1, s{sT0}")
            e(f"s_add_u32 s{sSig}, s{sStg}, s{sT0}")
            e(f"s_cmp_lt_u32 s{sSig}, 16")
            e(f"s_cselect_b32 s{sSig}, s{sSig}, s{sStg}")
        elif QORDER[0] == "rot4":
            e(f"s_add_u32 s{sT1}, s{sStg}, s{sCls}")
            e(f"s_and_b32 s{sT1}, s{sT1}, 3")
            e(f"s_andn2_b32 s{sSig}, s{sStg}, 3")
            e(f"s_or_b32 s{sSig}, s{sSig}, s{sT1}")
        elif QORDER[0] == "rot8":
            e(f"s_lshl_b32 s{sT1}, s{sCls}, 1")
            e(f"s_add_u32 s{sT1}, s{sT1}, s{sStg}")
            e(f"s_and_b32 s{sT1}, s{sT1}, 7")
            e(f"s_andn2_b32 s{sSig}, s{sStg}, 7")
            e(f"s_or_b32 s{sSig}, s{sSig}, s{sT1}")
        elif QORDER[0] == "rot16":
            e(f"s_lshl_b32 s{sT1}, s{sCls}, 2")
            e(f"s_add_u32 s{sT1}, s{sT1}, s{sStg}")
            e(f"s_and_b32 s{sSig}, s{sT1}, 15")
        else:
            e(f"s_mov_b32 s{sSig}, s{sStg}")

    def issue_w():
        sigma()
        e(f"s_lshl_b32 s{sT0}, s{sWV}, 12")
        e(f"s_add_u32 s{sT0}, s{sT0}, s{sLB}")
        e(f"s_add_u32 m0, s{sWslotF}, s{sT0}")
        e(f"s_lshl_b32 s{sT1}, s{sSig}, 19")
        e(f"s_add_u32 s{sT1}, s{sT1}, s{sWoff}")
        for jj in range(4):
            e(f"buffer_load_dwordx4 v{vWD+jj}, s[{SRD_W}:{SRD_W+3}], s{sT1} offen offset:{jj*1024} {pol_w} lds")
        e(f"s_cmp_eq_u32 s{sWslotF}, {LDS_MISC}")
        e(f"s_cselect_b32 s{sT0}, 0, {LDS_MISC}")
        e(f"s_cmp_eq_u32 s{sWslotF}, 0")
        e(f"s_cselect_b32 s{sWslotF}, 16384, s{sT0}")

    def issue_x(par):
        e(f"s_mov_b32 s{sT0}, s{sM0b}")
        if par is not None:
            e(f"s_add_u32 m0, s{sT0}, {par*4096}")
        else:
            e(f"s_add_u32 m0, s{sT0}, s{sXslot}")
        e(f"s_lshl_b32 s{sT1}, s{sSig}, 7")
        e(f"s_add_u32 s{sT1}, s{sT1}, s{sXoff}")
        for jj in range(4):
            e(f"buffer_load_dwordx4 v{vXD+jj}, s[{SRD_X}:{SRD_X+3}], s{sT1} offen offset:{jj*1024} {pol_x} lds")
        e(f"s_add_u32 s{sStg}, s{sStg}, 1")

    class Cap:
        def __init__(self): self.L = []
        def __call__(self, t=""): self.L.append(t)

    def capture(fn):
        nonlocal e
        keep = e
        c = Cap(); e = c
        fn()
        e = keep
        return c.L

    def stage(first, issue, hook_w=None, hook_x=None, last=False):
        nwait = 9 if (WT[0] and not first) else 8
        e(f"s_waitcnt vmcnt({nwait})" if not last else "s_waitcnt vmcnt(0)")
        if ASYM[0]:
            GB[0] += 1
            L = f"qb{GB[0]}"
            e(f"s_cmp_lg_u32 s{sRole}, 0")
            e(f"s_cbranch_scc1 {L}_g")
            e("s_barrier")
            e(f"s_branch {L}_d")
            a.label(L + "_g")
            bar(a)
            a.label(L + "_d")
        else:
            e("s_barrier")
        for t in range(4):
            e(f"v_add_u32 v{vWR2+t}, s{sWslotR}, v{vWR+t}")
        for u in range(4):
            e(f"v_add_u32 v{vXR2+u}, s{sXslot}, v{vXR+u}")
        if 'd' in QSKIP[0]:
            issue = False
        def rx():
            if 'r' in QSKIP[0]: return []
            return [f"ds_read_b128 v[{FX+4*u}:{FX+4*u+3}], v{vXR2+u}" for u in range(4)]
        def rw(u):
            L = []
            if 'r' in QSKIP[0]: return L
            for t in range(4):
                for half in range(2):
                    r = FW + 16*u + 4*t + 2*half
                    L.append(f"ds_read_b64_tr_b16 v[{r}:{r+1}], v{vWR2+t} offset:{(16*u+4*half)*256}")
            return L
        def mm(u):
            L = []
            for t in range(4):
                c = "0" if (first and u == 0) else f"v[{ACC+16*t}:{ACC+16*t+15}]"
                L.append(f"v_mfma_f32_32x32x16_bf16 v[{ACC+16*t}:{ACC+16*t+15}], v[{FW+16*u+4*t}:{FW+16*u+4*t+3}], v[{FX+4*u}:{FX+4*u+3}], {c}" if 'm' not in QSKIP[0] else "s_nop 0")
            return L
        for ln in rx() + rw(0):
            e(ln)
        if issue:
            issue_w()
            if WT[0]:
                wt_issue("cnt")
        if hook_w:
            hook_w()
        e("s_waitcnt lgkmcnt(0)")
        fill = rw(1) + rw(2)
        k = 0
        for m in mm(0):
            e(m)
            for ln in fill[k:k+4]:
                e(ln)
            k += 4
        xl = capture(lambda: issue_x(None)) if issue else []
        e("s_waitcnt lgkmcnt(8)")
        fill = rw(3)
        k = 0
        for m in mm(1):
            e(m)
            for ln in fill[k:k+2]:
                e(ln)
            k += 2
        e("s_waitcnt lgkmcnt(8)")
        k = 0
        per = (len(xl) + 3) // 4
        for m in mm(2):
            e(m)
            for ln in xl[k:k+per]:
                e(ln)
            k += per
        if hook_x:
            hook_x()
        e("s_waitcnt lgkmcnt(0)")
        adv = [f"s_cmp_eq_u32 s{sWslotR}, {LDS_MISC}",
               f"s_cselect_b32 s{sT0}, 0, {LDS_MISC}",
               f"s_cmp_eq_u32 s{sWslotR}, 0",
               f"s_cselect_b32 s{sWslotR}, 16384, s{sT0}",
               f"s_xor_b32 s{sXslot}, s{sXslot}, 4096"]
        k = 0
        for m in mm(3):
            e(m)
            for ln in adv[k:k+2]:
                e(ln)
            k += 2

    e(f"s_mov_b32 s{sWslotF}, {LDS_MISC}")
    e(f"s_mov_b32 s{sWslotR}, {LDS_MISC}")
    e(f"s_mov_b32 s{sXslot}, 0")
    e(f"s_mov_b32 s{sStg}, 0")
    e(f"s_mov_b32 s{sCnt}, 0")
    if WT[0]:
        wt_setup()
        for tau in range(WT[0]):
            wt_issue(tau)
    issue_w(); issue_x(0)
    issue_w(); issue_x(1)
    stage(True, True)
    e(f"s_mov_b32 s{sCnt}, 1")
    a.label(f"{name}_qloop")
    if QMARKS[0]:
        ts_mark(a, 76)
        for k, cnt in enumerate((1, 2, 4, 8, 12)):
            e(f"s_cmp_eq_u32 s{sCnt}, {cnt}")
            e(f"s_cselect_b32 s{MK[2+k]}, s76, s{MK[2+k]}")
    if ALT[0]:
        e(f"s_add_u32 s{sT0}, s{sCnt}, s{sRole}")
        e(f"s_bitcmp1_b32 s{sT0}, 0")
        e(f"s_cbranch_scc1 {name}_p1")
        e("s_setprio 0")
        e(f"s_branch {name}_p2")
        a.label(f"{name}_p1")
        e("s_setprio 1")
        a.label(f"{name}_p2")
    if PSIG[0]:
        e(f"s_cmp_lg_u32 s{sCnt}, {PSIG[0]}")
        e(f"s_cbranch_scc1 {name}_ps_d")
        e(f"s_or_b32 s{sT0}, s{sWV}, s{sRole}")
        e(f"s_cmp_lg_u32 s{sT0}, 0")
        e(f"s_cbranch_scc1 {name}_ps_d")
        e(f"s_and_b32 s{sT0}, s2, 255")
        e(f"s_lshl_b32 s{sT0}, s{sT0}, 8")
        e(f"s_add_u32 s{sT0}, s{sT0}, {PAIR_OFF}")
        e(f"s_mul_i32 s{sT1}, s{sPairN}, 0x9e3779b1")
        e(f"s_add_u32 s{sT1}, s{sT1}, 0x7f4a7c15")
        e(f"v_mov_b32 v{vT0}, 0")
        e(f"v_mov_b32 v{vT1}, s{sT1}")
        e(f"v_cmp_eq_u32 vcc, 0, v0")
        e(f"s_and_saveexec_b64 s[{sT2}:{sT3}], vcc")
        e(f"buffer_store_dword v{vT1}, v{vT0}, s[{SRD_O}:{SRD_O+3}], s{sT0} offen offset:16 sc0 sc1")
        e(f"s_mov_b64 exec, s[{sT2}:{sT3}]")
        a.label(f"{name}_ps_d")
    stage(False, True)
    e(f"s_add_u32 s{sCnt}, s{sCnt}, 1")
    e(f"s_cmp_lt_u32 s{sCnt}, 14")
    e(f"s_cbranch_scc1 {name}_qloop")
    stage(False, False)
    stage(False, False, hook_w=after_barrier15, hook_x=after_x15, last=True)
    a.nop(12)
    for s in range(8):
        t, sg = s >> 1, s & 1
        for i in range(4):
            src = ACC + 16*t + 8*sg + 2*i
            e(f"v_cvt_pk_bf16_f32 v{QOWN+4*s+i}, v{src}, v{src+1}")


def gen_qproj_pipe(a, name, pol_x, pol_w, hook_w=None, hook_x=None):
    e = a.e
    FXs = [QCUR, QCUR + 16]
    WR = [vWR2, vXR2]

    def sigma_of(reg):
        if QORDER[0] == "adv":
            return [f"s_add_u32 s{sT1}, s{reg}, 1", f"s_sub_u32 s{sT1}, s{sT1}, s{sCls}", f"s_and_b32 s{sT1}, s{sT1}, 3",
                    f"s_cmp_eq_u32 s{sT1}, 0", f"s_cselect_b32 s{sT0}, 1, 0", f"s_cmp_eq_u32 s{sT1}, 1",
                    f"s_cselect_b32 s{sT0}, -1, s{sT0}", f"s_add_u32 s{sSig}, s{reg}, s{sT0}",
                    f"s_cmp_lt_u32 s{sSig}, 16", f"s_cselect_b32 s{sSig}, s{sSig}, s{reg}"]
        return [f"s_mov_b32 s{sSig}, s{reg}"]

    sPW, sPX = sStg, sXslot
    def w_lines():
        L = sigma_of(sPW)
        L += [f"s_lshl_b32 s{sT0}, s{sWV}, 12", f"s_add_u32 s{sT0}, s{sT0}, s{sLB}", f"s_add_u32 m0, s{sWslotF}, s{sT0}",
              f"s_lshl_b32 s{sT1}, s{sSig}, 19", f"s_add_u32 s{sT1}, s{sT1}, s{sWoff}"]
        L += [f"buffer_load_dwordx4 v{vWD+jj}, s[{SRD_W}:{SRD_W+3}], s{sT1} offen offset:{jj*1024} {pol_w} lds" for jj in range(4)]
        L += [f"s_cmp_eq_u32 s{sWslotF}, {LDS_MISC}", f"s_cselect_b32 s{sT0}, 0, {LDS_MISC}", f"s_cmp_eq_u32 s{sWslotF}, 0",
              f"s_cselect_b32 s{sWslotF}, 16384, s{sT0}", f"s_add_u32 s{sPW}, s{sPW}, 1"]
        return L
    def x_lines(par):
        L = [f"s_add_u32 m0, s{sM0b}, {par*4096}", f"s_lshl_b32 s{sT1}, s{sSig}, 7", f"s_add_u32 s{sT1}, s{sT1}, s{sXoff}"]
        L += [f"buffer_load_dwordx4 v{vXD+jj}, s[{SRD_X}:{SRD_X+3}], s{sT1} offen offset:{jj*1024} {pol_x} lds" for jj in range(4)]
        return L
    def rw(u, par):
        L = []
        for t in range(4):
            for half in range(2):
                r = FW + 16*u + 4*t + 2*half
                L.append(f"ds_read_b64_tr_b16 v[{r}:{r+1}], v{WR[par]+t} offset:{(16*u+4*half)*256}")
        return L
    def rx(par):
        return [f"ds_read_b128 v[{FXs[par]+4*u}:{FXs[par]+4*u+3}], v{vXR+u} offset:{par*4096}" for u in range(4)]
    def mm(u, par):
        return [f"v_mfma_f32_32x32x16_bf16 v[{ACC+16*t}:{ACC+16*t+15}], v[{FW+16*u+4*t}:{FW+16*u+4*t+3}], v[{FXs[par]+4*u}:{FXs[par]+4*u+3}], v[{ACC+16*t}:{ACC+16*t+15}]" for t in range(4)]
    def wr_set(par):
        L = [f"v_add_u32 v{WR[par]+t}, s{sWslotR}, v{vWR+t}" for t in range(4)]
        L += [f"s_cmp_eq_u32 s{sWslotR}, {LDS_MISC}", f"s_cselect_b32 s{sT0}, 0, {LDS_MISC}", f"s_cmp_eq_u32 s{sWslotR}, 0",
              f"s_cselect_b32 s{sWslotR}, 16384, s{sT0}"]
        return L
    def weave(main, fill):
        per = -(-len(fill) // len(main))
        k = 0
        for m in main:
            e(m)
            for ln in fill[k:k+per]:
                e(ln)
            k += per

    e(f"s_mov_b32 s{sWslotF}, {LDS_MISC}")
    e(f"s_mov_b32 s{sWslotR}, {LDS_MISC}")
    e(f"s_mov_b32 s{sPW}, 0")
    e(f"s_mov_b32 s{sPX}, 0")
    for ln in w_lines() + x_lines(0) + w_lines() + x_lines(1) + w_lines():
        e(ln)
    for j in range(64):
        e(f"v_mov_b32 v{ACC+j}, 0")
    for ln in wr_set(0):
        e(ln)
    e("s_waitcnt vmcnt(12)")
    e("s_barrier")
    for ln in rx(0) + rw(0, 0) + rw(1, 0):
        e(ln)

    def stage(par, xiss, wiss, nwait, last=False, hw=None, hx=None):
        e("s_waitcnt lgkmcnt(8)")
        if hx:
            hx()
        xl = x_lines(par) if xiss else []
        weave(mm(0, par), rw(2, par) + xl[:3])
        e("s_waitcnt lgkmcnt(8)")
        weave(mm(1, par), rw(3, par) + xl[3:])
        if last:
            e("s_waitcnt lgkmcnt(8)")
            weave(mm(2, par), [])
            e("s_waitcnt lgkmcnt(0)")
            weave(mm(3, par), [])
            return
        for ln in wr_set(par ^ 1):
            e(ln)
        e(f"s_waitcnt vmcnt({nwait}) lgkmcnt(0)")
        e("s_barrier")
        if hw:
            hw()
        wl = w_lines() if wiss else []
        cut = len(wl) - 9 if wiss else 0
        weave(mm(2, par), rx(par ^ 1) + rw(0, par ^ 1) + wl[:cut // 2])
        weave(mm(3, par), rw(1, par ^ 1) + wl[cut // 2:])

    e(f"s_mov_b32 s{sCnt}, 0")
    a.label(f"{name}_qloop")
    if PSIG[0]:
        e(f"s_cmp_lg_u32 s{sCnt}, {PSIG[0] & ~1}")
        e(f"s_cbranch_scc1 {name}_ps_d")
        e(f"s_or_b32 s{sT0}, s{sWV}, s{sRole}")
        e(f"s_cmp_lg_u32 s{sT0}, 0")
        e(f"s_cbranch_scc1 {name}_ps_d")
        e(f"s_and_b32 s{sT0}, s2, 255")
        e(f"s_lshl_b32 s{sT0}, s{sT0}, 8")
        e(f"s_add_u32 s{sT0}, s{sT0}, {PAIR_OFF}")
        e(f"s_mul_i32 s{sT1}, s{sPairN}, 0x9e3779b1")
        e(f"s_add_u32 s{sT1}, s{sT1}, 0x7f4a7c15")
        e(f"v_mov_b32 v{vT0}, 0")
        e(f"v_mov_b32 v{vT1}, s{sT1}")
        e(f"v_cmp_eq_u32 vcc, 0, v0")
        e(f"s_and_saveexec_b64 s[{sT2}:{sT3}], vcc")
        e(f"buffer_store_dword v{vT1}, v{vT0}, s[{SRD_O}:{SRD_O+3}], s{sT0} offen offset:16 sc0 sc1")
        e(f"s_mov_b64 exec, s[{sT2}:{sT3}]")
        a.label(f"{name}_ps_d")
    stage(0, True, True, 8)
    stage(1, True, True, 8)
    e(f"s_add_u32 s{sCnt}, s{sCnt}, 2")
    e(f"s_cmp_lt_u32 s{sCnt}, 12")
    e(f"s_cbranch_scc1 {name}_qloop")
    stage(0, True, True, 8)
    stage(1, True, False, 8)
    stage(0, False, False, 0, hw=hook_w)
    stage(1, False, False, 0, last=True, hx=hook_x)
    a.nop(12)
    for s in range(8):
        t, sg = s >> 1, s & 1
        for i in range(4):
            src = ACC + 16*t + 8*sg + 2*i
            e(f"v_cvt_pk_bf16_f32 v{QOWN+4*s+i}, v{src}, v{src+1}")


def issue_tile(e, srd, slot_reg, off_reg, imm, is_k, pol, rotT=None):
    e(f"s_mov_b32 m0, s{slot_reg}")
    if rotT is not None and KROT[0]:
        e(f"s_add_u32 s{sT0}, s{off_reg}, s{88 + rotT}")
    elif imm:
        e(f"s_add_u32 s{sT0}, s{off_reg}, {imm}")
    else:
        e(f"s_mov_b32 s{sT0}, s{off_reg}")
    for half in range(2):
        for jj in range(4):
            v = vKD + jj if is_k else vVD
            e(f"buffer_load_dwordx4 v{v}, s[{srd}:{srd+3}], s{sT0} offen offset:{jj*1024} {pol} lds")
        if half == 0:
            e(f"s_add_u32 m0, s{slot_reg}, 4096")
            e(f"s_add_u32 s{sT0}, s{sT0}, {4096 if GRAN[0] == 8192 else 16384}")


def k_tile(e, T, slot, hook, early=None):
    FK = O + 32*(T & 1)
    if early:
        e("s_waitcnt vmcnt(0)")
        early()
    else:
        e("s_waitcnt vmcnt(8)")
    for s in range(8):
        e(f"ds_read_b128 v[{FK+4*s}:{FK+4*s+3}], v{vKR+s} offset:{slot*LDS_RING1}")
    e("s_waitcnt lgkmcnt(0)")
    hook()
    for s in range(8):
        mfma(e, S+16*T, FK+4*s, QCUR+4*s, "0" if s == 0 else None)


def v_tile(e, T, slot, hook, early=None):
    FV = S + 32
    if early:
        e("s_waitcnt vmcnt(0)")
        early()
    else:
        e("s_waitcnt vmcnt(8)")
    for k in range(4):
        for u in range(2):
            for half in range(2):
                r = FV + 8*k + 4*u + 2*half
                e(f"ds_read_b64_tr_b16 v[{r}:{r+1}], v{vVR+k} offset:{slot*LDS_RING1 + (16*u+8*half)*256}")
    e("s_waitcnt lgkmcnt(0)")
    hook()
    for u in range(2):
        for k in range(4):
            mfma(e, O+16*k, FV+8*k+4*u, S+8*T+4*u, "0" if (T == 0 and u == 0) else None)


def softmax(a, nreg=64):
    e = a.e
    e(f"v_max3_f32 v{vMx}, v{S}, v{S+1}, v{S+2}")
    e(f"v_max3_f32 v{vT0}, v{S+3}, v{S+4}, v{S+5}")
    k = 6
    tgt = [vMx, vT0]
    n = 0
    while k + 1 < nreg:
        e(f"v_max3_f32 v{tgt[n&1]}, v{tgt[n&1]}, v{S+k}, v{S+k+1}")
        k += 2; n += 1
    e(f"v_max_f32 v{vMx}, v{vMx}, v{vT0}")
    e(f"v_mov_b32 v{vT0}, v{vMx}")
    a.nop(2)
    e(f"v_permlane32_swap_b32 v{vMx}, v{vT0}")
    a.nop(1)
    e(f"v_max_f32 v{vM}, v{vMx}, v{vT0}")
    e(f"v_mul_f32 v{vF}, s{sScale}, v{vM}")
    for k in range(nreg):
        e(f"v_fma_f32 v{S+k}, v{S+k}, s{sScale}, -v{vF}")
    for k in range(nreg):
        e(f"v_exp_f32 v{S+k}, v{S+k}")
    e(f"v_add_f32 v{vL}, v{S}, v{S+1}")
    e(f"v_add_f32 v{vT0}, v{S+2}, v{S+3}")
    for k in range(4, nreg, 2):
        e(f"v_add_f32 v{vL}, v{vL}, v{S+k}")
        e(f"v_add_f32 v{vT0}, v{vT0}, v{S+k+1}")
    for k in range(nreg//2):
        e(f"v_cvt_pk_bf16_f32 v{S+k}, v{S+2*k}, v{S+2*k+1}")
    e(f"v_add_f32 v{vL}, v{vL}, v{vT0}")
    e(f"v_mov_b32 v{vT0}, v{vL}")
    a.nop(2)
    e(f"v_permlane32_swap_b32 v{vL}, v{vT0}")
    a.nop(1)
    e(f"v_add_f32 v{vL}, v{vL}, v{vT0}")


def q_broadcast(a, name, tag, owner_reg_or_imm):
    e = a.e
    e(f"s_cmp_lg_u32 s{sWV}, {owner_reg_or_imm}")
    e(f"s_cbranch_scc1 {name}_{tag}_skip")
    e(f"v_add_u32 v{vA0}, {LDS_MISC}, v{vL16L}")
    for s in range(8):
        e(f"ds_write_b128 v{vA0}, v[{QOWN+4*s}:{QOWN+4*s+3}] offset:{s*1024}")
    e("s_waitcnt lgkmcnt(0)")
    a.label(f"{name}_{tag}_skip")
    bar(a)
    e(f"v_add_u32 v{vA0}, {LDS_MISC}, v{vL16L}")
    for s in range(8):
        e(f"ds_read_b128 v[{QCUR+4*s}:{QCUR+4*s+3}], v{vA0} offset:{s*1024}")
    e("s_waitcnt lgkmcnt(0)")


def gen_m1(a, name, pol):
    e = a.e
    sNext = sT5
    G = S + 32
    a.label(f"{name}_task")
    e(f"s_add_u32 s{sNext}, s{sKVoff}, s{sOoff}")
    e(f"s_cmp_lt_u32 s{sTask}, 3")
    e(f"s_cselect_b32 s{sNext}, s{sNext}, {OOB:#x}")
    slotreg = [sM0a, sM0b]
    none = lambda: None
    for T in range(4):
        if LOOK[0] == 2:
            if T < 2:
                hook = lambda T=T: issue_tile(e, SRD_K, slotreg[T & 1], sKVoff, (T+2)*32768, True, pol)
            else:
                hook = lambda T=T: issue_tile(e, SRD_V, slotreg[T & 1], sKVoff, (T-2)*32768, False, pol)
            k_tile(e, T, T & 1, hook)
        else:
            if T < 3:
                early = lambda T=T: issue_tile(e, SRD_K, slotreg[(T+1) & 1], sKVoff, (T+1)*32768, True, pol, T+1)
            else:
                early = lambda: issue_tile(e, SRD_V, sM0a, sKVoff, 0, False, pol, 0)
            k_tile(e, T, T & 1, none, early)
    softmax(a)
    e(f"s_cmp_ge_u32 s{sTask}, 3")
    e(f"s_cbranch_scc1 {name}_noq")
    e(f"s_add_u32 s{sT4}, s{sTask}, 1")
    q_broadcast(a, name, "qn", f"s{sT4}")
    a.label(f"{name}_noq")
    for T in range(4):
        if LOOK[0] == 2:
            if T < 2:
                hook = lambda T=T: issue_tile(e, SRD_V, slotreg[T & 1], sKVoff, (T+2)*32768, False, pol)
            elif T == 2:
                hook = lambda: issue_tile(e, SRD_K, sM0a, sNext, 0, True, pol)
            else:
                hook = lambda: None
            v_tile(e, T, T & 1, hook)
        else:
            if T < 3:
                early = lambda T=T: issue_tile(e, SRD_V, slotreg[(T+1) & 1], sKVoff, (T+1)*32768, False, pol, T+1)
            else:
                early = lambda: issue_tile(e, SRD_K, sM0a, sNext, 0, True, pol, 0)
            v_tile(e, T, T & 1, none, early)
    e(f"v_and_b32 v{vT0}, 31, v0")
    e(f"v_lshlrev_b32 v{vT0}, 3, v{vT0}")
    e(f"v_add_u32 v{vT0}, {LDS_MISC + 8192}, v{vT0}")
    e(f"v_add_u32 v{vT0}, s{sLB}, v{vT0}")
    e(f"s_lshl_b32 s{sT0}, s{sWV}, 8")
    e(f"v_add_u32 v{vA0}, s{sT0}, v{vT0}")
    e(f"v_add_u32 v{vA1}, s{sM0b}, v{vLane16}")
    e(f"ds_write_b32 v{vA0}, v{vM}")
    e(f"ds_write_b32 v{vA0}, v{vL} offset:4")
    a.nop(10)
    for k in (1, 2):
        for j in range(4):
            e(f"ds_write_b128 v{vA1}, v[{O+16*k+4*j}:{O+16*k+4*j+3}] offset:{(k-1)*4096 + j*1024}")
    e("s_waitcnt lgkmcnt(0)")
    bar(a)
    for k in range(4):
        e(f"s_sub_u32 s{sT0}, s{sWV}, {k}")
        e(f"s_and_b32 s{sT0}, s{sT0}, 3")
        e(f"s_lshl_b32 s{sT0}, s{sT0}, 8")
        e(f"v_add_u32 v{vA0}, s{sT0}, v{vT0}")
        e(f"ds_read_b64 v[{G+2*k}:{G+2*k+1}], v{vA0}")
    TI = S
    for k in (1, 2):
        e(f"s_sub_u32 s{sT0}, s{sWV}, {k}")
        e(f"s_and_b32 s{sT0}, s{sT0}, 3")
        e(f"s_lshl_b32 s{sT0}, s{sT0}, 13")
        e(f"s_add_u32 s{sT0}, s{sT0}, {LDS_RING1 + (k-1)*4096}")
        e(f"v_add_u32 v{vA0}, s{sT0}, v{vL16L}")
        for j in range(4):
            e(f"ds_read_b128 v[{TI+16*(k-1)+4*j}:{TI+16*(k-1)+4*j+3}], v{vA0} offset:{j*1024}")
    e("s_waitcnt lgkmcnt(8)")
    e(f"v_max3_f32 v{vMx}, v{G}, v{G+2}, v{G+4}")
    e(f"v_max_f32 v{vMx}, v{vMx}, v{G+6}")
    e(f"v_mul_f32 v{vMx}, s{sScale}, v{vMx}")
    for k in range(4):
        e(f"v_fma_f32 v{G+2*k}, v{G+2*k}, s{sScale}, -v{vMx}")
    for k in range(4):
        e(f"v_exp_f32 v{G+2*k}, v{G+2*k}")
    a.nop(1)
    e(f"v_mul_f32 v{vF}, v{G}, v{G+1}")
    for k in range(1, 4):
        e(f"v_fma_f32 v{vF}, v{G+2*k}, v{G+2*k+1}, v{vF}")
    e(f"v_rcp_f32 v{vF}, v{vF}")
    a.nop(1)
    for k in range(4):
        e(f"v_mul_f32 v{G+2*k}, v{G+2*k}, v{vF}")
    for j in range(16):
        e(f"v_mul_f32 v{O+j}, v{O+j}, v{G}")
    e("s_waitcnt lgkmcnt(0)")
    for k in (1, 2):
        for j in range(16):
            e(f"v_fma_f32 v{O+j}, v{TI+16*(k-1)+j}, v{G+2*k}, v{O+j}")
    bar(a)
    for j in range(4):
        e(f"ds_write_b128 v{vA1}, v[{O+48+4*j}:{O+48+4*j+3}] offset:{j*1024}")
    e("s_waitcnt lgkmcnt(0)")
    bar(a)
    e(f"s_sub_u32 s{sT0}, s{sWV}, 3")
    e(f"s_and_b32 s{sT0}, s{sT0}, 3")
    e(f"s_lshl_b32 s{sT0}, s{sT0}, 13")
    e(f"s_add_u32 s{sT0}, s{sT0}, {LDS_RING1}")
    e(f"v_add_u32 v{vA0}, s{sT0}, v{vL16L}")
    for j in range(4):
        e(f"ds_read_b128 v[{TI+4*j}:{TI+4*j+3}], v{vA0} offset:{j*1024}")
    e("s_waitcnt lgkmcnt(0)")
    bar(a)
    if LOOK[0] == 2:
        issue_tile(e, SRD_K, sM0b, sNext, 32768, True, pol)
    for j in range(16):
        e(f"v_fma_f32 v{O+j}, v{TI+j}, v{G+6}, v{O+j}")
    for k in range(24):
        e(f"v_mov_b32 v{DEF+k}, v{DEF+8+k}")
    for j in range(8):
        e(f"v_cvt_pk_bf16_f32 v{DEF+24+j}, v{O+2*j}, v{O+2*j+1}")
    if TIMING[0]:
        ts_mark(a, 76)
        for k in range(4):
            e(f"s_cmp_eq_u32 s{sTask}, {k}")
            e(f"s_cselect_b32 s{MK[2+k]}, s76, s{MK[2+k]}")
    e(f"s_mov_b32 s{sKVoff}, s{sNext}")
    e(f"s_add_u32 s{sTask}, s{sTask}, 1")
    e(f"s_cmp_lt_u32 s{sTask}, 4")
    e(f"s_cbranch_scc1 {name}_task")
    e("s_waitcnt vmcnt(0)")
    e(f"s_xor_b32 s{sT0}, s{sRole}, 1")
    e(f"s_lshl_b32 s{sT0}, s{sT0}, 23")
    e(f"s_lshl_b32 s{sT1}, s{sI}, 18")
    e(f"s_add_u32 s{sT0}, s{sT0}, s{sT1}")
    e(f"s_lshl_b32 s{sT1}, s{sH}, 13")
    e(f"s_add_u32 s{sT0}, s{sT0}, s{sT1}")
    e(f"s_lshl_b32 s{sT1}, s{sWV}, 11")
    e(f"s_add_u32 s{sT0}, s{sT0}, s{sT1}")
    for r in range(4):
        for sg in range(2):
            e(f"buffer_store_dwordx4 v[{DEF+8*r+4*sg}:{DEF+8*r+4*sg+3}], v{vLane16}, s[{SRD_O}:{SRD_O+3}], s{sT0} offen offset:{sg*1024} {OPOL[0]}")
        if r < 3:
            e(f"s_add_u32 s{sT0}, s{sT0}, {8*262144}")


def gen_touch(a, pol):
    e = a.e
    vD = S
    e(f"s_bfe_u32 s{sT2}, s2, 0x50003")
    e(f"v_lshrrev_b32 v{vT0}, 4, v0")
    e(f"v_lshlrev_b32 v{vT0}, 13, v{vT0}")
    e(f"v_and_b32 v{vT1}, 15, v0")
    e(f"v_lshlrev_b32 v{vT1}, 7, v{vT1}")
    e(f"v_add_u32 v{vT0}, v{vT0}, v{vT1}")
    e(f"s_lshl_b32 s{sT0}, s{sWV}, 5")
    e(f"s_add_u32 s{sT0}, s{sT0}, s{sT2}")
    e(f"s_lshl_b32 s{sT0}, s{sT0}, 15")
    e(f"s_lshr_b32 s{sT1}, s{sX}, 1")
    e(f"s_lshl_b32 s{sT1}, s{sT1}, 11")
    e(f"s_add_u32 s{sT0}, s{sT0}, s{sT1}")
    e(f"s_add_u32 s{sT1}, s{sT0}, {128*4*8192}")
    e(f"s_lshl_b32 s{sT3}, s{sWV}, 5")
    e(f"s_add_u32 s{sT3}, s{sT3}, s{sT2}")
    e(f"s_and_b32 s{sT2}, s{sT3}, 7")
    e(f"s_lshl_b32 s{sT2}, s{sT2}, 6")
    e(f"v_add_u32 v{vT1}, s{sT2}, v0")
    e(f"v_bfe_u32 v{vT2}, v{vT1}, 5, 2")
    e(f"v_lshrrev_b32 v{vT3}, 7, v{vT1}")
    e(f"v_lshlrev_b32 v{vT3}, 3, v{vT3}")
    e(f"v_add_u32 v{vT2}, v{vT2}, v{vT3}")
    e(f"v_lshlrev_b32 v{vT2}, 5, v{vT2}")
    e(f"v_and_b32 v{vT1}, 31, v{vT1}")
    e(f"v_add_u32 v{vT1}, v{vT1}, v{vT2}")
    e(f"v_lshlrev_b32 v{vT1}, 11, v{vT1}")
    e(f"s_lshr_b32 s{sT3}, s{sT3}, 3")
    e(f"s_lshl_b32 s{sT3}, s{sT3}, 7")
    e(f"s_and_b32 s{sT2}, s{sX}, 1")
    e(f"s_lshl_b32 s{sT2}, s{sT2}, 18")
    e(f"s_add_u32 s{sT3}, s{sT3}, s{sT2}")
    e(f"buffer_load_dword v{vD}, v{vT0}, s[{SRD_W}:{SRD_W+3}], s{sT0} offen {pol}")
    e(f"buffer_load_dword v{vD+1}, v{vT1}, s[{SRD_X}:{SRD_X+3}], s{sT3} offen {pol}")
    e(f"buffer_load_dword v{vD+2}, v{vT0}, s[{SRD_W}:{SRD_W+3}], s{sT1} offen {pol}")


def poll_counter(a, label, off_reg, mask, shift_reg, target, bound, sleep=8):
    e = a.e
    e(f"v_mov_b32 v{vT0}, s{off_reg}")
    if bound:
        e(f"s_mov_b32 s{sT3}, {bound}")
    a.label(label)
    e(f"buffer_load_dword v{vT1}, v{vT0}, s[{SRD_D}:{SRD_D+3}], 0 offen sc1")
    e("s_waitcnt vmcnt(0)")
    e(f"v_readfirstlane_b32 s{sT1}, v{vT1}")
    a.nop(3)
    if shift_reg is not None:
        e(f"s_lshr_b32 s{sT1}, s{sT1}, s{shift_reg}")
    e(f"s_and_b32 s{sT1}, s{sT1}, {mask}")
    e(f"s_cmp_ge_u32 s{sT1}, {target}")
    e(f"s_cbranch_scc1 {label}_ok")
    if bound:
        e(f"s_sub_u32 s{sT3}, s{sT3}, 1")
        e(f"s_cmp_eq_u32 s{sT3}, 0")
        e(f"s_cbranch_scc1 {label}_ok")
    e(f"s_sleep {sleep}")
    e(f"s_branch {label}")
    a.label(label + "_ok")


def signal(a, label, off_reg, val_reg_or_imm):
    e = a.e
    e(f"s_cmp_lg_u32 s{sWV}, 0")
    e(f"s_cbranch_scc1 {label}")
    e(f"v_mov_b32 v{vT0}, s{off_reg}")
    e(f"v_mov_b32 v{vT1}, {val_reg_or_imm}")
    e(f"v_cmp_eq_u32 vcc, 0, v0")
    e(f"s_and_saveexec_b64 s[{sT2}:{sT3}], vcc")
    e(f"buffer_atomic_add v{vT1}, v{vT0}, s[{SRD_D}:{SRD_D+3}], 0 offen sc1")
    e(f"s_mov_b64 exec, s[{sT2}:{sT3}]")
    a.label(label)


def gen_flash(a, name, pol):
    e = a.e
    FK = [QOWN, DEF]
    sNextK, sNextV = sT4, sT5
    e(f"s_lshl_b32 s{sT0}, s{sB}, 5")
    e(f"s_add_u32 s{sT0}, s{sT0}, s{sH}")
    e(f"s_lshl_b32 s{sT0}, s{sT0}, 13")
    e(f"s_add_u32 s{sT0}, s{sT0}, {QWS_OFF}")
    for s in range(8):
        if s == 4:
            e(f"s_add_u32 s{sT0}, s{sT0}, 4096")
        e(f"buffer_store_dwordx4 v[{QOWN+4*s}:{QOWN+4*s+3}], v{vLane16}, s[{SRD_O}:{SRD_O+3}], s{sT0} offen offset:{(s%4)*1024} {QST[0]}")
    e("s_waitcnt vmcnt(0)")
    if XM[0]: mark(a, 3)
    bar(a)
    e(f"v_readfirstlane_b32 s{sNonce}, v{vNon}")
    a.nop(3)
    e(f"s_mul_i32 s{sNonce}, s{sNonce}, 0x9e3779b1")
    e(f"s_add_u32 s{sNonce}, s{sNonce}, 0x7f4a7c15")
    e(f"s_cmp_lg_u32 s{sWV}, 0")
    e(f"s_cbranch_scc1 {name}_qwait")
    e(f"s_and_b32 s{sT0}, s{sH}, 3")
    e(f"s_lshl_b32 s{sT0}, s{sT0}, 2")
    e(f"s_add_u32 s{sT0}, s{sT0}, s{sFlag}")
    e(f"s_add_u32 s{sT0}, s{sT0}, 16")
    e(f"v_mov_b32 v{vT0}, 0")
    e(f"v_mov_b32 v{vT1}, s{sNonce}")
    e(f"v_cmp_eq_u32 vcc, 0, v0")
    e(f"s_and_saveexec_b64 s[{sT2}:{sT3}], vcc")
    e(f"buffer_store_dword v{vT1}, v{vT0}, s[{SRD_O}:{SRD_O+3}], s{sT0} offen sc0 sc1")
    e(f"s_mov_b64 exec, s[{sT2}:{sT3}]")
    if SPOLL[0]:
        e(f"s_add_u32 s56, s{SRD_O}, s{sFlag}")
        e(f"s_addc_u32 s57, s{SRD_O+1}, 0")
        a.label(f"{name}_spinq")
        e(f"s_load_dwordx4 s[52:55], s[56:57], 16 glc")
        e("s_waitcnt lgkmcnt(0)")
        e(f"s_xor_b32 s{sT0}, s52, s{sNonce}")
        for k in range(1, 4):
            e(f"s_xor_b32 s{sT1}, s{52+k}, s{sNonce}")
            e(f"s_or_b32 s{sT0}, s{sT0}, s{sT1}")
        e(f"s_cmp_eq_u32 s{sT0}, 0")
        e(f"s_cbranch_scc1 {name}_pollq")
        e("s_sleep 2")
        e(f"s_branch {name}_spinq")
    a.label(f"{name}_pollq")
    e(f"buffer_load_dwordx4 v[{S}:{S+3}], v{vT0}, s[{SRD_O}:{SRD_O+3}], s{sFlag} offen offset:16 sc0 sc1")
    e("s_waitcnt vmcnt(0)")
    for k in range(4):
        e(f"v_xor_b32 v{S+k}, s{sNonce}, v{S+k}")
    e(f"v_or3_b32 v{S}, v{S}, v{S+1}, v{S+2}")
    e(f"v_or_b32 v{S}, v{S}, v{S+3}")
    a.nop(1)
    e(f"v_readfirstlane_b32 s{sT1}, v{S}")
    a.nop(3)
    e(f"s_cmp_eq_u32 s{sT1}, 0")
    e(f"s_cbranch_scc1 {name}_pollq_ok")
    e(f"s_sleep {SLEEPQ[0]}")
    e(f"s_branch {name}_pollq")
    a.label(f"{name}_pollq_ok")
    if XM[0]: mark(a, 4)
    e(f"v_cmp_eq_u32 vcc, 0, v0")
    e(f"s_and_saveexec_b64 s[{sT2}:{sT3}], vcc")
    e(f"buffer_store_dword v{vT1}, v{vT0}, s[{SRD_O}:{SRD_O+3}], s{sFlag} offen sc0 sc1")
    e(f"s_mov_b64 exec, s[{sT2}:{sT3}]")
    if INV[0]:
        e("buffer_inv sc1")
    e("s_waitcnt vmcnt(0)")
    if XM[0]: mark(a, 5)
    a.label(f"{name}_qwait")
    bar(a)
    mark(a, 2)
    e(f"s_lshl_b32 s{sT0}, s{sBs}, 5")
    e(f"s_lshl_b32 s{sT1}, s{sHq}, 2")
    e(f"s_add_u32 s{sT1}, s{sT1}, s{sWV}")
    e(f"s_add_u32 s{sT0}, s{sT0}, s{sT1}")
    e(f"s_lshl_b32 s{sT0}, s{sT0}, 13")
    e(f"s_add_u32 s{sT0}, s{sT0}, {QWS_OFF}")
    for s in range(8):
        if s == 4:
            e(f"s_add_u32 s{sT0}, s{sT0}, 4096")
        e(f"buffer_load_dwordx4 v[{QCUR+4*s}:{QCUR+4*s+3}], v{vLane16}, s[{SRD_O}:{SRD_O+3}], s{sT0} offen offset:{(s%4)*1024} {QST[1]}")
    issue_tile(e, SRD_K, sM0a, sKVoff, 0, True, pol)
    issue_tile(e, SRD_V, sM0b, sKVoff, 0, False, pol)
    for s in range(8):
        e(f"v_subrev_u32 v{vKR+s}, s{sW8}, v{vKR+s}")
    e(f"s_lshl_b32 s{sT0}, s{sWV}, 6")
    e(f"v_subrev_u32 v{vT2}, s{sW8}, v{vVR}")
    e(f"v_xor_b32 v{vT2}, s{sT0}, v{vT2}")
    for k in range(4):
        e(f"v_xor_b32 v{vVR+k}, {k*64}, v{vT2}")
    for j in range(64):
        e(f"v_mov_b32 v{O+j}, 0")
    e(f"v_mov_b32 v{vM}, 0xff7fffff")
    e(f"v_mov_b32 v{vL}, 0")
    e(f"s_mov_b32 s{sTask}, 0")
    a.label(f"{name}_chunk")
    e(f"s_add_u32 s{sNextK}, s{sKVoff}, 32768")
    e(f"s_cmp_lt_u32 s{sTask}, 3")
    e(f"s_cselect_b32 s{sNextK}, s{sNextK}, {OOB:#x}")
    e("s_waitcnt vmcnt(8)")
    bar(a)
    def rk(T):
        for s in range(8):
            e(f"ds_read_b128 v[{FK[T&1]+4*s}:{FK[T&1]+4*s+3}], v{vKR+s} offset:{T*8192}")
    def mk(T):
        for s in range(8):
            mfma(e, S+16*T, FK[T&1]+4*s, QCUR+4*s, "0" if s == 0 else None)
    rk(0); rk(1)
    e("s_waitcnt lgkmcnt(8)")
    mk(0)
    rk(2)
    e("s_waitcnt lgkmcnt(8)")
    mk(1)
    rk(3)
    e("s_waitcnt lgkmcnt(8)")
    mk(2)
    e("s_waitcnt lgkmcnt(0)")
    bar(a)
    issue_tile(e, SRD_K, sM0a, sNextK, 0, True, pol)
    mk(3)
    e(f"v_max3_f32 v{vMx}, v{S}, v{S+1}, v{S+2}")
    e(f"v_max3_f32 v{vT0}, v{S+3}, v{S+4}, v{S+5}")
    k = 6; n = 0
    tgt = [vMx, vT0]
    while k + 1 < 64:
        e(f"v_max3_f32 v{tgt[n&1]}, v{tgt[n&1]}, v{S+k}, v{S+k+1}")
        k += 2; n += 1
    e(f"v_max3_f32 v{vMx}, v{vMx}, v{vT0}, v{vM}")
    e(f"v_mov_b32 v{vT0}, v{vMx}")
    a.nop(2)
    e(f"v_permlane32_swap_b32 v{vMx}, v{vT0}")
    a.nop(1)
    e(f"v_max_f32 v{vMx}, v{vMx}, v{vT0}")
    e(f"v_mul_f32 v{vF}, s{sScale}, v{vMx}")
    e(f"v_fma_f32 v{vT1}, v{vM}, s{sScale}, -v{vF}")
    e(f"v_exp_f32 v{vT1}, v{vT1}")
    e(f"v_mov_b32 v{vM}, v{vMx}")
    for k in range(64):
        e(f"v_fma_f32 v{S+k}, v{S+k}, s{sScale}, -v{vF}")
    for k in range(64):
        e(f"v_exp_f32 v{S+k}, v{S+k}")
    for k in range(64):
        e(f"v_mul_f32 v{O+k}, v{O+k}, v{vT1}")
    e(f"v_add_f32 v{vT2}, v{S}, v{S+1}")
    e(f"v_add_f32 v{vT0}, v{S+2}, v{S+3}")
    for k in range(4, 64, 2):
        e(f"v_add_f32 v{vT2}, v{vT2}, v{S+k}")
        e(f"v_add_f32 v{vT0}, v{vT0}, v{S+k+1}")
    for k in range(32):
        e(f"v_cvt_pk_bf16_f32 v{S+k}, v{S+2*k}, v{S+2*k+1}")
    e(f"v_add_f32 v{vT2}, v{vT2}, v{vT0}")
    e(f"v_fma_f32 v{vL}, v{vL}, v{vT1}, v{vT2}")
    e("s_waitcnt vmcnt(8)")
    bar(a)
    FV = [S+32, QOWN]
    def rv(T):
        for k in range(4):
            for u in range(2):
                for half in range(2):
                    r = FV[T&1] + 8*k + 4*u + 2*half
                    e(f"ds_read_b64_tr_b16 v[{r}:{r+1}], v{vVR+k} offset:{LDS_RING1 + T*8192 + (16*u+8*half)*256}")
    def mv(T):
        for u in range(2):
            for k in range(4):
                mfma(e, O+16*k, FV[T&1]+8*k+4*u, S+8*T+4*u)
    rv(0)
    e("s_waitcnt lgkmcnt(0)")
    rv(1); mv(0)
    e("s_waitcnt lgkmcnt(0)")
    rv(2); mv(1)
    e("s_waitcnt lgkmcnt(0)")
    rv(3); mv(2)
    e("s_waitcnt lgkmcnt(0)")
    bar(a)
    issue_tile(e, SRD_V, sM0b, sNextK, 0, False, pol)
    mv(3)
    if TIMING[0]:
        ts_mark(a, 76)
        for k in range(4):
            e(f"s_cmp_eq_u32 s{sTask}, {k}")
            if not XM[0] or k == 3:
                e(f"s_cselect_b32 s{MK[3+k]}, s76, s{MK[3+k]}")
    e(f"s_mov_b32 s{sKVoff}, s{sNextK}")
    e(f"s_add_u32 s{sTask}, s{sTask}, 1")
    e(f"s_cmp_lt_u32 s{sTask}, 4")
    e(f"s_cbranch_scc1 {name}_chunk")
    e(f"v_mov_b32 v{vT0}, v{vL}")
    a.nop(2)
    e(f"v_permlane32_swap_b32 v{vL}, v{vT0}")
    a.nop(1)
    e(f"v_add_f32 v{vL}, v{vL}, v{vT0}")
    e(f"v_rcp_f32 v{vF}, v{vL}")
    a.nop(8)
    for k in range(64):
        e(f"v_mul_f32 v{O+k}, v{O+k}, v{vF}")
    for k in range(32):
        e(f"v_cvt_pk_bf16_f32 v{S+k}, v{O+2*k}, v{O+2*k+1}")
    e("s_waitcnt vmcnt(0)")
    e(f"s_lshl_b32 s{sT0}, s{sBs}, 18")
    e(f"s_lshl_b32 s{sT1}, s{sHq}, 2")
    e(f"s_add_u32 s{sT1}, s{sT1}, s{sWV}")
    e(f"s_lshl_b32 s{sT1}, s{sT1}, 13")
    e(f"s_add_u32 s{sT0}, s{sT0}, s{sT1}")
    for f in range(8):
        if f == 4:
            e(f"s_add_u32 s{sT0}, s{sT0}, 4096")
        e(f"buffer_store_dwordx4 v[{S+4*f}:{S+4*f+3}], v{vLane16}, s[{SRD_O}:{SRD_O+3}], s{sT0} offen offset:{(f%4)*1024} {OPOL[0]}")


def gen_attn(a, name, timing=False, pol_x="nt", pol_w="nt", pol_kv="nt", touch=True, delay_a=True, thresh=32, bound=64, qmarks=False, only=None, qonly=False, qskip='', qorder='adv', look=2, prio_a=0, prio_b=0, touch_a=False, sleep_q=8, sleep_b=48, xmarks=False, use_inv=False, altprio=False, codepf=0, gran=8192, krot=False, qpipe=False, endwb=False, spoll=False, fuse=False, p3opt=None, opol='', gsleep=1, psig=10, pairwait=0, wo_early=None, asym=False, pol_kv_a=None, clk=False, single=False, exp_sleep=0, wo_pf=None, wtouch=0, prio_flash=0, qst='sc0 sc1', qld='sc0 sc1'):
    kernel_header(a, name)
    e = a.e
    TIMING[0] = timing
    QMARKS[0] = qmarks
    QSKIP[0] = qskip
    QORDER[0] = qorder
    LOOK[0] = look
    SLEEPQ[0] = sleep_q
    XM[0] = xmarks
    ALT[0] = altprio
    ASYM[0] = asym
    KROT[0] = krot
    GRAN[0] = gran
    SPOLL[0] = spoll
    OPOL[0] = opol
    GSLEEP[0] = gsleep
    PSIG[0] = psig if pairwait else 0
    SINGLE[0] = single
    GB[0] = 0
    WT[0] = wtouch
    INV[0] = use_inv
    QST[0] = qst
    QST[1] = qld
    gen_prologue(a, name, timing)
    if only == "B":
        e(f"s_cmp_lg_u32 s{sRole}, 0")
        e(f"s_cbranch_scc1 {name}_done")
    if only == "A":
        e(f"s_cmp_eq_u32 s{sRole}, 0")
        e(f"s_cbranch_scc1 {name}_done")
    if timing:
        for k in range(8):
            e(f"s_mov_b32 s{MK[k]}, 0")
    e(f"s_and_b32 s{sT2}, s{sH}, 3")
    e(f"s_lshl_b32 s{sT2}, s{sT2}, 3")
    e(f"s_add_u32 s{sBs}, s{sT2}, s{sI}")
    e(f"s_lshr_b32 s{sHq}, s{sH}, 2")
    e(f"s_lshl_b32 s{sT0}, s{sI}, 5")
    e(f"s_add_u32 s{sT0}, s{sT0}, s{sH}")
    e(f"s_lshl_b32 s{sT1}, s{sBs}, 2")
    e(f"s_lshr_b32 s{sT2}, s{sH}, 3")
    e(f"s_add_u32 s{sT1}, s{sT1}, s{sT2}")
    e(f"s_cmp_eq_u32 s{sRole}, 0")
    e(f"s_cselect_b32 s{sKVoff}, s{sT0}, s{sT1}")
    e(f"s_lshl_b32 s{sKVoff}, s{sKVoff}, 17")
    if GRAN[0] == 8192:
        e(f"s_add_u32 s{sKVoff}, s{sKVoff}, s{sW8}")
    else:
        e(f"s_lshl_b32 s{sT0}, s{sWV}, 12")
        e(f"s_add_u32 s{sKVoff}, s{sKVoff}, s{sT0}")
    if krot:
        if krot == 1:
            e(f"s_and_b32 s{sT0}, s{sH}, 3")
        elif krot == 2:
            e(f"s_add_u32 s{sT0}, s{sH}, s{sI}")
        else:
            e(f"s_lshr_b32 s{sT0}, s{sH}, 1")
            e(f"s_add_u32 s{sT0}, s{sT0}, s{sI}")
        for T in range(4):
            e(f"s_add_u32 s{88+T}, s{sT0}, {T}")
            e(f"s_and_b32 s{88+T}, s{88+T}, 3")
            e(f"s_lshl_b32 s{88+T}, s{88+T}, 15")
    e(f"s_mov_b32 s{sOoff}, {8*32*131072}")
    if pairwait:
        e(f"s_and_b32 s{sT0}, s2, 255")
        e(f"s_lshl_b32 s{sT0}, s{sT0}, 8")
        e(f"s_add_u32 s{sT0}, s{sT0}, {PAIR_OFF}")
        e(f"s_add_u32 s{sPairP}, s{SRD_O}, s{sT0}")
        e(f"s_addc_u32 s{sPairP+1}, s{SRD_O+1}, 0")
        e(f"s_load_dword s{sPairN}, s[{sPairP}:{sPairP+1}], 0 glc")
    if fuse:
        import phase3
        phase3.entry_loads(a)
    e(f"s_cmp_eq_u32 s{sRole}, 0")
    e(f"s_cbranch_scc1 {name}_startb")
    if pairwait:
        e("s_waitcnt lgkmcnt(0)")
        e(f"s_mul_i32 s{sPairN}, s{sPairN}, 0x9e3779b1")
        e(f"s_add_u32 s{sPairN}, s{sPairN}, 0x7f4a7c15")
        e(f"s_mov_b32 s{sT3}, {pairwait}")
        a.label(f"{name}_pw")
        e(f"s_load_dword s{sT1}, s[{sPairP}:{sPairP+1}], 16 glc")
        e("s_waitcnt lgkmcnt(0)")
        e(f"s_cmp_eq_u32 s{sT1}, s{sPairN}")
        e(f"s_cbranch_scc1 {name}_pw_ok")
        e(f"s_sub_u32 s{sT3}, s{sT3}, 1")
        e(f"s_cmp_eq_u32 s{sT3}, 0")
        e(f"s_cbranch_scc1 {name}_pw_ok")
        e("s_sleep 4")
        e(f"s_branch {name}_pw")
        a.label(f"{name}_pw_ok")
        e(f"s_cmp_lg_u32 s{sWV}, 0")
        e(f"s_cbranch_scc1 {name}_pw_d")
        e(f"s_and_b32 s{sT0}, s2, 255")
        e(f"s_lshl_b32 s{sT0}, s{sT0}, 8")
        e(f"s_add_u32 s{sT0}, s{sT0}, {PAIR_OFF}")
        e(f"v_mov_b32 v{vT0}, 0")
        e(f"v_mov_b32 v{vT1}, s{sPairN}")
        e(f"v_cmp_eq_u32 vcc, 0, v0")
        e(f"s_and_saveexec_b64 s[{sT2}:{sT3}], vcc")
        e(f"buffer_store_dword v{vT1}, v{vT0}, s[{SRD_O}:{SRD_O+3}], s{sT0} offen sc0 sc1")
        e(f"s_mov_b64 exec, s[{sT2}:{sT3}]")
        a.label(f"{name}_pw_d")
    if codepf:
        e(f"s_getpc_b64 s[52:53]")
        a.label(f"{name}_pc")
        e(f"s_bfe_u32 s{sT0}, s2, 0x50003")
        e(f"s_lshl_b32 s{sT0}, s{sT0}, 2")
        e(f"s_add_u32 s{sT0}, s{sT0}, s{sWV}")
        e(f"s_mul_i32 s{sT0}, s{sT0}, {64*codepf}")
        e(f"s_add_u32 s52, s52, s{sT0}")
        e(f"s_addc_u32 s53, s53, 0")
        for k in range(codepf):
            e(f"s_load_dwordx16 s[56:71], s[52:53], {64*k}")
        e("s_waitcnt lgkmcnt(0)")
    if wo_early is not None:
        e(f"s_load_dwordx2 s[52:53], s[0:1], 32")
        e(f"s_load_dwordx2 s[54:55], s[0:1], 72")
        e(f"s_and_b32 s{sT0}, s2, 255")
        e(f"s_lshl_b32 s{sT0}, s{sT0}, 2")
        e(f"s_add_u32 s{sT0}, s{sT0}, s{sWV}")
        e(f"s_waitcnt lgkmcnt(0)")
        e(f"s_cmp_lt_u32 s{sT0}, 512")
        e(f"s_cselect_b32 s{SRD_T}, s52, s54")
        e(f"s_cselect_b32 s{SRD_T+1}, s53, s55")
        e(f"s_and_b32 s{SRD_T+1}, s{SRD_T+1}, 0xffff")
        e(f"s_mov_b32 s{SRD_T+2}, {4096*1024*2}")
        e(f"s_mov_b32 s{SRD_T+3}, 0x20000")
        e(f"s_and_b32 s{sT0}, s{sT0}, 511")
        e(f"s_lshl_b32 s{sT0}, s{sT0}, 14")
        e(f"v_lshlrev_b32 v{vT0}, 7, v0")
        e(f"buffer_load_dword v{vT2}, v{vT0}, s[{SRD_T}:{SRD_T+3}], s{sT0} offen {wo_early}")
        e(f"s_add_u32 s{sT0}, s{sT0}, 8192")
        e(f"buffer_load_dword v{vT3}, v{vT0}, s[{SRD_T}:{SRD_T+3}], s{sT0} offen {wo_early}")
        e("s_waitcnt vmcnt(0)")
    if asym:
        for k in range(16):
            e("s_barrier")
        e("s_barrier")
        e(f"v_mov_b32 v{vT3}, 0")
        e(f"ds_write_b32 v{vBarA}, v{vT3}")
        e("s_waitcnt lgkmcnt(0)")
        e("s_barrier")
    if exp_sleep:
        for k in range(exp_sleep):
            e("s_sleep 127")
    if delay_a:
        e(f"s_lshl_b32 s{sT4}, s{sX}, 2")
        e(f"s_cmp_lg_u32 s{sWV}, 0")
        e(f"s_cbranch_scc1 {name}_await")
        poll_counter(a, f"{name}_pollb", sT4, 255, None, thresh, bound, sleep=sleep_b)
        a.label(f"{name}_await")
        e("s_barrier")
    e(f"s_lshl_b32 s{sFlag}, s{sHq}, 3")
    e(f"s_add_u32 s{sFlag}, s{sFlag}, s{sI}")
    e(f"s_lshl_b32 s{sFlag}, s{sFlag}, 8")
    e(f"s_add_u32 s{sFlag}, s{sFlag}, {FLAG_OFF}")
    e(f"v_mov_b32 v{vT0}, 0")
    e(f"buffer_load_dword v{vNon}, v{vT0}, s[{SRD_O}:{SRD_O+3}], s{sFlag} offen sc0 sc1")
    if prio_a:
        e(f"s_setprio {prio_a}")
    if touch_a:
        gen_touch(a, pol_w)
    e(f"s_branch {name}_q")
    a.label(f"{name}_startb")
    if prio_b:
        e(f"s_setprio {prio_b}")
    if touch:
        gen_touch(a, pol_w)
    a.label(f"{name}_q")
    mark(a, 0)
    if clk:
        e("s_memtime s[76:77]")
        e("s_waitcnt lgkmcnt(0)")
        e(f"s_mov_b32 s{MK[5]}, s76")

    def hook_w():
        e(f"s_cmp_lg_u32 s{sRole}, 0")
        e(f"s_cbranch_scc1 {name}_hw")
        if delay_a:
            e(f"s_lshl_b32 s{sT4}, s{sX}, 2")
            signal(a, f"{name}_sigb", sT4, "1")
        issue_tile(e, SRD_K, sM0a, sKVoff, 0, True, pol_kv, 0)
        a.label(f"{name}_hw")
    def hook_x():
        if LOOK[0] != 2:
            return
        e(f"s_cmp_lg_u32 s{sRole}, 0")
        e(f"s_cbranch_scc1 {name}_hx")
        issue_tile(e, SRD_K, sM0b, sKVoff, 32768, True, pol_kv)
        a.label(f"{name}_hx")
    (gen_qproj_pipe if qpipe else gen_qproj)(a, name, pol_x, pol_w, hook_w, hook_x)
    if fuse:
        phase3.pick_tags(a)
    mark(a, 1)
    if clk:
        e("s_memtime s[76:77]")
        e("s_waitcnt lgkmcnt(0)")
        e(f"s_sub_u32 s{MK[6]}, s76, s{MK[5]}")
        e(f"s_mov_b32 s{MK[5]}, 0")
    if ALT[0]:
        e("s_setprio 0")
    if qonly:
        e(f"s_branch {name}_end")
    if single and asym:
        e(f"s_cmp_lg_u32 s{sRole}, 0")
        e(f"s_cbranch_scc1 {name}_rolea")
        e("s_barrier")
        e(f"v_mov_b32 v{vT3}, 0")
        e(f"ds_write_b32 v{vBarA}, v{vT3}")
        e("s_waitcnt lgkmcnt(0)")
        e("s_barrier")
    elif single:
        e("s_barrier")
        e(f"v_mov_b32 v{vT3}, 0")
        e(f"ds_write_b32 v{vBarA}, v{vT3}")
        e("s_waitcnt lgkmcnt(0)")
        e("s_barrier")
    e(f"s_cmp_lg_u32 s{sRole}, 0")
    e(f"s_cbranch_scc1 {name}_rolea")
    if not single:
        e("s_barrier")
    q_broadcast(a, name, "q0", "0")
    e(f"s_mov_b32 s{sTask}, 0")
    gen_m1(a, name, pol_kv)
    e(f"s_branch {name}_end")
    a.label(f"{name}_rolea")
    e(f"s_setprio {prio_flash}")
    gen_flash(a, name, pol_kv if pol_kv_a is None else pol_kv_a)
    a.label(f"{name}_end")
    if fuse:
        if timing:
            ts_mark(a, 76)
            e(f"s_mov_b32 s{MK[6]}, s76")
        phase3.gen_phase3(a, name, **(p3opt or {}))
    if endwb:
        e("s_waitcnt vmcnt(0)")
        e("s_barrier")
        e(f"s_cmp_lg_u32 s{sWV}, 0")
        e(f"s_cbranch_scc1 {name}_nowb")
        e("buffer_wbl2 sc1")
        a.label(f"{name}_nowb")
    if wo_pf is not None:
        e(f"s_load_dwordx2 s[52:53], s[0:1], 32")
        e(f"s_load_dwordx2 s[54:55], s[0:1], 72")
        e(f"s_waitcnt lgkmcnt(0)")
        e(f"s_cmp_lt_u32 s{sX}, 4")
        e(f"s_cselect_b32 s{SRD_W}, s52, s54")
        e(f"s_cselect_b32 s{SRD_W+1}, s53, s55")
        e(f"s_and_b32 s{SRD_W+1}, s{SRD_W+1}, 0xffff")
        e(f"s_mov_b32 s{SRD_W+2}, {4096*1024*2}")
        e(f"s_mov_b32 s{SRD_W+3}, 0x20000")
        if single:
            e(f"s_lshr_b32 s{sT0}, s2, 3")
            e(f"s_lshl_b32 s{sT0}, s{sT0}, 3")
            e(f"s_add_u32 s{sT0}, s{sT0}, s{sWid}")
        else:
            e(f"s_lshr_b32 s{sT0}, s2, 3")
            e(f"s_lshl_b32 s{sT0}, s{sT0}, 2")
            e(f"s_add_u32 s{sT0}, s{sT0}, s{sWV}")
        e(f"s_lshl_b32 s{sT0}, s{sT0}, 14")
        e(f"s_and_b32 s{sT1}, s{sX}, 1")
        e(f"s_lshl_b32 s{sT1}, s{sT1}, 10")
        e(f"s_add_u32 s{sT0}, s{sT0}, s{sT1}")
        e(f"s_bfe_u32 s{sT1}, s{sX}, 0x10001")
        e(f"s_lshl_b32 s{sT1}, s{sT1}, 22")
        e(f"s_add_u32 s{sT0}, s{sT0}, s{sT1}")
        e(f"v_lshrrev_b32 v{vT0}, 3, v0")
        e(f"v_lshlrev_b32 v{vT0}, 11, v{vT0}")
        e(f"v_and_b32 v{vT1}, 7, v0")
        e(f"v_lshlrev_b32 v{vT1}, 7, v{vT1}")
        e(f"v_add_u32 v{vT0}, v{vT0}, v{vT1}")
        e(f"buffer_load_dword v{vT2}, v{vT0}, s[{SRD_W}:{SRD_W+3}], s{sT0} offen {wo_pf}")
    e("s_waitcnt vmcnt(0)")
    if timing:
        mark(a, 7)
        ts_dump(a, [sTS] + MK[0:7], 0, sWid if single else sWV, 52, 8, nwaves=8 if single else 4)
        ts_end(a, sTS, 0, sWid if single else sWV, 52, 2, nwaves=8 if single else 4)
    a.label(f"{name}_done")
    e("s_endpgm")
    return dict(nv=256, ns=NS, lds=LDS_BYTES*(2 if single else 1), threads=512 if single else 256, grid=256 if single else 512)
```

```python
from asmlib import *
from oproj2 import interleave

NST = 32
OOB = 0x80000000
OSLOT, NO = 16384, 4
WSLOT, NW = 32768, 3
WBASE = NO * OSLOT
PART_OFF = 64 << 20
PFLAG_OFF = 49 << 20

def gen_oproj(a, name, pol_o="", pol_w="", timing=False, skip="", order="adv", sleep=4, prio_l=0, prio_c=0, xpol="sc0 sc1", samex=False, fast=0, lean=False):
    kernel_header(a, name)
    e = a.e
    sWV = 4
    SRD_O, SRD_W, SRD_OUT, SRD_P = 8, 12, 16, 60
    sO, sW, sFill, sReadO, sCnt, sT0, sT1, sT2, sBr, sB0, sCol = 20, 21, 22, 23, 24, 25, 26, 27, 28, 29, 30
    sOx, sIss, sCls, sWx, sM0o, sM0w, sLW, sReadW, sGrp, sWfill = 31, 42, 43, 52, 53, 54, 55, 56, 57, 58
    sKh, sPair, sNon, sFlag = 59, 64, 65, 66
    vLane16, vRO, vRO2, vT, vT2, vOut, vNon = 1, 2, 3, 4, 5, 6, 7
    vRW = 8
    vRW2 = 10
    vWD = 12
    ACC = 16
    FA = [80, 144]
    FB = [112, 176]
    NV = 208

    e("s_cmp_ge_u32 s2, 256")
    e(f"s_cbranch_scc1 {name}_done")
    if timing:
        ts_begin(a, 40)
    e("s_load_dwordx2 s[32:33], s[0:1], 32")
    e("s_load_dwordx2 s[34:35], s[0:1], 72")
    e("s_load_dwordx2 s[36:37], s[0:1], 80")
    e("s_load_dwordx2 s[38:39], s[0:1], 96")
    e("v_lshrrev_b32 v8, 6, v0")
    e("v_and_b32 v0, 63, v0")
    e(f"v_readfirstlane_b32 s{sWV}, v8")
    if not samex:
        e(f"s_and_b32 s{sT0}, s2, 7")
        e(f"s_lshr_b32 s{sT1}, s2, 3")
        e(f"s_lshr_b32 s{sBr}, s{sT0}, 2")
        e(f"s_bfe_u32 s{sKh}, s{sT0}, 0x10001")
        e(f"s_lshr_b32 s{sT2}, s{sT1}, 2")
        e(f"s_lshl_b32 s{sB0}, s{sT2}, 2")
        e(f"s_mov_b32 s{sCls}, s{sT2}")
        e(f"s_and_b32 s{sT2}, s{sT1}, 3")
        e(f"s_add_u32 s{sCls}, s{sCls}, s{sT2}")
        e(f"s_and_b32 s{sCls}, s{sCls}, 3")
        e(f"s_lshl_b32 s{sT2}, s{sT2}, 7")
        e(f"s_and_b32 s{sCol}, s{sT0}, 1")
        e(f"s_lshl_b32 s{sCol}, s{sCol}, 9")
        e(f"s_add_u32 s{sCol}, s{sCol}, s{sT2}")
        e(f"s_and_b32 s{sPair}, s{sT0}, 1")
        e(f"s_lshl_b32 s{sT2}, s{sBr}, 1")
        e(f"s_add_u32 s{sPair}, s{sPair}, s{sT2}")
        e(f"s_lshl_b32 s{sPair}, s{sPair}, 5")
        e(f"s_add_u32 s{sPair}, s{sPair}, s{sT1}")
    else:
        e(f"s_and_b32 s{sT0}, s2, 7")
        e(f"s_lshr_b32 s{sT1}, s2, 3")
        e(f"s_lshr_b32 s{sBr}, s{sT0}, 2")
        e(f"s_lshr_b32 s{sKh}, s{sT1}, 4")
        e(f"s_bfe_u32 s{sT2}, s{sT1}, 0x20002")
        e(f"s_mov_b32 s{sCls}, s{sT2}")
        e(f"s_lshl_b32 s{sB0}, s{sT2}, 2")
        e(f"s_bfe_u32 s{sT2}, s{sT0}, 0x10001")
        e(f"s_lshl_b32 s{sT2}, s{sT2}, 4")
        e(f"s_add_u32 s{sB0}, s{sB0}, s{sT2}")
        e(f"s_and_b32 s{sT2}, s{sT1}, 3")
        e(f"s_add_u32 s{sCls}, s{sCls}, s{sT2}")
        e(f"s_and_b32 s{sCls}, s{sCls}, 3")
        e(f"s_lshl_b32 s{sT2}, s{sT2}, 7")
        e(f"s_and_b32 s{sCol}, s{sT0}, 1")
        e(f"s_lshl_b32 s{sCol}, s{sCol}, 9")
        e(f"s_add_u32 s{sCol}, s{sCol}, s{sT2}")
        e(f"s_lshl_b32 s{sPair}, s{sT0}, 4")
        e(f"s_and_b32 s{sT2}, s{sT1}, 15")
        e(f"s_add_u32 s{sPair}, s{sPair}, s{sT2}")
    e(f"v_lshlrev_b32 v{vLane16}, 4, v0")
    e("s_waitcnt lgkmcnt(0)")
    e(f"s_cmp_ge_u32 s{sWV}, 4")
    e(f"s_cbranch_scc1 {name}_loader")

    if prio_c:
        e(f"s_setprio {prio_c}")
    e(f"s_mov_b32 s{SRD_P}, s38")
    e(f"s_and_b32 s{SRD_P+1}, s39, 0xffff")
    e(f"s_mov_b32 s{SRD_P+2}, {96 << 20}")
    e(f"s_mov_b32 s{SRD_P+3}, 0x20000")
    e(f"s_lshl_b32 s{sFlag}, s{sPair}, 8")
    e(f"s_add_u32 s{sFlag}, s{sFlag}, {PFLAG_OFF}")
    e(f"v_mov_b32 v{vT}, 0")
    e(f"buffer_load_dword v{vNon}, v{vT}, s[{SRD_P}:{SRD_P+3}], s{sFlag} offen sc0 sc1")
    e(f"s_mov_b32 s{SRD_OUT}, s36")
    e(f"s_and_b32 s{SRD_OUT+1}, s37, 0xffff")
    e(f"s_mov_b32 s{SRD_OUT+2}, {1024*2048*2}")
    e(f"s_mov_b32 s{SRD_OUT+3}, 0x20000")
    e(f"s_lshr_b32 s{sT0}, s{sWV}, 1")
    e(f"s_lshl_b32 s{sT0}, s{sT0}, 13")
    e(f"v_add_u32 v{vRO}, s{sT0}, v{vLane16}")
    e(f"v_bfe_u32 v{vT}, v0, 2, 2")
    e(f"v_lshlrev_b32 v{vRW}, 6, v{vT}")
    e(f"v_bfe_u32 v{vT2}, v0, 4, 1")
    e(f"v_lshlrev_b32 v{vT2}, 5, v{vT2}")
    e(f"v_add_u32 v{vRW}, v{vRW}, v{vT2}")
    e(f"v_and_b32 v{vT2}, 1, v0")
    e(f"v_lshlrev_b32 v{vT2}, 4, v{vT2}")
    e(f"v_add_u32 v{vRW}, v{vRW}, v{vT2}")
    e(f"v_bfe_u32 v{vT2}, v0, 1, 1")
    e(f"v_lshlrev_b32 v{vT2}, 3, v{vT2}")
    e(f"v_add_u32 v{vRW}, v{vRW}, v{vT2}")
    e(f"v_lshrrev_b32 v{vT2}, 5, v0")
    e(f"v_lshlrev_b32 v{vT2}, 3, v{vT2}")
    e(f"v_add_u32 v{vT2}, v{vT2}, v{vT}")
    e(f"v_lshlrev_b32 v{vT2}, 8, v{vT2}")
    e(f"v_add_u32 v{vRW}, v{vRW}, v{vT2}")
    e(f"v_add_u32 v{vRW}, {WBASE}, v{vRW}")
    e(f"s_and_b32 s{sT0}, s{sWV}, 1")
    e(f"s_lshl_b32 s{sT0}, s{sT0}, 7")
    e(f"v_xor_b32 v{vRW}, s{sT0}, v{vRW}")
    e(f"v_xor_b32 v{vRW+1}, 64, v{vRW}")
    e(f"v_and_b32 v{vOut}, 31, v0")
    e(f"v_lshlrev_b32 v{vOut}, 12, v{vOut}")
    e(f"v_lshrrev_b32 v{vT}, 5, v0")
    e(f"v_lshlrev_b32 v{vT}, 4, v{vT}")
    e(f"v_add_u32 v{vOut}, v{vOut}, v{vT}")
    e(f"v_add_u32 v{vOut}, s{sT0}, v{vOut}")
    e(f"s_mov_b32 s{sReadO}, 0")
    e(f"s_mov_b32 s{sReadW}, 0")
    e(f"s_mov_b32 s{sCnt}, 0")
    for r in range(64):
        e(f"v_mov_b32 v{ACC+r}, 0")
    for r in range(64):
        e(f"v_mov_b32 v{FA[1]+r}, 0")
    e("s_waitcnt vmcnt(0)")

    def reads(k):
        L = []
        for u in range(4):
            for mt in range(2):
                for half in range(2):
                    r = FA[k] + 16*mt + 4*u + 2*half
                    L.append(f"ds_read_b64_tr_b16 v[{r}:{r+1}], v{vRW2+mt} offset:{(16*u + 4*half)*256}")
            for t in range(2):
                r = FB[k] + 16*t + 4*u
                L.append(f"ds_read_b128 v[{r}:{r+3}], v{vRO2} offset:{t*4096 + u*1024}")
        return L

    def mfmas(k):
        L = []
        for u in range(4):
            for t in range(2):
                for mt in range(2):
                    d = ACC + 32*t + 16*mt
                    L.append(f"v_mfma_f32_32x32x16_bf16 v[{d}:{d+15}], v[{FA[k]+16*mt+4*u}:{FA[k]+16*mt+4*u+3}], v[{FB[k]+16*t+4*u}:{FB[k]+16*t+4*u+3}], v[{d}:{d+15}]")
        return L

    a.label(f"{name}_cloop")
    for k in range(2):
        e("s_barrier")
        e(f"v_add_u32 v{vRO2}, s{sReadO}, v{vRO}")
        e(f"v_add_u32 v{vRW2}, s{sReadW}, v{vRW}")
        e(f"v_add_u32 v{vRW2+1}, s{sReadW}, v{vRW+1}")
        e("s_waitcnt lgkmcnt(0)")
        fill = reads(k) if "r" not in skip else []
        fill += [f"s_add_u32 s{sReadO}, s{sReadO}, {OSLOT}",
                 f"s_and_b32 s{sReadO}, s{sReadO}, {NO*OSLOT-1}",
                 f"s_add_u32 s{sReadW}, s{sReadW}, 16384",
                 f"s_cmp_eq_u32 s{sReadW}, {NW*WSLOT}",
                 f"s_cselect_b32 s{sReadW}, 0, s{sReadW}",
                 f"s_add_u32 s{sCnt}, s{sCnt}, 1"]
        main = mfmas(1-k) if "m" not in skip else []
        if main:
            for ln in interleave(main, fill, [2]*12 + [3, 3, 0, 0]):
                e(ln)
        else:
            for ln in fill:
                e(ln)
    e(f"s_cmp_lt_u32 s{sCnt}, {NST}")
    e(f"s_cbranch_scc1 {name}_cloop")
    e("s_waitcnt lgkmcnt(0)")
    for ln in mfmas(1):
        e(ln)
    e("s_waitcnt vmcnt(0)")
    e(f"v_readfirstlane_b32 s{sNon}, v{vNon}")
    a.nop(3)
    e(f"s_mul_i32 s{sNon}, s{sNon}, 0x9e3779b1")
    e(f"s_add_u32 s{sNon}, s{sNon}, 0x7f4a7c15")
    sTag = [68, 69, 70, 71]
    for k in range(4):
        e(f"s_bfe_u32 s{sTag[k]}, s{sNon}, {(8 << 16) | (8*k):#x}")
    e(f"s_mov_b32 s{sT2}, 0xffffff00")
    e(f"v_mov_b32 v{vT}, s{sT2}")
    e(f"s_lshl_b32 s{sOx}, s{sPair}, 1")
    e(f"s_add_u32 s{sWx}, s{sOx}, s{sKh}")
    e(f"s_xor_b32 s{sT0}, s{sKh}, 1")
    e(f"s_add_u32 s{sOx}, s{sOx}, s{sT0}")
    for r in (sWx, sOx):
        e(f"s_lshl_b32 s{r}, s{r}, 2")
        e(f"s_add_u32 s{r}, s{r}, s{sWV}")
        e(f"s_lshl_b32 s{r}, s{r}, 13")
        e(f"s_add_u32 s{r}, s{r}, {PART_OFF}")
    IN = FA[0]
    vBad = vT2
    e(f"s_cmp_eq_u32 s{sKh}, 0")
    e(f"s_cbranch_scc0 {name}_x1")
    for kh in range(2):
        if kh == 1:
            a.label(f"{name}_x1")
        SND = ACC + 32*(1-kh)
        KEEP = ACC + 32*kh
        for r in range(32):
            e(f"v_and_or_b32 v{SND+r}, v{SND+r}, v{vT}, s{sTag[r & 3]}")
        MIRROR = 8 << 20
        def stores(off_extra, pol):
            e(f"s_add_u32 s{sT0}, s{sWx}, {off_extra}")
            for rq in range(8):
                e(f"buffer_store_dwordx4 v[{SND+4*rq}:{SND+4*rq+3}], v{vLane16}, s[{SRD_P}:{SRD_P+3}], s{sT0} offen offset:{(rq%4)*1024} {pol}")
                if rq == 3:
                    e(f"s_add_u32 s{sT0}, s{sT0}, 4096")
        def loads(off_extra, pol):
            e(f"s_add_u32 s{sT0}, s{sOx}, {off_extra}")
            for rq in range(8):
                e(f"buffer_load_dwordx4 v[{IN+4*rq}:{IN+4*rq+3}], v{vLane16}, s[{SRD_P}:{SRD_P+3}], s{sT0} offen offset:{(rq%4)*1024} {pol}")
                if rq == 3:
                    e(f"s_add_u32 s{sT0}, s{sT0}, 4096")
        if fast:
            stores(0, "")
            loads(0, "sc1")
            stores(MIRROR, "sc0 sc1")
            e(f"s_mov_b32 s{sT1}, {fast}")
            e("s_waitcnt vmcnt(8)")
            e(f"s_branch {name}_chk{kh}")
            a.label(f"{name}_poll{kh}")
            e(f"s_cmp_eq_u32 s{sT1}, 0")
            e(f"s_cbranch_scc1 {name}_slow{kh}")
            e(f"s_sub_u32 s{sT1}, s{sT1}, 1")
            loads(0, "sc1")
            e(f"s_branch {name}_wait{kh}")
            a.label(f"{name}_slow{kh}")
            loads(MIRROR, "sc0 sc1")
            a.label(f"{name}_wait{kh}")
            e("s_waitcnt vmcnt(0)")
            a.label(f"{name}_chk{kh}")
        else:
            stores(0, xpol)
            a.label(f"{name}_poll{kh}")
            loads(0, "sc0 sc1")
            e("s_waitcnt vmcnt(0)")
        e(f"v_xor_b32 v{vBad}, s{sTag[0]}, v{IN}")
        for r in range(1, 32):
            e(f"v_xor_b32 v{vRO2}, s{sTag[r & 3]}, v{IN+r}")
            e(f"v_or_b32 v{vBad}, v{vBad}, v{vRO2}")
        e(f"v_and_b32 v{vBad}, 0xff, v{vBad}")
        e(f"v_cmp_ne_u32 vcc, 0, v{vBad}")
        a.nop(4)
        e(f"s_cmp_eq_u64 vcc, 0")
        e(f"s_cbranch_scc1 {name}_got{kh}")
        e(f"s_sleep {sleep}")
        e(f"s_branch {name}_poll{kh}")
        a.label(f"{name}_got{kh}")
        for r in range(32):
            e(f"v_add_f32 v{KEEP+r}, v{KEEP+r}, v{IN+r}")
        P = FB[1]
        for mt in range(2):
            for sg in range(2):
                for i in range(4):
                    src = KEEP + 16*mt + 8*sg + 2*i
                    e(f"v_cvt_pk_bf16_f32 v{P + 8*mt + 4*sg + i}, v{src}, v{src+1}")
        if kh == 0:
            e(f"s_branch {name}_xout")
    a.label(f"{name}_xout")
    e(f"s_lshr_b32 s{sT0}, s{sWV}, 1")
    e(f"s_lshl_b32 s{sT0}, s{sT0}, 1")
    e(f"s_add_u32 s{sT0}, s{sT0}, s{sKh}")
    e(f"s_add_u32 s{sT0}, s{sT0}, s{sB0}")
    e(f"s_lshl_b32 s{sT0}, s{sT0}, 17")
    e(f"s_lshl_b32 s{sT1}, s{sBr}, 11")
    e(f"s_add_u32 s{sT0}, s{sT0}, s{sT1}")
    e(f"s_lshl_b32 s{sT1}, s{sCol}, 1")
    e(f"s_add_u32 s{sT0}, s{sT0}, s{sT1}")
    P = FB[1]
    for mt in range(2):
        for sg in range(2):
            r = P + 8*mt + 4*sg
            e(f"buffer_store_dwordx4 v[{r}:{r+3}], v{vOut}, s[{SRD_OUT}:{SRD_OUT+3}], s{sT0} offen offset:{64*mt + 32*sg}")
    e(f"v_mov_b32 v{vT}, 0")
    e(f"v_mov_b32 v{vT2}, s{sNon}")
    e(f"v_cmp_eq_u32 vcc, 0, v0")
    e(f"s_and_saveexec_b64 s[44:45], vcc")
    e(f"buffer_store_dword v{vT2}, v{vT}, s[{SRD_P}:{SRD_P+3}], s{sFlag} offen sc0 sc1")
    e(f"s_mov_b64 exec, s[44:45]")
    e("s_waitcnt vmcnt(0)")
    e(f"s_branch {name}_fin")

    a.label(f"{name}_loader")
    if prio_l:
        e(f"s_setprio {prio_l}")
    e(f"s_sub_u32 s{sLW}, s{sWV}, 4")
    e(f"v_lshrrev_b32 v{vT}, 4, v0")
    e(f"v_and_b32 v{vT2}, 15, v0")
    e(f"v_lshlrev_b32 v{vWD}, 2, v{vT}")
    e(f"v_xor_b32 v{vWD}, v{vWD}, v{vT2}")
    e(f"v_lshlrev_b32 v{vWD}, 4, v{vWD}")
    e(f"v_lshlrev_b32 v{vT}, 11, v{vT}")
    e(f"v_add_u32 v{vWD}, v{vWD}, v{vT}")
    for k in range(1, 4):
        e(f"v_add_u32 v{vWD+k}, {k*(4*2048 - 1024)}, v{vWD}")
    e(f"s_cmp_eq_u32 s{sBr}, 0")
    e(f"s_cselect_b32 s{SRD_W}, s32, s34")
    e(f"s_cselect_b32 s{SRD_W+1}, s33, s35")
    e(f"s_and_b32 s{SRD_W+1}, s{SRD_W+1}, 0xffff")
    e(f"s_mov_b32 s{SRD_W+2}, {4096*1024*2}")
    e(f"s_mov_b32 s{SRD_W+3}, 0x20000")
    e(f"s_mov_b32 s{SRD_O}, s38")
    e(f"s_and_b32 s{SRD_O+1}, s39, 0xffff")
    e(f"s_mov_b32 s{SRD_O+2}, {2*8388608}")
    e(f"s_mov_b32 s{SRD_O+3}, 0x20000")
    e(f"s_add_u32 s{sT0}, s{sB0}, s{sLW}")
    e(f"s_lshl_b32 s{sO}, s{sT0}, 18")
    e(f"s_lshl_b32 s{sT0}, s{sBr}, 23")
    e(f"s_add_u32 s{sO}, s{sO}, s{sT0}")
    e(f"s_lshl_b32 s{sT0}, s{sKh}, 17")
    e(f"s_add_u32 s{sO}, s{sO}, s{sT0}")
    e(f"s_lshl_b32 s{sW}, s{sLW}, 16")
    e(f"s_lshl_b32 s{sT0}, s{sCol}, 1")
    e(f"s_add_u32 s{sW}, s{sW}, s{sT0}")
    e(f"s_lshl_b32 s{sT0}, s{sKh}, 22")
    e(f"s_add_u32 s{sW}, s{sW}, s{sT0}")
    e(f"s_lshl_b32 s{sM0o}, s{sLW}, 12")
    e(f"s_lshl_b32 s{sM0w}, s{sLW}, 13")
    e(f"s_add_u32 s{sM0w}, s{sM0w}, {WBASE}")

    def group_of(pos_reg, dst):
        if order == "adv":
            e(f"s_add_u32 s{sT2}, s{pos_reg}, 1")
            e(f"s_sub_u32 s{sT2}, s{sT2}, s{sCls}")
            e(f"s_and_b32 s{sT2}, s{sT2}, 3")
            e(f"s_cmp_eq_u32 s{sT2}, 0")
            e(f"s_cselect_b32 s{sT0}, 1, 0")
            e(f"s_cmp_eq_u32 s{sT2}, 1")
            e(f"s_cselect_b32 s{sT0}, -1, s{sT0}")
            e(f"s_add_u32 s{dst}, s{pos_reg}, s{sT0}")
            e(f"s_cmp_lt_u32 s{dst}, 16")
            e(f"s_cselect_b32 s{dst}, s{dst}, s{pos_reg}")
        else:
            e(f"s_mov_b32 s{dst}, s{pos_reg}")

    def issue_o():
        e(f"s_lshr_b32 s{sT1}, s{sIss}, 1")
        group_of(sT1, sOx)
        e(f"s_lshl_b32 s{sOx}, s{sOx}, 1")
        e(f"s_and_b32 s{sT0}, s{sIss}, 1")
        e(f"s_add_u32 s{sOx}, s{sOx}, s{sT0}")
        e(f"s_lshl_b32 s{sOx}, s{sOx}, 12")
        e(f"s_add_u32 s{sOx}, s{sOx}, s{sO}")
        e(f"s_cmp_lt_u32 s{sIss}, {NST}")
        e(f"s_cselect_b32 s{sOx}, s{sOx}, {OOB:#x}")
        e(f"s_add_u32 m0, s{sFill}, s{sM0o}")
        e(f"s_add_u32 s{sIss}, s{sIss}, 1")
        for k in range(4):
            e(f"buffer_load_dwordx4 v{vLane16}, s[{SRD_O}:{SRD_O+3}], s{sOx} offen offset:{k*1024} {pol_o} lds")
        e(f"s_add_u32 s{sFill}, s{sFill}, {OSLOT}")
        e(f"s_and_b32 s{sFill}, s{sFill}, {NO*OSLOT-1}")

    def issue_w():
        group_of(sGrp, sWx)
        e(f"s_lshl_b32 s{sWx}, s{sWx}, 18")
        e(f"s_add_u32 s{sWx}, s{sWx}, s{sW}")
        e(f"s_cmp_lt_u32 s{sGrp}, 16")
        e(f"s_cselect_b32 s{sWx}, s{sWx}, {OOB:#x}")
        e(f"s_add_u32 m0, s{sWfill}, s{sM0w}")
        e(f"s_add_u32 s{sGrp}, s{sGrp}, 1")
        for half in range(2):
            for k in range(4):
                e(f"buffer_load_dwordx4 v{vWD+k}, s[{SRD_W}:{SRD_W+3}], s{sWx} offen offset:{k*1024} {pol_w} lds")
            if half == 0:
                e(f"s_add_u32 m0, m0, 4096")
                e(f"s_add_u32 s{sWx}, s{sWx}, {16*2048}")
        e(f"s_add_u32 s{sWfill}, s{sWfill}, {WSLOT}")
        e(f"s_cmp_eq_u32 s{sWfill}, {NW*WSLOT}")
        e(f"s_cselect_b32 s{sWfill}, 0, s{sWfill}")

    if lean and order == "adv":
        def table(c):
            t = 0
            for p in range(16):
                k = (p + 1 - c) & 3
                g = p + 1 if k == 0 else (p - 1 if k == 1 else p)
                if g < 0 or g > 15:
                    g = p
                t |= g << (4*p)
            return t
        TO, TW = 68, 70
        for c in range(4):
            t = table(c)
            e(f"s_cmp_eq_u32 s{sCls}, {c}")
            if c == 0:
                e(f"s_mov_b32 s{TO}, {t & 0xffffffff:#x}")
                e(f"s_mov_b32 s{TO+1}, {t >> 32:#x}")
            else:
                e(f"s_cselect_b32 s{TO}, {t & 0xffffffff:#x}, s{TO}")
                e(f"s_cselect_b32 s{TO+1}, {t >> 32:#x}, s{TO+1}")
        e(f"s_mov_b64 s[{TW}:{TW+1}], s[{TO}:{TO+1}]")
        def o_group():
            e(f"s_and_b32 s{sT0}, s{TO}, 15")
            e(f"s_lshr_b64 s[{TO}:{TO+1}], s[{TO}:{TO+1}], 4")
            e(f"s_lshl_b32 s{sT0}, s{sT0}, 13")
            e(f"s_add_u32 s{sOx}, s{sO}, s{sT0}")
        def o_stage(second):
            e(f"s_add_u32 m0, s{sFill}, s{sM0o}")
            if second:
                e(f"s_add_u32 s{sOx}, s{sOx}, 4096")
            else:
                e("s_nop 0")
            for k in range(4):
                e(f"buffer_load_dwordx4 v{vLane16}, s[{SRD_O}:{SRD_O+3}], s{sOx} offen offset:{k*1024} {pol_o} lds")
            e(f"s_add_u32 s{sFill}, s{sFill}, {OSLOT}")
            e(f"s_and_b32 s{sFill}, s{sFill}, {NO*OSLOT-1}")
        def w_group():
            e(f"s_and_b32 s{sT0}, s{TW}, 15")
            e(f"s_lshr_b64 s[{TW}:{TW+1}], s[{TW}:{TW+1}], 4")
            e(f"s_lshl_b32 s{sT0}, s{sT0}, 18")
            e(f"s_add_u32 m0, s{sWfill}, s{sM0w}")
            e(f"s_add_u32 s{sWx}, s{sW}, s{sT0}")
            for half in range(2):
                for k in range(4):
                    e(f"buffer_load_dwordx4 v{vWD+k}, s[{SRD_W}:{SRD_W+3}], s{sWx} offen offset:{k*1024} {pol_w} lds")
                if half == 0:
                    e(f"s_add_u32 m0, m0, 4096")
                    e(f"s_add_u32 s{sWx}, s{sWx}, {16*2048}")
            e(f"s_add_u32 s{sWfill}, s{sWfill}, {WSLOT}")
            e(f"s_cmp_eq_u32 s{sWfill}, {NW*WSLOT}")
            e(f"s_cselect_b32 s{sWfill}, 0, s{sWfill}")
        e(f"s_mov_b32 s{sFill}, 0")
        e(f"s_mov_b32 s{sWfill}, 0")
        w_group()
        o_group(); o_stage(False); o_stage(True)
        w_group()
        e(f"s_mov_b32 s{sCnt}, 0")
        a.label(f"{name}_lloop")
        e("s_waitcnt vmcnt(12)")
        e("s_barrier")
        o_group(); o_stage(False)
        e("s_waitcnt vmcnt(12)")
        e("s_barrier")
        o_stage(True)
        w_group()
        e(f"s_add_u32 s{sCnt}, s{sCnt}, 1")
        e(f"s_cmp_lt_u32 s{sCnt}, 14")
        e(f"s_cbranch_scc1 {name}_lloop")
        e("s_waitcnt vmcnt(12)")
        e("s_barrier")
        o_group(); o_stage(False)
        e("s_waitcnt vmcnt(12)")
        e("s_barrier")
        o_stage(True)
        e("s_waitcnt vmcnt(4)")
        e("s_barrier")
        e("s_waitcnt vmcnt(0)")
        e("s_barrier")
    else:
        e(f"s_mov_b32 s{sFill}, 0")
        e(f"s_mov_b32 s{sIss}, 0")
        e(f"s_mov_b32 s{sGrp}, 0")
        e(f"s_mov_b32 s{sWfill}, 0")
        issue_w()
        issue_o()
        issue_o()
        issue_w()
        e(f"s_mov_b32 s{sCnt}, 0")
        a.label(f"{name}_lloop")
        for r in range(2):
            e("s_waitcnt vmcnt(12)")
            e("s_barrier")
            if "d" not in skip:
                issue_o()
                if r == 1:
                    issue_w()
        e(f"s_add_u32 s{sCnt}, s{sCnt}, 2")
        e(f"s_cmp_lt_u32 s{sCnt}, {NST}")
        e(f"s_cbranch_scc1 {name}_lloop")
        e("s_waitcnt vmcnt(0)")
    a.label(f"{name}_fin")
    if timing:
        ts_end(a, 40, 1, sWV, 44, 48, nwaves=8)
    a.label(f"{name}_done")
    e("s_endpgm")
    return dict(nv=NV, ns=80, lds=NO*OSLOT + NW*WSLOT, threads=512)
```

```python
from asmlib import *
import math

OOB = 0x80000000
DEP_OFF = 53 << 20
PAIR_OFF = 50 << 20
FLAG_OFF = 48 << 20
QWS_OFF = 32 << 20
C_SCALE = math.log2(math.e) / math.sqrt(128.0)

def f32bits(x):
    import struct
    return struct.unpack("<I", struct.pack("<f", x))[0]

sWV = 4
sRole, sH, sI, sB = 5, 6, 7, 3
SRD_X, SRD_W, SRD_K, SRD_V, SRD_O = 8, 12, 16, 20, 24
sT0, sT1, sT2, sT3 = 28, 29, 30, 31
sXoff, sWoff, sWslotF, sWslotR, sXslot, sCnt = 32, 33, 34, 35, 36, 37
sKVoff, sTask, sScale, sM0a, sM0b = 38, 39, 40, 41, 42
sOoff, sT4, sT5 = 43, 44, 45
sTS = 46
sPtr = 48
sStg = 80
sX, sDbg, sBs, sHq, sCls, sSig = 81, 82, 84, 85, 86, 87
sFlag, sNonce = 92, 93
sPairN, sPairP = 74, 72
sTbase, sTstep, SRD_T = 94, 95, 96
sLB, sW8, sBarT, sWid = 100, 101, 78, 79
vL16L, vBarA = 30, 29
vNon = 31
SRD_D = 88
NS = 102
MK = [60, 62, 64, 66, 68, 70, 72, 74]
TIMING = [False]
QMARKS = [False]
QSKIP = ['']
QORDER = [None]
LOOK = [2]
SLEEPQ = [8]
XM = [False]
ALT = [False]
ASYM = [False]
KROT = [0]
GRAN = [8192]
SPOLL = [False]
OPOL = ['']
GSLEEP = [1]
PSIG = [0]
SINGLE = [False]
GB = [0]
WT = [0]
INV = [True]
QST = ['sc0 sc1', 'sc0 sc1']
def mark(a, k):
    if TIMING[0]:
        ts_mark(a, MK[k])
vLane16 = 1
vT0, vT1, vT2, vT3 = 2, 3, 4, 5
vKD = 6
vVD = 10
vKR = 11
vVR = 19
vM, vL, vMx, vF = 23, 24, 25, 26
vA0, vA1 = 27, 28
vSt = 29
QOWN, QCUR, S, O, DEF = 32, 64, 96, 160, 224
vWD = DEF
vXD = DEF + 4
vWR = DEF + 8
vXR = DEF + 12
vWR2 = DEF + 16
vXR2 = DEF + 20
vTT, vTD = DEF + 24, DEF + 25
ACC = S
FW = O
FX = QCUR

LDS_RING0, LDS_RING1, LDS_MISC = 0, 32768, 65536
LDS_BYTES = 81920

def bar(a):
    e = a.e
    if not SINGLE[0]:
        e("s_barrier")
        return
    GB[0] += 1
    L = f"gb{GB[0]}"
    e(f"s_add_u32 s{sBarT}, s{sBarT}, 1")
    e("s_waitcnt lgkmcnt(0)")
    e(f"v_mov_b32 v{vSt+2-0 if False else vT3}, 1")
    e("s_mov_b64 exec, 1")
    e(f"ds_add_u32 v{vBarA}, v{vT3}")
    e("s_mov_b64 exec, -1")
    a.label(L)
    e(f"ds_read_b32 v{vT3}, v{vBarA}")
    e("s_waitcnt lgkmcnt(0)")
    e(f"v_readfirstlane_b32 s{sT3}, v{vT3}")
    e(f"s_lshl_b32 s{sT2}, s{sBarT}, 2")
    a.nop(2)
    e(f"s_cmp_ge_u32 s{sT3}, s{sT2}")
    e(f"s_cbranch_scc1 {L}_ok")
    if GSLEEP[0] >= 0:
        e(f"s_sleep {GSLEEP[0]}")
    e(f"s_branch {L}")
    a.label(L + "_ok")


def mfma(e, d, a, b, c=None):
    cc = f"v[{d}:{d+15}]" if c is None else c
    e(f"v_mfma_f32_32x32x16_bf16 v[{d}:{d+15}], v[{a}:{a+3}], v[{b}:{b+3}], {cc}")


def gen_prologue(a, name, timing):
    e = a.e
    e(f"s_cmp_ge_u32 s2, {256 if SINGLE[0] else 512}")
    e(f"s_cbranch_scc1 {name}_done")
    if timing:
        ts_begin(a, sTS)
    e(f"s_load_dwordx8 s[{sPtr}:{sPtr+7}], s[0:1], 0")
    e(f"s_load_dwordx8 s[{sPtr+8}:{sPtr+15}], s[0:1], 40")
    e(f"s_load_dwordx2 s[{sPtr+16}:{sPtr+17}], s[0:1], 96")
    e(f"s_load_dwordx2 s[{sPtr+18}:{sPtr+19}], s[0:1], 88")
    e(f"v_lshrrev_b32 v{vT0}, 6, v0")
    e("v_and_b32 v0, 63, v0")
    e(f"v_readfirstlane_b32 s{sWid}, v{vT0}")
    a.nop(3)
    if SINGLE[0]:
        e(f"s_lshr_b32 s{sRole}, s{sWid}, 2")
        e(f"s_and_b32 s{sWV}, s{sWid}, 3")
        e(f"s_mul_i32 s{sLB}, s{sRole}, {LDS_BYTES}")
    else:
        e(f"s_mov_b32 s{sWV}, s{sWid}")
        e(f"s_lshr_b32 s{sRole}, s2, 8")
        e(f"s_mov_b32 s{sLB}, 0")
    e(f"s_lshl_b32 s{sW8}, s{sWV}, 13")
    e(f"s_and_b32 s{sT0}, s2, 7")
    e(f"s_bfe_u32 s{sT1}, s2, 0x50003")
    e(f"s_lshr_b32 s{sH}, s{sT0}, 1")
    e(f"s_lshl_b32 s{sH}, s{sH}, 3")
    e(f"s_and_b32 s{sT2}, s{sT1}, 7")
    e(f"s_add_u32 s{sH}, s{sH}, s{sT2}")
    e(f"s_and_b32 s{sI}, s{sT0}, 1")
    e(f"s_lshl_b32 s{sI}, s{sI}, 2")
    e(f"s_lshr_b32 s{sT2}, s{sT1}, 3")
    e(f"s_add_u32 s{sI}, s{sI}, s{sT2}")
    e(f"s_mov_b32 s{sX}, s{sT0}")
    e(f"s_add_u32 s{sCls}, s{sH}, s{sI}")
    e(f"s_and_b32 s{sCls}, s{sCls}, 3")
    e(f"v_lshlrev_b32 v{vLane16}, 4, v0")
    e(f"v_add_u32 v{vL16L}, s{sLB}, v{vLane16}")
    if ASYM[0]:
        e(f"s_lshl_b32 s{sT2}, s{sRole}, 6")
        e(f"s_add_u32 s{sT2}, s{sT2}, {LDS_MISC + 12288}")
    else:
        e(f"s_add_u32 s{sT2}, s{sLB}, {LDS_MISC + 12288}")
    e(f"v_mov_b32 v{vBarA}, s{sT2}")
    e(f"s_mov_b32 s{sBarT}, 0")
    e(f"v_lshrrev_b32 v{vT0}, 4, v0")
    e(f"v_and_b32 v{vT1}, 15, v0")
    e(f"v_lshlrev_b32 v{vT2}, 8, v{vT0}")
    for jj in range(4):
        e(f"v_add_u32 v{vT3}, {4*jj}, v{vT0}")
        e(f"v_xor_b32 v{vT3}, v{vT3}, v{vT1}")
        e(f"v_lshlrev_b32 v{vT3}, 4, v{vT3}")
        e(f"v_add_u32 v{vKD+jj}, v{vT3}, v{vT2}")
    e(f"v_lshlrev_b32 v{vT3}, 2, v{vT0}")
    e(f"v_xor_b32 v{vT3}, v{vT3}, v{vT1}")
    e(f"v_lshlrev_b32 v{vT3}, 4, v{vT3}")
    e(f"v_add_u32 v{vVD}, v{vT3}, v{vT2}")
    e(f"v_lshlrev_b32 v{vT2}, 13, v{vT0}")
    e(f"v_add_u32 v{vWD}, v{vT3}, v{vT2}")
    for jj in range(1, 4):
        e(f"v_add_u32 v{vWD+jj}, {jj*(4*8192-1024)}, v{vWD}")
    e(f"v_lshrrev_b32 v{vT1}, 3, v0")
    e(f"v_and_b32 v{vT2}, 7, v0")
    for jj in range(4):
        e(f"v_add_u32 v{vT3}, {4*jj}, v{vT0}")
        e(f"v_and_b32 v{vT3}, 7, v{vT3}")
        e(f"v_xor_b32 v{vT3}, v{vT3}, v{vT2}")
        e(f"v_lshlrev_b32 v{vT3}, 4, v{vT3}")
        e(f"v_lshlrev_b32 v{vXD+jj}, 11, v{vT1}")
        e(f"v_add_u32 v{vXD+jj}, v{vXD+jj}, v{vT3}")
        c = 8*jj*2048 - jj*1024
        if c:
            e(f"v_add_u32 v{vXD+jj}, {c}, v{vXD+jj}")
    e("s_waitcnt lgkmcnt(0)")
    e(f"s_cmp_eq_u32 s{sRole}, 0")
    for k, srd in enumerate((SRD_X, SRD_K, SRD_V, SRD_W)):
        e(f"s_cselect_b32 s{srd}, s{sPtr+8+2*k}, s{sPtr+2*k}")
        e(f"s_cselect_b32 s{srd+1}, s{sPtr+9+2*k}, s{sPtr+1+2*k}")
    e(f"s_mov_b32 s{sT0}, {32*32*131072}")
    e(f"s_cselect_b32 s{SRD_K+2}, s{sT0}, {32*4*131072}")
    e(f"s_mov_b32 s{SRD_V+2}, s{SRD_K+2}")
    for srd in (SRD_X, SRD_K, SRD_V, SRD_W):
        e(f"s_and_b32 s{srd+1}, s{srd+1}, 0xffff")
        e(f"s_mov_b32 s{srd+3}, 0x20000")
    e(f"s_mov_b32 s{SRD_X+2}, {1024*1024*2}")
    e(f"s_mov_b32 s{SRD_W+2}, {1024*4096*2}")
    e(f"s_mov_b32 s{sDbg}, s{sPtr+18}")
    e(f"s_mov_b32 s{sDbg+1}, s{sPtr+19}")
    e(f"s_mov_b32 s{SRD_D}, s{sPtr+18}")
    e(f"s_and_b32 s{SRD_D+1}, s{sPtr+19}, 0xffff")
    e(f"s_mov_b32 s{SRD_D+2}, 256")
    e(f"s_mov_b32 s{SRD_D+3}, 0x20000")
    e(f"s_mov_b32 s{SRD_O}, s{sPtr+16}")
    e(f"s_and_b32 s{SRD_O+1}, s{sPtr+17}, 0xffff")
    e(f"s_mov_b32 s{SRD_O+2}, {64 << 20}")
    e(f"s_mov_b32 s{SRD_O+3}, 0x20000")
    e(f"s_lshl_b32 s{sT0}, s{sWV}, 3")
    e(f"s_add_u32 s{sB}, s{sT0}, s{sI}")
    e(f"s_lshl_b32 s{sXoff}, s{sB}, 16")
    e(f"s_lshl_b32 s{sWoff}, s{sWV}, 17")
    e(f"s_lshl_b32 s{sT0}, s{sH}, 8")
    e(f"s_add_u32 s{sWoff}, s{sWoff}, s{sT0}")
    e(f"v_and_b32 v{vT0}, 31, v0")
    e(f"v_lshrrev_b32 v{vT1}, 5, v0")
    e(f"v_bfe_u32 v{vT2}, v0, 1, 3")
    e(f"v_xor_b32 v{vT2}, v{vT2}, v{vT1}")
    e(f"v_lshlrev_b32 v{vT2}, 4, v{vT2}")
    e(f"v_lshlrev_b32 v{vT3}, 7, v{vT0}")
    e(f"v_add_u32 v{vXR}, v{vT2}, v{vT3}")
    e(f"s_add_u32 s{sT0}, s{sW8}, {LDS_RING1}")
    e(f"s_add_u32 s{sT0}, s{sT0}, s{sLB}")
    e(f"v_add_u32 v{vXR}, s{sT0}, v{vXR}")
    for u in range(1, 4):
        e(f"v_xor_b32 v{vXR+u}, {u*32}, v{vXR}")
    e(f"v_and_b32 v{vT2}, 15, v0")
    e(f"v_xor_b32 v{vT2}, v{vT2}, v{vT1}")
    e(f"v_lshlrev_b32 v{vT2}, 4, v{vT2}")
    e(f"v_lshlrev_b32 v{vT3}, 8, v{vT0}")
    e(f"v_add_u32 v{vKR}, v{vT2}, v{vT3}")
    e(f"s_add_u32 s{sT0}, s{sW8}, s{sLB}")
    e(f"v_add_u32 v{vKR}, s{sT0}, v{vKR}")
    for s in range(1, 8):
        e(f"v_xor_b32 v{vKR+s}, {s*32}, v{vKR}")
    e(f"v_bfe_u32 v{vT0}, v0, 2, 2")
    e(f"v_lshlrev_b32 v{vT2}, 6, v{vT0}")
    e(f"v_bfe_u32 v{vT3}, v0, 4, 1")
    e(f"v_lshlrev_b32 v{vT3}, 5, v{vT3}")
    e(f"v_add_u32 v{vT2}, v{vT2}, v{vT3}")
    e(f"v_and_b32 v{vT3}, 1, v0")
    e(f"v_lshlrev_b32 v{vT3}, 4, v{vT3}")
    e(f"v_add_u32 v{vT2}, v{vT2}, v{vT3}")
    e(f"v_bfe_u32 v{vT3}, v0, 1, 1")
    e(f"v_lshlrev_b32 v{vT3}, 3, v{vT3}")
    e(f"v_add_u32 v{vT2}, v{vT2}, v{vT3}")
    e(f"v_lshlrev_b32 v{vT3}, 3, v{vT1}")
    e(f"v_add_u32 v{vT3}, v{vT3}, v{vT0}")
    e(f"v_lshlrev_b32 v{vT3}, 8, v{vT3}")
    e(f"v_add_u32 v{vWR}, v{vT2}, v{vT3}")
    e(f"v_add_u32 v{vWR}, s{sLB}, v{vWR}")
    e(f"v_lshlrev_b32 v{vT3}, 2, v{vT1}")
    e(f"v_add_u32 v{vT3}, v{vT3}, v{vT0}")
    e(f"v_lshlrev_b32 v{vT3}, 8, v{vT3}")
    e(f"v_add_u32 v{vVR}, v{vT2}, v{vT3}")
    for t in range(1, 4):
        e(f"v_xor_b32 v{vWR+t}, {t*64}, v{vWR}")
    e(f"s_add_u32 s{sT0}, s{sW8}, s{sLB}")
    e(f"v_add_u32 v{vT2}, s{sT0}, v{vVR}")
    for k in range(4):
        e(f"s_add_u32 s{sT0}, s{sWV}, {k}")
        e(f"s_and_b32 s{sT0}, s{sT0}, 3")
        e(f"s_lshl_b32 s{sT0}, s{sT0}, 6")
        e(f"v_xor_b32 v{vVR+k}, s{sT0}, v{vT2}")
    e(f"s_add_u32 s{sM0a}, s{sW8}, s{sLB}")
    e(f"s_add_u32 s{sM0b}, s{sM0a}, {LDS_RING1}")
    e(f"s_mov_b32 s{sScale}, {f32bits(C_SCALE):#x}")


def gen_qproj(a, name, pol_x, pol_w, after_barrier15=None, after_x15=None):
    e = a.e
    WSLOT = [LDS_MISC, 0, 16384]

    def wt_setup():
        e(f"s_and_b32 s{sT2}, s{sH}, 7")
        e(f"v_lshrrev_b32 v{vT0}, 4, v0")
        e(f"v_lshlrev_b32 v{vT0}, 13, v{vT0}")
        e(f"v_and_b32 v{vT1}, 15, v0")
        e(f"v_lshlrev_b32 v{vT1}, 7, v{vT1}")
        e(f"v_add_u32 v{vT0}, v{vT0}, v{vT1}")
        e(f"s_lshl_b32 s{sT0}, s{sT2}, 6")
        e(f"v_add_u32 v{vT1}, s{sT0}, v0")
        e(f"v_bfe_u32 v{vT2}, v{vT1}, 5, 2")
        e(f"v_lshrrev_b32 v{vT3}, 7, v{vT1}")
        e(f"v_lshlrev_b32 v{vT3}, 3, v{vT3}")
        e(f"v_add_u32 v{vT2}, v{vT2}, v{vT3}")
        e(f"v_lshlrev_b32 v{vT2}, 5, v{vT2}")
        e(f"v_and_b32 v{vT1}, 31, v{vT1}")
        e(f"v_add_u32 v{vT1}, v{vT1}, v{vT2}")
        e(f"v_lshlrev_b32 v{vT1}, 11, v{vT1}")
        e(f"s_cmp_lt_u32 s{sWV}, 2")
        e(f"s_cselect_b64 vcc, -1, 0")
        e(f"v_cndmask_b32 v{vTT}, v{vT1}, v{vT0}, vcc")
        for k in range(4):
            e(f"s_cselect_b32 s{SRD_T+k}, s{SRD_W+k}, s{SRD_X+k}")
        e(f"s_mov_b32 s{SRD_T+3}, 0x20000")
        e(f"s_lshl_b32 s{sT0}, s{sT2}, 3")
        e(f"s_lshl_b32 s{sT1}, s{sWV}, 2")
        e(f"s_add_u32 s{sT0}, s{sT0}, s{sT1}")
        e(f"s_lshl_b32 s{sT0}, s{sT0}, 13")
        e(f"s_lshr_b32 s{sT1}, s{sX}, 1")
        e(f"s_lshl_b32 s{sT1}, s{sT1}, 11")
        e(f"s_add_u32 s{sT0}, s{sT0}, s{sT1}")
        e(f"s_and_b32 s{sT1}, s{sX}, 1")
        e(f"s_lshl_b32 s{sT1}, s{sT1}, 18")
        e(f"s_cmp_lt_u32 s{sWV}, 2")
        e(f"s_cselect_b32 s{sTbase}, s{sT0}, s{sT1}")
        e(f"s_mov_b32 s{sT0}, {64*8192}")
        e(f"s_cselect_b32 s{sTstep}, s{sT0}, 128")
        e(f"s_cmp_eq_u32 s{sWV}, 3")
        e(f"s_cselect_b32 s{sTbase}, {OOB:#x}, s{sTbase}")
        e(f"s_cselect_b32 s{sTstep}, 0, s{sTstep}")

    def wt_issue(tau_reg_or_imm):
        if isinstance(tau_reg_or_imm, int):
            e(f"s_mov_b32 s{sT2}, {tau_reg_or_imm}")
        else:
            e(f"s_add_u32 s{sT2}, s{sCnt}, {WT[0]}")
        e(f"s_mul_i32 s{sT3}, s{sT2}, s{sTstep}")
        e(f"s_add_u32 s{sT3}, s{sT3}, s{sTbase}")
        e(f"s_and_b32 s{sT0}, s{sT2}, 3")
        e(f"s_cmp_eq_u32 s{sT0}, s{sCls}")
        e(f"s_cselect_b32 s{sT3}, s{sT3}, {OOB:#x}")
        e(f"s_cmp_lt_u32 s{sT2}, 16")
        e(f"s_cselect_b32 s{sT3}, s{sT3}, {OOB:#x}")
        e(f"buffer_load_dword v{vTD}, v{vTT}, s[{SRD_T}:{SRD_T+3}], s{sT3} offen {pol_w}")

    def sigma():
        if QORDER[0] == "adv":
            e(f"s_add_u32 s{sT1}, s{sStg}, 1")
            e(f"s_sub_u32 s{sT1}, s{sT1}, s{sCls}")
            e(f"s_and_b32 s{sT1}, s{sT1}, 3")
            e(f"s_cmp_eq_u32 s{sT1}, 0")
            e(f"s_cselect_b32 s{sT0}, 1, 0")
            e(f"s_cmp_eq_u32 s{sT1}, 1")
            e(f"s_cselect_b32 s{sT0}, -1, s{sT0}")
            e(f"s_add_u32 s{sSig}, s{sStg}, s{sT0}")
            e(f"s_cmp_lt_u32 s{sSig}, 16")
            e(f"s_cselect_b32 s{sSig}, s{sSig}, s{sStg}")
        elif QORDER[0] == "rot4":
            e(f"s_add_u32 s{sT1}, s{sStg}, s{sCls}")
            e(f"s_and_b32 s{sT1}, s{sT1}, 3")
            e(f"s_andn2_b32 s{sSig}, s{sStg}, 3")
            e(f"s_or_b32 s{sSig}, s{sSig}, s{sT1}")
        elif QORDER[0] == "rot8":
            e(f"s_lshl_b32 s{sT1}, s{sCls}, 1")
            e(f"s_add_u32 s{sT1}, s{sT1}, s{sStg}")
            e(f"s_and_b32 s{sT1}, s{sT1}, 7")
            e(f"s_andn2_b32 s{sSig}, s{sStg}, 7")
            e(f"s_or_b32 s{sSig}, s{sSig}, s{sT1}")
        elif QORDER[0] == "rot16":
            e(f"s_lshl_b32 s{sT1}, s{sCls}, 2")
            e(f"s_add_u32 s{sT1}, s{sT1}, s{sStg}")
            e(f"s_and_b32 s{sSig}, s{sT1}, 15")
        else:
            e(f"s_mov_b32 s{sSig}, s{sStg}")

    def issue_w():
        sigma()
        e(f"s_lshl_b32 s{sT0}, s{sWV}, 12")
        e(f"s_add_u32 s{sT0}, s{sT0}, s{sLB}")
        e(f"s_add_u32 m0, s{sWslotF}, s{sT0}")
        e(f"s_lshl_b32 s{sT1}, s{sSig}, 19")
        e(f"s_add_u32 s{sT1}, s{sT1}, s{sWoff}")
        for jj in range(4):
            e(f"buffer_load_dwordx4 v{vWD+jj}, s[{SRD_W}:{SRD_W+3}], s{sT1} offen offset:{jj*1024} {pol_w} lds")
        e(f"s_cmp_eq_u32 s{sWslotF}, {LDS_MISC}")
        e(f"s_cselect_b32 s{sT0}, 0, {LDS_MISC}")
        e(f"s_cmp_eq_u32 s{sWslotF}, 0")
        e(f"s_cselect_b32 s{sWslotF}, 16384, s{sT0}")

    def issue_x(par):
        e(f"s_mov_b32 s{sT0}, s{sM0b}")
        if par is not None:
            e(f"s_add_u32 m0, s{sT0}, {par*4096}")
        else:
            e(f"s_add_u32 m0, s{sT0}, s{sXslot}")
        e(f"s_lshl_b32 s{sT1}, s{sSig}, 7")
        e(f"s_add_u32 s{sT1}, s{sT1}, s{sXoff}")
        for jj in range(4):
            e(f"buffer_load_dwordx4 v{vXD+jj}, s[{SRD_X}:{SRD_X+3}], s{sT1} offen offset:{jj*1024} {pol_x} lds")
        e(f"s_add_u32 s{sStg}, s{sStg}, 1")

    class Cap:
        def __init__(self): self.L = []
        def __call__(self, t=""): self.L.append(t)

    def capture(fn):
        nonlocal e
        keep = e
        c = Cap(); e = c
        fn()
        e = keep
        return c.L

    def stage(first, issue, hook_w=None, hook_x=None, last=False):
        nwait = 9 if (WT[0] and not first) else 8
        e(f"s_waitcnt vmcnt({nwait})" if not last else "s_waitcnt vmcnt(0)")
        if ASYM[0]:
            GB[0] += 1
            L = f"qb{GB[0]}"
            e(f"s_cmp_lg_u32 s{sRole}, 0")
            e(f"s_cbranch_scc1 {L}_g")
            e("s_barrier")
            e(f"s_branch {L}_d")
            a.label(L + "_g")
            bar(a)
            a.label(L + "_d")
        else:
            e("s_barrier")
        for t in range(4):
            e(f"v_add_u32 v{vWR2+t}, s{sWslotR}, v{vWR+t}")
        for u in range(4):
            e(f"v_add_u32 v{vXR2+u}, s{sXslot}, v{vXR+u}")
        if 'd' in QSKIP[0]:
            issue = False
        def rx():
            if 'r' in QSKIP[0]: return []
            return [f"ds_read_b128 v[{FX+4*u}:{FX+4*u+3}], v{vXR2+u}" for u in range(4)]
        def rw(u):
            L = []
            if 'r' in QSKIP[0]: return L
            for t in range(4):
                for half in range(2):
                    r = FW + 16*u + 4*t + 2*half
                    L.append(f"ds_read_b64_tr_b16 v[{r}:{r+1}], v{vWR2+t} offset:{(16*u+4*half)*256}")
            return L
        def mm(u):
            L = []
            for t in range(4):
                c = "0" if (first and u == 0) else f"v[{ACC+16*t}:{ACC+16*t+15}]"
                L.append(f"v_mfma_f32_32x32x16_bf16 v[{ACC+16*t}:{ACC+16*t+15}], v[{FW+16*u+4*t}:{FW+16*u+4*t+3}], v[{FX+4*u}:{FX+4*u+3}], {c}" if 'm' not in QSKIP[0] else "s_nop 0")
            return L
        for ln in rx() + rw(0):
            e(ln)
        if issue:
            issue_w()
            if WT[0]:
                wt_issue("cnt")
        if hook_w:
            hook_w()
        e("s_waitcnt lgkmcnt(0)")
        fill = rw(1) + rw(2)
        k = 0
        for m in mm(0):
            e(m)
            for ln in fill[k:k+4]:
                e(ln)
            k += 4
        xl = capture(lambda: issue_x(None)) if issue else []
        e("s_waitcnt lgkmcnt(8)")
        fill = rw(3)
        k = 0
        for m in mm(1):
            e(m)
            for ln in fill[k:k+2]:
                e(ln)
            k += 2
        e("s_waitcnt lgkmcnt(8)")
        k = 0
        per = (len(xl) + 3) // 4
        for m in mm(2):
            e(m)
            for ln in xl[k:k+per]:
                e(ln)
            k += per
        if hook_x:
            hook_x()
        e("s_waitcnt lgkmcnt(0)")
        adv = [f"s_cmp_eq_u32 s{sWslotR}, {LDS_MISC}",
               f"s_cselect_b32 s{sT0}, 0, {LDS_MISC}",
               f"s_cmp_eq_u32 s{sWslotR}, 0",
               f"s_cselect_b32 s{sWslotR}, 16384, s{sT0}",
               f"s_xor_b32 s{sXslot}, s{sXslot}, 4096"]
        k = 0
        for m in mm(3):
            e(m)
            for ln in adv[k:k+2]:
                e(ln)
            k += 2

    e(f"s_mov_b32 s{sWslotF}, {LDS_MISC}")
    e(f"s_mov_b32 s{sWslotR}, {LDS_MISC}")
    e(f"s_mov_b32 s{sXslot}, 0")
    e(f"s_mov_b32 s{sStg}, 0")
    e(f"s_mov_b32 s{sCnt}, 0")
    if WT[0]:
        wt_setup()
        for tau in range(WT[0]):
            wt_issue(tau)
    issue_w(); issue_x(0)
    issue_w(); issue_x(1)
    stage(True, True)
    e(f"s_mov_b32 s{sCnt}, 1")
    a.label(f"{name}_qloop")
    if QMARKS[0]:
        ts_mark(a, 76)
        for k, cnt in enumerate((1, 2, 4, 8, 12)):
            e(f"s_cmp_eq_u32 s{sCnt}, {cnt}")
            e(f"s_cselect_b32 s{MK[2+k]}, s76, s{MK[2+k]}")
    if ALT[0]:
        e(f"s_add_u32 s{sT0}, s{sCnt}, s{sRole}")
        e(f"s_bitcmp1_b32 s{sT0}, 0")
        e(f"s_cbranch_scc1 {name}_p1")
        e("s_setprio 0")
        e(f"s_branch {name}_p2")
        a.label(f"{name}_p1")
        e("s_setprio 1")
        a.label(f"{name}_p2")
    if PSIG[0]:
        e(f"s_cmp_lg_u32 s{sCnt}, {PSIG[0]}")
        e(f"s_cbranch_scc1 {name}_ps_d")
        e(f"s_or_b32 s{sT0}, s{sWV}, s{sRole}")
        e(f"s_cmp_lg_u32 s{sT0}, 0")
        e(f"s_cbranch_scc1 {name}_ps_d")
        e(f"s_and_b32 s{sT0}, s2, 255")
        e(f"s_lshl_b32 s{sT0}, s{sT0}, 8")
        e(f"s_add_u32 s{sT0}, s{sT0}, {PAIR_OFF}")
        e(f"s_mul_i32 s{sT1}, s{sPairN}, 0x9e3779b1")
        e(f"s_add_u32 s{sT1}, s{sT1}, 0x7f4a7c15")
        e(f"v_mov_b32 v{vT0}, 0")
        e(f"v_mov_b32 v{vT1}, s{sT1}")
        e(f"v_cmp_eq_u32 vcc, 0, v0")
        e(f"s_and_saveexec_b64 s[{sT2}:{sT3}], vcc")
        e(f"buffer_store_dword v{vT1}, v{vT0}, s[{SRD_O}:{SRD_O+3}], s{sT0} offen offset:16 sc0 sc1")
        e(f"s_mov_b64 exec, s[{sT2}:{sT3}]")
        a.label(f"{name}_ps_d")
    stage(False, True)
    e(f"s_add_u32 s{sCnt}, s{sCnt}, 1")
    e(f"s_cmp_lt_u32 s{sCnt}, 14")
    e(f"s_cbranch_scc1 {name}_qloop")
    stage(False, False)
    stage(False, False, hook_w=after_barrier15, hook_x=after_x15, last=True)
    a.nop(12)
    for s in range(8):
        t, sg = s >> 1, s & 1
        for i in range(4):
            src = ACC + 16*t + 8*sg + 2*i
            e(f"v_cvt_pk_bf16_f32 v{QOWN+4*s+i}, v{src}, v{src+1}")


def gen_qproj_pipe(a, name, pol_x, pol_w, hook_w=None, hook_x=None):
    e = a.e
    def qbar():
        if ASYM[0]:
            GB[0] += 1
            L = f"qp{GB[0]}"
            e(f"s_cmp_lg_u32 s{sRole}, 0")
            e(f"s_cbranch_scc1 {L}_g")
            e("s_barrier")
            e(f"s_branch {L}_d")
            a.label(L + "_g")
            bar(a)
            a.label(L + "_d")
        else:
            e("s_barrier")
    FXs = [QCUR, QCUR + 16]
    WR = [vWR2, vXR2]

    def sigma_of(reg):
        if QORDER[0] == "adv":
            return [f"s_add_u32 s{sT1}, s{reg}, 1", f"s_sub_u32 s{sT1}, s{sT1}, s{sCls}", f"s_and_b32 s{sT1}, s{sT1}, 3",
                    f"s_cmp_eq_u32 s{sT1}, 0", f"s_cselect_b32 s{sT0}, 1, 0", f"s_cmp_eq_u32 s{sT1}, 1",
                    f"s_cselect_b32 s{sT0}, -1, s{sT0}", f"s_add_u32 s{sSig}, s{reg}, s{sT0}",
                    f"s_cmp_lt_u32 s{sSig}, 16", f"s_cselect_b32 s{sSig}, s{sSig}, s{reg}"]
        return [f"s_mov_b32 s{sSig}, s{reg}"]

    sPW, sPX = sStg, sXslot
    def w_lines():
        L = sigma_of(sPW)
        L += [f"s_lshl_b32 s{sT0}, s{sWV}, 12", f"s_add_u32 s{sT0}, s{sT0}, s{sLB}", f"s_add_u32 m0, s{sWslotF}, s{sT0}",
              f"s_lshl_b32 s{sT1}, s{sSig}, 19", f"s_add_u32 s{sT1}, s{sT1}, s{sWoff}"]
        L += [f"buffer_load_dwordx4 v{vWD+jj}, s[{SRD_W}:{SRD_W+3}], s{sT1} offen offset:{jj*1024} {pol_w} lds" for jj in range(4)]
        L += [f"s_cmp_eq_u32 s{sWslotF}, {LDS_MISC}", f"s_cselect_b32 s{sT0}, 0, {LDS_MISC}", f"s_cmp_eq_u32 s{sWslotF}, 0",
              f"s_cselect_b32 s{sWslotF}, 16384, s{sT0}", f"s_add_u32 s{sPW}, s{sPW}, 1"]
        return L
    def x_lines(par):
        L = [f"s_add_u32 m0, s{sM0b}, {par*4096}", f"s_lshl_b32 s{sT1}, s{sSig}, 7", f"s_add_u32 s{sT1}, s{sT1}, s{sXoff}"]
        L += [f"buffer_load_dwordx4 v{vXD+jj}, s[{SRD_X}:{SRD_X+3}], s{sT1} offen offset:{jj*1024} {pol_x} lds" for jj in range(4)]
        return L
    def rw(u, par):
        L = []
        for t in range(4):
            for half in range(2):
                r = FW + 16*u + 4*t + 2*half
                L.append(f"ds_read_b64_tr_b16 v[{r}:{r+1}], v{WR[par]+t} offset:{(16*u+4*half)*256}")
        return L
    def rx(par):
        return [f"ds_read_b128 v[{FXs[par]+4*u}:{FXs[par]+4*u+3}], v{vXR+u} offset:{par*4096}" for u in range(4)]
    def mm(u, par):
        return [f"v_mfma_f32_32x32x16_bf16 v[{ACC+16*t}:{ACC+16*t+15}], v[{FW+16*u+4*t}:{FW+16*u+4*t+3}], v[{FXs[par]+4*u}:{FXs[par]+4*u+3}], v[{ACC+16*t}:{ACC+16*t+15}]" for t in range(4)]
    def wr_set(par):
        L = [f"v_add_u32 v{WR[par]+t}, s{sWslotR}, v{vWR+t}" for t in range(4)]
        L += [f"s_cmp_eq_u32 s{sWslotR}, {LDS_MISC}", f"s_cselect_b32 s{sT0}, 0, {LDS_MISC}", f"s_cmp_eq_u32 s{sWslotR}, 0",
              f"s_cselect_b32 s{sWslotR}, 16384, s{sT0}"]
        return L
    def weave(main, fill):
        per = -(-len(fill) // len(main))
        k = 0
        for m in main:
            e(m)
            for ln in fill[k:k+per]:
                e(ln)
            k += per

    e(f"s_mov_b32 s{sWslotF}, {LDS_MISC}")
    e(f"s_mov_b32 s{sWslotR}, {LDS_MISC}")
    e(f"s_mov_b32 s{sPW}, 0")
    e(f"s_mov_b32 s{sPX}, 0")
    for ln in w_lines() + x_lines(0) + w_lines() + x_lines(1) + w_lines():
        e(ln)
    for j in range(64):
        e(f"v_mov_b32 v{ACC+j}, 0")
    for ln in wr_set(0):
        e(ln)
    e("s_waitcnt vmcnt(12)")
    qbar()
    for ln in rx(0) + rw(0, 0) + rw(1, 0):
        e(ln)

    def stage(par, xiss, wiss, nwait, last=False, hw=None, hx=None):
        e("s_waitcnt lgkmcnt(8)")
        if hx:
            hx()
        xl = x_lines(par) if xiss else []
        weave(mm(0, par), rw(2, par) + xl[:3])
        e("s_waitcnt lgkmcnt(8)")
        weave(mm(1, par), rw(3, par) + xl[3:])
        if last:
            e("s_waitcnt lgkmcnt(8)")
            weave(mm(2, par), [])
            e("s_waitcnt lgkmcnt(0)")
            weave(mm(3, par), [])
            return
        for ln in wr_set(par ^ 1):
            e(ln)
        e(f"s_waitcnt vmcnt({nwait}) lgkmcnt(0)")
        qbar()
        if hw:
            hw()
        wl = w_lines() if wiss else []
        cut = len(wl) - 9 if wiss else 0
        weave(mm(2, par), rx(par ^ 1) + rw(0, par ^ 1) + wl[:cut // 2])
        weave(mm(3, par), rw(1, par ^ 1) + wl[cut // 2:])

    e(f"s_mov_b32 s{sCnt}, 0")
    a.label(f"{name}_qloop")
    if PSIG[0]:
        e(f"s_cmp_lg_u32 s{sCnt}, {PSIG[0] & ~1}")
        e(f"s_cbranch_scc1 {name}_ps_d")
        e(f"s_or_b32 s{sT0}, s{sWV}, s{sRole}")
        e(f"s_cmp_lg_u32 s{sT0}, 0")
        e(f"s_cbranch_scc1 {name}_ps_d")
        e(f"s_and_b32 s{sT0}, s2, 255")
        e(f"s_lshl_b32 s{sT0}, s{sT0}, 8")
        e(f"s_add_u32 s{sT0}, s{sT0}, {PAIR_OFF}")
        e(f"s_mul_i32 s{sT1}, s{sPairN}, 0x9e3779b1")
        e(f"s_add_u32 s{sT1}, s{sT1}, 0x7f4a7c15")
        e(f"v_mov_b32 v{vT0}, 0")
        e(f"v_mov_b32 v{vT1}, s{sT1}")
        e(f"v_cmp_eq_u32 vcc, 0, v0")
        e(f"s_and_saveexec_b64 s[{sT2}:{sT3}], vcc")
        e(f"buffer_store_dword v{vT1}, v{vT0}, s[{SRD_O}:{SRD_O+3}], s{sT0} offen offset:16 sc0 sc1")
        e(f"s_mov_b64 exec, s[{sT2}:{sT3}]")
        a.label(f"{name}_ps_d")
    stage(0, True, True, 8)
    stage(1, True, True, 8)
    e(f"s_add_u32 s{sCnt}, s{sCnt}, 2")
    e(f"s_cmp_lt_u32 s{sCnt}, 12")
    e(f"s_cbranch_scc1 {name}_qloop")
    stage(0, True, True, 8)
    stage(1, True, False, 8)
    stage(0, False, False, 0, hw=hook_w)
    stage(1, False, False, 0, last=True, hx=hook_x)
    a.nop(12)
    for s in range(8):
        t, sg = s >> 1, s & 1
        for i in range(4):
            src = ACC + 16*t + 8*sg + 2*i
            e(f"v_cvt_pk_bf16_f32 v{QOWN+4*s+i}, v{src}, v{src+1}")


def issue_tile(e, srd, slot_reg, off_reg, imm, is_k, pol, rotT=None):
    e(f"s_mov_b32 m0, s{slot_reg}")
    if rotT is not None and KROT[0]:
        e(f"s_add_u32 s{sT0}, s{off_reg}, s{88 + rotT}")
    elif imm:
        e(f"s_add_u32 s{sT0}, s{off_reg}, {imm}")
    else:
        e(f"s_mov_b32 s{sT0}, s{off_reg}")
    for half in range(2):
        for jj in range(4):
            v = vKD + jj if is_k else vVD
            e(f"buffer_load_dwordx4 v{v}, s[{srd}:{srd+3}], s{sT0} offen offset:{jj*1024} {pol} lds")
        if half == 0:
            e(f"s_add_u32 m0, s{slot_reg}, 4096")
            e(f"s_add_u32 s{sT0}, s{sT0}, {4096 if GRAN[0] == 8192 else 16384}")


def k_tile(e, T, slot, hook, early=None):
    FK = O + 32*(T & 1)
    if early:
        e("s_waitcnt vmcnt(0)")
        early()
    else:
        e("s_waitcnt vmcnt(8)")
    for s in range(8):
        e(f"ds_read_b128 v[{FK+4*s}:{FK+4*s+3}], v{vKR+s} offset:{slot*LDS_RING1}")
    e("s_waitcnt lgkmcnt(0)")
    hook()
    for s in range(8):
        mfma(e, S+16*T, FK+4*s, QCUR+4*s, "0" if s == 0 else None)


def v_tile(e, T, slot, hook, early=None):
    FV = S + 32
    if early:
        e("s_waitcnt vmcnt(0)")
        early()
    else:
        e("s_waitcnt vmcnt(8)")
    for k in range(4):
        for u in range(2):
            for half in range(2):
                r = FV + 8*k + 4*u + 2*half
                e(f"ds_read_b64_tr_b16 v[{r}:{r+1}], v{vVR+k} offset:{slot*LDS_RING1 + (16*u+8*half)*256}")
    e("s_waitcnt lgkmcnt(0)")
    hook()
    for u in range(2):
        for k in range(4):
            mfma(e, O+16*k, FV+8*k+4*u, S+8*T+4*u, "0" if (T == 0 and u == 0) else None)


def softmax(a, nreg=64):
    e = a.e
    e(f"v_max3_f32 v{vMx}, v{S}, v{S+1}, v{S+2}")
    e(f"v_max3_f32 v{vT0}, v{S+3}, v{S+4}, v{S+5}")
    k = 6
    tgt = [vMx, vT0]
    n = 0
    while k + 1 < nreg:
        e(f"v_max3_f32 v{tgt[n&1]}, v{tgt[n&1]}, v{S+k}, v{S+k+1}")
        k += 2; n += 1
    e(f"v_max_f32 v{vMx}, v{vMx}, v{vT0}")
    e(f"v_mov_b32 v{vT0}, v{vMx}")
    a.nop(2)
    e(f"v_permlane32_swap_b32 v{vMx}, v{vT0}")
    a.nop(1)
    e(f"v_max_f32 v{vM}, v{vMx}, v{vT0}")
    e(f"v_mul_f32 v{vF}, s{sScale}, v{vM}")
    for k in range(nreg):
        e(f"v_fma_f32 v{S+k}, v{S+k}, s{sScale}, -v{vF}")
    for k in range(nreg):
        e(f"v_exp_f32 v{S+k}, v{S+k}")
    e(f"v_add_f32 v{vL}, v{S}, v{S+1}")
    e(f"v_add_f32 v{vT0}, v{S+2}, v{S+3}")
    for k in range(4, nreg, 2):
        e(f"v_add_f32 v{vL}, v{vL}, v{S+k}")
        e(f"v_add_f32 v{vT0}, v{vT0}, v{S+k+1}")
    for k in range(nreg//2):
        e(f"v_cvt_pk_bf16_f32 v{S+k}, v{S+2*k}, v{S+2*k+1}")
    e(f"v_add_f32 v{vL}, v{vL}, v{vT0}")
    e(f"v_mov_b32 v{vT0}, v{vL}")
    a.nop(2)
    e(f"v_permlane32_swap_b32 v{vL}, v{vT0}")
    a.nop(1)
    e(f"v_add_f32 v{vL}, v{vL}, v{vT0}")


def q_broadcast(a, name, tag, owner_reg_or_imm):
    e = a.e
    e(f"s_cmp_lg_u32 s{sWV}, {owner_reg_or_imm}")
    e(f"s_cbranch_scc1 {name}_{tag}_skip")
    e(f"v_add_u32 v{vA0}, {LDS_MISC}, v{vL16L}")
    for s in range(8):
        e(f"ds_write_b128 v{vA0}, v[{QOWN+4*s}:{QOWN+4*s+3}] offset:{s*1024}")
    e("s_waitcnt lgkmcnt(0)")
    a.label(f"{name}_{tag}_skip")
    bar(a)
    e(f"v_add_u32 v{vA0}, {LDS_MISC}, v{vL16L}")
    for s in range(8):
        e(f"ds_read_b128 v[{QCUR+4*s}:{QCUR+4*s+3}], v{vA0} offset:{s*1024}")
    e("s_waitcnt lgkmcnt(0)")


def gen_m1(a, name, pol):
    e = a.e
    sNext = sT5
    G = S + 32
    a.label(f"{name}_task")
    e(f"s_add_u32 s{sNext}, s{sKVoff}, s{sOoff}")
    e(f"s_cmp_lt_u32 s{sTask}, 3")
    e(f"s_cselect_b32 s{sNext}, s{sNext}, {OOB:#x}")
    slotreg = [sM0a, sM0b]
    none = lambda: None
    for T in range(4):
        if LOOK[0] == 2:
            if T < 2:
                hook = lambda T=T: issue_tile(e, SRD_K, slotreg[T & 1], sKVoff, (T+2)*32768, True, pol)
            else:
                hook = lambda T=T: issue_tile(e, SRD_V, slotreg[T & 1], sKVoff, (T-2)*32768, False, pol)
            k_tile(e, T, T & 1, hook)
        else:
            if T < 3:
                early = lambda T=T: issue_tile(e, SRD_K, slotreg[(T+1) & 1], sKVoff, (T+1)*32768, True, pol, T+1)
            else:
                early = lambda: issue_tile(e, SRD_V, sM0a, sKVoff, 0, False, pol, 0)
            k_tile(e, T, T & 1, none, early)
    softmax(a)
    e(f"s_cmp_ge_u32 s{sTask}, 3")
    e(f"s_cbranch_scc1 {name}_noq")
    e(f"s_add_u32 s{sT4}, s{sTask}, 1")
    q_broadcast(a, name, "qn", f"s{sT4}")
    a.label(f"{name}_noq")
    for T in range(4):
        if LOOK[0] == 2:
            if T < 2:
                hook = lambda T=T: issue_tile(e, SRD_V, slotreg[T & 1], sKVoff, (T+2)*32768, False, pol)
            elif T == 2:
                hook = lambda: issue_tile(e, SRD_K, sM0a, sNext, 0, True, pol)
            else:
                hook = lambda: None
            v_tile(e, T, T & 1, hook)
        else:
            if T < 3:
                early = lambda T=T: issue_tile(e, SRD_V, slotreg[(T+1) & 1], sKVoff, (T+1)*32768, False, pol, T+1)
            else:
                early = lambda: issue_tile(e, SRD_K, sM0a, sNext, 0, True, pol, 0)
            v_tile(e, T, T & 1, none, early)
    e(f"v_and_b32 v{vT0}, 31, v0")
    e(f"v_lshlrev_b32 v{vT0}, 3, v{vT0}")
    e(f"v_add_u32 v{vT0}, {LDS_MISC + 8192}, v{vT0}")
    e(f"v_add_u32 v{vT0}, s{sLB}, v{vT0}")
    e(f"s_lshl_b32 s{sT0}, s{sWV}, 8")
    e(f"v_add_u32 v{vA0}, s{sT0}, v{vT0}")
    e(f"v_add_u32 v{vA1}, s{sM0b}, v{vLane16}")
    e(f"ds_write_b32 v{vA0}, v{vM}")
    e(f"ds_write_b32 v{vA0}, v{vL} offset:4")
    a.nop(10)
    for k in (1, 2):
        for j in range(4):
            e(f"ds_write_b128 v{vA1}, v[{O+16*k+4*j}:{O+16*k+4*j+3}] offset:{(k-1)*4096 + j*1024}")
    e("s_waitcnt lgkmcnt(0)")
    bar(a)
    for k in range(4):
        e(f"s_sub_u32 s{sT0}, s{sWV}, {k}")
        e(f"s_and_b32 s{sT0}, s{sT0}, 3")
        e(f"s_lshl_b32 s{sT0}, s{sT0}, 8")
        e(f"v_add_u32 v{vA0}, s{sT0}, v{vT0}")
        e(f"ds_read_b64 v[{G+2*k}:{G+2*k+1}], v{vA0}")
    TI = S
    for k in (1, 2):
        e(f"s_sub_u32 s{sT0}, s{sWV}, {k}")
        e(f"s_and_b32 s{sT0}, s{sT0}, 3")
        e(f"s_lshl_b32 s{sT0}, s{sT0}, 13")
        e(f"s_add_u32 s{sT0}, s{sT0}, {LDS_RING1 + (k-1)*4096}")
        e(f"v_add_u32 v{vA0}, s{sT0}, v{vL16L}")
        for j in range(4):
            e(f"ds_read_b128 v[{TI+16*(k-1)+4*j}:{TI+16*(k-1)+4*j+3}], v{vA0} offset:{j*1024}")
    e("s_waitcnt lgkmcnt(8)")
    e(f"v_max3_f32 v{vMx}, v{G}, v{G+2}, v{G+4}")
    e(f"v_max_f32 v{vMx}, v{vMx}, v{G+6}")
    e(f"v_mul_f32 v{vMx}, s{sScale}, v{vMx}")
    for k in range(4):
        e(f"v_fma_f32 v{G+2*k}, v{G+2*k}, s{sScale}, -v{vMx}")
    for k in range(4):
        e(f"v_exp_f32 v{G+2*k}, v{G+2*k}")
    a.nop(1)
    e(f"v_mul_f32 v{vF}, v{G}, v{G+1}")
    for k in range(1, 4):
        e(f"v_fma_f32 v{vF}, v{G+2*k}, v{G+2*k+1}, v{vF}")
    e(f"v_rcp_f32 v{vF}, v{vF}")
    a.nop(1)
    for k in range(4):
        e(f"v_mul_f32 v{G+2*k}, v{G+2*k}, v{vF}")
    for j in range(16):
        e(f"v_mul_f32 v{O+j}, v{O+j}, v{G}")
    e("s_waitcnt lgkmcnt(0)")
    for k in (1, 2):
        for j in range(16):
            e(f"v_fma_f32 v{O+j}, v{TI+16*(k-1)+j}, v{G+2*k}, v{O+j}")
    bar(a)
    for j in range(4):
        e(f"ds_write_b128 v{vA1}, v[{O+48+4*j}:{O+48+4*j+3}] offset:{j*1024}")
    e("s_waitcnt lgkmcnt(0)")
    bar(a)
    e(f"s_sub_u32 s{sT0}, s{sWV}, 3")
    e(f"s_and_b32 s{sT0}, s{sT0}, 3")
    e(f"s_lshl_b32 s{sT0}, s{sT0}, 13")
    e(f"s_add_u32 s{sT0}, s{sT0}, {LDS_RING1}")
    e(f"v_add_u32 v{vA0}, s{sT0}, v{vL16L}")
    for j in range(4):
        e(f"ds_read_b128 v[{TI+4*j}:{TI+4*j+3}], v{vA0} offset:{j*1024}")
    e("s_waitcnt lgkmcnt(0)")
    bar(a)
    if LOOK[0] == 2:
        issue_tile(e, SRD_K, sM0b, sNext, 32768, True, pol)
    for j in range(16):
        e(f"v_fma_f32 v{O+j}, v{TI+j}, v{G+6}, v{O+j}")
    for k in range(24):
        e(f"v_mov_b32 v{DEF+k}, v{DEF+8+k}")
    for j in range(8):
        e(f"v_cvt_pk_bf16_f32 v{DEF+24+j}, v{O+2*j}, v{O+2*j+1}")
    if TIMING[0]:
        ts_mark(a, 76)
        for k in range(4):
            e(f"s_cmp_eq_u32 s{sTask}, {k}")
            e(f"s_cselect_b32 s{MK[2+k]}, s76, s{MK[2+k]}")
    e(f"s_mov_b32 s{sKVoff}, s{sNext}")
    e(f"s_add_u32 s{sTask}, s{sTask}, 1")
    e(f"s_cmp_lt_u32 s{sTask}, 4")
    e(f"s_cbranch_scc1 {name}_task")
    e("s_waitcnt vmcnt(0)")
    e(f"s_xor_b32 s{sT0}, s{sRole}, 1")
    e(f"s_lshl_b32 s{sT0}, s{sT0}, 23")
    e(f"s_lshl_b32 s{sT1}, s{sI}, 18")
    e(f"s_add_u32 s{sT0}, s{sT0}, s{sT1}")
    e(f"s_lshl_b32 s{sT1}, s{sH}, 13")
    e(f"s_add_u32 s{sT0}, s{sT0}, s{sT1}")
    e(f"s_lshl_b32 s{sT1}, s{sWV}, 11")
    e(f"s_add_u32 s{sT0}, s{sT0}, s{sT1}")
    for r in range(4):
        for sg in range(2):
            e(f"buffer_store_dwordx4 v[{DEF+8*r+4*sg}:{DEF+8*r+4*sg+3}], v{vLane16}, s[{SRD_O}:{SRD_O+3}], s{sT0} offen offset:{sg*1024} {OPOL[0]}")
        if r < 3:
            e(f"s_add_u32 s{sT0}, s{sT0}, {8*262144}")


def gen_touch(a, pol):
    e = a.e
    vD = S
    e(f"s_bfe_u32 s{sT2}, s2, 0x50003")
    e(f"v_lshrrev_b32 v{vT0}, 4, v0")
    e(f"v_lshlrev_b32 v{vT0}, 13, v{vT0}")
    e(f"v_and_b32 v{vT1}, 15, v0")
    e(f"v_lshlrev_b32 v{vT1}, 7, v{vT1}")
    e(f"v_add_u32 v{vT0}, v{vT0}, v{vT1}")
    e(f"s_lshl_b32 s{sT0}, s{sWV}, 5")
    e(f"s_add_u32 s{sT0}, s{sT0}, s{sT2}")
    e(f"s_lshl_b32 s{sT0}, s{sT0}, 15")
    e(f"s_lshr_b32 s{sT1}, s{sX}, 1")
    e(f"s_lshl_b32 s{sT1}, s{sT1}, 11")
    e(f"s_add_u32 s{sT0}, s{sT0}, s{sT1}")
    e(f"s_add_u32 s{sT1}, s{sT0}, {128*4*8192}")
    e(f"s_lshl_b32 s{sT3}, s{sWV}, 5")
    e(f"s_add_u32 s{sT3}, s{sT3}, s{sT2}")
    e(f"s_and_b32 s{sT2}, s{sT3}, 7")
    e(f"s_lshl_b32 s{sT2}, s{sT2}, 6")
    e(f"v_add_u32 v{vT1}, s{sT2}, v0")
    e(f"v_bfe_u32 v{vT2}, v{vT1}, 5, 2")
    e(f"v_lshrrev_b32 v{vT3}, 7, v{vT1}")
    e(f"v_lshlrev_b32 v{vT3}, 3, v{vT3}")
    e(f"v_add_u32 v{vT2}, v{vT2}, v{vT3}")
    e(f"v_lshlrev_b32 v{vT2}, 5, v{vT2}")
    e(f"v_and_b32 v{vT1}, 31, v{vT1}")
    e(f"v_add_u32 v{vT1}, v{vT1}, v{vT2}")
    e(f"v_lshlrev_b32 v{vT1}, 11, v{vT1}")
    e(f"s_lshr_b32 s{sT3}, s{sT3}, 3")
    e(f"s_lshl_b32 s{sT3}, s{sT3}, 7")
    e(f"s_and_b32 s{sT2}, s{sX}, 1")
    e(f"s_lshl_b32 s{sT2}, s{sT2}, 18")
    e(f"s_add_u32 s{sT3}, s{sT3}, s{sT2}")
    e(f"buffer_load_dword v{vD}, v{vT0}, s[{SRD_W}:{SRD_W+3}], s{sT0} offen {pol}")
    e(f"buffer_load_dword v{vD+1}, v{vT1}, s[{SRD_X}:{SRD_X+3}], s{sT3} offen {pol}")
    e(f"buffer_load_dword v{vD+2}, v{vT0}, s[{SRD_W}:{SRD_W+3}], s{sT1} offen {pol}")


def poll_counter(a, label, off_reg, mask, shift_reg, target, bound, sleep=8):
    e = a.e
    e(f"v_mov_b32 v{vT0}, s{off_reg}")
    if bound:
        e(f"s_mov_b32 s{sT3}, {bound}")
    a.label(label)
    e(f"buffer_load_dword v{vT1}, v{vT0}, s[{SRD_D}:{SRD_D+3}], 0 offen sc1")
    e("s_waitcnt vmcnt(0)")
    e(f"v_readfirstlane_b32 s{sT1}, v{vT1}")
    a.nop(3)
    if shift_reg is not None:
        e(f"s_lshr_b32 s{sT1}, s{sT1}, s{shift_reg}")
    e(f"s_and_b32 s{sT1}, s{sT1}, {mask}")
    e(f"s_cmp_ge_u32 s{sT1}, {target}")
    e(f"s_cbranch_scc1 {label}_ok")
    if bound:
        e(f"s_sub_u32 s{sT3}, s{sT3}, 1")
        e(f"s_cmp_eq_u32 s{sT3}, 0")
        e(f"s_cbranch_scc1 {label}_ok")
    e(f"s_sleep {sleep}")
    e(f"s_branch {label}")
    a.label(label + "_ok")


def signal(a, label, off_reg, val_reg_or_imm):
    e = a.e
    e(f"s_cmp_lg_u32 s{sWV}, 0")
    e(f"s_cbranch_scc1 {label}")
    e(f"v_mov_b32 v{vT0}, s{off_reg}")
    e(f"v_mov_b32 v{vT1}, {val_reg_or_imm}")
    e(f"v_cmp_eq_u32 vcc, 0, v0")
    e(f"s_and_saveexec_b64 s[{sT2}:{sT3}], vcc")
    e(f"buffer_atomic_add v{vT1}, v{vT0}, s[{SRD_D}:{SRD_D+3}], 0 offen sc1")
    e(f"s_mov_b64 exec, s[{sT2}:{sT3}]")
    a.label(label)


def gen_flash(a, name, pol):
    e = a.e
    FK = [QOWN, DEF]
    sNextK, sNextV = sT4, sT5
    e(f"s_lshl_b32 s{sT0}, s{sB}, 5")
    e(f"s_add_u32 s{sT0}, s{sT0}, s{sH}")
    e(f"s_lshl_b32 s{sT0}, s{sT0}, 13")
    e(f"s_add_u32 s{sT0}, s{sT0}, {QWS_OFF}")
    for s in range(8):
        if s == 4:
            e(f"s_add_u32 s{sT0}, s{sT0}, 4096")
        e(f"buffer_store_dwordx4 v[{QOWN+4*s}:{QOWN+4*s+3}], v{vLane16}, s[{SRD_O}:{SRD_O+3}], s{sT0} offen offset:{(s%4)*1024} {QST[0]}")
    e("s_waitcnt vmcnt(0)")
    if XM[0]: mark(a, 3)
    bar(a)
    e(f"v_readfirstlane_b32 s{sNonce}, v{vNon}")
    a.nop(3)
    e(f"s_mul_i32 s{sNonce}, s{sNonce}, 0x9e3779b1")
    e(f"s_add_u32 s{sNonce}, s{sNonce}, 0x7f4a7c15")
    e(f"s_cmp_lg_u32 s{sWV}, 0")
    e(f"s_cbranch_scc1 {name}_qwait")
    e(f"s_and_b32 s{sT0}, s{sH}, 3")
    e(f"s_lshl_b32 s{sT0}, s{sT0}, 2")
    e(f"s_add_u32 s{sT0}, s{sT0}, s{sFlag}")
    e(f"s_add_u32 s{sT0}, s{sT0}, 16")
    e(f"v_mov_b32 v{vT0}, 0")
    e(f"v_mov_b32 v{vT1}, s{sNonce}")
    e(f"v_cmp_eq_u32 vcc, 0, v0")
    e(f"s_and_saveexec_b64 s[{sT2}:{sT3}], vcc")
    e(f"buffer_store_dword v{vT1}, v{vT0}, s[{SRD_O}:{SRD_O+3}], s{sT0} offen sc0 sc1")
    e(f"s_mov_b64 exec, s[{sT2}:{sT3}]")
    if SPOLL[0]:
        e(f"s_add_u32 s56, s{SRD_O}, s{sFlag}")
        e(f"s_addc_u32 s57, s{SRD_O+1}, 0")
        a.label(f"{name}_spinq")
        e(f"s_load_dwordx4 s[52:55], s[56:57], 16 glc")
        e("s_waitcnt lgkmcnt(0)")
        e(f"s_xor_b32 s{sT0}, s52, s{sNonce}")
        for k in range(1, 4):
            e(f"s_xor_b32 s{sT1}, s{52+k}, s{sNonce}")
            e(f"s_or_b32 s{sT0}, s{sT0}, s{sT1}")
        e(f"s_cmp_eq_u32 s{sT0}, 0")
        e(f"s_cbranch_scc1 {name}_pollq")
        e("s_sleep 2")
        e(f"s_branch {name}_spinq")
    a.label(f"{name}_pollq")
    e(f"buffer_load_dwordx4 v[{S}:{S+3}], v{vT0}, s[{SRD_O}:{SRD_O+3}], s{sFlag} offen offset:16 sc0 sc1")
    e("s_waitcnt vmcnt(0)")
    for k in range(4):
        e(f"v_xor_b32 v{S+k}, s{sNonce}, v{S+k}")
    e(f"v_or3_b32 v{S}, v{S}, v{S+1}, v{S+2}")
    e(f"v_or_b32 v{S}, v{S}, v{S+3}")
    a.nop(1)
    e(f"v_readfirstlane_b32 s{sT1}, v{S}")
    a.nop(3)
    e(f"s_cmp_eq_u32 s{sT1}, 0")
    e(f"s_cbranch_scc1 {name}_pollq_ok")
    e(f"s_sleep {SLEEPQ[0]}")
    e(f"s_branch {name}_pollq")
    a.label(f"{name}_pollq_ok")
    if XM[0]: mark(a, 4)
    e(f"v_cmp_eq_u32 vcc, 0, v0")
    e(f"s_and_saveexec_b64 s[{sT2}:{sT3}], vcc")
    e(f"buffer_store_dword v{vT1}, v{vT0}, s[{SRD_O}:{SRD_O+3}], s{sFlag} offen sc0 sc1")
    e(f"s_mov_b64 exec, s[{sT2}:{sT3}]")
    if INV[0]:
        e("buffer_inv sc1")
    e("s_waitcnt vmcnt(0)")
    if XM[0]: mark(a, 5)
    a.label(f"{name}_qwait")
    bar(a)
    mark(a, 2)
    e(f"s_lshl_b32 s{sT0}, s{sBs}, 5")
    e(f"s_lshl_b32 s{sT1}, s{sHq}, 2")
    e(f"s_add_u32 s{sT1}, s{sT1}, s{sWV}")
    e(f"s_add_u32 s{sT0}, s{sT0}, s{sT1}")
    e(f"s_lshl_b32 s{sT0}, s{sT0}, 13")
    e(f"s_add_u32 s{sT0}, s{sT0}, {QWS_OFF}")
    for s in range(8):
        if s == 4:
            e(f"s_add_u32 s{sT0}, s{sT0}, 4096")
        e(f"buffer_load_dwordx4 v[{QCUR+4*s}:{QCUR+4*s+3}], v{vLane16}, s[{SRD_O}:{SRD_O+3}], s{sT0} offen offset:{(s%4)*1024} {QST[1]}")
    issue_tile(e, SRD_K, sM0a, sKVoff, 0, True, pol)
    issue_tile(e, SRD_V, sM0b, sKVoff, 0, False, pol)
    for s in range(8):
        e(f"v_subrev_u32 v{vKR+s}, s{sW8}, v{vKR+s}")
    e(f"s_lshl_b32 s{sT0}, s{sWV}, 6")
    e(f"v_subrev_u32 v{vT2}, s{sW8}, v{vVR}")
    e(f"v_xor_b32 v{vT2}, s{sT0}, v{vT2}")
    for k in range(4):
        e(f"v_xor_b32 v{vVR+k}, {k*64}, v{vT2}")
    for j in range(64):
        e(f"v_mov_b32 v{O+j}, 0")
    e(f"v_mov_b32 v{vM}, 0xff7fffff")
    e(f"v_mov_b32 v{vL}, 0")
    e(f"s_mov_b32 s{sTask}, 0")
    a.label(f"{name}_chunk")
    e(f"s_add_u32 s{sNextK}, s{sKVoff}, 32768")
    e(f"s_cmp_lt_u32 s{sTask}, 3")
    e(f"s_cselect_b32 s{sNextK}, s{sNextK}, {OOB:#x}")
    e("s_waitcnt vmcnt(8)")
    bar(a)
    def rk(T):
        for s in range(8):
            e(f"ds_read_b128 v[{FK[T&1]+4*s}:{FK[T&1]+4*s+3}], v{vKR+s} offset:{T*8192}")
    def mk(T):
        for s in range(8):
            mfma(e, S+16*T, FK[T&1]+4*s, QCUR+4*s, "0" if s == 0 else None)
    rk(0); rk(1)
    e("s_waitcnt lgkmcnt(8)")
    mk(0)
    rk(2)
    e("s_waitcnt lgkmcnt(8)")
    mk(1)
    rk(3)
    e("s_waitcnt lgkmcnt(8)")
    mk(2)
    e("s_waitcnt lgkmcnt(0)")
    bar(a)
    issue_tile(e, SRD_K, sM0a, sNextK, 0, True, pol)
    mk(3)
    e(f"v_max3_f32 v{vMx}, v{S}, v{S+1}, v{S+2}")
    e(f"v_max3_f32 v{vT0}, v{S+3}, v{S+4}, v{S+5}")
    k = 6; n = 0
    tgt = [vMx, vT0]
    while k + 1 < 64:
        e(f"v_max3_f32 v{tgt[n&1]}, v{tgt[n&1]}, v{S+k}, v{S+k+1}")
        k += 2; n += 1
    e(f"v_max3_f32 v{vMx}, v{vMx}, v{vT0}, v{vM}")
    e(f"v_mov_b32 v{vT0}, v{vMx}")
    a.nop(2)
    e(f"v_permlane32_swap_b32 v{vMx}, v{vT0}")
    a.nop(1)
    e(f"v_max_f32 v{vMx}, v{vMx}, v{vT0}")
    e(f"v_mul_f32 v{vF}, s{sScale}, v{vMx}")
    e(f"v_fma_f32 v{vT1}, v{vM}, s{sScale}, -v{vF}")
    e(f"v_exp_f32 v{vT1}, v{vT1}")
    e(f"v_mov_b32 v{vM}, v{vMx}")
    for k in range(64):
        e(f"v_fma_f32 v{S+k}, v{S+k}, s{sScale}, -v{vF}")
    for k in range(64):
        e(f"v_exp_f32 v{S+k}, v{S+k}")
    for k in range(64):
        e(f"v_mul_f32 v{O+k}, v{O+k}, v{vT1}")
    e(f"v_add_f32 v{vT2}, v{S}, v{S+1}")
    e(f"v_add_f32 v{vT0}, v{S+2}, v{S+3}")
    for k in range(4, 64, 2):
        e(f"v_add_f32 v{vT2}, v{vT2}, v{S+k}")
        e(f"v_add_f32 v{vT0}, v{vT0}, v{S+k+1}")
    for k in range(32):
        e(f"v_cvt_pk_bf16_f32 v{S+k}, v{S+2*k}, v{S+2*k+1}")
    e(f"v_add_f32 v{vT2}, v{vT2}, v{vT0}")
    e(f"v_fma_f32 v{vL}, v{vL}, v{vT1}, v{vT2}")
    e("s_waitcnt vmcnt(8)")
    bar(a)
    FV = [S+32, QOWN]
    def rv(T):
        for k in range(4):
            for u in range(2):
                for half in range(2):
                    r = FV[T&1] + 8*k + 4*u + 2*half
                    e(f"ds_read_b64_tr_b16 v[{r}:{r+1}], v{vVR+k} offset:{LDS_RING1 + T*8192 + (16*u+8*half)*256}")
    def mv(T):
        for u in range(2):
            for k in range(4):
                mfma(e, O+16*k, FV[T&1]+8*k+4*u, S+8*T+4*u)
    rv(0)
    e("s_waitcnt lgkmcnt(0)")
    rv(1); mv(0)
    e("s_waitcnt lgkmcnt(0)")
    rv(2); mv(1)
    e("s_waitcnt lgkmcnt(0)")
    rv(3); mv(2)
    e("s_waitcnt lgkmcnt(0)")
    bar(a)
    issue_tile(e, SRD_V, sM0b, sNextK, 0, False, pol)
    mv(3)
    if TIMING[0]:
        ts_mark(a, 76)
        for k in range(4):
            e(f"s_cmp_eq_u32 s{sTask}, {k}")
            if not XM[0] or k == 3:
                e(f"s_cselect_b32 s{MK[3+k]}, s76, s{MK[3+k]}")
    e(f"s_mov_b32 s{sKVoff}, s{sNextK}")
    e(f"s_add_u32 s{sTask}, s{sTask}, 1")
    e(f"s_cmp_lt_u32 s{sTask}, 4")
    e(f"s_cbranch_scc1 {name}_chunk")
    e(f"v_mov_b32 v{vT0}, v{vL}")
    a.nop(2)
    e(f"v_permlane32_swap_b32 v{vL}, v{vT0}")
    a.nop(1)
    e(f"v_add_f32 v{vL}, v{vL}, v{vT0}")
    e(f"v_rcp_f32 v{vF}, v{vL}")
    a.nop(8)
    for k in range(64):
        e(f"v_mul_f32 v{O+k}, v{O+k}, v{vF}")
    for k in range(32):
        e(f"v_cvt_pk_bf16_f32 v{S+k}, v{O+2*k}, v{O+2*k+1}")
    e("s_waitcnt vmcnt(0)")
    e(f"s_lshl_b32 s{sT0}, s{sBs}, 18")
    e(f"s_lshl_b32 s{sT1}, s{sHq}, 2")
    e(f"s_add_u32 s{sT1}, s{sT1}, s{sWV}")
    e(f"s_lshl_b32 s{sT1}, s{sT1}, 13")
    e(f"s_add_u32 s{sT0}, s{sT0}, s{sT1}")
    for f in range(8):
        if f == 4:
            e(f"s_add_u32 s{sT0}, s{sT0}, 4096")
        e(f"buffer_store_dwordx4 v[{S+4*f}:{S+4*f+3}], v{vLane16}, s[{SRD_O}:{SRD_O+3}], s{sT0} offen offset:{(f%4)*1024} {OPOL[0]}")


def gen_attn(a, name, timing=False, pol_x="nt", pol_w="nt", pol_kv="nt", touch=True, delay_a=True, thresh=32, bound=64, qmarks=False, only=None, qonly=False, qskip='', qorder='adv', look=2, prio_a=0, prio_b=0, touch_a=False, sleep_q=8, sleep_b=48, xmarks=False, use_inv=False, altprio=False, fuse2=False, codepf=0, gran=8192, krot=False, qpipe=False, endwb=False, spoll=False, fuse=False, p3opt=None, opol='', gsleep=1, psig=10, pairwait=0, wo_early=None, asym=False, pol_kv_a=None, clk=False, single=False, exp_sleep=0, wo_pf=None, wtouch=0, prio_flash=0, qst='sc0 sc1', qld='sc0 sc1'):
    kernel_header(a, name)
    e = a.e
    TIMING[0] = timing
    QMARKS[0] = qmarks
    QSKIP[0] = qskip
    QORDER[0] = qorder
    LOOK[0] = look
    SLEEPQ[0] = sleep_q
    XM[0] = xmarks
    ALT[0] = altprio
    ASYM[0] = asym
    KROT[0] = krot
    GRAN[0] = gran
    SPOLL[0] = spoll
    OPOL[0] = opol
    GSLEEP[0] = gsleep
    PSIG[0] = psig if pairwait else 0
    SINGLE[0] = single
    GB[0] = 0
    WT[0] = wtouch
    INV[0] = use_inv
    QST[0] = qst
    QST[1] = qld
    gen_prologue(a, name, timing)
    if only == "B":
        e(f"s_cmp_lg_u32 s{sRole}, 0")
        e(f"s_cbranch_scc1 {name}_done")
    if only == "A":
        e(f"s_cmp_eq_u32 s{sRole}, 0")
        e(f"s_cbranch_scc1 {name}_done")
    if timing:
        for k in range(8):
            e(f"s_mov_b32 s{MK[k]}, 0")
    e(f"s_and_b32 s{sT2}, s{sH}, 3")
    e(f"s_lshl_b32 s{sT2}, s{sT2}, 3")
    e(f"s_add_u32 s{sBs}, s{sT2}, s{sI}")
    e(f"s_lshr_b32 s{sHq}, s{sH}, 2")
    e(f"s_lshl_b32 s{sT0}, s{sI}, 5")
    e(f"s_add_u32 s{sT0}, s{sT0}, s{sH}")
    e(f"s_lshl_b32 s{sT1}, s{sBs}, 2")
    e(f"s_lshr_b32 s{sT2}, s{sH}, 3")
    e(f"s_add_u32 s{sT1}, s{sT1}, s{sT2}")
    e(f"s_cmp_eq_u32 s{sRole}, 0")
    e(f"s_cselect_b32 s{sKVoff}, s{sT0}, s{sT1}")
    e(f"s_lshl_b32 s{sKVoff}, s{sKVoff}, 17")
    if GRAN[0] == 8192:
        e(f"s_add_u32 s{sKVoff}, s{sKVoff}, s{sW8}")
    else:
        e(f"s_lshl_b32 s{sT0}, s{sWV}, 12")
        e(f"s_add_u32 s{sKVoff}, s{sKVoff}, s{sT0}")
    if krot:
        if krot == 1:
            e(f"s_and_b32 s{sT0}, s{sH}, 3")
        elif krot == 2:
            e(f"s_add_u32 s{sT0}, s{sH}, s{sI}")
        else:
            e(f"s_lshr_b32 s{sT0}, s{sH}, 1")
            e(f"s_add_u32 s{sT0}, s{sT0}, s{sI}")
        for T in range(4):
            e(f"s_add_u32 s{88+T}, s{sT0}, {T}")
            e(f"s_and_b32 s{88+T}, s{88+T}, 3")
            e(f"s_lshl_b32 s{88+T}, s{88+T}, 15")
    e(f"s_mov_b32 s{sOoff}, {8*32*131072}")
    if pairwait:
        e(f"s_and_b32 s{sT0}, s2, 255")
        e(f"s_lshl_b32 s{sT0}, s{sT0}, 8")
        e(f"s_add_u32 s{sT0}, s{sT0}, {PAIR_OFF}")
        e(f"s_add_u32 s{sPairP}, s{SRD_O}, s{sT0}")
        e(f"s_addc_u32 s{sPairP+1}, s{SRD_O+1}, 0")
        e(f"s_load_dword s{sPairN}, s[{sPairP}:{sPairP+1}], 0 glc")
    sNB, sNA, sNC = 82, 83, 75
    def dep_line(dst, br_expr, i_reg, kh_reg):
        e(f"s_lshl_b32 s{dst}, s{i_reg}, 1")
        e(f"s_add_u32 s{dst}, s{dst}, s{kh_reg}")
        if br_expr != 0:
            e(f"s_add_u32 s{dst}, s{dst}, {br_expr}")
        e(f"s_lshl_b32 s{dst}, s{dst}, 8")
        e(f"s_add_u32 s{dst}, s{dst}, {DEP_OFF}")
    def cons_coords(rbr, ri, rkh, ridx):
        e(f"s_lshr_b32 s{rbr}, s{sX}, 2")
        e(f"s_lshl_b32 s{rbr}, s{rbr}, 4")
        e(f"s_bfe_u32 s{rkh}, s{sX}, 0x10001")
        e(f"s_bfe_u32 s{ri}, s2, 0x30005")
        e(f"s_and_b32 s{ridx}, s{sX}, 1")
        e(f"s_lshl_b32 s{ridx}, s{ridx}, 2")
        e(f"s_bfe_u32 s{sT3}, s2, 0x20003")
        e(f"s_add_u32 s{ridx}, s{ridx}, s{sT3}")
    if fuse2:
        e(f"s_lshr_b32 s{sT2}, s{sH}, 4")
        e(f"v_mov_b32 v{vT0}, 0")
        dep_line(sT0, 16, sI, sT2)
        e(f"buffer_load_dword v{DEF+26}, v{vT0}, s[{SRD_O}:{SRD_O+3}], s{sT0} offen sc1")
        dep_line(sT0, 0, sI, sT2)
        e(f"buffer_load_dword v{DEF+27}, v{vT0}, s[{SRD_O}:{SRD_O+3}], s{sT0} offen sc1")
        cons_coords(sT4, sT5, sT2, sT1)
        dep_line(sT0, f"s{sT4}", sT5, sT2)
        e(f"buffer_load_dword v{DEF+28}, v{vT0}, s[{SRD_O}:{SRD_O+3}], s{sT0} offen sc1")
    if fuse:
        import phase3
        phase3.entry_loads(a)
    e(f"s_cmp_eq_u32 s{sRole}, 0")
    e(f"s_cbranch_scc1 {name}_startb")
    if pairwait:
        e("s_waitcnt lgkmcnt(0)")
        e(f"s_mul_i32 s{sPairN}, s{sPairN}, 0x9e3779b1")
        e(f"s_add_u32 s{sPairN}, s{sPairN}, 0x7f4a7c15")
        e(f"s_mov_b32 s{sT3}, {pairwait}")
        a.label(f"{name}_pw")
        e(f"s_load_dword s{sT1}, s[{sPairP}:{sPairP+1}], 16 glc")
        e("s_waitcnt lgkmcnt(0)")
        e(f"s_cmp_eq_u32 s{sT1}, s{sPairN}")
        e(f"s_cbranch_scc1 {name}_pw_ok")
        e(f"s_sub_u32 s{sT3}, s{sT3}, 1")
        e(f"s_cmp_eq_u32 s{sT3}, 0")
        e(f"s_cbranch_scc1 {name}_pw_ok")
        e("s_sleep 4")
        e(f"s_branch {name}_pw")
        a.label(f"{name}_pw_ok")
        e(f"s_cmp_lg_u32 s{sWV}, 0")
        e(f"s_cbranch_scc1 {name}_pw_d")
        e(f"s_and_b32 s{sT0}, s2, 255")
        e(f"s_lshl_b32 s{sT0}, s{sT0}, 8")
        e(f"s_add_u32 s{sT0}, s{sT0}, {PAIR_OFF}")
        e(f"v_mov_b32 v{vT0}, 0")
        e(f"v_mov_b32 v{vT1}, s{sPairN}")
        e(f"v_cmp_eq_u32 vcc, 0, v0")
        e(f"s_and_saveexec_b64 s[{sT2}:{sT3}], vcc")
        e(f"buffer_store_dword v{vT1}, v{vT0}, s[{SRD_O}:{SRD_O+3}], s{sT0} offen sc0 sc1")
        e(f"s_mov_b64 exec, s[{sT2}:{sT3}]")
        a.label(f"{name}_pw_d")
    if codepf:
        e(f"s_getpc_b64 s[52:53]")
        a.label(f"{name}_pc")
        e(f"s_bfe_u32 s{sT0}, s2, 0x50003")
        e(f"s_lshl_b32 s{sT0}, s{sT0}, 2")
        e(f"s_add_u32 s{sT0}, s{sT0}, s{sWV}")
        e(f"s_mul_i32 s{sT0}, s{sT0}, {64*codepf}")
        e(f"s_add_u32 s52, s52, s{sT0}")
        e(f"s_addc_u32 s53, s53, 0")
        for k in range(codepf):
            e(f"s_load_dwordx16 s[56:71], s[52:53], {64*k}")
        e("s_waitcnt lgkmcnt(0)")
    if wo_early is not None:
        e(f"s_load_dwordx2 s[52:53], s[0:1], 32")
        e(f"s_load_dwordx2 s[54:55], s[0:1], 72")
        e(f"s_and_b32 s{sT0}, s2, 255")
        e(f"s_lshl_b32 s{sT0}, s{sT0}, 2")
        e(f"s_add_u32 s{sT0}, s{sT0}, s{sWV}")
        e(f"s_waitcnt lgkmcnt(0)")
        e(f"s_cmp_lt_u32 s{sT0}, 512")
        e(f"s_cselect_b32 s{SRD_T}, s52, s54")
        e(f"s_cselect_b32 s{SRD_T+1}, s53, s55")
        e(f"s_and_b32 s{SRD_T+1}, s{SRD_T+1}, 0xffff")
        e(f"s_mov_b32 s{SRD_T+2}, {4096*1024*2}")
        e(f"s_mov_b32 s{SRD_T+3}, 0x20000")
        e(f"s_and_b32 s{sT0}, s{sT0}, 511")
        e(f"s_lshl_b32 s{sT0}, s{sT0}, 14")
        e(f"v_lshlrev_b32 v{vT0}, 7, v0")
        e(f"buffer_load_dword v{vT2}, v{vT0}, s[{SRD_T}:{SRD_T+3}], s{sT0} offen {wo_early}")
        e(f"s_add_u32 s{sT0}, s{sT0}, 8192")
        e(f"buffer_load_dword v{vT3}, v{vT0}, s[{SRD_T}:{SRD_T+3}], s{sT0} offen {wo_early}")
        e("s_waitcnt vmcnt(0)")
    if asym:
        for k in range(16):
            e("s_barrier")
        e("s_barrier")
        e(f"v_mov_b32 v{vT3}, 0")
        e(f"ds_write_b32 v{vBarA}, v{vT3}")
        e("s_waitcnt lgkmcnt(0)")
        e("s_barrier")
    if exp_sleep:
        for k in range(exp_sleep):
            e("s_sleep 127")
    if delay_a:
        e(f"s_lshl_b32 s{sT4}, s{sX}, 2")
        e(f"s_cmp_lg_u32 s{sWV}, 0")
        e(f"s_cbranch_scc1 {name}_await")
        poll_counter(a, f"{name}_pollb", sT4, 255, None, thresh, bound, sleep=sleep_b)
        a.label(f"{name}_await")
        e("s_barrier")
    e(f"s_lshl_b32 s{sFlag}, s{sHq}, 3")
    e(f"s_add_u32 s{sFlag}, s{sFlag}, s{sI}")
    e(f"s_lshl_b32 s{sFlag}, s{sFlag}, 8")
    e(f"s_add_u32 s{sFlag}, s{sFlag}, {FLAG_OFF}")
    e(f"v_mov_b32 v{vT0}, 0")
    e(f"buffer_load_dword v{vNon}, v{vT0}, s[{SRD_O}:{SRD_O+3}], s{sFlag} offen sc0 sc1")
    if prio_a:
        e(f"s_setprio {prio_a}")
    if touch_a:
        gen_touch(a, pol_w)
    e(f"s_branch {name}_q")
    a.label(f"{name}_startb")
    if prio_b:
        e(f"s_setprio {prio_b}")
    if touch:
        gen_touch(a, pol_w)
    a.label(f"{name}_q")
    mark(a, 0)
    if clk:
        e("s_memtime s[76:77]")
        e("s_waitcnt lgkmcnt(0)")
        e(f"s_mov_b32 s{MK[5]}, s76")

    def hook_w():
        e(f"s_cmp_lg_u32 s{sRole}, 0")
        e(f"s_cbranch_scc1 {name}_hw")
        if delay_a:
            e(f"s_lshl_b32 s{sT4}, s{sX}, 2")
            signal(a, f"{name}_sigb", sT4, "1")
        issue_tile(e, SRD_K, sM0a, sKVoff, 0, True, pol_kv, 0)
        a.label(f"{name}_hw")
    def hook_x():
        if LOOK[0] != 2:
            return
        e(f"s_cmp_lg_u32 s{sRole}, 0")
        e(f"s_cbranch_scc1 {name}_hx")
        issue_tile(e, SRD_K, sM0b, sKVoff, 32768, True, pol_kv)
        a.label(f"{name}_hx")
    (gen_qproj_pipe if qpipe else gen_qproj)(a, name, pol_x, pol_w, hook_w, hook_x)
    if fuse2:
        for r, v in ((sNB, DEF+26), (sNA, DEF+27), (sNC, DEF+28)):
            e(f"v_readfirstlane_b32 s{r}, v{v}")
        a.nop(3)
        for r in (sNB, sNA, sNC):
            e(f"s_mul_i32 s{r}, s{r}, 0x9e3779b1")
            e(f"s_add_u32 s{r}, s{r}, 0x7f4a7c15")
        e(f"s_cmp_lg_u32 s{sWid}, 0")
        e(f"s_cbranch_scc1 {name}_noack")
        cons_coords(sT4, sT5, sT2, sT1)
        dep_line(sT0, f"s{sT4}", sT5, sT2)
        e(f"s_lshl_b32 s{sT1}, s{sT1}, 2")
        e(f"s_add_u32 s{sT0}, s{sT0}, s{sT1}")
        e(f"v_mov_b32 v{vT0}, 0")
        e(f"v_mov_b32 v{vT1}, s{sNC}")
        e(f"v_cmp_eq_u32 vcc, 0, v0")
        e(f"s_and_saveexec_b64 s[{sT2}:{sT3}], vcc")
        e(f"buffer_store_dword v{vT1}, v{vT0}, s[{SRD_O}:{SRD_O+3}], s{sT0} offen offset:32 sc1")
        e(f"s_mov_b64 exec, s[{sT2}:{sT3}]")
        a.label(f"{name}_noack")
    if fuse:
        phase3.pick_tags(a)
    mark(a, 1)
    if clk:
        e("s_memtime s[76:77]")
        e("s_waitcnt lgkmcnt(0)")
        e(f"s_sub_u32 s{MK[6]}, s76, s{MK[5]}")
        e(f"s_mov_b32 s{MK[5]}, 0")
    if ALT[0]:
        e("s_setprio 0")
    if qonly:
        e(f"s_branch {name}_end")
    if single and asym:
        e(f"s_cmp_lg_u32 s{sRole}, 0")
        e(f"s_cbranch_scc1 {name}_rolea")
        e("s_barrier")
        e(f"v_mov_b32 v{vT3}, 0")
        e(f"ds_write_b32 v{vBarA}, v{vT3}")
        e("s_waitcnt lgkmcnt(0)")
        e("s_barrier")
    elif single:
        e("s_barrier")
        e(f"v_mov_b32 v{vT3}, 0")
        e(f"ds_write_b32 v{vBarA}, v{vT3}")
        e("s_waitcnt lgkmcnt(0)")
        e("s_barrier")
    e(f"s_cmp_lg_u32 s{sRole}, 0")
    e(f"s_cbranch_scc1 {name}_rolea")
    if not single:
        e("s_barrier")
    q_broadcast(a, name, "q0", "0")
    e(f"s_mov_b32 s{sTask}, 0")
    gen_m1(a, name, pol_kv)
    e(f"s_branch {name}_end")
    a.label(f"{name}_rolea")
    e(f"s_setprio {prio_flash}")
    gen_flash(a, name, pol_kv if pol_kv_a is None else pol_kv_a)
    a.label(f"{name}_end")
    if fuse2:
        import oproj6
        e("s_waitcnt vmcnt(0)")
        e("s_setprio 0")
        e("s_barrier")
        e(f"s_cmp_lg_u32 s{sWid}, 0")
        e(f"s_cbranch_scc1 {name}_noflag")
        e(f"s_lshr_b32 s{sT2}, s{sH}, 4")
        e(f"s_and_b32 s{sT4}, s{sH}, 15")
        e(f"s_lshl_b32 s{sT4}, s{sT4}, 2")
        e(f"v_mov_b32 v{vT0}, 0")
        e(f"v_cmp_eq_u32 vcc, 0, v0")
        for br, tag in ((16, sNB), (0, sNA)):
            e(f"s_lshr_b32 s{sT2}, s{sH}, 4")
            dep_line(sT0, br, sI, sT2)
            e(f"s_add_u32 s{sT0}, s{sT0}, s{sT4}")
            e(f"v_mov_b32 v{vT1}, s{tag}")
            e(f"s_and_saveexec_b64 s[{sT2}:{sT3}], vcc")
            e(f"buffer_store_dword v{vT1}, v{vT0}, s[{SRD_O}:{SRD_O+3}], s{sT0} offen offset:64 sc1")
            e(f"s_mov_b64 exec, s[{sT2}:{sT3}]")
        a.label(f"{name}_noflag")
        e(f"s_mov_b32 s92, s{SRD_O}")
        e(f"s_mov_b32 s93, s{SRD_O+1}")
        e(f"s_mov_b32 s100, s{sWid}")
        def line_ptr(sBr, sKh, sI2):
            e(f"s_lshl_b32 s96, s{sBr}, 4")
            e(f"s_lshl_b32 s97, s{sI2}, 1")
            e(f"s_add_u32 s96, s96, s97")
            e(f"s_add_u32 s96, s96, s{sKh}")
            e(f"s_lshl_b32 s96, s96, 8")
            e(f"s_add_u32 s96, s96, {DEP_OFF}")
            e(f"s_add_u32 s94, s92, s96")
            e(f"s_addc_u32 s95, s93, 0")
        def all_equal(first, n):
            e(f"s_xor_b32 s97, s{first}, s{sNC}")
            for r in range(first + 1, first + n):
                e(f"s_xor_b32 s98, s{r}, s{sNC}")
                e(f"s_or_b32 s97, s97, s98")
            e("s_cmp_eq_u32 s97, 0")
        def wait(sLW, sBr, sKh, sI2, SRDO):
            e(f"s_cmp_lg_u32 s{sLW}, 0")
            e(f"s_cbranch_scc1 {name}_dw_d")
            line_ptr(sBr, sKh, sI2)
            a.label(f"{name}_dw")
            e("s_load_dwordx16 s[76:91], s[94:95], 64 glc")
            e("s_waitcnt lgkmcnt(0)")
            all_equal(76, 16)
            e(f"s_cbranch_scc0 {name}_dw_z")
            e(f"v_and_b32 v4, 15, v0")
            e(f"v_lshlrev_b32 v4, 2, v4")
            e(f"buffer_load_dword v5, v4, s[{SRDO}:{SRDO+3}], s96 offen offset:64 sc1")
            e("s_waitcnt vmcnt(0)")
            e(f"v_cmp_ne_u32 vcc, s{sNC}, v5")
            a.nop(4)
            e("s_cmp_eq_u64 vcc, 0")
            e(f"s_cbranch_scc1 {name}_dw_d")
            a.label(f"{name}_dw_z")
            e("s_sleep 1")
            e(f"s_branch {name}_dw")
            a.label(f"{name}_dw_d")
        def finish(sWV2, sBr, sKh, sI2, sCol, SRDP):
            e(f"s_and_b32 s97, s{sCol}, 0x380")
            e(f"s_or_b32 s97, s97, s{sWV2}")
            e(f"s_cmp_lg_u32 s97, 0")
            e(f"s_cbranch_scc1 {name}_df_d")
            line_ptr(sBr, sKh, sI2)
            a.label(f"{name}_df")
            e("s_load_dwordx8 s[76:83], s[94:95], 32 glc")
            e("s_waitcnt lgkmcnt(0)")
            all_equal(76, 8)
            e(f"s_cbranch_scc0 {name}_df")
            e(f"v_mov_b32 v4, 0")
            e(f"v_mov_b32 v5, s{sNC}")
            e(f"v_cmp_eq_u32 vcc, 0, v0")
            e(f"s_and_saveexec_b64 s[44:45], vcc")
            e(f"buffer_store_dword v5, v4, s[{SRDP}:{SRDP+3}], s96 offen sc1")
            e(f"s_mov_b64 exec, s[44:45]")
            a.label(f"{name}_df_d")
        oproj6.gen_oproj(a, name + "_p", embed=dict(wid=100, wait=wait, finish=finish), **(p3opt or {}))
    if fuse:
        if timing:
            ts_mark(a, 76)
            e(f"s_mov_b32 s{MK[6]}, s76")
        phase3.gen_phase3(a, name, **(p3opt or {}))
    if endwb:
        e("s_waitcnt vmcnt(0)")
        e("s_barrier")
        e(f"s_cmp_lg_u32 s{sWV}, 0")
        e(f"s_cbranch_scc1 {name}_nowb")
        e("buffer_wbl2 sc1")
        a.label(f"{name}_nowb")
    if wo_pf is not None:
        e(f"s_load_dwordx2 s[52:53], s[0:1], 32")
        e(f"s_load_dwordx2 s[54:55], s[0:1], 72")
        e(f"s_waitcnt lgkmcnt(0)")
        e(f"s_cmp_lt_u32 s{sX}, 4")
        e(f"s_cselect_b32 s{SRD_W}, s52, s54")
        e(f"s_cselect_b32 s{SRD_W+1}, s53, s55")
        e(f"s_and_b32 s{SRD_W+1}, s{SRD_W+1}, 0xffff")
        e(f"s_mov_b32 s{SRD_W+2}, {4096*1024*2}")
        e(f"s_mov_b32 s{SRD_W+3}, 0x20000")
        if single:
            e(f"s_lshr_b32 s{sT0}, s2, 3")
            e(f"s_lshl_b32 s{sT0}, s{sT0}, 3")
            e(f"s_add_u32 s{sT0}, s{sT0}, s{sWid}")
        else:
            e(f"s_lshr_b32 s{sT0}, s2, 3")
            e(f"s_lshl_b32 s{sT0}, s{sT0}, 2")
            e(f"s_add_u32 s{sT0}, s{sT0}, s{sWV}")
        e(f"s_lshl_b32 s{sT0}, s{sT0}, 14")
        e(f"s_and_b32 s{sT1}, s{sX}, 1")
        e(f"s_lshl_b32 s{sT1}, s{sT1}, 10")
        e(f"s_add_u32 s{sT0}, s{sT0}, s{sT1}")
        e(f"s_bfe_u32 s{sT1}, s{sX}, 0x10001")
        e(f"s_lshl_b32 s{sT1}, s{sT1}, 22")
        e(f"s_add_u32 s{sT0}, s{sT0}, s{sT1}")
        e(f"v_lshrrev_b32 v{vT0}, 3, v0")
        e(f"v_lshlrev_b32 v{vT0}, 11, v{vT0}")
        e(f"v_and_b32 v{vT1}, 7, v0")
        e(f"v_lshlrev_b32 v{vT1}, 7, v{vT1}")
        e(f"v_add_u32 v{vT0}, v{vT0}, v{vT1}")
        e(f"buffer_load_dword v{vT2}, v{vT0}, s[{SRD_W}:{SRD_W+3}], s{sT0} offen {wo_pf}")
    e("s_waitcnt vmcnt(0)")
    if timing:
        mark(a, 7)
        wreg = 100 if fuse2 else (sWid if single else sWV)
        ts_dump(a, [sTS] + MK[0:7], 0, wreg, 52, 8, nwaves=8 if single else 4)
        ts_end(a, sTS, 0, wreg, 52, 2, nwaves=8 if single else 4)
    a.label(f"{name}_done")
    e("s_endpgm")
    return dict(nv=256, ns=NS, lds=LDS_BYTES*(2 if single else 1), threads=512 if single else 256, grid=256 if single else 512)
```

```python
from asmlib import *
from oproj2 import interleave

NST = 32
OOB = 0x80000000
OSLOT, NO = 16384, 4
WSLOT, NW = 32768, 3
WBASE = NO * OSLOT
PART_OFF = 64 << 20
PFLAG_OFF = 49 << 20

def gen_oproj(a, name, pol_o="", pol_w="", timing=False, skip="", order="adv", sleep=4, prio_l=0, prio_c=0, xpol="sc0 sc1", samex=False, fast=0, lean=False, embed=None):
    if embed is None:
        kernel_header(a, name)
    e = a.e
    sWV = 4
    SRD_O, SRD_W, SRD_OUT, SRD_P = 8, 12, 16, 60
    sO, sW, sFill, sReadO, sCnt, sT0, sT1, sT2, sBr, sB0, sCol = 20, 21, 22, 23, 24, 25, 26, 27, 28, 29, 30
    sOx, sIss, sCls, sWx, sM0o, sM0w, sLW, sReadW, sGrp, sWfill = 31, 42, 43, 52, 53, 54, 55, 56, 57, 58
    sKh, sPair, sNon, sFlag = 59, 64, 65, 66
    vLane16, vRO, vRO2, vT, vT2, vOut, vNon = 1, 2, 3, 4, 5, 6, 7
    vRW = 8
    vRW2 = 10
    vWD = 12
    ACC = 16
    FA = [80, 144]
    FB = [112, 176]
    NV = 208

    if embed is None:
        e("s_cmp_ge_u32 s2, 256")
        e(f"s_cbranch_scc1 {name}_done")
        if timing:
            ts_begin(a, 40)
    e("s_load_dwordx2 s[32:33], s[0:1], 32")
    e("s_load_dwordx2 s[34:35], s[0:1], 72")
    e("s_load_dwordx2 s[36:37], s[0:1], 80")
    e("s_load_dwordx2 s[38:39], s[0:1], 96")
    if embed is None:
        e("v_lshrrev_b32 v8, 6, v0")
        e("v_and_b32 v0, 63, v0")
        e(f"v_readfirstlane_b32 s{sWV}, v8")
    else:
        e(f"s_mov_b32 s{sWV}, s{embed['wid']}")
    if not samex:
        e(f"s_and_b32 s{sT0}, s2, 7")
        e(f"s_lshr_b32 s{sT1}, s2, 3")
        e(f"s_lshr_b32 s{sBr}, s{sT0}, 2")
        e(f"s_bfe_u32 s{sKh}, s{sT0}, 0x10001")
        e(f"s_lshr_b32 s{sT2}, s{sT1}, 2")
        if embed is None:
            e(f"s_lshl_b32 s{sB0}, s{sT2}, 2")
        else:
            e(f"s_mov_b32 s{sB0}, s{sT2}")
        e(f"s_mov_b32 s{sCls}, s{sT2}")
        e(f"s_and_b32 s{sT2}, s{sT1}, 3")
        e(f"s_add_u32 s{sCls}, s{sCls}, s{sT2}")
        e(f"s_and_b32 s{sCls}, s{sCls}, 3")
        e(f"s_lshl_b32 s{sT2}, s{sT2}, 7")
        e(f"s_and_b32 s{sCol}, s{sT0}, 1")
        e(f"s_lshl_b32 s{sCol}, s{sCol}, 9")
        e(f"s_add_u32 s{sCol}, s{sCol}, s{sT2}")
        e(f"s_and_b32 s{sPair}, s{sT0}, 1")
        e(f"s_lshl_b32 s{sT2}, s{sBr}, 1")
        e(f"s_add_u32 s{sPair}, s{sPair}, s{sT2}")
        e(f"s_lshl_b32 s{sPair}, s{sPair}, 5")
        e(f"s_add_u32 s{sPair}, s{sPair}, s{sT1}")
    else:
        e(f"s_and_b32 s{sT0}, s2, 7")
        e(f"s_lshr_b32 s{sT1}, s2, 3")
        e(f"s_lshr_b32 s{sBr}, s{sT0}, 2")
        e(f"s_lshr_b32 s{sKh}, s{sT1}, 4")
        e(f"s_bfe_u32 s{sT2}, s{sT1}, 0x20002")
        e(f"s_mov_b32 s{sCls}, s{sT2}")
        e(f"s_lshl_b32 s{sB0}, s{sT2}, 2")
        e(f"s_bfe_u32 s{sT2}, s{sT0}, 0x10001")
        e(f"s_lshl_b32 s{sT2}, s{sT2}, 4")
        e(f"s_add_u32 s{sB0}, s{sB0}, s{sT2}")
        e(f"s_and_b32 s{sT2}, s{sT1}, 3")
        e(f"s_add_u32 s{sCls}, s{sCls}, s{sT2}")
        e(f"s_and_b32 s{sCls}, s{sCls}, 3")
        e(f"s_lshl_b32 s{sT2}, s{sT2}, 7")
        e(f"s_and_b32 s{sCol}, s{sT0}, 1")
        e(f"s_lshl_b32 s{sCol}, s{sCol}, 9")
        e(f"s_add_u32 s{sCol}, s{sCol}, s{sT2}")
        e(f"s_lshl_b32 s{sPair}, s{sT0}, 4")
        e(f"s_and_b32 s{sT2}, s{sT1}, 15")
        e(f"s_add_u32 s{sPair}, s{sPair}, s{sT2}")
    e(f"v_lshlrev_b32 v{vLane16}, 4, v0")
    e("s_waitcnt lgkmcnt(0)")
    e(f"s_cmp_ge_u32 s{sWV}, 4")
    e(f"s_cbranch_scc1 {name}_loader")

    if prio_c:
        e(f"s_setprio {prio_c}")
    e(f"s_mov_b32 s{SRD_P}, s38")
    e(f"s_and_b32 s{SRD_P+1}, s39, 0xffff")
    e(f"s_mov_b32 s{SRD_P+2}, {96 << 20}")
    e(f"s_mov_b32 s{SRD_P+3}, 0x20000")
    e(f"s_lshl_b32 s{sFlag}, s{sPair}, 8")
    e(f"s_add_u32 s{sFlag}, s{sFlag}, {PFLAG_OFF}")
    e(f"v_mov_b32 v{vT}, 0")
    e(f"buffer_load_dword v{vNon}, v{vT}, s[{SRD_P}:{SRD_P+3}], s{sFlag} offen sc0 sc1")
    e(f"s_mov_b32 s{SRD_OUT}, s36")
    e(f"s_and_b32 s{SRD_OUT+1}, s37, 0xffff")
    e(f"s_mov_b32 s{SRD_OUT+2}, {1024*2048*2}")
    e(f"s_mov_b32 s{SRD_OUT+3}, 0x20000")
    e(f"s_lshr_b32 s{sT0}, s{sWV}, 1")
    e(f"s_lshl_b32 s{sT0}, s{sT0}, 13")
    e(f"v_add_u32 v{vRO}, s{sT0}, v{vLane16}")
    e(f"v_bfe_u32 v{vT}, v0, 2, 2")
    e(f"v_lshlrev_b32 v{vRW}, 6, v{vT}")
    e(f"v_bfe_u32 v{vT2}, v0, 4, 1")
    e(f"v_lshlrev_b32 v{vT2}, 5, v{vT2}")
    e(f"v_add_u32 v{vRW}, v{vRW}, v{vT2}")
    e(f"v_and_b32 v{vT2}, 1, v0")
    e(f"v_lshlrev_b32 v{vT2}, 4, v{vT2}")
    e(f"v_add_u32 v{vRW}, v{vRW}, v{vT2}")
    e(f"v_bfe_u32 v{vT2}, v0, 1, 1")
    e(f"v_lshlrev_b32 v{vT2}, 3, v{vT2}")
    e(f"v_add_u32 v{vRW}, v{vRW}, v{vT2}")
    e(f"v_lshrrev_b32 v{vT2}, 5, v0")
    e(f"v_lshlrev_b32 v{vT2}, 3, v{vT2}")
    e(f"v_add_u32 v{vT2}, v{vT2}, v{vT}")
    e(f"v_lshlrev_b32 v{vT2}, 8, v{vT2}")
    e(f"v_add_u32 v{vRW}, v{vRW}, v{vT2}")
    e(f"v_add_u32 v{vRW}, {WBASE}, v{vRW}")
    e(f"s_and_b32 s{sT0}, s{sWV}, 1")
    e(f"s_lshl_b32 s{sT0}, s{sT0}, 7")
    e(f"v_xor_b32 v{vRW}, s{sT0}, v{vRW}")
    e(f"v_xor_b32 v{vRW+1}, 64, v{vRW}")
    e(f"v_and_b32 v{vOut}, 31, v0")
    e(f"v_lshlrev_b32 v{vOut}, 12, v{vOut}")
    e(f"v_lshrrev_b32 v{vT}, 5, v0")
    e(f"v_lshlrev_b32 v{vT}, 4, v{vT}")
    e(f"v_add_u32 v{vOut}, v{vOut}, v{vT}")
    e(f"v_add_u32 v{vOut}, s{sT0}, v{vOut}")
    e(f"s_mov_b32 s{sReadO}, 0")
    e(f"s_mov_b32 s{sReadW}, 0")
    e(f"s_mov_b32 s{sCnt}, 0")
    for r in range(64):
        e(f"v_mov_b32 v{ACC+r}, 0")
    for r in range(64):
        e(f"v_mov_b32 v{FA[1]+r}, 0")
    e("s_waitcnt vmcnt(0)")
    if embed is not None:
        e("s_barrier")

    def reads(k):
        L = []
        for u in range(4):
            for mt in range(2):
                for half in range(2):
                    r = FA[k] + 16*mt + 4*u + 2*half
                    L.append(f"ds_read_b64_tr_b16 v[{r}:{r+1}], v{vRW2+mt} offset:{(16*u + 4*half)*256}")
            for t in range(2):
                r = FB[k] + 16*t + 4*u
                L.append(f"ds_read_b128 v[{r}:{r+3}], v{vRO2} offset:{t*4096 + u*1024}")
        return L

    def mfmas(k):
        L = []
        for u in range(4):
            for t in range(2):
                for mt in range(2):
                    d = ACC + 32*t + 16*mt
                    L.append(f"v_mfma_f32_32x32x16_bf16 v[{d}:{d+15}], v[{FA[k]+16*mt+4*u}:{FA[k]+16*mt+4*u+3}], v[{FB[k]+16*t+4*u}:{FB[k]+16*t+4*u+3}], v[{d}:{d+15}]")
        return L

    a.label(f"{name}_cloop")
    for k in range(2):
        e("s_barrier")
        e(f"v_add_u32 v{vRO2}, s{sReadO}, v{vRO}")
        e(f"v_add_u32 v{vRW2}, s{sReadW}, v{vRW}")
        e(f"v_add_u32 v{vRW2+1}, s{sReadW}, v{vRW+1}")
        e("s_waitcnt lgkmcnt(0)")
        fill = reads(k) if "r" not in skip else []
        fill += [f"s_add_u32 s{sReadO}, s{sReadO}, {OSLOT}",
                 f"s_and_b32 s{sReadO}, s{sReadO}, {NO*OSLOT-1}",
                 f"s_add_u32 s{sReadW}, s{sReadW}, 16384",
                 f"s_cmp_eq_u32 s{sReadW}, {NW*WSLOT}",
                 f"s_cselect_b32 s{sReadW}, 0, s{sReadW}",
                 f"s_add_u32 s{sCnt}, s{sCnt}, 1"]
        main = mfmas(1-k) if "m" not in skip else []
        if main:
            for ln in interleave(main, fill, [2]*12 + [3, 3, 0, 0]):
                e(ln)
        else:
            for ln in fill:
                e(ln)
    e(f"s_cmp_lt_u32 s{sCnt}, {NST}")
    e(f"s_cbranch_scc1 {name}_cloop")
    e("s_waitcnt lgkmcnt(0)")
    for ln in mfmas(1):
        e(ln)
    e("s_waitcnt vmcnt(0)")
    e(f"v_readfirstlane_b32 s{sNon}, v{vNon}")
    a.nop(3)
    e(f"s_mul_i32 s{sNon}, s{sNon}, 0x9e3779b1")
    e(f"s_add_u32 s{sNon}, s{sNon}, 0x7f4a7c15")
    sTag = [68, 69, 70, 71]
    for k in range(4):
        e(f"s_bfe_u32 s{sTag[k]}, s{sNon}, {(8 << 16) | (8*k):#x}")
    e(f"s_mov_b32 s{sT2}, 0xffffff00")
    e(f"v_mov_b32 v{vT}, s{sT2}")
    e(f"s_lshl_b32 s{sOx}, s{sPair}, 1")
    e(f"s_add_u32 s{sWx}, s{sOx}, s{sKh}")
    e(f"s_xor_b32 s{sT0}, s{sKh}, 1")
    e(f"s_add_u32 s{sOx}, s{sOx}, s{sT0}")
    for r in (sWx, sOx):
        e(f"s_lshl_b32 s{r}, s{r}, 2")
        e(f"s_add_u32 s{r}, s{r}, s{sWV}")
        e(f"s_lshl_b32 s{r}, s{r}, 13")
        e(f"s_add_u32 s{r}, s{r}, {PART_OFF}")
    IN = FA[0]
    vBad = vT2
    e(f"s_cmp_eq_u32 s{sKh}, 0")
    e(f"s_cbranch_scc0 {name}_x1")
    for kh in range(2):
        if kh == 1:
            a.label(f"{name}_x1")
        SND = ACC + 32*(1-kh)
        KEEP = ACC + 32*kh
        for r in range(32):
            e(f"v_and_or_b32 v{SND+r}, v{SND+r}, v{vT}, s{sTag[r & 3]}")
        MIRROR = 8 << 20
        def stores(off_extra, pol):
            e(f"s_add_u32 s{sT0}, s{sWx}, {off_extra}")
            for rq in range(8):
                e(f"buffer_store_dwordx4 v[{SND+4*rq}:{SND+4*rq+3}], v{vLane16}, s[{SRD_P}:{SRD_P+3}], s{sT0} offen offset:{(rq%4)*1024} {pol}")
                if rq == 3:
                    e(f"s_add_u32 s{sT0}, s{sT0}, 4096")
        def loads(off_extra, pol):
            e(f"s_add_u32 s{sT0}, s{sOx}, {off_extra}")
            for rq in range(8):
                e(f"buffer_load_dwordx4 v[{IN+4*rq}:{IN+4*rq+3}], v{vLane16}, s[{SRD_P}:{SRD_P+3}], s{sT0} offen offset:{(rq%4)*1024} {pol}")
                if rq == 3:
                    e(f"s_add_u32 s{sT0}, s{sT0}, 4096")
        if fast:
            stores(0, "")
            loads(0, "sc1")
            stores(MIRROR, "sc0 sc1")
            e(f"s_mov_b32 s{sT1}, {fast}")
            e("s_waitcnt vmcnt(8)")
            e(f"s_branch {name}_chk{kh}")
            a.label(f"{name}_poll{kh}")
            e(f"s_cmp_eq_u32 s{sT1}, 0")
            e(f"s_cbranch_scc1 {name}_slow{kh}")
            e(f"s_sub_u32 s{sT1}, s{sT1}, 1")
            loads(0, "sc1")
            e(f"s_branch {name}_wait{kh}")
            a.label(f"{name}_slow{kh}")
            loads(MIRROR, "sc0 sc1")
            a.label(f"{name}_wait{kh}")
            e("s_waitcnt vmcnt(0)")
            a.label(f"{name}_chk{kh}")
        else:
            stores(0, xpol)
            a.label(f"{name}_poll{kh}")
            loads(0, "sc0 sc1")
            e("s_waitcnt vmcnt(0)")
        e(f"v_xor_b32 v{vBad}, s{sTag[0]}, v{IN}")
        for r in range(1, 32):
            e(f"v_xor_b32 v{vRO2}, s{sTag[r & 3]}, v{IN+r}")
            e(f"v_or_b32 v{vBad}, v{vBad}, v{vRO2}")
        e(f"v_and_b32 v{vBad}, 0xff, v{vBad}")
        e(f"v_cmp_ne_u32 vcc, 0, v{vBad}")
        a.nop(4)
        e(f"s_cmp_eq_u64 vcc, 0")
        e(f"s_cbranch_scc1 {name}_got{kh}")
        e(f"s_sleep {sleep}")
        e(f"s_branch {name}_poll{kh}")
        a.label(f"{name}_got{kh}")
        for r in range(32):
            e(f"v_add_f32 v{KEEP+r}, v{KEEP+r}, v{IN+r}")
        P = FB[1]
        for mt in range(2):
            for sg in range(2):
                for i in range(4):
                    src = KEEP + 16*mt + 8*sg + 2*i
                    e(f"v_cvt_pk_bf16_f32 v{P + 8*mt + 4*sg + i}, v{src}, v{src+1}")
        if kh == 0:
            e(f"s_branch {name}_xout")
    a.label(f"{name}_xout")
    e(f"s_lshr_b32 s{sT0}, s{sWV}, 1")
    e(f"s_lshl_b32 s{sT0}, s{sT0}, 1")
    e(f"s_add_u32 s{sT0}, s{sT0}, s{sKh}")
    if embed is not None:
        e(f"s_lshl_b32 s{sT0}, s{sT0}, 3")
    e(f"s_add_u32 s{sT0}, s{sT0}, s{sB0}")
    e(f"s_lshl_b32 s{sT0}, s{sT0}, 17")
    e(f"s_lshl_b32 s{sT1}, s{sBr}, 11")
    e(f"s_add_u32 s{sT0}, s{sT0}, s{sT1}")
    e(f"s_lshl_b32 s{sT1}, s{sCol}, 1")
    e(f"s_add_u32 s{sT0}, s{sT0}, s{sT1}")
    P = FB[1]
    for mt in range(2):
        for sg in range(2):
            r = P + 8*mt + 4*sg
            e(f"buffer_store_dwordx4 v[{r}:{r+3}], v{vOut}, s[{SRD_OUT}:{SRD_OUT+3}], s{sT0} offen offset:{64*mt + 32*sg}")
    e(f"v_mov_b32 v{vT}, 0")
    e(f"v_mov_b32 v{vT2}, s{sNon}")
    e(f"v_cmp_eq_u32 vcc, 0, v0")
    e(f"s_and_saveexec_b64 s[44:45], vcc")
    e(f"buffer_store_dword v{vT2}, v{vT}, s[{SRD_P}:{SRD_P+3}], s{sFlag} offen sc0 sc1")
    e(f"s_mov_b64 exec, s[44:45]")
    if embed is not None:
        embed["finish"](sWV, sBr, sKh, sB0, sCol, SRD_P)
    e("s_waitcnt vmcnt(0)")
    e(f"s_branch {name}_fin")

    a.label(f"{name}_loader")
    if prio_l:
        e(f"s_setprio {prio_l}")
    e(f"s_sub_u32 s{sLW}, s{sWV}, 4")
    e(f"v_lshrrev_b32 v{vT}, 4, v0")
    e(f"v_and_b32 v{vT2}, 15, v0")
    e(f"v_lshlrev_b32 v{vWD}, 2, v{vT}")
    e(f"v_xor_b32 v{vWD}, v{vWD}, v{vT2}")
    e(f"v_lshlrev_b32 v{vWD}, 4, v{vWD}")
    e(f"v_lshlrev_b32 v{vT}, 11, v{vT}")
    e(f"v_add_u32 v{vWD}, v{vWD}, v{vT}")
    for k in range(1, 4):
        e(f"v_add_u32 v{vWD+k}, {k*(4*2048 - 1024)}, v{vWD}")
    e(f"s_cmp_eq_u32 s{sBr}, 0")
    e(f"s_cselect_b32 s{SRD_W}, s32, s34")
    e(f"s_cselect_b32 s{SRD_W+1}, s33, s35")
    e(f"s_and_b32 s{SRD_W+1}, s{SRD_W+1}, 0xffff")
    e(f"s_mov_b32 s{SRD_W+2}, {4096*1024*2}")
    e(f"s_mov_b32 s{SRD_W+3}, 0x20000")
    e(f"s_mov_b32 s{SRD_O}, s38")
    e(f"s_and_b32 s{SRD_O+1}, s39, 0xffff")
    e(f"s_mov_b32 s{SRD_O+2}, {2*8388608 if embed is None else 64 << 20}")
    e(f"s_mov_b32 s{SRD_O+3}, 0x20000")
    if embed is None:
        e(f"s_add_u32 s{sT0}, s{sB0}, s{sLW}")
    else:
        e(f"s_lshl_b32 s{sT0}, s{sLW}, 3")
        e(f"s_add_u32 s{sT0}, s{sT0}, s{sB0}")
    e(f"s_lshl_b32 s{sO}, s{sT0}, 18")
    e(f"s_lshl_b32 s{sT0}, s{sBr}, 23")
    e(f"s_add_u32 s{sO}, s{sO}, s{sT0}")
    e(f"s_lshl_b32 s{sT0}, s{sKh}, 17")
    e(f"s_add_u32 s{sO}, s{sO}, s{sT0}")
    e(f"s_lshl_b32 s{sW}, s{sLW}, 16")
    e(f"s_lshl_b32 s{sT0}, s{sCol}, 1")
    e(f"s_add_u32 s{sW}, s{sW}, s{sT0}")
    e(f"s_lshl_b32 s{sT0}, s{sKh}, 22")
    e(f"s_add_u32 s{sW}, s{sW}, s{sT0}")
    e(f"s_lshl_b32 s{sM0o}, s{sLW}, 12")
    e(f"s_lshl_b32 s{sM0w}, s{sLW}, 13")
    e(f"s_add_u32 s{sM0w}, s{sM0w}, {WBASE}")

    def group_of(pos_reg, dst):
        if order == "adv":
            e(f"s_add_u32 s{sT2}, s{pos_reg}, 1")
            e(f"s_sub_u32 s{sT2}, s{sT2}, s{sCls}")
            e(f"s_and_b32 s{sT2}, s{sT2}, 3")
            e(f"s_cmp_eq_u32 s{sT2}, 0")
            e(f"s_cselect_b32 s{sT0}, 1, 0")
            e(f"s_cmp_eq_u32 s{sT2}, 1")
            e(f"s_cselect_b32 s{sT0}, -1, s{sT0}")
            e(f"s_add_u32 s{dst}, s{pos_reg}, s{sT0}")
            e(f"s_cmp_lt_u32 s{dst}, 16")
            e(f"s_cselect_b32 s{dst}, s{dst}, s{pos_reg}")
        else:
            e(f"s_mov_b32 s{dst}, s{pos_reg}")

    def issue_o():
        e(f"s_lshr_b32 s{sT1}, s{sIss}, 1")
        group_of(sT1, sOx)
        e(f"s_lshl_b32 s{sOx}, s{sOx}, 1")
        e(f"s_and_b32 s{sT0}, s{sIss}, 1")
        e(f"s_add_u32 s{sOx}, s{sOx}, s{sT0}")
        e(f"s_lshl_b32 s{sOx}, s{sOx}, 12")
        e(f"s_add_u32 s{sOx}, s{sOx}, s{sO}")
        e(f"s_cmp_lt_u32 s{sIss}, {NST}")
        e(f"s_cselect_b32 s{sOx}, s{sOx}, {OOB:#x}")
        e(f"s_add_u32 m0, s{sFill}, s{sM0o}")
        e(f"s_add_u32 s{sIss}, s{sIss}, 1")
        for k in range(4):
            e(f"buffer_load_dwordx4 v{vLane16}, s[{SRD_O}:{SRD_O+3}], s{sOx} offen offset:{k*1024} {pol_o} lds")
        e(f"s_add_u32 s{sFill}, s{sFill}, {OSLOT}")
        e(f"s_and_b32 s{sFill}, s{sFill}, {NO*OSLOT-1}")

    def issue_w():
        group_of(sGrp, sWx)
        e(f"s_lshl_b32 s{sWx}, s{sWx}, 18")
        e(f"s_add_u32 s{sWx}, s{sWx}, s{sW}")
        e(f"s_cmp_lt_u32 s{sGrp}, 16")
        e(f"s_cselect_b32 s{sWx}, s{sWx}, {OOB:#x}")
        e(f"s_add_u32 m0, s{sWfill}, s{sM0w}")
        e(f"s_add_u32 s{sGrp}, s{sGrp}, 1")
        for half in range(2):
            for k in range(4):
                e(f"buffer_load_dwordx4 v{vWD+k}, s[{SRD_W}:{SRD_W+3}], s{sWx} offen offset:{k*1024} {pol_w} lds")
            if half == 0:
                e(f"s_add_u32 m0, m0, 4096")
                e(f"s_add_u32 s{sWx}, s{sWx}, {16*2048}")
        e(f"s_add_u32 s{sWfill}, s{sWfill}, {WSLOT}")
        e(f"s_cmp_eq_u32 s{sWfill}, {NW*WSLOT}")
        e(f"s_cselect_b32 s{sWfill}, 0, s{sWfill}")

    if lean and order == "adv":
        def table(c):
            t = 0
            for p in range(16):
                k = (p + 1 - c) & 3
                g = p + 1 if k == 0 else (p - 1 if k == 1 else p)
                if g < 0 or g > 15:
                    g = p
                t |= g << (4*p)
            return t
        TO, TW = 68, 70
        for c in range(4):
            t = table(c)
            e(f"s_cmp_eq_u32 s{sCls}, {c}")
            if c == 0:
                e(f"s_mov_b32 s{TO}, {t & 0xffffffff:#x}")
                e(f"s_mov_b32 s{TO+1}, {t >> 32:#x}")
            else:
                e(f"s_cselect_b32 s{TO}, {t & 0xffffffff:#x}, s{TO}")
                e(f"s_cselect_b32 s{TO+1}, {t >> 32:#x}, s{TO+1}")
        e(f"s_mov_b64 s[{TW}:{TW+1}], s[{TO}:{TO+1}]")
        def o_group():
            e(f"s_and_b32 s{sT0}, s{TO}, 15")
            e(f"s_lshr_b64 s[{TO}:{TO+1}], s[{TO}:{TO+1}], 4")
            e(f"s_lshl_b32 s{sT0}, s{sT0}, 13")
            e(f"s_add_u32 s{sOx}, s{sO}, s{sT0}")
        def o_stage(second):
            e(f"s_add_u32 m0, s{sFill}, s{sM0o}")
            if second:
                e(f"s_add_u32 s{sOx}, s{sOx}, 4096")
            else:
                e("s_nop 0")
            for k in range(4):
                e(f"buffer_load_dwordx4 v{vLane16}, s[{SRD_O}:{SRD_O+3}], s{sOx} offen offset:{k*1024} {pol_o} lds")
            e(f"s_add_u32 s{sFill}, s{sFill}, {OSLOT}")
            e(f"s_and_b32 s{sFill}, s{sFill}, {NO*OSLOT-1}")
        def w_group():
            e(f"s_and_b32 s{sT0}, s{TW}, 15")
            e(f"s_lshr_b64 s[{TW}:{TW+1}], s[{TW}:{TW+1}], 4")
            e(f"s_lshl_b32 s{sT0}, s{sT0}, 18")
            e(f"s_add_u32 m0, s{sWfill}, s{sM0w}")
            e(f"s_add_u32 s{sWx}, s{sW}, s{sT0}")
            for half in range(2):
                for k in range(4):
                    e(f"buffer_load_dwordx4 v{vWD+k}, s[{SRD_W}:{SRD_W+3}], s{sWx} offen offset:{k*1024} {pol_w} lds")
                if half == 0:
                    e(f"s_add_u32 m0, m0, 4096")
                    e(f"s_add_u32 s{sWx}, s{sWx}, {16*2048}")
            e(f"s_add_u32 s{sWfill}, s{sWfill}, {WSLOT}")
            e(f"s_cmp_eq_u32 s{sWfill}, {NW*WSLOT}")
            e(f"s_cselect_b32 s{sWfill}, 0, s{sWfill}")
        e(f"s_mov_b32 s{sFill}, 0")
        e(f"s_mov_b32 s{sWfill}, 0")
        if embed is None:
            w_group()
            o_group(); o_stage(False); o_stage(True)
            w_group()
        else:
            w_group(); w_group()
            embed["wait"](sLW, sBr, sKh, sB0, SRD_O)
            e("s_barrier")
            o_group(); o_stage(False); o_stage(True)
            e("s_waitcnt vmcnt(0)")
        e(f"s_mov_b32 s{sCnt}, 0")
        a.label(f"{name}_lloop")
        e("s_waitcnt vmcnt(12)")
        e("s_barrier")
        o_group(); o_stage(False)
        e("s_waitcnt vmcnt(12)")
        e("s_barrier")
        o_stage(True)
        w_group()
        e(f"s_add_u32 s{sCnt}, s{sCnt}, 1")
        e(f"s_cmp_lt_u32 s{sCnt}, 14")
        e(f"s_cbranch_scc1 {name}_lloop")
        e("s_waitcnt vmcnt(12)")
        e("s_barrier")
        o_group(); o_stage(False)
        e("s_waitcnt vmcnt(12)")
        e("s_barrier")
        o_stage(True)
        e("s_waitcnt vmcnt(4)")
        e("s_barrier")
        e("s_waitcnt vmcnt(0)")
        e("s_barrier")
    else:
        e(f"s_mov_b32 s{sFill}, 0")
        e(f"s_mov_b32 s{sIss}, 0")
        e(f"s_mov_b32 s{sGrp}, 0")
        e(f"s_mov_b32 s{sWfill}, 0")
        issue_w()
        issue_o()
        issue_o()
        issue_w()
        e(f"s_mov_b32 s{sCnt}, 0")
        a.label(f"{name}_lloop")
        for r in range(2):
            e("s_waitcnt vmcnt(12)")
            e("s_barrier")
            if "d" not in skip:
                issue_o()
                if r == 1:
                    issue_w()
        e(f"s_add_u32 s{sCnt}, s{sCnt}, 2")
        e(f"s_cmp_lt_u32 s{sCnt}, {NST}")
        e(f"s_cbranch_scc1 {name}_lloop")
        e("s_waitcnt vmcnt(0)")
    a.label(f"{name}_fin")
    if embed is not None:
        return
    if timing:
        ts_end(a, 40, 1, sWV, 44, 48, nwaves=8)
    a.label(f"{name}_done")
    e("s_endpgm")
    return dict(nv=NV, ns=80, lds=NO*OSLOT + NW*WSLOT, threads=512)
```

```python
from asmlib import *
import math

OOB = 0x80000000
DEP_OFF = 53 << 20
PAIR_OFF = 50 << 20
FLAG_OFF = 48 << 20
QWS_OFF = 32 << 20
C_SCALE = math.log2(math.e) / math.sqrt(128.0)

def f32bits(x):
    import struct
    return struct.unpack("<I", struct.pack("<f", x))[0]

sWV = 4
sRole, sH, sI, sB = 5, 6, 7, 3
SRD_X, SRD_W, SRD_K, SRD_V, SRD_O = 8, 12, 16, 20, 24
sT0, sT1, sT2, sT3 = 28, 29, 30, 31
sXoff, sWoff, sWslotF, sWslotR, sXslot, sCnt = 32, 33, 34, 35, 36, 37
sKVoff, sTask, sScale, sM0a, sM0b = 38, 39, 40, 41, 42
sOoff, sT4, sT5 = 43, 44, 45
sTS = 46
sPtr = 48
sStg = 80
sX, sDbg, sBs, sHq, sCls, sSig = 81, 82, 84, 85, 86, 87
sFlag, sNonce = 92, 93
sPairN, sPairP = 74, 72
sTbase, sTstep, SRD_T = 94, 95, 96
sLB, sW8, sBarT, sWid = 100, 101, 78, 79
vL16L, vBarA = 30, 29
vNon = 31
SRD_D = 88
NS = 102
MK = [60, 62, 64, 66, 68, 70, 72, 74]
TIMING = [False]
QMARKS = [False]
QSKIP = ['']
QORDER = [None]
LOOK = [2]
SLEEPQ = [8]
XM = [False]
ALT = [False]
ASYM = [False]
MERGE = ['']
KROT = [0]
GRAN = [8192]
SPOLL = [False]
OPOL = ['']
GSLEEP = [1]
PSIG = [0]
SINGLE = [False]
GB = [0]
WT = [0]
INV = [True]
QST = ['sc0 sc1', 'sc0 sc1']
def mark(a, k):
    if TIMING[0]:
        ts_mark(a, MK[k])
vLane16 = 1
vT0, vT1, vT2, vT3 = 2, 3, 4, 5
vKD = 6
vVD = 10
vKR = 11
vVR = 19
vM, vL, vMx, vF = 23, 24, 25, 26
vA0, vA1 = 27, 28
vSt = 29
QOWN, QCUR, S, O, DEF = 32, 64, 96, 160, 224
vWD = DEF
vXD = DEF + 4
vWR = DEF + 8
vXR = DEF + 12
vWR2 = DEF + 16
vXR2 = DEF + 20
vTT, vTD = DEF + 24, DEF + 25
ACC = S
FW = O
FX = QCUR

LDS_RING0, LDS_RING1, LDS_MISC = 0, 32768, 65536
LDS_BYTES = 81920

def bar(a):
    e = a.e
    if not SINGLE[0]:
        e("s_barrier")
        return
    GB[0] += 1
    L = f"gb{GB[0]}"
    e(f"s_add_u32 s{sBarT}, s{sBarT}, 1")
    e("s_waitcnt lgkmcnt(0)")
    e(f"v_mov_b32 v{vSt+2-0 if False else vT3}, 1")
    e("s_mov_b64 exec, 1")
    e(f"ds_add_u32 v{vBarA}, v{vT3}")
    e("s_mov_b64 exec, -1")
    a.label(L)
    e(f"ds_read_b32 v{vT3}, v{vBarA}")
    e("s_waitcnt lgkmcnt(0)")
    e(f"v_readfirstlane_b32 s{sT3}, v{vT3}")
    e(f"s_lshl_b32 s{sT2}, s{sBarT}, 2")
    a.nop(2)
    e(f"s_cmp_ge_u32 s{sT3}, s{sT2}")
    e(f"s_cbranch_scc1 {L}_ok")
    if GSLEEP[0] >= 0:
        e(f"s_sleep {GSLEEP[0]}")
    e(f"s_branch {L}")
    a.label(L + "_ok")


def mfma(e, d, a, b, c=None):
    cc = f"v[{d}:{d+15}]" if c is None else c
    e(f"v_mfma_f32_32x32x16_bf16 v[{d}:{d+15}], v[{a}:{a+3}], v[{b}:{b+3}], {cc}")


def gen_prologue(a, name, timing):
    e = a.e
    e(f"s_cmp_ge_u32 s2, {256 if SINGLE[0] else 512}")
    e(f"s_cbranch_scc1 {name}_done")
    if timing:
        ts_begin(a, sTS)
    e(f"s_load_dwordx8 s[{sPtr}:{sPtr+7}], s[0:1], 0")
    e(f"s_load_dwordx8 s[{sPtr+8}:{sPtr+15}], s[0:1], 40")
    e(f"s_load_dwordx2 s[{sPtr+16}:{sPtr+17}], s[0:1], 96")
    e(f"s_load_dwordx2 s[{sPtr+18}:{sPtr+19}], s[0:1], 88")
    e(f"v_lshrrev_b32 v{vT0}, 6, v0")
    e("v_and_b32 v0, 63, v0")
    e(f"v_readfirstlane_b32 s{sWid}, v{vT0}")
    a.nop(3)
    if SINGLE[0]:
        e(f"s_lshr_b32 s{sRole}, s{sWid}, 2")
        e(f"s_and_b32 s{sWV}, s{sWid}, 3")
        e(f"s_mul_i32 s{sLB}, s{sRole}, {LDS_BYTES}")
    else:
        e(f"s_mov_b32 s{sWV}, s{sWid}")
        e(f"s_lshr_b32 s{sRole}, s2, 8")
        e(f"s_mov_b32 s{sLB}, 0")
    e(f"s_lshl_b32 s{sW8}, s{sWV}, 13")
    e(f"s_and_b32 s{sT0}, s2, 7")
    e(f"s_bfe_u32 s{sT1}, s2, 0x50003")
    e(f"s_lshr_b32 s{sH}, s{sT0}, 1")
    e(f"s_lshl_b32 s{sH}, s{sH}, 3")
    e(f"s_and_b32 s{sT2}, s{sT1}, 7")
    e(f"s_add_u32 s{sH}, s{sH}, s{sT2}")
    e(f"s_and_b32 s{sI}, s{sT0}, 1")
    e(f"s_lshl_b32 s{sI}, s{sI}, 2")
    e(f"s_lshr_b32 s{sT2}, s{sT1}, 3")
    e(f"s_add_u32 s{sI}, s{sI}, s{sT2}")
    e(f"s_mov_b32 s{sX}, s{sT0}")
    e(f"s_add_u32 s{sCls}, s{sH}, s{sI}")
    e(f"s_and_b32 s{sCls}, s{sCls}, 3")
    e(f"v_lshlrev_b32 v{vLane16}, 4, v0")
    e(f"v_add_u32 v{vL16L}, s{sLB}, v{vLane16}")
    if ASYM[0]:
        e(f"s_lshl_b32 s{sT2}, s{sRole}, 6")
        e(f"s_add_u32 s{sT2}, s{sT2}, {LDS_MISC + 12288}")
    else:
        e(f"s_add_u32 s{sT2}, s{sLB}, {LDS_MISC + 12288}")
    e(f"v_mov_b32 v{vBarA}, s{sT2}")
    e(f"s_mov_b32 s{sBarT}, 0")
    e(f"v_lshrrev_b32 v{vT0}, 4, v0")
    e(f"v_and_b32 v{vT1}, 15, v0")
    e(f"v_lshlrev_b32 v{vT2}, 8, v{vT0}")
    for jj in range(4):
        e(f"v_add_u32 v{vT3}, {4*jj}, v{vT0}")
        e(f"v_xor_b32 v{vT3}, v{vT3}, v{vT1}")
        e(f"v_lshlrev_b32 v{vT3}, 4, v{vT3}")
        e(f"v_add_u32 v{vKD+jj}, v{vT3}, v{vT2}")
    e(f"v_lshlrev_b32 v{vT3}, 2, v{vT0}")
    e(f"v_xor_b32 v{vT3}, v{vT3}, v{vT1}")
    e(f"v_lshlrev_b32 v{vT3}, 4, v{vT3}")
    e(f"v_add_u32 v{vVD}, v{vT3}, v{vT2}")
    e(f"v_lshlrev_b32 v{vT2}, 13, v{vT0}")
    e(f"v_add_u32 v{vWD}, v{vT3}, v{vT2}")
    for jj in range(1, 4):
        e(f"v_add_u32 v{vWD+jj}, {jj*(4*8192-1024)}, v{vWD}")
    e(f"v_lshrrev_b32 v{vT1}, 3, v0")
    e(f"v_and_b32 v{vT2}, 7, v0")
    for jj in range(4):
        e(f"v_add_u32 v{vT3}, {4*jj}, v{vT0}")
        e(f"v_and_b32 v{vT3}, 7, v{vT3}")
        e(f"v_xor_b32 v{vT3}, v{vT3}, v{vT2}")
        e(f"v_lshlrev_b32 v{vT3}, 4, v{vT3}")
        e(f"v_lshlrev_b32 v{vXD+jj}, 11, v{vT1}")
        e(f"v_add_u32 v{vXD+jj}, v{vXD+jj}, v{vT3}")
        c = 8*jj*2048 - jj*1024
        if c:
            e(f"v_add_u32 v{vXD+jj}, {c}, v{vXD+jj}")
    e("s_waitcnt lgkmcnt(0)")
    e(f"s_cmp_eq_u32 s{sRole}, 0")
    for k, srd in enumerate((SRD_X, SRD_K, SRD_V, SRD_W)):
        e(f"s_cselect_b32 s{srd}, s{sPtr+8+2*k}, s{sPtr+2*k}")
        e(f"s_cselect_b32 s{srd+1}, s{sPtr+9+2*k}, s{sPtr+1+2*k}")
    e(f"s_mov_b32 s{sT0}, {32*32*131072}")
    e(f"s_cselect_b32 s{SRD_K+2}, s{sT0}, {32*4*131072}")
    e(f"s_mov_b32 s{SRD_V+2}, s{SRD_K+2}")
    for srd in (SRD_X, SRD_K, SRD_V, SRD_W):
        e(f"s_and_b32 s{srd+1}, s{srd+1}, 0xffff")
        e(f"s_mov_b32 s{srd+3}, 0x20000")
    e(f"s_mov_b32 s{SRD_X+2}, {1024*1024*2}")
    e(f"s_mov_b32 s{SRD_W+2}, {1024*4096*2}")
    e(f"s_mov_b32 s{sDbg}, s{sPtr+18}")
    e(f"s_mov_b32 s{sDbg+1}, s{sPtr+19}")
    e(f"s_mov_b32 s{SRD_D}, s{sPtr+18}")
    e(f"s_and_b32 s{SRD_D+1}, s{sPtr+19}, 0xffff")
    e(f"s_mov_b32 s{SRD_D+2}, 256")
    e(f"s_mov_b32 s{SRD_D+3}, 0x20000")
    e(f"s_mov_b32 s{SRD_O}, s{sPtr+16}")
    e(f"s_and_b32 s{SRD_O+1}, s{sPtr+17}, 0xffff")
    e(f"s_mov_b32 s{SRD_O+2}, {64 << 20}")
    e(f"s_mov_b32 s{SRD_O+3}, 0x20000")
    e(f"s_lshl_b32 s{sT0}, s{sWV}, 3")
    e(f"s_add_u32 s{sB}, s{sT0}, s{sI}")
    e(f"s_lshl_b32 s{sXoff}, s{sB}, 16")
    e(f"s_lshl_b32 s{sWoff}, s{sWV}, 17")
    e(f"s_lshl_b32 s{sT0}, s{sH}, 8")
    e(f"s_add_u32 s{sWoff}, s{sWoff}, s{sT0}")
    e(f"v_and_b32 v{vT0}, 31, v0")
    e(f"v_lshrrev_b32 v{vT1}, 5, v0")
    e(f"v_bfe_u32 v{vT2}, v0, 1, 3")
    e(f"v_xor_b32 v{vT2}, v{vT2}, v{vT1}")
    e(f"v_lshlrev_b32 v{vT2}, 4, v{vT2}")
    e(f"v_lshlrev_b32 v{vT3}, 7, v{vT0}")
    e(f"v_add_u32 v{vXR}, v{vT2}, v{vT3}")
    e(f"s_add_u32 s{sT0}, s{sW8}, {LDS_RING1}")
    e(f"s_add_u32 s{sT0}, s{sT0}, s{sLB}")
    e(f"v_add_u32 v{vXR}, s{sT0}, v{vXR}")
    for u in range(1, 4):
        e(f"v_xor_b32 v{vXR+u}, {u*32}, v{vXR}")
    e(f"v_and_b32 v{vT2}, 15, v0")
    e(f"v_xor_b32 v{vT2}, v{vT2}, v{vT1}")
    e(f"v_lshlrev_b32 v{vT2}, 4, v{vT2}")
    e(f"v_lshlrev_b32 v{vT3}, 8, v{vT0}")
    e(f"v_add_u32 v{vKR}, v{vT2}, v{vT3}")
    e(f"s_add_u32 s{sT0}, s{sW8}, s{sLB}")
    e(f"v_add_u32 v{vKR}, s{sT0}, v{vKR}")
    for s in range(1, 8):
        e(f"v_xor_b32 v{vKR+s}, {s*32}, v{vKR}")
    e(f"v_bfe_u32 v{vT0}, v0, 2, 2")
    e(f"v_lshlrev_b32 v{vT2}, 6, v{vT0}")
    e(f"v_bfe_u32 v{vT3}, v0, 4, 1")
    e(f"v_lshlrev_b32 v{vT3}, 5, v{vT3}")
    e(f"v_add_u32 v{vT2}, v{vT2}, v{vT3}")
    e(f"v_and_b32 v{vT3}, 1, v0")
    e(f"v_lshlrev_b32 v{vT3}, 4, v{vT3}")
    e(f"v_add_u32 v{vT2}, v{vT2}, v{vT3}")
    e(f"v_bfe_u32 v{vT3}, v0, 1, 1")
    e(f"v_lshlrev_b32 v{vT3}, 3, v{vT3}")
    e(f"v_add_u32 v{vT2}, v{vT2}, v{vT3}")
    e(f"v_lshlrev_b32 v{vT3}, 3, v{vT1}")
    e(f"v_add_u32 v{vT3}, v{vT3}, v{vT0}")
    e(f"v_lshlrev_b32 v{vT3}, 8, v{vT3}")
    e(f"v_add_u32 v{vWR}, v{vT2}, v{vT3}")
    e(f"v_add_u32 v{vWR}, s{sLB}, v{vWR}")
    e(f"v_lshlrev_b32 v{vT3}, 2, v{vT1}")
    e(f"v_add_u32 v{vT3}, v{vT3}, v{vT0}")
    e(f"v_lshlrev_b32 v{vT3}, 8, v{vT3}")
    e(f"v_add_u32 v{vVR}, v{vT2}, v{vT3}")
    for t in range(1, 4):
        e(f"v_xor_b32 v{vWR+t}, {t*64}, v{vWR}")
    e(f"s_add_u32 s{sT0}, s{sW8}, s{sLB}")
    e(f"v_add_u32 v{vT2}, s{sT0}, v{vVR}")
    for k in range(4):
        e(f"s_add_u32 s{sT0}, s{sWV}, {k}")
        e(f"s_and_b32 s{sT0}, s{sT0}, 3")
        e(f"s_lshl_b32 s{sT0}, s{sT0}, 6")
        e(f"v_xor_b32 v{vVR+k}, s{sT0}, v{vT2}")
    e(f"s_add_u32 s{sM0a}, s{sW8}, s{sLB}")
    e(f"s_add_u32 s{sM0b}, s{sM0a}, {LDS_RING1}")
    e(f"s_mov_b32 s{sScale}, {f32bits(C_SCALE):#x}")


def gen_qproj(a, name, pol_x, pol_w, after_barrier15=None, after_x15=None):
    e = a.e
    WSLOT = [LDS_MISC, 0, 16384]

    def wt_setup():
        e(f"s_and_b32 s{sT2}, s{sH}, 7")
        e(f"v_lshrrev_b32 v{vT0}, 4, v0")
        e(f"v_lshlrev_b32 v{vT0}, 13, v{vT0}")
        e(f"v_and_b32 v{vT1}, 15, v0")
        e(f"v_lshlrev_b32 v{vT1}, 7, v{vT1}")
        e(f"v_add_u32 v{vT0}, v{vT0}, v{vT1}")
        e(f"s_lshl_b32 s{sT0}, s{sT2}, 6")
        e(f"v_add_u32 v{vT1}, s{sT0}, v0")
        e(f"v_bfe_u32 v{vT2}, v{vT1}, 5, 2")
        e(f"v_lshrrev_b32 v{vT3}, 7, v{vT1}")
        e(f"v_lshlrev_b32 v{vT3}, 3, v{vT3}")
        e(f"v_add_u32 v{vT2}, v{vT2}, v{vT3}")
        e(f"v_lshlrev_b32 v{vT2}, 5, v{vT2}")
        e(f"v_and_b32 v{vT1}, 31, v{vT1}")
        e(f"v_add_u32 v{vT1}, v{vT1}, v{vT2}")
        e(f"v_lshlrev_b32 v{vT1}, 11, v{vT1}")
        e(f"s_cmp_lt_u32 s{sWV}, 2")
        e(f"s_cselect_b64 vcc, -1, 0")
        e(f"v_cndmask_b32 v{vTT}, v{vT1}, v{vT0}, vcc")
        for k in range(4):
            e(f"s_cselect_b32 s{SRD_T+k}, s{SRD_W+k}, s{SRD_X+k}")
        e(f"s_mov_b32 s{SRD_T+3}, 0x20000")
        e(f"s_lshl_b32 s{sT0}, s{sT2}, 3")
        e(f"s_lshl_b32 s{sT1}, s{sWV}, 2")
        e(f"s_add_u32 s{sT0}, s{sT0}, s{sT1}")
        e(f"s_lshl_b32 s{sT0}, s{sT0}, 13")
        e(f"s_lshr_b32 s{sT1}, s{sX}, 1")
        e(f"s_lshl_b32 s{sT1}, s{sT1}, 11")
        e(f"s_add_u32 s{sT0}, s{sT0}, s{sT1}")
        e(f"s_and_b32 s{sT1}, s{sX}, 1")
        e(f"s_lshl_b32 s{sT1}, s{sT1}, 18")
        e(f"s_cmp_lt_u32 s{sWV}, 2")
        e(f"s_cselect_b32 s{sTbase}, s{sT0}, s{sT1}")
        e(f"s_mov_b32 s{sT0}, {64*8192}")
        e(f"s_cselect_b32 s{sTstep}, s{sT0}, 128")
        e(f"s_cmp_eq_u32 s{sWV}, 3")
        e(f"s_cselect_b32 s{sTbase}, {OOB:#x}, s{sTbase}")
        e(f"s_cselect_b32 s{sTstep}, 0, s{sTstep}")

    def wt_issue(tau_reg_or_imm):
        if isinstance(tau_reg_or_imm, int):
            e(f"s_mov_b32 s{sT2}, {tau_reg_or_imm}")
        else:
            e(f"s_add_u32 s{sT2}, s{sCnt}, {WT[0]}")
        e(f"s_mul_i32 s{sT3}, s{sT2}, s{sTstep}")
        e(f"s_add_u32 s{sT3}, s{sT3}, s{sTbase}")
        e(f"s_and_b32 s{sT0}, s{sT2}, 3")
        e(f"s_cmp_eq_u32 s{sT0}, s{sCls}")
        e(f"s_cselect_b32 s{sT3}, s{sT3}, {OOB:#x}")
        e(f"s_cmp_lt_u32 s{sT2}, 16")
        e(f"s_cselect_b32 s{sT3}, s{sT3}, {OOB:#x}")
        e(f"buffer_load_dword v{vTD}, v{vTT}, s[{SRD_T}:{SRD_T+3}], s{sT3} offen {pol_w}")

    def sigma():
        if QORDER[0] == "adv":
            e(f"s_add_u32 s{sT1}, s{sStg}, 1")
            e(f"s_sub_u32 s{sT1}, s{sT1}, s{sCls}")
            e(f"s_and_b32 s{sT1}, s{sT1}, 3")
            e(f"s_cmp_eq_u32 s{sT1}, 0")
            e(f"s_cselect_b32 s{sT0}, 1, 0")
            e(f"s_cmp_eq_u32 s{sT1}, 1")
            e(f"s_cselect_b32 s{sT0}, -1, s{sT0}")
            e(f"s_add_u32 s{sSig}, s{sStg}, s{sT0}")
            e(f"s_cmp_lt_u32 s{sSig}, 16")
            e(f"s_cselect_b32 s{sSig}, s{sSig}, s{sStg}")
        elif QORDER[0] == "rot4":
            e(f"s_add_u32 s{sT1}, s{sStg}, s{sCls}")
            e(f"s_and_b32 s{sT1}, s{sT1}, 3")
            e(f"s_andn2_b32 s{sSig}, s{sStg}, 3")
            e(f"s_or_b32 s{sSig}, s{sSig}, s{sT1}")
        elif QORDER[0] == "rot8":
            e(f"s_lshl_b32 s{sT1}, s{sCls}, 1")
            e(f"s_add_u32 s{sT1}, s{sT1}, s{sStg}")
            e(f"s_and_b32 s{sT1}, s{sT1}, 7")
            e(f"s_andn2_b32 s{sSig}, s{sStg}, 7")
            e(f"s_or_b32 s{sSig}, s{sSig}, s{sT1}")
        elif QORDER[0] == "rot16":
            e(f"s_lshl_b32 s{sT1}, s{sCls}, 2")
            e(f"s_add_u32 s{sT1}, s{sT1}, s{sStg}")
            e(f"s_and_b32 s{sSig}, s{sT1}, 15")
        else:
            e(f"s_mov_b32 s{sSig}, s{sStg}")

    def issue_w():
        sigma()
        e(f"s_lshl_b32 s{sT0}, s{sWV}, 12")
        e(f"s_add_u32 s{sT0}, s{sT0}, s{sLB}")
        e(f"s_add_u32 m0, s{sWslotF}, s{sT0}")
        e(f"s_lshl_b32 s{sT1}, s{sSig}, 19")
        e(f"s_add_u32 s{sT1}, s{sT1}, s{sWoff}")
        for jj in range(4):
            e(f"buffer_load_dwordx4 v{vWD+jj}, s[{SRD_W}:{SRD_W+3}], s{sT1} offen offset:{jj*1024} {pol_w} lds")
        e(f"s_cmp_eq_u32 s{sWslotF}, {LDS_MISC}")
        e(f"s_cselect_b32 s{sT0}, 0, {LDS_MISC}")
        e(f"s_cmp_eq_u32 s{sWslotF}, 0")
        e(f"s_cselect_b32 s{sWslotF}, 16384, s{sT0}")

    def issue_x(par):
        e(f"s_mov_b32 s{sT0}, s{sM0b}")
        if par is not None:
            e(f"s_add_u32 m0, s{sT0}, {par*4096}")
        else:
            e(f"s_add_u32 m0, s{sT0}, s{sXslot}")
        e(f"s_lshl_b32 s{sT1}, s{sSig}, 7")
        e(f"s_add_u32 s{sT1}, s{sT1}, s{sXoff}")
        for jj in range(4):
            e(f"buffer_load_dwordx4 v{vXD+jj}, s[{SRD_X}:{SRD_X+3}], s{sT1} offen offset:{jj*1024} {pol_x} lds")
        e(f"s_add_u32 s{sStg}, s{sStg}, 1")

    class Cap:
        def __init__(self): self.L = []
        def __call__(self, t=""): self.L.append(t)

    def capture(fn):
        nonlocal e
        keep = e
        c = Cap(); e = c
        fn()
        e = keep
        return c.L

    def stage(first, issue, hook_w=None, hook_x=None, last=False):
        nwait = 9 if (WT[0] and not first) else 8
        e(f"s_waitcnt vmcnt({nwait})" if not last else "s_waitcnt vmcnt(0)")
        if ASYM[0]:
            GB[0] += 1
            L = f"qb{GB[0]}"
            e(f"s_cmp_lg_u32 s{sRole}, 0")
            e(f"s_cbranch_scc1 {L}_g")
            e("s_barrier")
            e(f"s_branch {L}_d")
            a.label(L + "_g")
            bar(a)
            a.label(L + "_d")
        else:
            e("s_barrier")
        for t in range(4):
            e(f"v_add_u32 v{vWR2+t}, s{sWslotR}, v{vWR+t}")
        for u in range(4):
            e(f"v_add_u32 v{vXR2+u}, s{sXslot}, v{vXR+u}")
        if 'd' in QSKIP[0]:
            issue = False
        def rx():
            if 'r' in QSKIP[0]: return []
            return [f"ds_read_b128 v[{FX+4*u}:{FX+4*u+3}], v{vXR2+u}" for u in range(4)]
        def rw(u):
            L = []
            if 'r' in QSKIP[0]: return L
            for t in range(4):
                for half in range(2):
                    r = FW + 16*u + 4*t + 2*half
                    L.append(f"ds_read_b64_tr_b16 v[{r}:{r+1}], v{vWR2+t} offset:{(16*u+4*half)*256}")
            return L
        def mm(u):
            L = []
            for t in range(4):
                c = "0" if (first and u == 0) else f"v[{ACC+16*t}:{ACC+16*t+15}]"
                L.append(f"v_mfma_f32_32x32x16_bf16 v[{ACC+16*t}:{ACC+16*t+15}], v[{FW+16*u+4*t}:{FW+16*u+4*t+3}], v[{FX+4*u}:{FX+4*u+3}], {c}" if 'm' not in QSKIP[0] else "s_nop 0")
            return L
        for ln in rx() + rw(0):
            e(ln)
        if issue:
            issue_w()
            if WT[0]:
                wt_issue("cnt")
        if hook_w:
            hook_w()
        e("s_waitcnt lgkmcnt(0)")
        fill = rw(1) + rw(2)
        k = 0
        for m in mm(0):
            e(m)
            for ln in fill[k:k+4]:
                e(ln)
            k += 4
        xl = capture(lambda: issue_x(None)) if issue else []
        e("s_waitcnt lgkmcnt(8)")
        fill = rw(3)
        k = 0
        for m in mm(1):
            e(m)
            for ln in fill[k:k+2]:
                e(ln)
            k += 2
        e("s_waitcnt lgkmcnt(8)")
        k = 0
        per = (len(xl) + 3) // 4
        for m in mm(2):
            e(m)
            for ln in xl[k:k+per]:
                e(ln)
            k += per
        if hook_x:
            hook_x()
        e("s_waitcnt lgkmcnt(0)")
        adv = [f"s_cmp_eq_u32 s{sWslotR}, {LDS_MISC}",
               f"s_cselect_b32 s{sT0}, 0, {LDS_MISC}",
               f"s_cmp_eq_u32 s{sWslotR}, 0",
               f"s_cselect_b32 s{sWslotR}, 16384, s{sT0}",
               f"s_xor_b32 s{sXslot}, s{sXslot}, 4096"]
        k = 0
        for m in mm(3):
            e(m)
            for ln in adv[k:k+2]:
                e(ln)
            k += 2

    e(f"s_mov_b32 s{sWslotF}, {LDS_MISC}")
    e(f"s_mov_b32 s{sWslotR}, {LDS_MISC}")
    e(f"s_mov_b32 s{sXslot}, 0")
    e(f"s_mov_b32 s{sStg}, 0")
    e(f"s_mov_b32 s{sCnt}, 0")
    if WT[0]:
        wt_setup()
        for tau in range(WT[0]):
            wt_issue(tau)
    issue_w(); issue_x(0)
    issue_w(); issue_x(1)
    stage(True, True)
    e(f"s_mov_b32 s{sCnt}, 1")
    a.label(f"{name}_qloop")
    if QMARKS[0]:
        ts_mark(a, 76)
        for k, cnt in enumerate((1, 2, 4, 8, 12)):
            e(f"s_cmp_eq_u32 s{sCnt}, {cnt}")
            e(f"s_cselect_b32 s{MK[2+k]}, s76, s{MK[2+k]}")
    if ALT[0]:
        e(f"s_add_u32 s{sT0}, s{sCnt}, s{sRole}")
        e(f"s_bitcmp1_b32 s{sT0}, 0")
        e(f"s_cbranch_scc1 {name}_p1")
        e("s_setprio 0")
        e(f"s_branch {name}_p2")
        a.label(f"{name}_p1")
        e("s_setprio 1")
        a.label(f"{name}_p2")
    if PSIG[0]:
        e(f"s_cmp_lg_u32 s{sCnt}, {PSIG[0]}")
        e(f"s_cbranch_scc1 {name}_ps_d")
        e(f"s_or_b32 s{sT0}, s{sWV}, s{sRole}")
        e(f"s_cmp_lg_u32 s{sT0}, 0")
        e(f"s_cbranch_scc1 {name}_ps_d")
        e(f"s_and_b32 s{sT0}, s2, 255")
        e(f"s_lshl_b32 s{sT0}, s{sT0}, 8")
        e(f"s_add_u32 s{sT0}, s{sT0}, {PAIR_OFF}")
        e(f"s_mul_i32 s{sT1}, s{sPairN}, 0x9e3779b1")
        e(f"s_add_u32 s{sT1}, s{sT1}, 0x7f4a7c15")
        e(f"v_mov_b32 v{vT0}, 0")
        e(f"v_mov_b32 v{vT1}, s{sT1}")
        e(f"v_cmp_eq_u32 vcc, 0, v0")
        e(f"s_and_saveexec_b64 s[{sT2}:{sT3}], vcc")
        e(f"buffer_store_dword v{vT1}, v{vT0}, s[{SRD_O}:{SRD_O+3}], s{sT0} offen offset:16 sc0 sc1")
        e(f"s_mov_b64 exec, s[{sT2}:{sT3}]")
        a.label(f"{name}_ps_d")
    stage(False, True)
    e(f"s_add_u32 s{sCnt}, s{sCnt}, 1")
    e(f"s_cmp_lt_u32 s{sCnt}, 14")
    e(f"s_cbranch_scc1 {name}_qloop")
    stage(False, False)
    stage(False, False, hook_w=after_barrier15, hook_x=after_x15, last=True)
    a.nop(12)
    for s in range(8):
        t, sg = s >> 1, s & 1
        for i in range(4):
            src = ACC + 16*t + 8*sg + 2*i
            e(f"v_cvt_pk_bf16_f32 v{QOWN+4*s+i}, v{src}, v{src+1}")


def gen_qproj_pipe(a, name, pol_x, pol_w, hook_w=None, hook_x=None):
    e = a.e
    def qbar():
        if ASYM[0]:
            GB[0] += 1
            L = f"qp{GB[0]}"
            e(f"s_cmp_lg_u32 s{sRole}, 0")
            e(f"s_cbranch_scc1 {L}_g")
            e("s_barrier")
            e(f"s_branch {L}_d")
            a.label(L + "_g")
            bar(a)
            a.label(L + "_d")
        else:
            e("s_barrier")
    FXs = [QCUR, QCUR + 16]
    WR = [vWR2, vXR2]

    def sigma_of(reg):
        if QORDER[0] == "adv":
            return [f"s_add_u32 s{sT1}, s{reg}, 1", f"s_sub_u32 s{sT1}, s{sT1}, s{sCls}", f"s_and_b32 s{sT1}, s{sT1}, 3",
                    f"s_cmp_eq_u32 s{sT1}, 0", f"s_cselect_b32 s{sT0}, 1, 0", f"s_cmp_eq_u32 s{sT1}, 1",
                    f"s_cselect_b32 s{sT0}, -1, s{sT0}", f"s_add_u32 s{sSig}, s{reg}, s{sT0}",
                    f"s_cmp_lt_u32 s{sSig}, 16", f"s_cselect_b32 s{sSig}, s{sSig}, s{reg}"]
        return [f"s_mov_b32 s{sSig}, s{reg}"]

    sPW, sPX = sStg, sXslot
    def w_lines():
        L = sigma_of(sPW)
        L += [f"s_lshl_b32 s{sT0}, s{sWV}, 12", f"s_add_u32 s{sT0}, s{sT0}, s{sLB}", f"s_add_u32 m0, s{sWslotF}, s{sT0}",
              f"s_lshl_b32 s{sT1}, s{sSig}, 19", f"s_add_u32 s{sT1}, s{sT1}, s{sWoff}"]
        L += [f"buffer_load_dwordx4 v{vWD+jj}, s[{SRD_W}:{SRD_W+3}], s{sT1} offen offset:{jj*1024} {pol_w} lds" for jj in range(4)]
        L += [f"s_cmp_eq_u32 s{sWslotF}, {LDS_MISC}", f"s_cselect_b32 s{sT0}, 0, {LDS_MISC}", f"s_cmp_eq_u32 s{sWslotF}, 0",
              f"s_cselect_b32 s{sWslotF}, 16384, s{sT0}", f"s_add_u32 s{sPW}, s{sPW}, 1"]
        return L
    def x_lines(par):
        L = [f"s_add_u32 m0, s{sM0b}, {par*4096}", f"s_lshl_b32 s{sT1}, s{sSig}, 7", f"s_add_u32 s{sT1}, s{sT1}, s{sXoff}"]
        L += [f"buffer_load_dwordx4 v{vXD+jj}, s[{SRD_X}:{SRD_X+3}], s{sT1} offen offset:{jj*1024} {pol_x} lds" for jj in range(4)]
        return L
    def rw(u, par):
        L = []
        for t in range(4):
            for half in range(2):
                r = FW + 16*u + 4*t + 2*half
                L.append(f"ds_read_b64_tr_b16 v[{r}:{r+1}], v{WR[par]+t} offset:{(16*u+4*half)*256}")
        return L
    def rx(par):
        return [f"ds_read_b128 v[{FXs[par]+4*u}:{FXs[par]+4*u+3}], v{vXR+u} offset:{par*4096}" for u in range(4)]
    def mm(u, par):
        return [f"v_mfma_f32_32x32x16_bf16 v[{ACC+16*t}:{ACC+16*t+15}], v[{FW+16*u+4*t}:{FW+16*u+4*t+3}], v[{FXs[par]+4*u}:{FXs[par]+4*u+3}], v[{ACC+16*t}:{ACC+16*t+15}]" for t in range(4)]
    def wr_set(par):
        L = [f"v_add_u32 v{WR[par]+t}, s{sWslotR}, v{vWR+t}" for t in range(4)]
        L += [f"s_cmp_eq_u32 s{sWslotR}, {LDS_MISC}", f"s_cselect_b32 s{sT0}, 0, {LDS_MISC}", f"s_cmp_eq_u32 s{sWslotR}, 0",
              f"s_cselect_b32 s{sWslotR}, 16384, s{sT0}"]
        return L
    def weave(main, fill):
        per = -(-len(fill) // len(main))
        k = 0
        for m in main:
            e(m)
            for ln in fill[k:k+per]:
                e(ln)
            k += per

    e(f"s_mov_b32 s{sWslotF}, {LDS_MISC}")
    e(f"s_mov_b32 s{sWslotR}, {LDS_MISC}")
    e(f"s_mov_b32 s{sPW}, 0")
    e(f"s_mov_b32 s{sPX}, 0")
    for ln in w_lines() + x_lines(0) + w_lines() + x_lines(1) + w_lines():
        e(ln)
    for j in range(64):
        e(f"v_mov_b32 v{ACC+j}, 0")
    for ln in wr_set(0):
        e(ln)
    e("s_waitcnt vmcnt(12)")
    qbar()
    for ln in rx(0) + rw(0, 0) + rw(1, 0):
        e(ln)

    def stage(par, xiss, wiss, nwait, last=False, hw=None, hx=None):
        e("s_waitcnt lgkmcnt(8)")
        if hx:
            hx()
        xl = x_lines(par) if xiss else []
        weave(mm(0, par), rw(2, par) + xl[:3])
        e("s_waitcnt lgkmcnt(8)")
        weave(mm(1, par), rw(3, par) + xl[3:])
        if last:
            e("s_waitcnt lgkmcnt(8)")
            weave(mm(2, par), [])
            e("s_waitcnt lgkmcnt(0)")
            weave(mm(3, par), [])
            return
        for ln in wr_set(par ^ 1):
            e(ln)
        e(f"s_waitcnt vmcnt({nwait}) lgkmcnt(0)")
        qbar()
        if hw:
            hw()
        wl = w_lines() if wiss else []
        cut = len(wl) - 9 if wiss else 0
        weave(mm(2, par), rx(par ^ 1) + rw(0, par ^ 1) + wl[:cut // 2])
        weave(mm(3, par), rw(1, par ^ 1) + wl[cut // 2:])

    e(f"s_mov_b32 s{sCnt}, 0")
    a.label(f"{name}_qloop")
    if PSIG[0]:
        e(f"s_cmp_lg_u32 s{sCnt}, {PSIG[0] & ~1}")
        e(f"s_cbranch_scc1 {name}_ps_d")
        e(f"s_or_b32 s{sT0}, s{sWV}, s{sRole}")
        e(f"s_cmp_lg_u32 s{sT0}, 0")
        e(f"s_cbranch_scc1 {name}_ps_d")
        e(f"s_and_b32 s{sT0}, s2, 255")
        e(f"s_lshl_b32 s{sT0}, s{sT0}, 8")
        e(f"s_add_u32 s{sT0}, s{sT0}, {PAIR_OFF}")
        e(f"s_mul_i32 s{sT1}, s{sPairN}, 0x9e3779b1")
        e(f"s_add_u32 s{sT1}, s{sT1}, 0x7f4a7c15")
        e(f"v_mov_b32 v{vT0}, 0")
        e(f"v_mov_b32 v{vT1}, s{sT1}")
        e(f"v_cmp_eq_u32 vcc, 0, v0")
        e(f"s_and_saveexec_b64 s[{sT2}:{sT3}], vcc")
        e(f"buffer_store_dword v{vT1}, v{vT0}, s[{SRD_O}:{SRD_O+3}], s{sT0} offen offset:16 sc0 sc1")
        e(f"s_mov_b64 exec, s[{sT2}:{sT3}]")
        a.label(f"{name}_ps_d")
    stage(0, True, True, 8)
    stage(1, True, True, 8)
    e(f"s_add_u32 s{sCnt}, s{sCnt}, 2")
    e(f"s_cmp_lt_u32 s{sCnt}, 12")
    e(f"s_cbranch_scc1 {name}_qloop")
    stage(0, True, True, 8)
    stage(1, True, False, 8)
    stage(0, False, False, 0, hw=hook_w)
    stage(1, False, False, 0, last=True, hx=hook_x)
    a.nop(12)
    for s in range(8):
        t, sg = s >> 1, s & 1
        for i in range(4):
            src = ACC + 16*t + 8*sg + 2*i
            e(f"v_cvt_pk_bf16_f32 v{QOWN+4*s+i}, v{src}, v{src+1}")


def issue_tile(e, srd, slot_reg, off_reg, imm, is_k, pol, rotT=None):
    e(f"s_mov_b32 m0, s{slot_reg}")
    if rotT is not None and KROT[0]:
        e(f"s_add_u32 s{sT0}, s{off_reg}, s{88 + rotT}")
    elif imm:
        e(f"s_add_u32 s{sT0}, s{off_reg}, {imm}")
    else:
        e(f"s_mov_b32 s{sT0}, s{off_reg}")
    for half in range(2):
        for jj in range(4):
            v = vKD + jj if is_k else vVD
            e(f"buffer_load_dwordx4 v{v}, s[{srd}:{srd+3}], s{sT0} offen offset:{jj*1024} {pol} lds")
        if half == 0:
            e(f"s_add_u32 m0, s{slot_reg}, 4096")
            e(f"s_add_u32 s{sT0}, s{sT0}, {4096 if GRAN[0] == 8192 else 16384}")


def k_tile(e, T, slot, hook, early=None):
    FK = O + 32*(T & 1)
    if early:
        e("s_waitcnt vmcnt(0)")
        early()
    else:
        e("s_waitcnt vmcnt(8)")
    for s in range(8):
        e(f"ds_read_b128 v[{FK+4*s}:{FK+4*s+3}], v{vKR+s} offset:{slot*LDS_RING1}")
    e("s_waitcnt lgkmcnt(0)")
    hook()
    for s in range(8):
        mfma(e, S+16*T, FK+4*s, QCUR+4*s, "0" if s == 0 else None)


def v_tile(e, T, slot, hook, early=None):
    FV = S + 32
    if early:
        e("s_waitcnt vmcnt(0)")
        early()
    else:
        e("s_waitcnt vmcnt(8)")
    for k in range(4):
        for u in range(2):
            for half in range(2):
                r = FV + 8*k + 4*u + 2*half
                e(f"ds_read_b64_tr_b16 v[{r}:{r+1}], v{vVR+k} offset:{slot*LDS_RING1 + (16*u+8*half)*256}")
    e("s_waitcnt lgkmcnt(0)")
    hook()
    for u in range(2):
        for k in range(4):
            mfma(e, O+16*k, FV+8*k+4*u, S+8*T+4*u, "0" if (T == 0 and u == 0) else None)


def softmax(a, nreg=64):
    e = a.e
    e(f"v_max3_f32 v{vMx}, v{S}, v{S+1}, v{S+2}")
    e(f"v_max3_f32 v{vT0}, v{S+3}, v{S+4}, v{S+5}")
    k = 6
    tgt = [vMx, vT0]
    n = 0
    while k + 1 < nreg:
        e(f"v_max3_f32 v{tgt[n&1]}, v{tgt[n&1]}, v{S+k}, v{S+k+1}")
        k += 2; n += 1
    e(f"v_max_f32 v{vMx}, v{vMx}, v{vT0}")
    e(f"v_mov_b32 v{vT0}, v{vMx}")
    a.nop(2)
    e(f"v_permlane32_swap_b32 v{vMx}, v{vT0}")
    a.nop(1)
    e(f"v_max_f32 v{vM}, v{vMx}, v{vT0}")
    e(f"v_mul_f32 v{vF}, s{sScale}, v{vM}")
    for k in range(nreg):
        e(f"v_fma_f32 v{S+k}, v{S+k}, s{sScale}, -v{vF}")
    for k in range(nreg):
        e(f"v_exp_f32 v{S+k}, v{S+k}")
    e(f"v_add_f32 v{vL}, v{S}, v{S+1}")
    e(f"v_add_f32 v{vT0}, v{S+2}, v{S+3}")
    for k in range(4, nreg, 2):
        e(f"v_add_f32 v{vL}, v{vL}, v{S+k}")
        e(f"v_add_f32 v{vT0}, v{vT0}, v{S+k+1}")
    for k in range(nreg//2):
        e(f"v_cvt_pk_bf16_f32 v{S+k}, v{S+2*k}, v{S+2*k+1}")
    e(f"v_add_f32 v{vL}, v{vL}, v{vT0}")
    e(f"v_mov_b32 v{vT0}, v{vL}")
    a.nop(2)
    e(f"v_permlane32_swap_b32 v{vL}, v{vT0}")
    a.nop(1)
    e(f"v_add_f32 v{vL}, v{vL}, v{vT0}")


def q_broadcast(a, name, tag, owner_reg_or_imm):
    e = a.e
    e(f"s_cmp_lg_u32 s{sWV}, {owner_reg_or_imm}")
    e(f"s_cbranch_scc1 {name}_{tag}_skip")
    e(f"v_add_u32 v{vA0}, {LDS_MISC}, v{vL16L}")
    for s in range(8):
        e(f"ds_write_b128 v{vA0}, v[{QOWN+4*s}:{QOWN+4*s+3}] offset:{s*1024}")
    e("s_waitcnt lgkmcnt(0)")
    a.label(f"{name}_{tag}_skip")
    bar(a)
    e(f"v_add_u32 v{vA0}, {LDS_MISC}, v{vL16L}")
    for s in range(8):
        e(f"ds_read_b128 v[{QCUR+4*s}:{QCUR+4*s+3}], v{vA0} offset:{s*1024}")
    e("s_waitcnt lgkmcnt(0)")


def gen_m1(a, name, pol):
    e = a.e
    sNext = sT5
    G = S + 32
    a.label(f"{name}_task")
    e(f"s_add_u32 s{sNext}, s{sKVoff}, s{sOoff}")
    e(f"s_cmp_lt_u32 s{sTask}, 3")
    e(f"s_cselect_b32 s{sNext}, s{sNext}, {OOB:#x}")
    slotreg = [sM0a, sM0b]
    none = lambda: None
    for T in range(4):
        if LOOK[0] == 2:
            if T < 2:
                hook = lambda T=T: issue_tile(e, SRD_K, slotreg[T & 1], sKVoff, (T+2)*32768, True, pol)
            else:
                hook = lambda T=T: issue_tile(e, SRD_V, slotreg[T & 1], sKVoff, (T-2)*32768, False, pol)
            k_tile(e, T, T & 1, hook)
        else:
            if T < 3:
                early = lambda T=T: issue_tile(e, SRD_K, slotreg[(T+1) & 1], sKVoff, (T+1)*32768, True, pol, T+1)
            else:
                early = lambda: issue_tile(e, SRD_V, sM0a, sKVoff, 0, False, pol, 0)
            k_tile(e, T, T & 1, none, early)
    softmax(a)
    e(f"s_cmp_ge_u32 s{sTask}, 3")
    e(f"s_cbranch_scc1 {name}_noq")
    e(f"s_add_u32 s{sT4}, s{sTask}, 1")
    q_broadcast(a, name, "qn", f"s{sT4}")
    a.label(f"{name}_noq")
    for T in range(4):
        if LOOK[0] == 2:
            if T < 2:
                hook = lambda T=T: issue_tile(e, SRD_V, slotreg[T & 1], sKVoff, (T+2)*32768, False, pol)
            elif T == 2:
                hook = lambda: issue_tile(e, SRD_K, sM0a, sNext, 0, True, pol)
            else:
                hook = lambda: None
            v_tile(e, T, T & 1, hook)
        else:
            if T < 3:
                early = lambda T=T: issue_tile(e, SRD_V, slotreg[(T+1) & 1], sKVoff, (T+1)*32768, False, pol, T+1)
            else:
                early = lambda: issue_tile(e, SRD_K, sM0a, sNext, 0, True, pol, 0)
            v_tile(e, T, T & 1, none, early)
    if MERGE[0] == "atomic":
        e(f"v_and_b32 v{vT0}, 31, v0")
        e(f"v_lshlrev_b32 v{vT0}, 3, v{vT0}")
        e(f"v_add_u32 v{vT0}, {LDS_MISC + 8192}, v{vT0}")
        e(f"v_add_u32 v{vT0}, s{sLB}, v{vT0}")
        e(f"s_lshl_b32 s{sT0}, s{sWV}, 8")
        e(f"v_add_u32 v{vA0}, s{sT0}, v{vT0}")
        e(f"v_add_u32 v{vA1}, s{sM0b}, v{vLane16}")
        e(f"ds_write_b32 v{vA0}, v{vM}")
        e(f"ds_write_b32 v{vA0}, v{vL} offset:4")
        for j in range(4):
            e(f"v_mov_b32 v{G+j}, 0")
        for j in range(4):
            e(f"ds_write_b128 v{vA1}, v[{G}:{G+3}] offset:{j*1024}")
        e("s_waitcnt lgkmcnt(0)")
        bar(a)
        for k in range(4):
            e(f"s_sub_u32 s{sT0}, s{sWV}, {k}")
            e(f"s_and_b32 s{sT0}, s{sT0}, 3")
            e(f"s_lshl_b32 s{sT0}, s{sT0}, 8")
            e(f"v_add_u32 v{vA0}, s{sT0}, v{vT0}")
            e(f"ds_read_b64 v[{G+2*k}:{G+2*k+1}], v{vA0}")
        e("s_waitcnt lgkmcnt(0)")
        e(f"v_max3_f32 v{vMx}, v{G}, v{G+2}, v{G+4}")
        e(f"v_max_f32 v{vMx}, v{vMx}, v{G+6}")
        e(f"v_mul_f32 v{vMx}, s{sScale}, v{vMx}")
        for k in range(4):
            e(f"v_fma_f32 v{G+2*k}, v{G+2*k}, s{sScale}, -v{vMx}")
        for k in range(4):
            e(f"v_exp_f32 v{G+2*k}, v{G+2*k}")
        a.nop(1)
        e(f"v_mul_f32 v{vF}, v{G}, v{G+1}")
        for k in range(1, 4):
            e(f"v_fma_f32 v{vF}, v{G+2*k}, v{G+2*k+1}, v{vF}")
        e(f"v_rcp_f32 v{vF}, v{vF}")
        a.nop(1)
        e(f"v_mul_f32 v{G}, v{G}, v{vF}")
        for j in range(64):
            e(f"v_mul_f32 v{O+j}, v{O+j}, v{G}")
        for k in range(1, 4):
            e(f"s_add_u32 s{sT0}, s{sWV}, {k}")
            e(f"s_and_b32 s{sT0}, s{sT0}, 3")
            e(f"s_lshl_b32 s{sT0}, s{sT0}, 13")
            e(f"s_add_u32 s{sT0}, s{sT0}, {LDS_RING1}")
            e(f"s_add_u32 s{sT0}, s{sT0}, s{sLB}")
            e(f"v_lshl_add_u32 v{vA0}, v0, 2, s{sT0}")
            for j in range(16):
                e(f"ds_add_f32 v{vA0}, v{O+16*k+j} offset:{j*256}")
        e("s_waitcnt lgkmcnt(0)")
        bar(a)
        TI = S
        e(f"v_lshl_add_u32 v{vA0}, v0, 2, s{sM0b}")
        for j in range(16):
            e(f"ds_read_b32 v{TI+j}, v{vA0} offset:{j*256}")
        e("s_waitcnt lgkmcnt(0)")
        if LOOK[0] == 2:
            issue_tile(e, SRD_K, sM0b, sNext, 32768, True, pol)
        for j in range(16):
            e(f"v_add_f32 v{O+j}, v{O+j}, v{TI+j}")
    else:
        e(f"v_and_b32 v{vT0}, 31, v0")
        e(f"v_lshlrev_b32 v{vT0}, 3, v{vT0}")
        e(f"v_add_u32 v{vT0}, {LDS_MISC + 8192}, v{vT0}")
        e(f"v_add_u32 v{vT0}, s{sLB}, v{vT0}")
        e(f"s_lshl_b32 s{sT0}, s{sWV}, 8")
        e(f"v_add_u32 v{vA0}, s{sT0}, v{vT0}")
        e(f"v_add_u32 v{vA1}, s{sM0b}, v{vLane16}")
        e(f"ds_write_b32 v{vA0}, v{vM}")
        e(f"ds_write_b32 v{vA0}, v{vL} offset:4")
        a.nop(10)
        for k in (1, 2):
            for j in range(4):
                e(f"ds_write_b128 v{vA1}, v[{O+16*k+4*j}:{O+16*k+4*j+3}] offset:{(k-1)*4096 + j*1024}")
        e("s_waitcnt lgkmcnt(0)")
        bar(a)
        for k in range(4):
            e(f"s_sub_u32 s{sT0}, s{sWV}, {k}")
            e(f"s_and_b32 s{sT0}, s{sT0}, 3")
            e(f"s_lshl_b32 s{sT0}, s{sT0}, 8")
            e(f"v_add_u32 v{vA0}, s{sT0}, v{vT0}")
            e(f"ds_read_b64 v[{G+2*k}:{G+2*k+1}], v{vA0}")
        TI = S
        for k in (1, 2):
            e(f"s_sub_u32 s{sT0}, s{sWV}, {k}")
            e(f"s_and_b32 s{sT0}, s{sT0}, 3")
            e(f"s_lshl_b32 s{sT0}, s{sT0}, 13")
            e(f"s_add_u32 s{sT0}, s{sT0}, {LDS_RING1 + (k-1)*4096}")
            e(f"v_add_u32 v{vA0}, s{sT0}, v{vL16L}")
            for j in range(4):
                e(f"ds_read_b128 v[{TI+16*(k-1)+4*j}:{TI+16*(k-1)+4*j+3}], v{vA0} offset:{j*1024}")
        e("s_waitcnt lgkmcnt(8)")
        e(f"v_max3_f32 v{vMx}, v{G}, v{G+2}, v{G+4}")
        e(f"v_max_f32 v{vMx}, v{vMx}, v{G+6}")
        e(f"v_mul_f32 v{vMx}, s{sScale}, v{vMx}")
        for k in range(4):
            e(f"v_fma_f32 v{G+2*k}, v{G+2*k}, s{sScale}, -v{vMx}")
        for k in range(4):
            e(f"v_exp_f32 v{G+2*k}, v{G+2*k}")
        a.nop(1)
        e(f"v_mul_f32 v{vF}, v{G}, v{G+1}")
        for k in range(1, 4):
            e(f"v_fma_f32 v{vF}, v{G+2*k}, v{G+2*k+1}, v{vF}")
        e(f"v_rcp_f32 v{vF}, v{vF}")
        a.nop(1)
        for k in range(4):
            e(f"v_mul_f32 v{G+2*k}, v{G+2*k}, v{vF}")
        for j in range(16):
            e(f"v_mul_f32 v{O+j}, v{O+j}, v{G}")
        e("s_waitcnt lgkmcnt(0)")
        for k in (1, 2):
            for j in range(16):
                e(f"v_fma_f32 v{O+j}, v{TI+16*(k-1)+j}, v{G+2*k}, v{O+j}")
        bar(a)
        for j in range(4):
            e(f"ds_write_b128 v{vA1}, v[{O+48+4*j}:{O+48+4*j+3}] offset:{j*1024}")
        e("s_waitcnt lgkmcnt(0)")
        bar(a)
        e(f"s_sub_u32 s{sT0}, s{sWV}, 3")
        e(f"s_and_b32 s{sT0}, s{sT0}, 3")
        e(f"s_lshl_b32 s{sT0}, s{sT0}, 13")
        e(f"s_add_u32 s{sT0}, s{sT0}, {LDS_RING1}")
        e(f"v_add_u32 v{vA0}, s{sT0}, v{vL16L}")
        for j in range(4):
            e(f"ds_read_b128 v[{TI+4*j}:{TI+4*j+3}], v{vA0} offset:{j*1024}")
        e("s_waitcnt lgkmcnt(0)")
        bar(a)
        if LOOK[0] == 2:
            issue_tile(e, SRD_K, sM0b, sNext, 32768, True, pol)
        for j in range(16):
            e(f"v_fma_f32 v{O+j}, v{TI+j}, v{G+6}, v{O+j}")
    for k in range(24):
        e(f"v_mov_b32 v{DEF+k}, v{DEF+8+k}")
    for j in range(8):
        e(f"v_cvt_pk_bf16_f32 v{DEF+24+j}, v{O+2*j}, v{O+2*j+1}")
    if TIMING[0]:
        ts_mark(a, 76)
        for k in range(4):
            e(f"s_cmp_eq_u32 s{sTask}, {k}")
            e(f"s_cselect_b32 s{MK[2+k]}, s76, s{MK[2+k]}")
    e(f"s_mov_b32 s{sKVoff}, s{sNext}")
    e(f"s_add_u32 s{sTask}, s{sTask}, 1")
    e(f"s_cmp_lt_u32 s{sTask}, 4")
    e(f"s_cbranch_scc1 {name}_task")
    e("s_waitcnt vmcnt(0)")
    e(f"s_xor_b32 s{sT0}, s{sRole}, 1")
    e(f"s_lshl_b32 s{sT0}, s{sT0}, 23")
    e(f"s_lshl_b32 s{sT1}, s{sI}, 18")
    e(f"s_add_u32 s{sT0}, s{sT0}, s{sT1}")
    e(f"s_lshl_b32 s{sT1}, s{sH}, 13")
    e(f"s_add_u32 s{sT0}, s{sT0}, s{sT1}")
    e(f"s_lshl_b32 s{sT1}, s{sWV}, 11")
    e(f"s_add_u32 s{sT0}, s{sT0}, s{sT1}")
    for r in range(4):
        for sg in range(2):
            e(f"buffer_store_dwordx4 v[{DEF+8*r+4*sg}:{DEF+8*r+4*sg+3}], v{vLane16}, s[{SRD_O}:{SRD_O+3}], s{sT0} offen offset:{sg*1024} {OPOL[0]}")
        if r < 3:
            e(f"s_add_u32 s{sT0}, s{sT0}, {8*262144}")


def gen_touch(a, pol):
    e = a.e
    vD = S
    e(f"s_bfe_u32 s{sT2}, s2, 0x50003")
    e(f"v_lshrrev_b32 v{vT0}, 4, v0")
    e(f"v_lshlrev_b32 v{vT0}, 13, v{vT0}")
    e(f"v_and_b32 v{vT1}, 15, v0")
    e(f"v_lshlrev_b32 v{vT1}, 7, v{vT1}")
    e(f"v_add_u32 v{vT0}, v{vT0}, v{vT1}")
    e(f"s_lshl_b32 s{sT0}, s{sWV}, 5")
    e(f"s_add_u32 s{sT0}, s{sT0}, s{sT2}")
    e(f"s_lshl_b32 s{sT0}, s{sT0}, 15")
    e(f"s_lshr_b32 s{sT1}, s{sX}, 1")
    e(f"s_lshl_b32 s{sT1}, s{sT1}, 11")
    e(f"s_add_u32 s{sT0}, s{sT0}, s{sT1}")
    e(f"s_add_u32 s{sT1}, s{sT0}, {128*4*8192}")
    e(f"s_lshl_b32 s{sT3}, s{sWV}, 5")
    e(f"s_add_u32 s{sT3}, s{sT3}, s{sT2}")
    e(f"s_and_b32 s{sT2}, s{sT3}, 7")
    e(f"s_lshl_b32 s{sT2}, s{sT2}, 6")
    e(f"v_add_u32 v{vT1}, s{sT2}, v0")
    e(f"v_bfe_u32 v{vT2}, v{vT1}, 5, 2")
    e(f"v_lshrrev_b32 v{vT3}, 7, v{vT1}")
    e(f"v_lshlrev_b32 v{vT3}, 3, v{vT3}")
    e(f"v_add_u32 v{vT2}, v{vT2}, v{vT3}")
    e(f"v_lshlrev_b32 v{vT2}, 5, v{vT2}")
    e(f"v_and_b32 v{vT1}, 31, v{vT1}")
    e(f"v_add_u32 v{vT1}, v{vT1}, v{vT2}")
    e(f"v_lshlrev_b32 v{vT1}, 11, v{vT1}")
    e(f"s_lshr_b32 s{sT3}, s{sT3}, 3")
    e(f"s_lshl_b32 s{sT3}, s{sT3}, 7")
    e(f"s_and_b32 s{sT2}, s{sX}, 1")
    e(f"s_lshl_b32 s{sT2}, s{sT2}, 18")
    e(f"s_add_u32 s{sT3}, s{sT3}, s{sT2}")
    e(f"buffer_load_dword v{vD}, v{vT0}, s[{SRD_W}:{SRD_W+3}], s{sT0} offen {pol}")
    e(f"buffer_load_dword v{vD+1}, v{vT1}, s[{SRD_X}:{SRD_X+3}], s{sT3} offen {pol}")
    e(f"buffer_load_dword v{vD+2}, v{vT0}, s[{SRD_W}:{SRD_W+3}], s{sT1} offen {pol}")


def poll_counter(a, label, off_reg, mask, shift_reg, target, bound, sleep=8):
    e = a.e
    e(f"v_mov_b32 v{vT0}, s{off_reg}")
    if bound:
        e(f"s_mov_b32 s{sT3}, {bound}")
    a.label(label)
    e(f"buffer_load_dword v{vT1}, v{vT0}, s[{SRD_D}:{SRD_D+3}], 0 offen sc1")
    e("s_waitcnt vmcnt(0)")
    e(f"v_readfirstlane_b32 s{sT1}, v{vT1}")
    a.nop(3)
    if shift_reg is not None:
        e(f"s_lshr_b32 s{sT1}, s{sT1}, s{shift_reg}")
    e(f"s_and_b32 s{sT1}, s{sT1}, {mask}")
    e(f"s_cmp_ge_u32 s{sT1}, {target}")
    e(f"s_cbranch_scc1 {label}_ok")
    if bound:
        e(f"s_sub_u32 s{sT3}, s{sT3}, 1")
        e(f"s_cmp_eq_u32 s{sT3}, 0")
        e(f"s_cbranch_scc1 {label}_ok")
    e(f"s_sleep {sleep}")
    e(f"s_branch {label}")
    a.label(label + "_ok")


def signal(a, label, off_reg, val_reg_or_imm):
    e = a.e
    e(f"s_cmp_lg_u32 s{sWV}, 0")
    e(f"s_cbranch_scc1 {label}")
    e(f"v_mov_b32 v{vT0}, s{off_reg}")
    e(f"v_mov_b32 v{vT1}, {val_reg_or_imm}")
    e(f"v_cmp_eq_u32 vcc, 0, v0")
    e(f"s_and_saveexec_b64 s[{sT2}:{sT3}], vcc")
    e(f"buffer_atomic_add v{vT1}, v{vT0}, s[{SRD_D}:{SRD_D+3}], 0 offen sc1")
    e(f"s_mov_b64 exec, s[{sT2}:{sT3}]")
    a.label(label)


def gen_flash(a, name, pol):
    e = a.e
    FK = [QOWN, DEF]
    sNextK, sNextV = sT4, sT5
    e(f"s_lshl_b32 s{sT0}, s{sB}, 5")
    e(f"s_add_u32 s{sT0}, s{sT0}, s{sH}")
    e(f"s_lshl_b32 s{sT0}, s{sT0}, 13")
    e(f"s_add_u32 s{sT0}, s{sT0}, {QWS_OFF}")
    for s in range(8):
        if s == 4:
            e(f"s_add_u32 s{sT0}, s{sT0}, 4096")
        e(f"buffer_store_dwordx4 v[{QOWN+4*s}:{QOWN+4*s+3}], v{vLane16}, s[{SRD_O}:{SRD_O+3}], s{sT0} offen offset:{(s%4)*1024} {QST[0]}")
    e("s_waitcnt vmcnt(0)")
    if XM[0]: mark(a, 3)
    bar(a)
    e(f"v_readfirstlane_b32 s{sNonce}, v{vNon}")
    a.nop(3)
    e(f"s_mul_i32 s{sNonce}, s{sNonce}, 0x9e3779b1")
    e(f"s_add_u32 s{sNonce}, s{sNonce}, 0x7f4a7c15")
    e(f"s_cmp_lg_u32 s{sWV}, 0")
    e(f"s_cbranch_scc1 {name}_qwait")
    e(f"s_and_b32 s{sT0}, s{sH}, 3")
    e(f"s_lshl_b32 s{sT0}, s{sT0}, 2")
    e(f"s_add_u32 s{sT0}, s{sT0}, s{sFlag}")
    e(f"s_add_u32 s{sT0}, s{sT0}, 16")
    e(f"v_mov_b32 v{vT0}, 0")
    e(f"v_mov_b32 v{vT1}, s{sNonce}")
    e(f"v_cmp_eq_u32 vcc, 0, v0")
    e(f"s_and_saveexec_b64 s[{sT2}:{sT3}], vcc")
    e(f"buffer_store_dword v{vT1}, v{vT0}, s[{SRD_O}:{SRD_O+3}], s{sT0} offen sc0 sc1")
    e(f"s_mov_b64 exec, s[{sT2}:{sT3}]")
    if SPOLL[0]:
        e(f"s_add_u32 s56, s{SRD_O}, s{sFlag}")
        e(f"s_addc_u32 s57, s{SRD_O+1}, 0")
        a.label(f"{name}_spinq")
        e(f"s_load_dwordx4 s[52:55], s[56:57], 16 glc")
        e("s_waitcnt lgkmcnt(0)")
        e(f"s_xor_b32 s{sT0}, s52, s{sNonce}")
        for k in range(1, 4):
            e(f"s_xor_b32 s{sT1}, s{52+k}, s{sNonce}")
            e(f"s_or_b32 s{sT0}, s{sT0}, s{sT1}")
        e(f"s_cmp_eq_u32 s{sT0}, 0")
        e(f"s_cbranch_scc1 {name}_pollq")
        e("s_sleep 2")
        e(f"s_branch {name}_spinq")
    a.label(f"{name}_pollq")
    e(f"buffer_load_dwordx4 v[{S}:{S+3}], v{vT0}, s[{SRD_O}:{SRD_O+3}], s{sFlag} offen offset:16 sc0 sc1")
    e("s_waitcnt vmcnt(0)")
    for k in range(4):
        e(f"v_xor_b32 v{S+k}, s{sNonce}, v{S+k}")
    e(f"v_or3_b32 v{S}, v{S}, v{S+1}, v{S+2}")
    e(f"v_or_b32 v{S}, v{S}, v{S+3}")
    a.nop(1)
    e(f"v_readfirstlane_b32 s{sT1}, v{S}")
    a.nop(3)
    e(f"s_cmp_eq_u32 s{sT1}, 0")
    e(f"s_cbranch_scc1 {name}_pollq_ok")
    e(f"s_sleep {SLEEPQ[0]}")
    e(f"s_branch {name}_pollq")
    a.label(f"{name}_pollq_ok")
    if XM[0]: mark(a, 4)
    e(f"v_cmp_eq_u32 vcc, 0, v0")
    e(f"s_and_saveexec_b64 s[{sT2}:{sT3}], vcc")
    e(f"buffer_store_dword v{vT1}, v{vT0}, s[{SRD_O}:{SRD_O+3}], s{sFlag} offen sc0 sc1")
    e(f"s_mov_b64 exec, s[{sT2}:{sT3}]")
    if INV[0]:
        e("buffer_inv sc1")
    e("s_waitcnt vmcnt(0)")
    if XM[0]: mark(a, 5)
    a.label(f"{name}_qwait")
    bar(a)
    mark(a, 2)
    e(f"s_lshl_b32 s{sT0}, s{sBs}, 5")
    e(f"s_lshl_b32 s{sT1}, s{sHq}, 2")
    e(f"s_add_u32 s{sT1}, s{sT1}, s{sWV}")
    e(f"s_add_u32 s{sT0}, s{sT0}, s{sT1}")
    e(f"s_lshl_b32 s{sT0}, s{sT0}, 13")
    e(f"s_add_u32 s{sT0}, s{sT0}, {QWS_OFF}")
    for s in range(8):
        if s == 4:
            e(f"s_add_u32 s{sT0}, s{sT0}, 4096")
        e(f"buffer_load_dwordx4 v[{QCUR+4*s}:{QCUR+4*s+3}], v{vLane16}, s[{SRD_O}:{SRD_O+3}], s{sT0} offen offset:{(s%4)*1024} {QST[1]}")
    issue_tile(e, SRD_K, sM0a, sKVoff, 0, True, pol)
    issue_tile(e, SRD_V, sM0b, sKVoff, 0, False, pol)
    for s in range(8):
        e(f"v_subrev_u32 v{vKR+s}, s{sW8}, v{vKR+s}")
    e(f"s_lshl_b32 s{sT0}, s{sWV}, 6")
    e(f"v_subrev_u32 v{vT2}, s{sW8}, v{vVR}")
    e(f"v_xor_b32 v{vT2}, s{sT0}, v{vT2}")
    for k in range(4):
        e(f"v_xor_b32 v{vVR+k}, {k*64}, v{vT2}")
    for j in range(64):
        e(f"v_mov_b32 v{O+j}, 0")
    e(f"v_mov_b32 v{vM}, 0xff7fffff")
    e(f"v_mov_b32 v{vL}, 0")
    e(f"s_mov_b32 s{sTask}, 0")
    a.label(f"{name}_chunk")
    e(f"s_add_u32 s{sNextK}, s{sKVoff}, 32768")
    e(f"s_cmp_lt_u32 s{sTask}, 3")
    e(f"s_cselect_b32 s{sNextK}, s{sNextK}, {OOB:#x}")
    e("s_waitcnt vmcnt(8)")
    bar(a)
    def rk(T):
        for s in range(8):
            e(f"ds_read_b128 v[{FK[T&1]+4*s}:{FK[T&1]+4*s+3}], v{vKR+s} offset:{T*8192}")
    def mk(T):
        for s in range(8):
            mfma(e, S+16*T, FK[T&1]+4*s, QCUR+4*s, "0" if s == 0 else None)
    rk(0); rk(1)
    e("s_waitcnt lgkmcnt(8)")
    mk(0)
    rk(2)
    e("s_waitcnt lgkmcnt(8)")
    mk(1)
    rk(3)
    e("s_waitcnt lgkmcnt(8)")
    mk(2)
    e("s_waitcnt lgkmcnt(0)")
    bar(a)
    issue_tile(e, SRD_K, sM0a, sNextK, 0, True, pol)
    mk(3)
    e(f"v_max3_f32 v{vMx}, v{S}, v{S+1}, v{S+2}")
    e(f"v_max3_f32 v{vT0}, v{S+3}, v{S+4}, v{S+5}")
    k = 6; n = 0
    tgt = [vMx, vT0]
    while k + 1 < 64:
        e(f"v_max3_f32 v{tgt[n&1]}, v{tgt[n&1]}, v{S+k}, v{S+k+1}")
        k += 2; n += 1
    e(f"v_max3_f32 v{vMx}, v{vMx}, v{vT0}, v{vM}")
    e(f"v_mov_b32 v{vT0}, v{vMx}")
    a.nop(2)
    e(f"v_permlane32_swap_b32 v{vMx}, v{vT0}")
    a.nop(1)
    e(f"v_max_f32 v{vMx}, v{vMx}, v{vT0}")
    e(f"v_mul_f32 v{vF}, s{sScale}, v{vMx}")
    e(f"v_fma_f32 v{vT1}, v{vM}, s{sScale}, -v{vF}")
    e(f"v_exp_f32 v{vT1}, v{vT1}")
    e(f"v_mov_b32 v{vM}, v{vMx}")
    for k in range(64):
        e(f"v_fma_f32 v{S+k}, v{S+k}, s{sScale}, -v{vF}")
    for k in range(64):
        e(f"v_exp_f32 v{S+k}, v{S+k}")
    for k in range(64):
        e(f"v_mul_f32 v{O+k}, v{O+k}, v{vT1}")
    e(f"v_add_f32 v{vT2}, v{S}, v{S+1}")
    e(f"v_add_f32 v{vT0}, v{S+2}, v{S+3}")
    for k in range(4, 64, 2):
        e(f"v_add_f32 v{vT2}, v{vT2}, v{S+k}")
        e(f"v_add_f32 v{vT0}, v{vT0}, v{S+k+1}")
    for k in range(32):
        e(f"v_cvt_pk_bf16_f32 v{S+k}, v{S+2*k}, v{S+2*k+1}")
    e(f"v_add_f32 v{vT2}, v{vT2}, v{vT0}")
    e(f"v_fma_f32 v{vL}, v{vL}, v{vT1}, v{vT2}")
    e("s_waitcnt vmcnt(8)")
    bar(a)
    FV = [S+32, QOWN]
    def rv(T):
        for k in range(4):
            for u in range(2):
                for half in range(2):
                    r = FV[T&1] + 8*k + 4*u + 2*half
                    e(f"ds_read_b64_tr_b16 v[{r}:{r+1}], v{vVR+k} offset:{LDS_RING1 + T*8192 + (16*u+8*half)*256}")
    def mv(T):
        for u in range(2):
            for k in range(4):
                mfma(e, O+16*k, FV[T&1]+8*k+4*u, S+8*T+4*u)
    rv(0)
    e("s_waitcnt lgkmcnt(0)")
    rv(1); mv(0)
    e("s_waitcnt lgkmcnt(0)")
    rv(2); mv(1)
    e("s_waitcnt lgkmcnt(0)")
    rv(3); mv(2)
    e("s_waitcnt lgkmcnt(0)")
    bar(a)
    issue_tile(e, SRD_V, sM0b, sNextK, 0, False, pol)
    mv(3)
    if TIMING[0]:
        ts_mark(a, 76)
        for k in range(4):
            e(f"s_cmp_eq_u32 s{sTask}, {k}")
            if not XM[0] or k == 3:
                e(f"s_cselect_b32 s{MK[3+k]}, s76, s{MK[3+k]}")
    e(f"s_mov_b32 s{sKVoff}, s{sNextK}")
    e(f"s_add_u32 s{sTask}, s{sTask}, 1")
    e(f"s_cmp_lt_u32 s{sTask}, 4")
    e(f"s_cbranch_scc1 {name}_chunk")
    e(f"v_mov_b32 v{vT0}, v{vL}")
    a.nop(2)
    e(f"v_permlane32_swap_b32 v{vL}, v{vT0}")
    a.nop(1)
    e(f"v_add_f32 v{vL}, v{vL}, v{vT0}")
    e(f"v_rcp_f32 v{vF}, v{vL}")
    a.nop(8)
    for k in range(64):
        e(f"v_mul_f32 v{O+k}, v{O+k}, v{vF}")
    for k in range(32):
        e(f"v_cvt_pk_bf16_f32 v{S+k}, v{O+2*k}, v{O+2*k+1}")
    e("s_waitcnt vmcnt(0)")
    e(f"s_lshl_b32 s{sT0}, s{sBs}, 18")
    e(f"s_lshl_b32 s{sT1}, s{sHq}, 2")
    e(f"s_add_u32 s{sT1}, s{sT1}, s{sWV}")
    e(f"s_lshl_b32 s{sT1}, s{sT1}, 13")
    e(f"s_add_u32 s{sT0}, s{sT0}, s{sT1}")
    for f in range(8):
        if f == 4:
            e(f"s_add_u32 s{sT0}, s{sT0}, 4096")
        e(f"buffer_store_dwordx4 v[{S+4*f}:{S+4*f+3}], v{vLane16}, s[{SRD_O}:{SRD_O+3}], s{sT0} offen offset:{(f%4)*1024} {OPOL[0]}")


def gen_attn(a, name, timing=False, pol_x="nt", pol_w="nt", pol_kv="nt", touch=True, delay_a=True, thresh=32, bound=64, qmarks=False, only=None, qonly=False, qskip='', qorder='adv', look=2, prio_a=0, prio_b=0, touch_a=False, sleep_q=8, sleep_b=48, xmarks=False, use_inv=False, altprio=False, merge='', fuse2=False, codepf=0, gran=8192, krot=False, qpipe=False, endwb=False, spoll=False, fuse=False, p3opt=None, opol='', gsleep=1, psig=10, pairwait=0, wo_early=None, asym=False, pol_kv_a=None, clk=False, single=False, exp_sleep=0, wo_pf=None, wtouch=0, prio_flash=0, qst='sc0 sc1', qld='sc0 sc1'):
    kernel_header(a, name)
    e = a.e
    TIMING[0] = timing
    QMARKS[0] = qmarks
    QSKIP[0] = qskip
    QORDER[0] = qorder
    LOOK[0] = look
    SLEEPQ[0] = sleep_q
    XM[0] = xmarks
    ALT[0] = altprio
    ASYM[0] = asym
    MERGE[0] = merge
    KROT[0] = krot
    GRAN[0] = gran
    SPOLL[0] = spoll
    OPOL[0] = opol
    GSLEEP[0] = gsleep
    PSIG[0] = psig if pairwait else 0
    SINGLE[0] = single
    GB[0] = 0
    WT[0] = wtouch
    INV[0] = use_inv
    QST[0] = qst
    QST[1] = qld
    gen_prologue(a, name, timing)
    if only == "B":
        e(f"s_cmp_lg_u32 s{sRole}, 0")
        e(f"s_cbranch_scc1 {name}_done")
    if only == "A":
        e(f"s_cmp_eq_u32 s{sRole}, 0")
        e(f"s_cbranch_scc1 {name}_done")
    if timing:
        for k in range(8):
            e(f"s_mov_b32 s{MK[k]}, 0")
    e(f"s_and_b32 s{sT2}, s{sH}, 3")
    e(f"s_lshl_b32 s{sT2}, s{sT2}, 3")
    e(f"s_add_u32 s{sBs}, s{sT2}, s{sI}")
    e(f"s_lshr_b32 s{sHq}, s{sH}, 2")
    e(f"s_lshl_b32 s{sT0}, s{sI}, 5")
    e(f"s_add_u32 s{sT0}, s{sT0}, s{sH}")
    e(f"s_lshl_b32 s{sT1}, s{sBs}, 2")
    e(f"s_lshr_b32 s{sT2}, s{sH}, 3")
    e(f"s_add_u32 s{sT1}, s{sT1}, s{sT2}")
    e(f"s_cmp_eq_u32 s{sRole}, 0")
    e(f"s_cselect_b32 s{sKVoff}, s{sT0}, s{sT1}")
    e(f"s_lshl_b32 s{sKVoff}, s{sKVoff}, 17")
    if GRAN[0] == 8192:
        e(f"s_add_u32 s{sKVoff}, s{sKVoff}, s{sW8}")
    else:
        e(f"s_lshl_b32 s{sT0}, s{sWV}, 12")
        e(f"s_add_u32 s{sKVoff}, s{sKVoff}, s{sT0}")
    if krot:
        if krot == 1:
            e(f"s_and_b32 s{sT0}, s{sH}, 3")
        elif krot == 2:
            e(f"s_add_u32 s{sT0}, s{sH}, s{sI}")
        else:
            e(f"s_lshr_b32 s{sT0}, s{sH}, 1")
            e(f"s_add_u32 s{sT0}, s{sT0}, s{sI}")
        for T in range(4):
            e(f"s_add_u32 s{88+T}, s{sT0}, {T}")
            e(f"s_and_b32 s{88+T}, s{88+T}, 3")
            e(f"s_lshl_b32 s{88+T}, s{88+T}, 15")
    e(f"s_mov_b32 s{sOoff}, {8*32*131072}")
    if pairwait:
        e(f"s_and_b32 s{sT0}, s2, 255")
        e(f"s_lshl_b32 s{sT0}, s{sT0}, 8")
        e(f"s_add_u32 s{sT0}, s{sT0}, {PAIR_OFF}")
        e(f"s_add_u32 s{sPairP}, s{SRD_O}, s{sT0}")
        e(f"s_addc_u32 s{sPairP+1}, s{SRD_O+1}, 0")
        e(f"s_load_dword s{sPairN}, s[{sPairP}:{sPairP+1}], 0 glc")
    sNB, sNA, sNC = 82, 83, 75
    def dep_line(dst, br_expr, i_reg, kh_reg):
        e(f"s_lshl_b32 s{dst}, s{i_reg}, 1")
        e(f"s_add_u32 s{dst}, s{dst}, s{kh_reg}")
        if br_expr != 0:
            e(f"s_add_u32 s{dst}, s{dst}, {br_expr}")
        e(f"s_lshl_b32 s{dst}, s{dst}, 8")
        e(f"s_add_u32 s{dst}, s{dst}, {DEP_OFF}")
    def cons_coords(rbr, ri, rkh, ridx):
        e(f"s_lshr_b32 s{rbr}, s{sX}, 2")
        e(f"s_lshl_b32 s{rbr}, s{rbr}, 4")
        e(f"s_bfe_u32 s{rkh}, s{sX}, 0x10001")
        e(f"s_bfe_u32 s{ri}, s2, 0x30005")
        e(f"s_and_b32 s{ridx}, s{sX}, 1")
        e(f"s_lshl_b32 s{ridx}, s{ridx}, 2")
        e(f"s_bfe_u32 s{sT3}, s2, 0x20003")
        e(f"s_add_u32 s{ridx}, s{ridx}, s{sT3}")
    if fuse2:
        e(f"s_lshr_b32 s{sT2}, s{sH}, 4")
        e(f"v_mov_b32 v{vT0}, 0")
        dep_line(sT0, 16, sI, sT2)
        e(f"buffer_load_dword v{DEF+26}, v{vT0}, s[{SRD_O}:{SRD_O+3}], s{sT0} offen sc1")
        dep_line(sT0, 0, sI, sT2)
        e(f"buffer_load_dword v{DEF+27}, v{vT0}, s[{SRD_O}:{SRD_O+3}], s{sT0} offen sc1")
        cons_coords(sT4, sT5, sT2, sT1)
        dep_line(sT0, f"s{sT4}", sT5, sT2)
        e(f"buffer_load_dword v{DEF+28}, v{vT0}, s[{SRD_O}:{SRD_O+3}], s{sT0} offen sc1")
    if fuse:
        import phase3
        phase3.entry_loads(a)
    e(f"s_cmp_eq_u32 s{sRole}, 0")
    e(f"s_cbranch_scc1 {name}_startb")
    if pairwait:
        e("s_waitcnt lgkmcnt(0)")
        e(f"s_mul_i32 s{sPairN}, s{sPairN}, 0x9e3779b1")
        e(f"s_add_u32 s{sPairN}, s{sPairN}, 0x7f4a7c15")
        e(f"s_mov_b32 s{sT3}, {pairwait}")
        a.label(f"{name}_pw")
        e(f"s_load_dword s{sT1}, s[{sPairP}:{sPairP+1}], 16 glc")
        e("s_waitcnt lgkmcnt(0)")
        e(f"s_cmp_eq_u32 s{sT1}, s{sPairN}")
        e(f"s_cbranch_scc1 {name}_pw_ok")
        e(f"s_sub_u32 s{sT3}, s{sT3}, 1")
        e(f"s_cmp_eq_u32 s{sT3}, 0")
        e(f"s_cbranch_scc1 {name}_pw_ok")
        e("s_sleep 4")
        e(f"s_branch {name}_pw")
        a.label(f"{name}_pw_ok")
        e(f"s_cmp_lg_u32 s{sWV}, 0")
        e(f"s_cbranch_scc1 {name}_pw_d")
        e(f"s_and_b32 s{sT0}, s2, 255")
        e(f"s_lshl_b32 s{sT0}, s{sT0}, 8")
        e(f"s_add_u32 s{sT0}, s{sT0}, {PAIR_OFF}")
        e(f"v_mov_b32 v{vT0}, 0")
        e(f"v_mov_b32 v{vT1}, s{sPairN}")
        e(f"v_cmp_eq_u32 vcc, 0, v0")
        e(f"s_and_saveexec_b64 s[{sT2}:{sT3}], vcc")
        e(f"buffer_store_dword v{vT1}, v{vT0}, s[{SRD_O}:{SRD_O+3}], s{sT0} offen sc0 sc1")
        e(f"s_mov_b64 exec, s[{sT2}:{sT3}]")
        a.label(f"{name}_pw_d")
    if codepf:
        e(f"s_getpc_b64 s[52:53]")
        a.label(f"{name}_pc")
        e(f"s_bfe_u32 s{sT0}, s2, 0x50003")
        e(f"s_lshl_b32 s{sT0}, s{sT0}, 2")
        e(f"s_add_u32 s{sT0}, s{sT0}, s{sWV}")
        e(f"s_mul_i32 s{sT0}, s{sT0}, {64*codepf}")
        e(f"s_add_u32 s52, s52, s{sT0}")
        e(f"s_addc_u32 s53, s53, 0")
        for k in range(codepf):
            e(f"s_load_dwordx16 s[56:71], s[52:53], {64*k}")
        e("s_waitcnt lgkmcnt(0)")
    if wo_early is not None:
        e(f"s_load_dwordx2 s[52:53], s[0:1], 32")
        e(f"s_load_dwordx2 s[54:55], s[0:1], 72")
        e(f"s_and_b32 s{sT0}, s2, 255")
        e(f"s_lshl_b32 s{sT0}, s{sT0}, 2")
        e(f"s_add_u32 s{sT0}, s{sT0}, s{sWV}")
        e(f"s_waitcnt lgkmcnt(0)")
        e(f"s_cmp_lt_u32 s{sT0}, 512")
        e(f"s_cselect_b32 s{SRD_T}, s52, s54")
        e(f"s_cselect_b32 s{SRD_T+1}, s53, s55")
        e(f"s_and_b32 s{SRD_T+1}, s{SRD_T+1}, 0xffff")
        e(f"s_mov_b32 s{SRD_T+2}, {4096*1024*2}")
        e(f"s_mov_b32 s{SRD_T+3}, 0x20000")
        e(f"s_and_b32 s{sT0}, s{sT0}, 511")
        e(f"s_lshl_b32 s{sT0}, s{sT0}, 14")
        e(f"v_lshlrev_b32 v{vT0}, 7, v0")
        e(f"buffer_load_dword v{vT2}, v{vT0}, s[{SRD_T}:{SRD_T+3}], s{sT0} offen {wo_early}")
        e(f"s_add_u32 s{sT0}, s{sT0}, 8192")
        e(f"buffer_load_dword v{vT3}, v{vT0}, s[{SRD_T}:{SRD_T+3}], s{sT0} offen {wo_early}")
        e("s_waitcnt vmcnt(0)")
    if asym:
        for k in range(16):
            e("s_barrier")
        e("s_barrier")
        e(f"v_mov_b32 v{vT3}, 0")
        e(f"ds_write_b32 v{vBarA}, v{vT3}")
        e("s_waitcnt lgkmcnt(0)")
        e("s_barrier")
    if exp_sleep:
        for k in range(exp_sleep):
            e("s_sleep 127")
    if delay_a:
        e(f"s_lshl_b32 s{sT4}, s{sX}, 2")
        e(f"s_cmp_lg_u32 s{sWV}, 0")
        e(f"s_cbranch_scc1 {name}_await")
        poll_counter(a, f"{name}_pollb", sT4, 255, None, thresh, bound, sleep=sleep_b)
        a.label(f"{name}_await")
        e("s_barrier")
    e(f"s_lshl_b32 s{sFlag}, s{sHq}, 3")
    e(f"s_add_u32 s{sFlag}, s{sFlag}, s{sI}")
    e(f"s_lshl_b32 s{sFlag}, s{sFlag}, 8")
    e(f"s_add_u32 s{sFlag}, s{sFlag}, {FLAG_OFF}")
    e(f"v_mov_b32 v{vT0}, 0")
    e(f"buffer_load_dword v{vNon}, v{vT0}, s[{SRD_O}:{SRD_O+3}], s{sFlag} offen sc0 sc1")
    if prio_a:
        e(f"s_setprio {prio_a}")
    if touch_a:
        gen_touch(a, pol_w)
    e(f"s_branch {name}_q")
    a.label(f"{name}_startb")
    if prio_b:
        e(f"s_setprio {prio_b}")
    if touch:
        gen_touch(a, pol_w)
    a.label(f"{name}_q")
    mark(a, 0)
    if clk:
        e("s_memtime s[76:77]")
        e("s_waitcnt lgkmcnt(0)")
        e(f"s_mov_b32 s{MK[5]}, s76")

    def hook_w():
        e(f"s_cmp_lg_u32 s{sRole}, 0")
        e(f"s_cbranch_scc1 {name}_hw")
        if delay_a:
            e(f"s_lshl_b32 s{sT4}, s{sX}, 2")
            signal(a, f"{name}_sigb", sT4, "1")
        issue_tile(e, SRD_K, sM0a, sKVoff, 0, True, pol_kv, 0)
        a.label(f"{name}_hw")
    def hook_x():
        if LOOK[0] != 2:
            return
        e(f"s_cmp_lg_u32 s{sRole}, 0")
        e(f"s_cbranch_scc1 {name}_hx")
        issue_tile(e, SRD_K, sM0b, sKVoff, 32768, True, pol_kv)
        a.label(f"{name}_hx")
    (gen_qproj_pipe if qpipe else gen_qproj)(a, name, pol_x, pol_w, hook_w, hook_x)
    if fuse2:
        for r, v in ((sNB, DEF+26), (sNA, DEF+27), (sNC, DEF+28)):
            e(f"v_readfirstlane_b32 s{r}, v{v}")
        a.nop(3)
        for r in (sNB, sNA, sNC):
            e(f"s_mul_i32 s{r}, s{r}, 0x9e3779b1")
            e(f"s_add_u32 s{r}, s{r}, 0x7f4a7c15")
        e(f"s_cmp_lg_u32 s{sWid}, 0")
        e(f"s_cbranch_scc1 {name}_noack")
        cons_coords(sT4, sT5, sT2, sT1)
        dep_line(sT0, f"s{sT4}", sT5, sT2)
        e(f"s_lshl_b32 s{sT1}, s{sT1}, 2")
        e(f"s_add_u32 s{sT0}, s{sT0}, s{sT1}")
        e(f"v_mov_b32 v{vT0}, 0")
        e(f"v_mov_b32 v{vT1}, s{sNC}")
        e(f"v_cmp_eq_u32 vcc, 0, v0")
        e(f"s_and_saveexec_b64 s[{sT2}:{sT3}], vcc")
        e(f"buffer_store_dword v{vT1}, v{vT0}, s[{SRD_O}:{SRD_O+3}], s{sT0} offen offset:32 sc1")
        e(f"s_mov_b64 exec, s[{sT2}:{sT3}]")
        a.label(f"{name}_noack")
    if fuse:
        phase3.pick_tags(a)
    mark(a, 1)
    if clk:
        e("s_memtime s[76:77]")
        e("s_waitcnt lgkmcnt(0)")
        e(f"s_sub_u32 s{MK[6]}, s76, s{MK[5]}")
        e(f"s_mov_b32 s{MK[5]}, 0")
    if ALT[0]:
        e("s_setprio 0")
    if qonly:
        e(f"s_branch {name}_end")
    if single and asym:
        e(f"s_cmp_lg_u32 s{sRole}, 0")
        e(f"s_cbranch_scc1 {name}_rolea")
        e("s_barrier")
        e(f"v_mov_b32 v{vT3}, 0")
        e(f"ds_write_b32 v{vBarA}, v{vT3}")
        e("s_waitcnt lgkmcnt(0)")
        e("s_barrier")
    elif single:
        e("s_barrier")
        e(f"v_mov_b32 v{vT3}, 0")
        e(f"ds_write_b32 v{vBarA}, v{vT3}")
        e("s_waitcnt lgkmcnt(0)")
        e("s_barrier")
    e(f"s_cmp_lg_u32 s{sRole}, 0")
    e(f"s_cbranch_scc1 {name}_rolea")
    if not single:
        e("s_barrier")
    q_broadcast(a, name, "q0", "0")
    e(f"s_mov_b32 s{sTask}, 0")
    gen_m1(a, name, pol_kv)
    e(f"s_branch {name}_end")
    a.label(f"{name}_rolea")
    e(f"s_setprio {prio_flash}")
    gen_flash(a, name, pol_kv if pol_kv_a is None else pol_kv_a)
    a.label(f"{name}_end")
    if fuse2:
        import oproj6
        e("s_waitcnt vmcnt(0)")
        e("s_setprio 0")
        if timing:
            ts_mark(a, 72)
        e("s_barrier")
        if timing:
            ts_mark(a, 84)
        e(f"s_cmp_lg_u32 s{sWid}, 0")
        e(f"s_cbranch_scc1 {name}_noflag")
        e(f"s_lshr_b32 s{sT2}, s{sH}, 4")
        e(f"s_and_b32 s{sT4}, s{sH}, 15")
        e(f"s_lshl_b32 s{sT4}, s{sT4}, 2")
        e(f"v_mov_b32 v{vT0}, 0")
        e(f"v_cmp_eq_u32 vcc, 0, v0")
        for br, tag in ((16, sNB), (0, sNA)):
            e(f"s_lshr_b32 s{sT2}, s{sH}, 4")
            dep_line(sT0, br, sI, sT2)
            e(f"s_add_u32 s{sT0}, s{sT0}, s{sT4}")
            e(f"v_mov_b32 v{vT1}, s{tag}")
            e(f"s_and_saveexec_b64 s[{sT2}:{sT3}], vcc")
            e(f"buffer_store_dword v{vT1}, v{vT0}, s[{SRD_O}:{SRD_O+3}], s{sT0} offen offset:64 sc1")
            e(f"s_mov_b64 exec, s[{sT2}:{sT3}]")
        a.label(f"{name}_noflag")
        e(f"s_mov_b32 s92, s{SRD_O}")
        e(f"s_mov_b32 s93, s{SRD_O+1}")
        e(f"s_mov_b32 s100, s{sWid}")
        def line_ptr(sBr, sKh, sI2):
            e(f"s_lshl_b32 s96, s{sBr}, 4")
            e(f"s_lshl_b32 s97, s{sI2}, 1")
            e(f"s_add_u32 s96, s96, s97")
            e(f"s_add_u32 s96, s96, s{sKh}")
            e(f"s_lshl_b32 s96, s96, 8")
            e(f"s_add_u32 s96, s96, {DEP_OFF}")
            e(f"s_add_u32 s94, s92, s96")
            e(f"s_addc_u32 s95, s93, 0")
        def all_equal(first, n):
            e(f"s_xor_b32 s97, s{first}, s{sNC}")
            for r in range(first + 1, first + n):
                e(f"s_xor_b32 s98, s{r}, s{sNC}")
                e(f"s_or_b32 s97, s97, s98")
            e("s_cmp_eq_u32 s97, 0")
        def wait(sLW, sBr, sKh, sI2, SRDO):
            e(f"s_cmp_lg_u32 s{sLW}, 0")
            e(f"s_cbranch_scc1 {name}_dw_d")
            line_ptr(sBr, sKh, sI2)
            a.label(f"{name}_dw")
            e("s_load_dwordx16 s[76:91], s[94:95], 64 glc")
            e("s_waitcnt lgkmcnt(0)")
            all_equal(76, 16)
            e(f"s_cbranch_scc0 {name}_dw_z")
            e(f"v_and_b32 v4, 15, v0")
            e(f"v_lshlrev_b32 v4, 2, v4")
            e(f"buffer_load_dword v5, v4, s[{SRDO}:{SRDO+3}], s96 offen offset:64 sc1")
            e("s_waitcnt vmcnt(0)")
            e(f"v_cmp_ne_u32 vcc, s{sNC}, v5")
            a.nop(4)
            e("s_cmp_eq_u64 vcc, 0")
            e(f"s_cbranch_scc1 {name}_dw_d")
            a.label(f"{name}_dw_z")
            e("s_sleep 1")
            e(f"s_branch {name}_dw")
            a.label(f"{name}_dw_d")
            if timing:
                ts_mark(a, 86)
        def finish(sWV2, sBr, sKh, sI2, sCol, SRDP):
            e(f"s_and_b32 s97, s{sCol}, 0x380")
            e(f"s_or_b32 s97, s97, s{sWV2}")
            e(f"s_cmp_lg_u32 s97, 0")
            e(f"s_cbranch_scc1 {name}_df_d")
            line_ptr(sBr, sKh, sI2)
            a.label(f"{name}_df")
            e("s_load_dwordx8 s[76:83], s[94:95], 32 glc")
            e("s_waitcnt lgkmcnt(0)")
            all_equal(76, 8)
            e(f"s_cbranch_scc0 {name}_df")
            e(f"v_mov_b32 v4, 0")
            e(f"v_mov_b32 v5, s{sNC}")
            e(f"v_cmp_eq_u32 vcc, 0, v0")
            e(f"s_and_saveexec_b64 s[44:45], vcc")
            e(f"buffer_store_dword v5, v4, s[{SRDP}:{SRDP+3}], s96 offen sc1")
            e(f"s_mov_b64 exec, s[44:45]")
            a.label(f"{name}_df_d")
        oproj6.gen_oproj(a, name + "_p", embed=dict(wid=100, wait=wait, finish=finish), **(p3opt or {}))
    if fuse:
        if timing:
            ts_mark(a, 76)
            e(f"s_mov_b32 s{MK[6]}, s76")
        phase3.gen_phase3(a, name, **(p3opt or {}))
    if endwb:
        e("s_waitcnt vmcnt(0)")
        e("s_barrier")
        e(f"s_cmp_lg_u32 s{sWV}, 0")
        e(f"s_cbranch_scc1 {name}_nowb")
        e("buffer_wbl2 sc1")
        a.label(f"{name}_nowb")
    if wo_pf is not None:
        e(f"s_load_dwordx2 s[52:53], s[0:1], 32")
        e(f"s_load_dwordx2 s[54:55], s[0:1], 72")
        e(f"s_waitcnt lgkmcnt(0)")
        e(f"s_cmp_lt_u32 s{sX}, 4")
        e(f"s_cselect_b32 s{SRD_W}, s52, s54")
        e(f"s_cselect_b32 s{SRD_W+1}, s53, s55")
        e(f"s_and_b32 s{SRD_W+1}, s{SRD_W+1}, 0xffff")
        e(f"s_mov_b32 s{SRD_W+2}, {4096*1024*2}")
        e(f"s_mov_b32 s{SRD_W+3}, 0x20000")
        if single:
            e(f"s_lshr_b32 s{sT0}, s2, 3")
            e(f"s_lshl_b32 s{sT0}, s{sT0}, 3")
            e(f"s_add_u32 s{sT0}, s{sT0}, s{sWid}")
        else:
            e(f"s_lshr_b32 s{sT0}, s2, 3")
            e(f"s_lshl_b32 s{sT0}, s{sT0}, 2")
            e(f"s_add_u32 s{sT0}, s{sT0}, s{sWV}")
        e(f"s_lshl_b32 s{sT0}, s{sT0}, 14")
        e(f"s_and_b32 s{sT1}, s{sX}, 1")
        e(f"s_lshl_b32 s{sT1}, s{sT1}, 10")
        e(f"s_add_u32 s{sT0}, s{sT0}, s{sT1}")
        e(f"s_bfe_u32 s{sT1}, s{sX}, 0x10001")
        e(f"s_lshl_b32 s{sT1}, s{sT1}, 22")
        e(f"s_add_u32 s{sT0}, s{sT0}, s{sT1}")
        e(f"v_lshrrev_b32 v{vT0}, 3, v0")
        e(f"v_lshlrev_b32 v{vT0}, 11, v{vT0}")
        e(f"v_and_b32 v{vT1}, 7, v0")
        e(f"v_lshlrev_b32 v{vT1}, 7, v{vT1}")
        e(f"v_add_u32 v{vT0}, v{vT0}, v{vT1}")
        e(f"buffer_load_dword v{vT2}, v{vT0}, s[{SRD_W}:{SRD_W+3}], s{sT0} offen {wo_pf}")
    e("s_waitcnt vmcnt(0)")
    if timing:
        mark(a, 7)
        wreg = 100 if fuse2 else (sWid if single else sWV)
        regs = [sTS] + MK[0:7]
        if fuse2:
            regs = [sTS, 72, 84, 86, 72, 72, 72, 72]
        ts_dump(a, regs, 0, wreg, 52, 8, nwaves=8 if single else 4)
        ts_end(a, sTS, 0, wreg, 52, 2, nwaves=8 if single else 4)
    a.label(f"{name}_done")
    e("s_endpgm")
    return dict(nv=256, ns=NS, lds=LDS_BYTES*(2 if single else 1), threads=512 if single else 256, grid=256 if single else 512)
```

```python
from asmlib import *
import math

OOB = 0x80000000
DEP_OFF = 53 << 20
PAIR_OFF = 50 << 20
FLAG_OFF = 48 << 20
QWS_OFF = 32 << 20
C_SCALE = math.log2(math.e) / math.sqrt(128.0)

def f32bits(x):
    import struct
    return struct.unpack("<I", struct.pack("<f", x))[0]

sWV = 4
sRole, sH, sI, sB = 5, 6, 7, 3
SRD_X, SRD_W, SRD_K, SRD_V, SRD_O = 8, 12, 16, 20, 24
sT0, sT1, sT2, sT3 = 28, 29, 30, 31
sXoff, sWoff, sWslotF, sWslotR, sXslot, sCnt = 32, 33, 34, 35, 36, 37
sKVoff, sTask, sScale, sM0a, sM0b = 38, 39, 40, 41, 42
sOoff, sT4, sT5 = 43, 44, 45
sTS = 46
sPtr = 48
sStg = 80
sX, sDbg, sBs, sHq, sCls, sSig = 81, 82, 84, 85, 86, 87
sFlag, sNonce = 92, 93
sPairN, sPairP = 74, 72
sTbase, sTstep, SRD_T = 94, 95, 96
sLB, sW8, sBarT, sWid = 100, 101, 78, 79
vL16L, vBarA = 30, 29
vNon = 31
SRD_D = 88
NS = 102
MK = [60, 62, 64, 66, 68, 70, 72, 74]
TIMING = [False]
QMARKS = [False]
QSKIP = ['']
QORDER = [None]
LOOK = [2]
SLEEPQ = [8]
XM = [False]
ALT = [False]
ASYM = [False]
KPRE = [False]
MERGE = ['']
KROT = [0]
GRAN = [8192]
SPOLL = [False]
OPOL = ['']
GSLEEP = [1]
PSIG = [0]
SINGLE = [False]
GB = [0]
WT = [0]
INV = [True]
QST = ['sc0 sc1', 'sc0 sc1']
def mark(a, k):
    if TIMING[0]:
        ts_mark(a, MK[k])
vLane16 = 1
vT0, vT1, vT2, vT3 = 2, 3, 4, 5
vKD = 6
vVD = 10
vKR = 11
vVR = 19
vM, vL, vMx, vF = 23, 24, 25, 26
vA0, vA1 = 27, 28
vSt = 29
QOWN, QCUR, S, O, DEF = 32, 64, 96, 160, 224
vWD = DEF
vXD = DEF + 4
vWR = DEF + 8
vXR = DEF + 12
vWR2 = DEF + 16
vXR2 = DEF + 20
vTT, vTD = DEF + 24, DEF + 25
ACC = S
FW = O
FX = QCUR

LDS_RING0, LDS_RING1, LDS_MISC = 0, 32768, 65536
LDS_BYTES = 81920

def bar(a):
    e = a.e
    if not SINGLE[0]:
        e("s_barrier")
        return
    GB[0] += 1
    L = f"gb{GB[0]}"
    e(f"s_add_u32 s{sBarT}, s{sBarT}, 1")
    e("s_waitcnt lgkmcnt(0)")
    e(f"v_mov_b32 v{vSt+2-0 if False else vT3}, 1")
    e("s_mov_b64 exec, 1")
    e(f"ds_add_u32 v{vBarA}, v{vT3}")
    e("s_mov_b64 exec, -1")
    a.label(L)
    e(f"ds_read_b32 v{vT3}, v{vBarA}")
    e("s_waitcnt lgkmcnt(0)")
    e(f"v_readfirstlane_b32 s{sT3}, v{vT3}")
    e(f"s_lshl_b32 s{sT2}, s{sBarT}, 2")
    a.nop(2)
    e(f"s_cmp_ge_u32 s{sT3}, s{sT2}")
    e(f"s_cbranch_scc1 {L}_ok")
    if GSLEEP[0] >= 0:
        e(f"s_sleep {GSLEEP[0]}")
    e(f"s_branch {L}")
    a.label(L + "_ok")


def mfma(e, d, a, b, c=None):
    cc = f"v[{d}:{d+15}]" if c is None else c
    e(f"v_mfma_f32_32x32x16_bf16 v[{d}:{d+15}], v[{a}:{a+3}], v[{b}:{b+3}], {cc}")


def gen_prologue(a, name, timing):
    e = a.e
    e(f"s_cmp_ge_u32 s2, {256 if SINGLE[0] else 512}")
    e(f"s_cbranch_scc1 {name}_done")
    if timing:
        ts_begin(a, sTS)
    e(f"s_load_dwordx8 s[{sPtr}:{sPtr+7}], s[0:1], 0")
    e(f"s_load_dwordx8 s[{sPtr+8}:{sPtr+15}], s[0:1], 40")
    e(f"s_load_dwordx2 s[{sPtr+16}:{sPtr+17}], s[0:1], 96")
    e(f"s_load_dwordx2 s[{sPtr+18}:{sPtr+19}], s[0:1], 88")
    e(f"v_lshrrev_b32 v{vT0}, 6, v0")
    e("v_and_b32 v0, 63, v0")
    e(f"v_readfirstlane_b32 s{sWid}, v{vT0}")
    a.nop(3)
    if SINGLE[0]:
        e(f"s_lshr_b32 s{sRole}, s{sWid}, 2")
        e(f"s_and_b32 s{sWV}, s{sWid}, 3")
        e(f"s_mul_i32 s{sLB}, s{sRole}, {LDS_BYTES}")
    else:
        e(f"s_mov_b32 s{sWV}, s{sWid}")
        e(f"s_lshr_b32 s{sRole}, s2, 8")
        e(f"s_mov_b32 s{sLB}, 0")
    e(f"s_lshl_b32 s{sW8}, s{sWV}, 13")
    e(f"s_and_b32 s{sT0}, s2, 7")
    e(f"s_bfe_u32 s{sT1}, s2, 0x50003")
    e(f"s_lshr_b32 s{sH}, s{sT0}, 1")
    e(f"s_lshl_b32 s{sH}, s{sH}, 3")
    e(f"s_and_b32 s{sT2}, s{sT1}, 7")
    e(f"s_add_u32 s{sH}, s{sH}, s{sT2}")
    e(f"s_and_b32 s{sI}, s{sT0}, 1")
    e(f"s_lshl_b32 s{sI}, s{sI}, 2")
    e(f"s_lshr_b32 s{sT2}, s{sT1}, 3")
    e(f"s_add_u32 s{sI}, s{sI}, s{sT2}")
    e(f"s_mov_b32 s{sX}, s{sT0}")
    e(f"s_add_u32 s{sCls}, s{sH}, s{sI}")
    e(f"s_and_b32 s{sCls}, s{sCls}, 3")
    e(f"v_lshlrev_b32 v{vLane16}, 4, v0")
    e(f"v_add_u32 v{vL16L}, s{sLB}, v{vLane16}")
    if ASYM[0]:
        e(f"s_lshl_b32 s{sT2}, s{sRole}, 6")
        e(f"s_add_u32 s{sT2}, s{sT2}, {LDS_MISC + 12288}")
    else:
        e(f"s_add_u32 s{sT2}, s{sLB}, {LDS_MISC + 12288}")
    e(f"v_mov_b32 v{vBarA}, s{sT2}")
    e(f"s_mov_b32 s{sBarT}, 0")
    e(f"v_lshrrev_b32 v{vT0}, 4, v0")
    e(f"v_and_b32 v{vT1}, 15, v0")
    e(f"v_lshlrev_b32 v{vT2}, 8, v{vT0}")
    for jj in range(4):
        e(f"v_add_u32 v{vT3}, {4*jj}, v{vT0}")
        e(f"v_xor_b32 v{vT3}, v{vT3}, v{vT1}")
        e(f"v_lshlrev_b32 v{vT3}, 4, v{vT3}")
        e(f"v_add_u32 v{vKD+jj}, v{vT3}, v{vT2}")
    e(f"v_lshlrev_b32 v{vT3}, 2, v{vT0}")
    e(f"v_xor_b32 v{vT3}, v{vT3}, v{vT1}")
    e(f"v_lshlrev_b32 v{vT3}, 4, v{vT3}")
    e(f"v_add_u32 v{vVD}, v{vT3}, v{vT2}")
    e(f"v_lshlrev_b32 v{vT2}, 13, v{vT0}")
    e(f"v_add_u32 v{vWD}, v{vT3}, v{vT2}")
    for jj in range(1, 4):
        e(f"v_add_u32 v{vWD+jj}, {jj*(4*8192-1024)}, v{vWD}")
    e(f"v_lshrrev_b32 v{vT1}, 3, v0")
    e(f"v_and_b32 v{vT2}, 7, v0")
    for jj in range(4):
        e(f"v_add_u32 v{vT3}, {4*jj}, v{vT0}")
        e(f"v_and_b32 v{vT3}, 7, v{vT3}")
        e(f"v_xor_b32 v{vT3}, v{vT3}, v{vT2}")
        e(f"v_lshlrev_b32 v{vT3}, 4, v{vT3}")
        e(f"v_lshlrev_b32 v{vXD+jj}, 11, v{vT1}")
        e(f"v_add_u32 v{vXD+jj}, v{vXD+jj}, v{vT3}")
        c = 8*jj*2048 - jj*1024
        if c:
            e(f"v_add_u32 v{vXD+jj}, {c}, v{vXD+jj}")
    e("s_waitcnt lgkmcnt(0)")
    e(f"s_cmp_eq_u32 s{sRole}, 0")
    for k, srd in enumerate((SRD_X, SRD_K, SRD_V, SRD_W)):
        e(f"s_cselect_b32 s{srd}, s{sPtr+8+2*k}, s{sPtr+2*k}")
        e(f"s_cselect_b32 s{srd+1}, s{sPtr+9+2*k}, s{sPtr+1+2*k}")
    e(f"s_mov_b32 s{sT0}, {32*32*131072}")
    e(f"s_cselect_b32 s{SRD_K+2}, s{sT0}, {32*4*131072}")
    e(f"s_mov_b32 s{SRD_V+2}, s{SRD_K+2}")
    for srd in (SRD_X, SRD_K, SRD_V, SRD_W):
        e(f"s_and_b32 s{srd+1}, s{srd+1}, 0xffff")
        e(f"s_mov_b32 s{srd+3}, 0x20000")
    e(f"s_mov_b32 s{SRD_X+2}, {1024*1024*2}")
    e(f"s_mov_b32 s{SRD_W+2}, {1024*4096*2}")
    e(f"s_mov_b32 s{sDbg}, s{sPtr+18}")
    e(f"s_mov_b32 s{sDbg+1}, s{sPtr+19}")
    e(f"s_mov_b32 s{SRD_D}, s{sPtr+18}")
    e(f"s_and_b32 s{SRD_D+1}, s{sPtr+19}, 0xffff")
    e(f"s_mov_b32 s{SRD_D+2}, 256")
    e(f"s_mov_b32 s{SRD_D+3}, 0x20000")
    e(f"s_mov_b32 s{SRD_O}, s{sPtr+16}")
    e(f"s_and_b32 s{SRD_O+1}, s{sPtr+17}, 0xffff")
    e(f"s_mov_b32 s{SRD_O+2}, {64 << 20}")
    e(f"s_mov_b32 s{SRD_O+3}, 0x20000")
    e(f"s_lshl_b32 s{sT0}, s{sWV}, 3")
    e(f"s_add_u32 s{sB}, s{sT0}, s{sI}")
    e(f"s_lshl_b32 s{sXoff}, s{sB}, 16")
    e(f"s_lshl_b32 s{sWoff}, s{sWV}, 17")
    e(f"s_lshl_b32 s{sT0}, s{sH}, 8")
    e(f"s_add_u32 s{sWoff}, s{sWoff}, s{sT0}")
    e(f"v_and_b32 v{vT0}, 31, v0")
    e(f"v_lshrrev_b32 v{vT1}, 5, v0")
    e(f"v_bfe_u32 v{vT2}, v0, 1, 3")
    e(f"v_xor_b32 v{vT2}, v{vT2}, v{vT1}")
    e(f"v_lshlrev_b32 v{vT2}, 4, v{vT2}")
    e(f"v_lshlrev_b32 v{vT3}, 7, v{vT0}")
    e(f"v_add_u32 v{vXR}, v{vT2}, v{vT3}")
    e(f"s_add_u32 s{sT0}, s{sW8}, {LDS_RING1}")
    e(f"s_add_u32 s{sT0}, s{sT0}, s{sLB}")
    e(f"v_add_u32 v{vXR}, s{sT0}, v{vXR}")
    for u in range(1, 4):
        e(f"v_xor_b32 v{vXR+u}, {u*32}, v{vXR}")
    e(f"v_and_b32 v{vT2}, 15, v0")
    e(f"v_xor_b32 v{vT2}, v{vT2}, v{vT1}")
    e(f"v_lshlrev_b32 v{vT2}, 4, v{vT2}")
    e(f"v_lshlrev_b32 v{vT3}, 8, v{vT0}")
    e(f"v_add_u32 v{vKR}, v{vT2}, v{vT3}")
    e(f"s_add_u32 s{sT0}, s{sW8}, s{sLB}")
    e(f"v_add_u32 v{vKR}, s{sT0}, v{vKR}")
    for s in range(1, 8):
        e(f"v_xor_b32 v{vKR+s}, {s*32}, v{vKR}")
    e(f"v_bfe_u32 v{vT0}, v0, 2, 2")
    e(f"v_lshlrev_b32 v{vT2}, 6, v{vT0}")
    e(f"v_bfe_u32 v{vT3}, v0, 4, 1")
    e(f"v_lshlrev_b32 v{vT3}, 5, v{vT3}")
    e(f"v_add_u32 v{vT2}, v{vT2}, v{vT3}")
    e(f"v_and_b32 v{vT3}, 1, v0")
    e(f"v_lshlrev_b32 v{vT3}, 4, v{vT3}")
    e(f"v_add_u32 v{vT2}, v{vT2}, v{vT3}")
    e(f"v_bfe_u32 v{vT3}, v0, 1, 1")
    e(f"v_lshlrev_b32 v{vT3}, 3, v{vT3}")
    e(f"v_add_u32 v{vT2}, v{vT2}, v{vT3}")
    e(f"v_lshlrev_b32 v{vT3}, 3, v{vT1}")
    e(f"v_add_u32 v{vT3}, v{vT3}, v{vT0}")
    e(f"v_lshlrev_b32 v{vT3}, 8, v{vT3}")
    e(f"v_add_u32 v{vWR}, v{vT2}, v{vT3}")
    e(f"v_add_u32 v{vWR}, s{sLB}, v{vWR}")
    e(f"v_lshlrev_b32 v{vT3}, 2, v{vT1}")
    e(f"v_add_u32 v{vT3}, v{vT3}, v{vT0}")
    e(f"v_lshlrev_b32 v{vT3}, 8, v{vT3}")
    e(f"v_add_u32 v{vVR}, v{vT2}, v{vT3}")
    for t in range(1, 4):
        e(f"v_xor_b32 v{vWR+t}, {t*64}, v{vWR}")
    e(f"s_add_u32 s{sT0}, s{sW8}, s{sLB}")
    e(f"v_add_u32 v{vT2}, s{sT0}, v{vVR}")
    for k in range(4):
        e(f"s_add_u32 s{sT0}, s{sWV}, {k}")
        e(f"s_and_b32 s{sT0}, s{sT0}, 3")
        e(f"s_lshl_b32 s{sT0}, s{sT0}, 6")
        e(f"v_xor_b32 v{vVR+k}, s{sT0}, v{vT2}")
    e(f"s_add_u32 s{sM0a}, s{sW8}, s{sLB}")
    e(f"s_add_u32 s{sM0b}, s{sM0a}, {LDS_RING1}")
    e(f"s_mov_b32 s{sScale}, {f32bits(C_SCALE):#x}")


def gen_qproj(a, name, pol_x, pol_w, after_barrier15=None, after_x15=None):
    e = a.e
    WSLOT = [LDS_MISC, 0, 16384]

    def wt_setup():
        e(f"s_and_b32 s{sT2}, s{sH}, 7")
        e(f"v_lshrrev_b32 v{vT0}, 4, v0")
        e(f"v_lshlrev_b32 v{vT0}, 13, v{vT0}")
        e(f"v_and_b32 v{vT1}, 15, v0")
        e(f"v_lshlrev_b32 v{vT1}, 7, v{vT1}")
        e(f"v_add_u32 v{vT0}, v{vT0}, v{vT1}")
        e(f"s_lshl_b32 s{sT0}, s{sT2}, 6")
        e(f"v_add_u32 v{vT1}, s{sT0}, v0")
        e(f"v_bfe_u32 v{vT2}, v{vT1}, 5, 2")
        e(f"v_lshrrev_b32 v{vT3}, 7, v{vT1}")
        e(f"v_lshlrev_b32 v{vT3}, 3, v{vT3}")
        e(f"v_add_u32 v{vT2}, v{vT2}, v{vT3}")
        e(f"v_lshlrev_b32 v{vT2}, 5, v{vT2}")
        e(f"v_and_b32 v{vT1}, 31, v{vT1}")
        e(f"v_add_u32 v{vT1}, v{vT1}, v{vT2}")
        e(f"v_lshlrev_b32 v{vT1}, 11, v{vT1}")
        e(f"s_cmp_lt_u32 s{sWV}, 2")
        e(f"s_cselect_b64 vcc, -1, 0")
        e(f"v_cndmask_b32 v{vTT}, v{vT1}, v{vT0}, vcc")
        for k in range(4):
            e(f"s_cselect_b32 s{SRD_T+k}, s{SRD_W+k}, s{SRD_X+k}")
        e(f"s_mov_b32 s{SRD_T+3}, 0x20000")
        e(f"s_lshl_b32 s{sT0}, s{sT2}, 3")
        e(f"s_lshl_b32 s{sT1}, s{sWV}, 2")
        e(f"s_add_u32 s{sT0}, s{sT0}, s{sT1}")
        e(f"s_lshl_b32 s{sT0}, s{sT0}, 13")
        e(f"s_lshr_b32 s{sT1}, s{sX}, 1")
        e(f"s_lshl_b32 s{sT1}, s{sT1}, 11")
        e(f"s_add_u32 s{sT0}, s{sT0}, s{sT1}")
        e(f"s_and_b32 s{sT1}, s{sX}, 1")
        e(f"s_lshl_b32 s{sT1}, s{sT1}, 18")
        e(f"s_cmp_lt_u32 s{sWV}, 2")
        e(f"s_cselect_b32 s{sTbase}, s{sT0}, s{sT1}")
        e(f"s_mov_b32 s{sT0}, {64*8192}")
        e(f"s_cselect_b32 s{sTstep}, s{sT0}, 128")
        e(f"s_cmp_eq_u32 s{sWV}, 3")
        e(f"s_cselect_b32 s{sTbase}, {OOB:#x}, s{sTbase}")
        e(f"s_cselect_b32 s{sTstep}, 0, s{sTstep}")

    def wt_issue(tau_reg_or_imm):
        if isinstance(tau_reg_or_imm, int):
            e(f"s_mov_b32 s{sT2}, {tau_reg_or_imm}")
        else:
            e(f"s_add_u32 s{sT2}, s{sCnt}, {WT[0]}")
        e(f"s_mul_i32 s{sT3}, s{sT2}, s{sTstep}")
        e(f"s_add_u32 s{sT3}, s{sT3}, s{sTbase}")
        e(f"s_and_b32 s{sT0}, s{sT2}, 3")
        e(f"s_cmp_eq_u32 s{sT0}, s{sCls}")
        e(f"s_cselect_b32 s{sT3}, s{sT3}, {OOB:#x}")
        e(f"s_cmp_lt_u32 s{sT2}, 16")
        e(f"s_cselect_b32 s{sT3}, s{sT3}, {OOB:#x}")
        e(f"buffer_load_dword v{vTD}, v{vTT}, s[{SRD_T}:{SRD_T+3}], s{sT3} offen {pol_w}")

    def sigma():
        if QORDER[0] == "adv":
            e(f"s_add_u32 s{sT1}, s{sStg}, 1")
            e(f"s_sub_u32 s{sT1}, s{sT1}, s{sCls}")
            e(f"s_and_b32 s{sT1}, s{sT1}, 3")
            e(f"s_cmp_eq_u32 s{sT1}, 0")
            e(f"s_cselect_b32 s{sT0}, 1, 0")
            e(f"s_cmp_eq_u32 s{sT1}, 1")
            e(f"s_cselect_b32 s{sT0}, -1, s{sT0}")
            e(f"s_add_u32 s{sSig}, s{sStg}, s{sT0}")
            e(f"s_cmp_lt_u32 s{sSig}, 16")
            e(f"s_cselect_b32 s{sSig}, s{sSig}, s{sStg}")
        elif QORDER[0] == "rot4":
            e(f"s_add_u32 s{sT1}, s{sStg}, s{sCls}")
            e(f"s_and_b32 s{sT1}, s{sT1}, 3")
            e(f"s_andn2_b32 s{sSig}, s{sStg}, 3")
            e(f"s_or_b32 s{sSig}, s{sSig}, s{sT1}")
        elif QORDER[0] == "rot8":
            e(f"s_lshl_b32 s{sT1}, s{sCls}, 1")
            e(f"s_add_u32 s{sT1}, s{sT1}, s{sStg}")
            e(f"s_and_b32 s{sT1}, s{sT1}, 7")
            e(f"s_andn2_b32 s{sSig}, s{sStg}, 7")
            e(f"s_or_b32 s{sSig}, s{sSig}, s{sT1}")
        elif QORDER[0] == "rot16":
            e(f"s_lshl_b32 s{sT1}, s{sCls}, 2")
            e(f"s_add_u32 s{sT1}, s{sT1}, s{sStg}")
            e(f"s_and_b32 s{sSig}, s{sT1}, 15")
        else:
            e(f"s_mov_b32 s{sSig}, s{sStg}")

    def issue_w():
        sigma()
        e(f"s_lshl_b32 s{sT0}, s{sWV}, 12")
        e(f"s_add_u32 s{sT0}, s{sT0}, s{sLB}")
        e(f"s_add_u32 m0, s{sWslotF}, s{sT0}")
        e(f"s_lshl_b32 s{sT1}, s{sSig}, 19")
        e(f"s_add_u32 s{sT1}, s{sT1}, s{sWoff}")
        for jj in range(4):
            e(f"buffer_load_dwordx4 v{vWD+jj}, s[{SRD_W}:{SRD_W+3}], s{sT1} offen offset:{jj*1024} {pol_w} lds")
        e(f"s_cmp_eq_u32 s{sWslotF}, {LDS_MISC}")
        e(f"s_cselect_b32 s{sT0}, 0, {LDS_MISC}")
        e(f"s_cmp_eq_u32 s{sWslotF}, 0")
        e(f"s_cselect_b32 s{sWslotF}, 16384, s{sT0}")

    def issue_x(par):
        e(f"s_mov_b32 s{sT0}, s{sM0b}")
        if par is not None:
            e(f"s_add_u32 m0, s{sT0}, {par*4096}")
        else:
            e(f"s_add_u32 m0, s{sT0}, s{sXslot}")
        e(f"s_lshl_b32 s{sT1}, s{sSig}, 7")
        e(f"s_add_u32 s{sT1}, s{sT1}, s{sXoff}")
        for jj in range(4):
            e(f"buffer_load_dwordx4 v{vXD+jj}, s[{SRD_X}:{SRD_X+3}], s{sT1} offen offset:{jj*1024} {pol_x} lds")
        e(f"s_add_u32 s{sStg}, s{sStg}, 1")

    class Cap:
        def __init__(self): self.L = []
        def __call__(self, t=""): self.L.append(t)

    def capture(fn):
        nonlocal e
        keep = e
        c = Cap(); e = c
        fn()
        e = keep
        return c.L

    def stage(first, issue, hook_w=None, hook_x=None, last=False):
        nwait = 9 if (WT[0] and not first) else 8
        e(f"s_waitcnt vmcnt({nwait})" if not last else "s_waitcnt vmcnt(0)")
        if ASYM[0]:
            GB[0] += 1
            L = f"qb{GB[0]}"
            e(f"s_cmp_lg_u32 s{sRole}, 0")
            e(f"s_cbranch_scc1 {L}_g")
            e("s_barrier")
            e(f"s_branch {L}_d")
            a.label(L + "_g")
            bar(a)
            a.label(L + "_d")
        else:
            e("s_barrier")
        for t in range(4):
            e(f"v_add_u32 v{vWR2+t}, s{sWslotR}, v{vWR+t}")
        for u in range(4):
            e(f"v_add_u32 v{vXR2+u}, s{sXslot}, v{vXR+u}")
        if 'd' in QSKIP[0]:
            issue = False
        def rx():
            if 'r' in QSKIP[0]: return []
            return [f"ds_read_b128 v[{FX+4*u}:{FX+4*u+3}], v{vXR2+u}" for u in range(4)]
        def rw(u):
            L = []
            if 'r' in QSKIP[0]: return L
            for t in range(4):
                for half in range(2):
                    r = FW + 16*u + 4*t + 2*half
                    L.append(f"ds_read_b64_tr_b16 v[{r}:{r+1}], v{vWR2+t} offset:{(16*u+4*half)*256}")
            return L
        def mm(u):
            L = []
            for t in range(4):
                c = "0" if (first and u == 0) else f"v[{ACC+16*t}:{ACC+16*t+15}]"
                L.append(f"v_mfma_f32_32x32x16_bf16 v[{ACC+16*t}:{ACC+16*t+15}], v[{FW+16*u+4*t}:{FW+16*u+4*t+3}], v[{FX+4*u}:{FX+4*u+3}], {c}" if 'm' not in QSKIP[0] else "s_nop 0")
            return L
        for ln in rx() + rw(0):
            e(ln)
        if issue:
            issue_w()
            if WT[0]:
                wt_issue("cnt")
        if hook_w:
            hook_w()
        e("s_waitcnt lgkmcnt(0)")
        fill = rw(1) + rw(2)
        k = 0
        for m in mm(0):
            e(m)
            for ln in fill[k:k+4]:
                e(ln)
            k += 4
        xl = capture(lambda: issue_x(None)) if issue else []
        e("s_waitcnt lgkmcnt(8)")
        fill = rw(3)
        k = 0
        for m in mm(1):
            e(m)
            for ln in fill[k:k+2]:
                e(ln)
            k += 2
        e("s_waitcnt lgkmcnt(8)")
        k = 0
        per = (len(xl) + 3) // 4
        for m in mm(2):
            e(m)
            for ln in xl[k:k+per]:
                e(ln)
            k += per
        if hook_x:
            hook_x()
        e("s_waitcnt lgkmcnt(0)")
        adv = [f"s_cmp_eq_u32 s{sWslotR}, {LDS_MISC}",
               f"s_cselect_b32 s{sT0}, 0, {LDS_MISC}",
               f"s_cmp_eq_u32 s{sWslotR}, 0",
               f"s_cselect_b32 s{sWslotR}, 16384, s{sT0}",
               f"s_xor_b32 s{sXslot}, s{sXslot}, 4096"]
        k = 0
        for m in mm(3):
            e(m)
            for ln in adv[k:k+2]:
                e(ln)
            k += 2

    e(f"s_mov_b32 s{sWslotF}, {LDS_MISC}")
    e(f"s_mov_b32 s{sWslotR}, {LDS_MISC}")
    e(f"s_mov_b32 s{sXslot}, 0")
    e(f"s_mov_b32 s{sStg}, 0")
    e(f"s_mov_b32 s{sCnt}, 0")
    if WT[0]:
        wt_setup()
        for tau in range(WT[0]):
            wt_issue(tau)
    issue_w(); issue_x(0)
    issue_w(); issue_x(1)
    stage(True, True)
    e(f"s_mov_b32 s{sCnt}, 1")
    a.label(f"{name}_qloop")
    if QMARKS[0]:
        ts_mark(a, 76)
        for k, cnt in enumerate((1, 2, 4, 8, 12)):
            e(f"s_cmp_eq_u32 s{sCnt}, {cnt}")
            e(f"s_cselect_b32 s{MK[2+k]}, s76, s{MK[2+k]}")
    if ALT[0]:
        e(f"s_add_u32 s{sT0}, s{sCnt}, s{sRole}")
        e(f"s_bitcmp1_b32 s{sT0}, 0")
        e(f"s_cbranch_scc1 {name}_p1")
        e("s_setprio 0")
        e(f"s_branch {name}_p2")
        a.label(f"{name}_p1")
        e("s_setprio 1")
        a.label(f"{name}_p2")
    if PSIG[0]:
        e(f"s_cmp_lg_u32 s{sCnt}, {PSIG[0]}")
        e(f"s_cbranch_scc1 {name}_ps_d")
        e(f"s_or_b32 s{sT0}, s{sWV}, s{sRole}")
        e(f"s_cmp_lg_u32 s{sT0}, 0")
        e(f"s_cbranch_scc1 {name}_ps_d")
        e(f"s_and_b32 s{sT0}, s2, 255")
        e(f"s_lshl_b32 s{sT0}, s{sT0}, 8")
        e(f"s_add_u32 s{sT0}, s{sT0}, {PAIR_OFF}")
        e(f"s_mul_i32 s{sT1}, s{sPairN}, 0x9e3779b1")
        e(f"s_add_u32 s{sT1}, s{sT1}, 0x7f4a7c15")
        e(f"v_mov_b32 v{vT0}, 0")
        e(f"v_mov_b32 v{vT1}, s{sT1}")
        e(f"v_cmp_eq_u32 vcc, 0, v0")
        e(f"s_and_saveexec_b64 s[{sT2}:{sT3}], vcc")
        e(f"buffer_store_dword v{vT1}, v{vT0}, s[{SRD_O}:{SRD_O+3}], s{sT0} offen offset:16 sc0 sc1")
        e(f"s_mov_b64 exec, s[{sT2}:{sT3}]")
        a.label(f"{name}_ps_d")
    stage(False, True)
    e(f"s_add_u32 s{sCnt}, s{sCnt}, 1")
    e(f"s_cmp_lt_u32 s{sCnt}, 14")
    e(f"s_cbranch_scc1 {name}_qloop")
    stage(False, False)
    stage(False, False, hook_w=after_barrier15, hook_x=after_x15, last=True)
    a.nop(12)
    for s in range(8):
        t, sg = s >> 1, s & 1
        for i in range(4):
            src = ACC + 16*t + 8*sg + 2*i
            e(f"v_cvt_pk_bf16_f32 v{QOWN+4*s+i}, v{src}, v{src+1}")


def gen_qproj_pipe(a, name, pol_x, pol_w, hook_w=None, hook_x=None):
    e = a.e
    def qbar():
        if ASYM[0]:
            GB[0] += 1
            L = f"qp{GB[0]}"
            e(f"s_cmp_lg_u32 s{sRole}, 0")
            e(f"s_cbranch_scc1 {L}_g")
            e("s_barrier")
            e(f"s_branch {L}_d")
            a.label(L + "_g")
            bar(a)
            a.label(L + "_d")
        else:
            e("s_barrier")
    FXs = [QCUR, QCUR + 16]
    WR = [vWR2, vXR2]

    def sigma_of(reg):
        if QORDER[0] == "adv":
            return [f"s_add_u32 s{sT1}, s{reg}, 1", f"s_sub_u32 s{sT1}, s{sT1}, s{sCls}", f"s_and_b32 s{sT1}, s{sT1}, 3",
                    f"s_cmp_eq_u32 s{sT1}, 0", f"s_cselect_b32 s{sT0}, 1, 0", f"s_cmp_eq_u32 s{sT1}, 1",
                    f"s_cselect_b32 s{sT0}, -1, s{sT0}", f"s_add_u32 s{sSig}, s{reg}, s{sT0}",
                    f"s_cmp_lt_u32 s{sSig}, 16", f"s_cselect_b32 s{sSig}, s{sSig}, s{reg}"]
        return [f"s_mov_b32 s{sSig}, s{reg}"]

    sPW, sPX = sStg, sXslot
    def w_lines():
        L = sigma_of(sPW)
        L += [f"s_lshl_b32 s{sT0}, s{sWV}, 12", f"s_add_u32 s{sT0}, s{sT0}, s{sLB}", f"s_add_u32 m0, s{sWslotF}, s{sT0}",
              f"s_lshl_b32 s{sT1}, s{sSig}, 19", f"s_add_u32 s{sT1}, s{sT1}, s{sWoff}"]
        L += [f"buffer_load_dwordx4 v{vWD+jj}, s[{SRD_W}:{SRD_W+3}], s{sT1} offen offset:{jj*1024} {pol_w} lds" for jj in range(4)]
        L += [f"s_cmp_eq_u32 s{sWslotF}, {LDS_MISC}", f"s_cselect_b32 s{sT0}, 0, {LDS_MISC}", f"s_cmp_eq_u32 s{sWslotF}, 0",
              f"s_cselect_b32 s{sWslotF}, 16384, s{sT0}", f"s_add_u32 s{sPW}, s{sPW}, 1"]
        return L
    def x_lines(par):
        L = [f"s_add_u32 m0, s{sM0b}, {par*4096}", f"s_lshl_b32 s{sT1}, s{sSig}, 7", f"s_add_u32 s{sT1}, s{sT1}, s{sXoff}"]
        L += [f"buffer_load_dwordx4 v{vXD+jj}, s[{SRD_X}:{SRD_X+3}], s{sT1} offen offset:{jj*1024} {pol_x} lds" for jj in range(4)]
        return L
    def rw(u, par):
        L = []
        for t in range(4):
            for half in range(2):
                r = FW + 16*u + 4*t + 2*half
                L.append(f"ds_read_b64_tr_b16 v[{r}:{r+1}], v{WR[par]+t} offset:{(16*u+4*half)*256}")
        return L
    def rx(par):
        return [f"ds_read_b128 v[{FXs[par]+4*u}:{FXs[par]+4*u+3}], v{vXR+u} offset:{par*4096}" for u in range(4)]
    def mm(u, par):
        return [f"v_mfma_f32_32x32x16_bf16 v[{ACC+16*t}:{ACC+16*t+15}], v[{FW+16*u+4*t}:{FW+16*u+4*t+3}], v[{FXs[par]+4*u}:{FXs[par]+4*u+3}], v[{ACC+16*t}:{ACC+16*t+15}]" for t in range(4)]
    def wr_set(par):
        L = [f"v_add_u32 v{WR[par]+t}, s{sWslotR}, v{vWR+t}" for t in range(4)]
        L += [f"s_cmp_eq_u32 s{sWslotR}, {LDS_MISC}", f"s_cselect_b32 s{sT0}, 0, {LDS_MISC}", f"s_cmp_eq_u32 s{sWslotR}, 0",
              f"s_cselect_b32 s{sWslotR}, 16384, s{sT0}"]
        return L
    def weave(main, fill):
        per = -(-len(fill) // len(main))
        k = 0
        for m in main:
            e(m)
            for ln in fill[k:k+per]:
                e(ln)
            k += per

    e(f"s_mov_b32 s{sWslotF}, {LDS_MISC}")
    e(f"s_mov_b32 s{sWslotR}, {LDS_MISC}")
    e(f"s_mov_b32 s{sPW}, 0")
    e(f"s_mov_b32 s{sPX}, 0")
    for ln in w_lines() + x_lines(0) + w_lines() + x_lines(1) + w_lines():
        e(ln)
    for j in range(64):
        e(f"v_mov_b32 v{ACC+j}, 0")
    for ln in wr_set(0):
        e(ln)
    e("s_waitcnt vmcnt(12)")
    qbar()
    for ln in rx(0) + rw(0, 0) + rw(1, 0):
        e(ln)

    def stage(par, xiss, wiss, nwait, last=False, hw=None, hx=None):
        e("s_waitcnt lgkmcnt(8)")
        if hx:
            hx()
        xl = x_lines(par) if xiss else []
        weave(mm(0, par), rw(2, par) + xl[:3])
        e("s_waitcnt lgkmcnt(8)")
        weave(mm(1, par), rw(3, par) + xl[3:])
        if last:
            e("s_waitcnt lgkmcnt(8)")
            weave(mm(2, par), [])
            e("s_waitcnt lgkmcnt(0)")
            weave(mm(3, par), [])
            return
        for ln in wr_set(par ^ 1):
            e(ln)
        e(f"s_waitcnt vmcnt({nwait}) lgkmcnt(0)")
        qbar()
        if hw:
            hw()
        wl = w_lines() if wiss else []
        cut = len(wl) - 9 if wiss else 0
        weave(mm(2, par), rx(par ^ 1) + rw(0, par ^ 1) + wl[:cut // 2])
        weave(mm(3, par), rw(1, par ^ 1) + wl[cut // 2:])

    e(f"s_mov_b32 s{sCnt}, 0")
    a.label(f"{name}_qloop")
    if PSIG[0]:
        e(f"s_cmp_lg_u32 s{sCnt}, {PSIG[0] & ~1}")
        e(f"s_cbranch_scc1 {name}_ps_d")
        e(f"s_or_b32 s{sT0}, s{sWV}, s{sRole}")
        e(f"s_cmp_lg_u32 s{sT0}, 0")
        e(f"s_cbranch_scc1 {name}_ps_d")
        e(f"s_and_b32 s{sT0}, s2, 255")
        e(f"s_lshl_b32 s{sT0}, s{sT0}, 8")
        e(f"s_add_u32 s{sT0}, s{sT0}, {PAIR_OFF}")
        e(f"s_mul_i32 s{sT1}, s{sPairN}, 0x9e3779b1")
        e(f"s_add_u32 s{sT1}, s{sT1}, 0x7f4a7c15")
        e(f"v_mov_b32 v{vT0}, 0")
        e(f"v_mov_b32 v{vT1}, s{sT1}")
        e(f"v_cmp_eq_u32 vcc, 0, v0")
        e(f"s_and_saveexec_b64 s[{sT2}:{sT3}], vcc")
        e(f"buffer_store_dword v{vT1}, v{vT0}, s[{SRD_O}:{SRD_O+3}], s{sT0} offen offset:16 sc0 sc1")
        e(f"s_mov_b64 exec, s[{sT2}:{sT3}]")
        a.label(f"{name}_ps_d")
    stage(0, True, True, 8)
    stage(1, True, True, 8)
    e(f"s_add_u32 s{sCnt}, s{sCnt}, 2")
    e(f"s_cmp_lt_u32 s{sCnt}, 12")
    e(f"s_cbranch_scc1 {name}_qloop")
    stage(0, True, True, 8)
    stage(1, True, False, 8)
    stage(0, False, False, 0, hw=hook_w)
    stage(1, False, False, 0, last=True, hx=hook_x)
    a.nop(12)
    for s in range(8):
        t, sg = s >> 1, s & 1
        for i in range(4):
            src = ACC + 16*t + 8*sg + 2*i
            e(f"v_cvt_pk_bf16_f32 v{QOWN+4*s+i}, v{src}, v{src+1}")


def issue_tile(e, srd, slot_reg, off_reg, imm, is_k, pol, rotT=None):
    e(f"s_mov_b32 m0, s{slot_reg}")
    if rotT is not None and KROT[0]:
        e(f"s_add_u32 s{sT0}, s{off_reg}, s{88 + rotT}")
    elif imm:
        e(f"s_add_u32 s{sT0}, s{off_reg}, {imm}")
    else:
        e(f"s_mov_b32 s{sT0}, s{off_reg}")
    for half in range(2):
        for jj in range(4):
            v = vKD + jj if is_k else vVD
            e(f"buffer_load_dwordx4 v{v}, s[{srd}:{srd+3}], s{sT0} offen offset:{jj*1024} {pol} lds")
        if half == 0:
            e(f"s_add_u32 m0, s{slot_reg}, 4096")
            e(f"s_add_u32 s{sT0}, s{sT0}, {4096 if GRAN[0] == 8192 else 16384}")


def k_tile(e, T, slot, hook, early=None):
    FK = O + 32*(T & 1)
    if early:
        e("s_waitcnt vmcnt(0)")
        early()
    else:
        e("s_waitcnt vmcnt(8)")
    for s in range(8):
        e(f"ds_read_b128 v[{FK+4*s}:{FK+4*s+3}], v{vKR+s} offset:{slot*LDS_RING1}")
    e("s_waitcnt lgkmcnt(0)")
    hook()
    for s in range(8):
        mfma(e, S+16*T, FK+4*s, QCUR+4*s, "0" if s == 0 else None)


def v_tile(e, T, slot, hook, early=None):
    FV = S + 32
    if early:
        e("s_waitcnt vmcnt(0)")
        early()
    else:
        e("s_waitcnt vmcnt(8)")
    for k in range(4):
        for u in range(2):
            for half in range(2):
                r = FV + 8*k + 4*u + 2*half
                e(f"ds_read_b64_tr_b16 v[{r}:{r+1}], v{vVR+k} offset:{slot*LDS_RING1 + (16*u+8*half)*256}")
    e("s_waitcnt lgkmcnt(0)")
    hook()
    for u in range(2):
        for k in range(4):
            mfma(e, O+16*k, FV+8*k+4*u, S+8*T+4*u, "0" if (T == 0 and u == 0) else None)


def softmax(a, nreg=64):
    e = a.e
    e(f"v_max3_f32 v{vMx}, v{S}, v{S+1}, v{S+2}")
    e(f"v_max3_f32 v{vT0}, v{S+3}, v{S+4}, v{S+5}")
    k = 6
    tgt = [vMx, vT0]
    n = 0
    while k + 1 < nreg:
        e(f"v_max3_f32 v{tgt[n&1]}, v{tgt[n&1]}, v{S+k}, v{S+k+1}")
        k += 2; n += 1
    e(f"v_max_f32 v{vMx}, v{vMx}, v{vT0}")
    e(f"v_mov_b32 v{vT0}, v{vMx}")
    a.nop(2)
    e(f"v_permlane32_swap_b32 v{vMx}, v{vT0}")
    a.nop(1)
    e(f"v_max_f32 v{vM}, v{vMx}, v{vT0}")
    e(f"v_mul_f32 v{vF}, s{sScale}, v{vM}")
    for k in range(nreg):
        e(f"v_fma_f32 v{S+k}, v{S+k}, s{sScale}, -v{vF}")
    for k in range(nreg):
        e(f"v_exp_f32 v{S+k}, v{S+k}")
    e(f"v_add_f32 v{vL}, v{S}, v{S+1}")
    e(f"v_add_f32 v{vT0}, v{S+2}, v{S+3}")
    for k in range(4, nreg, 2):
        e(f"v_add_f32 v{vL}, v{vL}, v{S+k}")
        e(f"v_add_f32 v{vT0}, v{vT0}, v{S+k+1}")
    for k in range(nreg//2):
        e(f"v_cvt_pk_bf16_f32 v{S+k}, v{S+2*k}, v{S+2*k+1}")
    e(f"v_add_f32 v{vL}, v{vL}, v{vT0}")
    e(f"v_mov_b32 v{vT0}, v{vL}")
    a.nop(2)
    e(f"v_permlane32_swap_b32 v{vL}, v{vT0}")
    a.nop(1)
    e(f"v_add_f32 v{vL}, v{vL}, v{vT0}")


def q_broadcast(a, name, tag, owner_reg_or_imm):
    e = a.e
    e(f"s_cmp_lg_u32 s{sWV}, {owner_reg_or_imm}")
    e(f"s_cbranch_scc1 {name}_{tag}_skip")
    e(f"v_add_u32 v{vA0}, {LDS_MISC}, v{vL16L}")
    for s in range(8):
        e(f"ds_write_b128 v{vA0}, v[{QOWN+4*s}:{QOWN+4*s+3}] offset:{s*1024}")
    e("s_waitcnt lgkmcnt(0)")
    a.label(f"{name}_{tag}_skip")
    bar(a)
    e(f"v_add_u32 v{vA0}, {LDS_MISC}, v{vL16L}")
    for s in range(8):
        e(f"ds_read_b128 v[{QCUR+4*s}:{QCUR+4*s+3}], v{vA0} offset:{s*1024}")
    e("s_waitcnt lgkmcnt(0)")


def gen_m1(a, name, pol):
    e = a.e
    sNext = sT5
    G = S + 32
    a.label(f"{name}_task")
    e(f"s_add_u32 s{sNext}, s{sKVoff}, s{sOoff}")
    e(f"s_cmp_lt_u32 s{sTask}, 3")
    e(f"s_cselect_b32 s{sNext}, s{sNext}, {OOB:#x}")
    slotreg = [sM0a, sM0b]
    none = lambda: None
    for T in range(4):
        if LOOK[0] == 2:
            if T < 2:
                hook = lambda T=T: issue_tile(e, SRD_K, slotreg[T & 1], sKVoff, (T+2)*32768, True, pol)
            else:
                hook = lambda T=T: issue_tile(e, SRD_V, slotreg[T & 1], sKVoff, (T-2)*32768, False, pol)
            k_tile(e, T, T & 1, hook)
        else:
            if T < 3:
                early = lambda T=T: issue_tile(e, SRD_K, slotreg[(T+1) & 1], sKVoff, (T+1)*32768, True, pol, T+1)
            else:
                early = lambda: issue_tile(e, SRD_V, sM0a, sKVoff, 0, False, pol, 0)
            if T == 2 and KPRE[0]:
                a.label(f"{name}_k2")
            k_tile(e, T, T & 1, none, early)
    softmax(a)
    e(f"s_cmp_ge_u32 s{sTask}, 3")
    e(f"s_cbranch_scc1 {name}_noq")
    e(f"s_add_u32 s{sT4}, s{sTask}, 1")
    q_broadcast(a, name, "qn", f"s{sT4}")
    a.label(f"{name}_noq")
    for T in range(4):
        if LOOK[0] == 2:
            if T < 2:
                hook = lambda T=T: issue_tile(e, SRD_V, slotreg[T & 1], sKVoff, (T+2)*32768, False, pol)
            elif T == 2:
                hook = lambda: issue_tile(e, SRD_K, sM0a, sNext, 0, True, pol)
            else:
                hook = lambda: None
            v_tile(e, T, T & 1, hook)
        else:
            if T < 3:
                early = lambda T=T: issue_tile(e, SRD_V, slotreg[(T+1) & 1], sKVoff, (T+1)*32768, False, pol, T+1)
            else:
                early = lambda: issue_tile(e, SRD_K, sM0a, sNext, 0, True, pol, 0)
            v_tile(e, T, T & 1, none, early)
    if MERGE[0] == "atomic":
        e(f"v_and_b32 v{vT0}, 31, v0")
        e(f"v_lshlrev_b32 v{vT0}, 3, v{vT0}")
        e(f"v_add_u32 v{vT0}, {LDS_MISC + 8192}, v{vT0}")
        e(f"v_add_u32 v{vT0}, s{sLB}, v{vT0}")
        e(f"s_lshl_b32 s{sT0}, s{sWV}, 8")
        e(f"v_add_u32 v{vA0}, s{sT0}, v{vT0}")
        e(f"v_add_u32 v{vA1}, s{sM0b}, v{vLane16}")
        e(f"ds_write_b32 v{vA0}, v{vM}")
        e(f"ds_write_b32 v{vA0}, v{vL} offset:4")
        for j in range(4):
            e(f"v_mov_b32 v{G+j}, 0")
        for j in range(4):
            e(f"ds_write_b128 v{vA1}, v[{G}:{G+3}] offset:{j*1024}")
        e("s_waitcnt lgkmcnt(0)")
        bar(a)
        for k in range(4):
            e(f"s_sub_u32 s{sT0}, s{sWV}, {k}")
            e(f"s_and_b32 s{sT0}, s{sT0}, 3")
            e(f"s_lshl_b32 s{sT0}, s{sT0}, 8")
            e(f"v_add_u32 v{vA0}, s{sT0}, v{vT0}")
            e(f"ds_read_b64 v[{G+2*k}:{G+2*k+1}], v{vA0}")
        e("s_waitcnt lgkmcnt(0)")
        e(f"v_max3_f32 v{vMx}, v{G}, v{G+2}, v{G+4}")
        e(f"v_max_f32 v{vMx}, v{vMx}, v{G+6}")
        e(f"v_mul_f32 v{vMx}, s{sScale}, v{vMx}")
        for k in range(4):
            e(f"v_fma_f32 v{G+2*k}, v{G+2*k}, s{sScale}, -v{vMx}")
        for k in range(4):
            e(f"v_exp_f32 v{G+2*k}, v{G+2*k}")
        a.nop(1)
        e(f"v_mul_f32 v{vF}, v{G}, v{G+1}")
        for k in range(1, 4):
            e(f"v_fma_f32 v{vF}, v{G+2*k}, v{G+2*k+1}, v{vF}")
        e(f"v_rcp_f32 v{vF}, v{vF}")
        a.nop(1)
        e(f"v_mul_f32 v{G}, v{G}, v{vF}")
        for j in range(64):
            e(f"v_mul_f32 v{O+j}, v{O+j}, v{G}")
        for k in range(1, 4):
            e(f"s_add_u32 s{sT0}, s{sWV}, {k}")
            e(f"s_and_b32 s{sT0}, s{sT0}, 3")
            e(f"s_lshl_b32 s{sT0}, s{sT0}, 13")
            e(f"s_add_u32 s{sT0}, s{sT0}, {LDS_RING1}")
            e(f"s_add_u32 s{sT0}, s{sT0}, s{sLB}")
            e(f"v_lshl_add_u32 v{vA0}, v0, 2, s{sT0}")
            for j in range(16):
                e(f"ds_add_f32 v{vA0}, v{O+16*k+j} offset:{j*256}")
        e("s_waitcnt lgkmcnt(0)")
        bar(a)
        TI = S
        e(f"v_lshl_add_u32 v{vA0}, v0, 2, s{sM0b}")
        for j in range(16):
            e(f"ds_read_b32 v{TI+j}, v{vA0} offset:{j*256}")
        e("s_waitcnt lgkmcnt(0)")
        if LOOK[0] == 2:
            issue_tile(e, SRD_K, sM0b, sNext, 32768, True, pol)
        for j in range(16):
            e(f"v_add_f32 v{O+j}, v{O+j}, v{TI+j}")
    else:
        e(f"v_and_b32 v{vT0}, 31, v0")
        e(f"v_lshlrev_b32 v{vT0}, 3, v{vT0}")
        e(f"v_add_u32 v{vT0}, {LDS_MISC + 8192}, v{vT0}")
        e(f"v_add_u32 v{vT0}, s{sLB}, v{vT0}")
        e(f"s_lshl_b32 s{sT0}, s{sWV}, 8")
        e(f"v_add_u32 v{vA0}, s{sT0}, v{vT0}")
        e(f"v_add_u32 v{vA1}, s{sM0b}, v{vLane16}")
        e(f"ds_write_b32 v{vA0}, v{vM}")
        e(f"ds_write_b32 v{vA0}, v{vL} offset:4")
        a.nop(10)
        for k in (1, 2):
            for j in range(4):
                e(f"ds_write_b128 v{vA1}, v[{O+16*k+4*j}:{O+16*k+4*j+3}] offset:{(k-1)*4096 + j*1024}")
        e("s_waitcnt lgkmcnt(0)")
        bar(a)
        for k in range(4):
            e(f"s_sub_u32 s{sT0}, s{sWV}, {k}")
            e(f"s_and_b32 s{sT0}, s{sT0}, 3")
            e(f"s_lshl_b32 s{sT0}, s{sT0}, 8")
            e(f"v_add_u32 v{vA0}, s{sT0}, v{vT0}")
            e(f"ds_read_b64 v[{G+2*k}:{G+2*k+1}], v{vA0}")
        TI = S
        for k in (1, 2):
            e(f"s_sub_u32 s{sT0}, s{sWV}, {k}")
            e(f"s_and_b32 s{sT0}, s{sT0}, 3")
            e(f"s_lshl_b32 s{sT0}, s{sT0}, 13")
            e(f"s_add_u32 s{sT0}, s{sT0}, {LDS_RING1 + (k-1)*4096}")
            e(f"v_add_u32 v{vA0}, s{sT0}, v{vL16L}")
            for j in range(4):
                e(f"ds_read_b128 v[{TI+16*(k-1)+4*j}:{TI+16*(k-1)+4*j+3}], v{vA0} offset:{j*1024}")
        e("s_waitcnt lgkmcnt(8)")
        e(f"v_max3_f32 v{vMx}, v{G}, v{G+2}, v{G+4}")
        e(f"v_max_f32 v{vMx}, v{vMx}, v{G+6}")
        e(f"v_mul_f32 v{vMx}, s{sScale}, v{vMx}")
        for k in range(4):
            e(f"v_fma_f32 v{G+2*k}, v{G+2*k}, s{sScale}, -v{vMx}")
        for k in range(4):
            e(f"v_exp_f32 v{G+2*k}, v{G+2*k}")
        a.nop(1)
        e(f"v_mul_f32 v{vF}, v{G}, v{G+1}")
        for k in range(1, 4):
            e(f"v_fma_f32 v{vF}, v{G+2*k}, v{G+2*k+1}, v{vF}")
        e(f"v_rcp_f32 v{vF}, v{vF}")
        a.nop(1)
        for k in range(4):
            e(f"v_mul_f32 v{G+2*k}, v{G+2*k}, v{vF}")
        for j in range(16):
            e(f"v_mul_f32 v{O+j}, v{O+j}, v{G}")
        e("s_waitcnt lgkmcnt(0)")
        for k in (1, 2):
            for j in range(16):
                e(f"v_fma_f32 v{O+j}, v{TI+16*(k-1)+j}, v{G+2*k}, v{O+j}")
        bar(a)
        for j in range(4):
            e(f"ds_write_b128 v{vA1}, v[{O+48+4*j}:{O+48+4*j+3}] offset:{j*1024}")
        e("s_waitcnt lgkmcnt(0)")
        bar(a)
        e(f"s_sub_u32 s{sT0}, s{sWV}, 3")
        e(f"s_and_b32 s{sT0}, s{sT0}, 3")
        e(f"s_lshl_b32 s{sT0}, s{sT0}, 13")
        e(f"s_add_u32 s{sT0}, s{sT0}, {LDS_RING1}")
        e(f"v_add_u32 v{vA0}, s{sT0}, v{vL16L}")
        for j in range(4):
            e(f"ds_read_b128 v[{TI+4*j}:{TI+4*j+3}], v{vA0} offset:{j*1024}")
        e("s_waitcnt lgkmcnt(0)")
        bar(a)
        if LOOK[0] == 2:
            issue_tile(e, SRD_K, sM0b, sNext, 32768, True, pol)
        for j in range(16):
            e(f"v_fma_f32 v{O+j}, v{TI+j}, v{G+6}, v{O+j}")
    for k in range(24):
        e(f"v_mov_b32 v{DEF+k}, v{DEF+8+k}")
    for j in range(8):
        e(f"v_cvt_pk_bf16_f32 v{DEF+24+j}, v{O+2*j}, v{O+2*j+1}")
    if TIMING[0]:
        ts_mark(a, 76)
        for k in range(4):
            e(f"s_cmp_eq_u32 s{sTask}, {k}")
            e(f"s_cselect_b32 s{MK[2+k]}, s76, s{MK[2+k]}")
    e(f"s_mov_b32 s{sKVoff}, s{sNext}")
    e(f"s_add_u32 s{sTask}, s{sTask}, 1")
    e(f"s_cmp_lt_u32 s{sTask}, 4")
    e(f"s_cbranch_scc1 {name}_task")
    e("s_waitcnt vmcnt(0)")
    e(f"s_xor_b32 s{sT0}, s{sRole}, 1")
    e(f"s_lshl_b32 s{sT0}, s{sT0}, 23")
    e(f"s_lshl_b32 s{sT1}, s{sI}, 18")
    e(f"s_add_u32 s{sT0}, s{sT0}, s{sT1}")
    e(f"s_lshl_b32 s{sT1}, s{sH}, 13")
    e(f"s_add_u32 s{sT0}, s{sT0}, s{sT1}")
    e(f"s_lshl_b32 s{sT1}, s{sWV}, 11")
    e(f"s_add_u32 s{sT0}, s{sT0}, s{sT1}")
    for r in range(4):
        for sg in range(2):
            e(f"buffer_store_dwordx4 v[{DEF+8*r+4*sg}:{DEF+8*r+4*sg+3}], v{vLane16}, s[{SRD_O}:{SRD_O+3}], s{sT0} offen offset:{sg*1024} {OPOL[0]}")
        if r < 3:
            e(f"s_add_u32 s{sT0}, s{sT0}, {8*262144}")


def gen_touch(a, pol):
    e = a.e
    vD = S
    e(f"s_bfe_u32 s{sT2}, s2, 0x50003")
    e(f"v_lshrrev_b32 v{vT0}, 4, v0")
    e(f"v_lshlrev_b32 v{vT0}, 13, v{vT0}")
    e(f"v_and_b32 v{vT1}, 15, v0")
    e(f"v_lshlrev_b32 v{vT1}, 7, v{vT1}")
    e(f"v_add_u32 v{vT0}, v{vT0}, v{vT1}")
    e(f"s_lshl_b32 s{sT0}, s{sWV}, 5")
    e(f"s_add_u32 s{sT0}, s{sT0}, s{sT2}")
    e(f"s_lshl_b32 s{sT0}, s{sT0}, 15")
    e(f"s_lshr_b32 s{sT1}, s{sX}, 1")
    e(f"s_lshl_b32 s{sT1}, s{sT1}, 11")
    e(f"s_add_u32 s{sT0}, s{sT0}, s{sT1}")
    e(f"s_add_u32 s{sT1}, s{sT0}, {128*4*8192}")
    e(f"s_lshl_b32 s{sT3}, s{sWV}, 5")
    e(f"s_add_u32 s{sT3}, s{sT3}, s{sT2}")
    e(f"s_and_b32 s{sT2}, s{sT3}, 7")
    e(f"s_lshl_b32 s{sT2}, s{sT2}, 6")
    e(f"v_add_u32 v{vT1}, s{sT2}, v0")
    e(f"v_bfe_u32 v{vT2}, v{vT1}, 5, 2")
    e(f"v_lshrrev_b32 v{vT3}, 7, v{vT1}")
    e(f"v_lshlrev_b32 v{vT3}, 3, v{vT3}")
    e(f"v_add_u32 v{vT2}, v{vT2}, v{vT3}")
    e(f"v_lshlrev_b32 v{vT2}, 5, v{vT2}")
    e(f"v_and_b32 v{vT1}, 31, v{vT1}")
    e(f"v_add_u32 v{vT1}, v{vT1}, v{vT2}")
    e(f"v_lshlrev_b32 v{vT1}, 11, v{vT1}")
    e(f"s_lshr_b32 s{sT3}, s{sT3}, 3")
    e(f"s_lshl_b32 s{sT3}, s{sT3}, 7")
    e(f"s_and_b32 s{sT2}, s{sX}, 1")
    e(f"s_lshl_b32 s{sT2}, s{sT2}, 18")
    e(f"s_add_u32 s{sT3}, s{sT3}, s{sT2}")
    e(f"buffer_load_dword v{vD}, v{vT0}, s[{SRD_W}:{SRD_W+3}], s{sT0} offen {pol}")
    e(f"buffer_load_dword v{vD+1}, v{vT1}, s[{SRD_X}:{SRD_X+3}], s{sT3} offen {pol}")
    e(f"buffer_load_dword v{vD+2}, v{vT0}, s[{SRD_W}:{SRD_W+3}], s{sT1} offen {pol}")


def poll_counter(a, label, off_reg, mask, shift_reg, target, bound, sleep=8):
    e = a.e
    e(f"v_mov_b32 v{vT0}, s{off_reg}")
    if bound:
        e(f"s_mov_b32 s{sT3}, {bound}")
    a.label(label)
    e(f"buffer_load_dword v{vT1}, v{vT0}, s[{SRD_D}:{SRD_D+3}], 0 offen sc1")
    e("s_waitcnt vmcnt(0)")
    e(f"v_readfirstlane_b32 s{sT1}, v{vT1}")
    a.nop(3)
    if shift_reg is not None:
        e(f"s_lshr_b32 s{sT1}, s{sT1}, s{shift_reg}")
    e(f"s_and_b32 s{sT1}, s{sT1}, {mask}")
    e(f"s_cmp_ge_u32 s{sT1}, {target}")
    e(f"s_cbranch_scc1 {label}_ok")
    if bound:
        e(f"s_sub_u32 s{sT3}, s{sT3}, 1")
        e(f"s_cmp_eq_u32 s{sT3}, 0")
        e(f"s_cbranch_scc1 {label}_ok")
    e(f"s_sleep {sleep}")
    e(f"s_branch {label}")
    a.label(label + "_ok")


def signal(a, label, off_reg, val_reg_or_imm):
    e = a.e
    e(f"s_cmp_lg_u32 s{sWV}, 0")
    e(f"s_cbranch_scc1 {label}")
    e(f"v_mov_b32 v{vT0}, s{off_reg}")
    e(f"v_mov_b32 v{vT1}, {val_reg_or_imm}")
    e(f"v_cmp_eq_u32 vcc, 0, v0")
    e(f"s_and_saveexec_b64 s[{sT2}:{sT3}], vcc")
    e(f"buffer_atomic_add v{vT1}, v{vT0}, s[{SRD_D}:{SRD_D+3}], 0 offen sc1")
    e(f"s_mov_b64 exec, s[{sT2}:{sT3}]")
    a.label(label)


def gen_flash(a, name, pol):
    e = a.e
    FK = [QOWN, DEF]
    sNextK, sNextV = sT4, sT5
    e(f"s_lshl_b32 s{sT0}, s{sB}, 5")
    e(f"s_add_u32 s{sT0}, s{sT0}, s{sH}")
    e(f"s_lshl_b32 s{sT0}, s{sT0}, 13")
    e(f"s_add_u32 s{sT0}, s{sT0}, {QWS_OFF}")
    for s in range(8):
        if s == 4:
            e(f"s_add_u32 s{sT0}, s{sT0}, 4096")
        e(f"buffer_store_dwordx4 v[{QOWN+4*s}:{QOWN+4*s+3}], v{vLane16}, s[{SRD_O}:{SRD_O+3}], s{sT0} offen offset:{(s%4)*1024} {QST[0]}")
    e("s_waitcnt vmcnt(0)")
    if XM[0]: mark(a, 3)
    bar(a)
    e(f"v_readfirstlane_b32 s{sNonce}, v{vNon}")
    a.nop(3)
    e(f"s_mul_i32 s{sNonce}, s{sNonce}, 0x9e3779b1")
    e(f"s_add_u32 s{sNonce}, s{sNonce}, 0x7f4a7c15")
    e(f"s_cmp_lg_u32 s{sWV}, 0")
    e(f"s_cbranch_scc1 {name}_qwait")
    e(f"s_and_b32 s{sT0}, s{sH}, 3")
    e(f"s_lshl_b32 s{sT0}, s{sT0}, 2")
    e(f"s_add_u32 s{sT0}, s{sT0}, s{sFlag}")
    e(f"s_add_u32 s{sT0}, s{sT0}, 16")
    e(f"v_mov_b32 v{vT0}, 0")
    e(f"v_mov_b32 v{vT1}, s{sNonce}")
    e(f"v_cmp_eq_u32 vcc, 0, v0")
    e(f"s_and_saveexec_b64 s[{sT2}:{sT3}], vcc")
    e(f"buffer_store_dword v{vT1}, v{vT0}, s[{SRD_O}:{SRD_O+3}], s{sT0} offen sc0 sc1")
    e(f"s_mov_b64 exec, s[{sT2}:{sT3}]")
    if SPOLL[0]:
        e(f"s_add_u32 s56, s{SRD_O}, s{sFlag}")
        e(f"s_addc_u32 s57, s{SRD_O+1}, 0")
        a.label(f"{name}_spinq")
        e(f"s_load_dwordx4 s[52:55], s[56:57], 16 glc")
        e("s_waitcnt lgkmcnt(0)")
        e(f"s_xor_b32 s{sT0}, s52, s{sNonce}")
        for k in range(1, 4):
            e(f"s_xor_b32 s{sT1}, s{52+k}, s{sNonce}")
            e(f"s_or_b32 s{sT0}, s{sT0}, s{sT1}")
        e(f"s_cmp_eq_u32 s{sT0}, 0")
        e(f"s_cbranch_scc1 {name}_pollq")
        e("s_sleep 2")
        e(f"s_branch {name}_spinq")
    a.label(f"{name}_pollq")
    e(f"buffer_load_dwordx4 v[{S}:{S+3}], v{vT0}, s[{SRD_O}:{SRD_O+3}], s{sFlag} offen offset:16 sc0 sc1")
    e("s_waitcnt vmcnt(0)")
    for k in range(4):
        e(f"v_xor_b32 v{S+k}, s{sNonce}, v{S+k}")
    e(f"v_or3_b32 v{S}, v{S}, v{S+1}, v{S+2}")
    e(f"v_or_b32 v{S}, v{S}, v{S+3}")
    a.nop(1)
    e(f"v_readfirstlane_b32 s{sT1}, v{S}")
    a.nop(3)
    e(f"s_cmp_eq_u32 s{sT1}, 0")
    e(f"s_cbranch_scc1 {name}_pollq_ok")
    e(f"s_sleep {SLEEPQ[0]}")
    e(f"s_branch {name}_pollq")
    a.label(f"{name}_pollq_ok")
    if XM[0]: mark(a, 4)
    e(f"v_cmp_eq_u32 vcc, 0, v0")
    e(f"s_and_saveexec_b64 s[{sT2}:{sT3}], vcc")
    e(f"buffer_store_dword v{vT1}, v{vT0}, s[{SRD_O}:{SRD_O+3}], s{sFlag} offen sc0 sc1")
    e(f"s_mov_b64 exec, s[{sT2}:{sT3}]")
    if INV[0]:
        e("buffer_inv sc1")
    e("s_waitcnt vmcnt(0)")
    if XM[0]: mark(a, 5)
    a.label(f"{name}_qwait")
    bar(a)
    mark(a, 2)
    e(f"s_lshl_b32 s{sT0}, s{sBs}, 5")
    e(f"s_lshl_b32 s{sT1}, s{sHq}, 2")
    e(f"s_add_u32 s{sT1}, s{sT1}, s{sWV}")
    e(f"s_add_u32 s{sT0}, s{sT0}, s{sT1}")
    e(f"s_lshl_b32 s{sT0}, s{sT0}, 13")
    e(f"s_add_u32 s{sT0}, s{sT0}, {QWS_OFF}")
    for s in range(8):
        if s == 4:
            e(f"s_add_u32 s{sT0}, s{sT0}, 4096")
        e(f"buffer_load_dwordx4 v[{QCUR+4*s}:{QCUR+4*s+3}], v{vLane16}, s[{SRD_O}:{SRD_O+3}], s{sT0} offen offset:{(s%4)*1024} {QST[1]}")
    issue_tile(e, SRD_K, sM0a, sKVoff, 0, True, pol)
    issue_tile(e, SRD_V, sM0b, sKVoff, 0, False, pol)
    for s in range(8):
        e(f"v_subrev_u32 v{vKR+s}, s{sW8}, v{vKR+s}")
    e(f"s_lshl_b32 s{sT0}, s{sWV}, 6")
    e(f"v_subrev_u32 v{vT2}, s{sW8}, v{vVR}")
    e(f"v_xor_b32 v{vT2}, s{sT0}, v{vT2}")
    for k in range(4):
        e(f"v_xor_b32 v{vVR+k}, {k*64}, v{vT2}")
    for j in range(64):
        e(f"v_mov_b32 v{O+j}, 0")
    e(f"v_mov_b32 v{vM}, 0xff7fffff")
    e(f"v_mov_b32 v{vL}, 0")
    e(f"s_mov_b32 s{sTask}, 0")
    a.label(f"{name}_chunk")
    e(f"s_add_u32 s{sNextK}, s{sKVoff}, 32768")
    e(f"s_cmp_lt_u32 s{sTask}, 3")
    e(f"s_cselect_b32 s{sNextK}, s{sNextK}, {OOB:#x}")
    e("s_waitcnt vmcnt(8)")
    bar(a)
    def rk(T):
        for s in range(8):
            e(f"ds_read_b128 v[{FK[T&1]+4*s}:{FK[T&1]+4*s+3}], v{vKR+s} offset:{T*8192}")
    def mk(T):
        for s in range(8):
            mfma(e, S+16*T, FK[T&1]+4*s, QCUR+4*s, "0" if s == 0 else None)
    rk(0); rk(1)
    e("s_waitcnt lgkmcnt(8)")
    mk(0)
    rk(2)
    e("s_waitcnt lgkmcnt(8)")
    mk(1)
    rk(3)
    e("s_waitcnt lgkmcnt(8)")
    mk(2)
    e("s_waitcnt lgkmcnt(0)")
    bar(a)
    issue_tile(e, SRD_K, sM0a, sNextK, 0, True, pol)
    mk(3)
    e(f"v_max3_f32 v{vMx}, v{S}, v{S+1}, v{S+2}")
    e(f"v_max3_f32 v{vT0}, v{S+3}, v{S+4}, v{S+5}")
    k = 6; n = 0
    tgt = [vMx, vT0]
    while k + 1 < 64:
        e(f"v_max3_f32 v{tgt[n&1]}, v{tgt[n&1]}, v{S+k}, v{S+k+1}")
        k += 2; n += 1
    e(f"v_max3_f32 v{vMx}, v{vMx}, v{vT0}, v{vM}")
    e(f"v_mov_b32 v{vT0}, v{vMx}")
    a.nop(2)
    e(f"v_permlane32_swap_b32 v{vMx}, v{vT0}")
    a.nop(1)
    e(f"v_max_f32 v{vMx}, v{vMx}, v{vT0}")
    e(f"v_mul_f32 v{vF}, s{sScale}, v{vMx}")
    e(f"v_fma_f32 v{vT1}, v{vM}, s{sScale}, -v{vF}")
    e(f"v_exp_f32 v{vT1}, v{vT1}")
    e(f"v_mov_b32 v{vM}, v{vMx}")
    for k in range(64):
        e(f"v_fma_f32 v{S+k}, v{S+k}, s{sScale}, -v{vF}")
    for k in range(64):
        e(f"v_exp_f32 v{S+k}, v{S+k}")
    for k in range(64):
        e(f"v_mul_f32 v{O+k}, v{O+k}, v{vT1}")
    e(f"v_add_f32 v{vT2}, v{S}, v{S+1}")
    e(f"v_add_f32 v{vT0}, v{S+2}, v{S+3}")
    for k in range(4, 64, 2):
        e(f"v_add_f32 v{vT2}, v{vT2}, v{S+k}")
        e(f"v_add_f32 v{vT0}, v{vT0}, v{S+k+1}")
    for k in range(32):
        e(f"v_cvt_pk_bf16_f32 v{S+k}, v{S+2*k}, v{S+2*k+1}")
    e(f"v_add_f32 v{vT2}, v{vT2}, v{vT0}")
    e(f"v_fma_f32 v{vL}, v{vL}, v{vT1}, v{vT2}")
    e("s_waitcnt vmcnt(8)")
    bar(a)
    FV = [S+32, QOWN]
    def rv(T):
        for k in range(4):
            for u in range(2):
                for half in range(2):
                    r = FV[T&1] + 8*k + 4*u + 2*half
                    e(f"ds_read_b64_tr_b16 v[{r}:{r+1}], v{vVR+k} offset:{LDS_RING1 + T*8192 + (16*u+8*half)*256}")
    def mv(T):
        for u in range(2):
            for k in range(4):
                mfma(e, O+16*k, FV[T&1]+8*k+4*u, S+8*T+4*u)
    rv(0)
    e("s_waitcnt lgkmcnt(0)")
    rv(1); mv(0)
    e("s_waitcnt lgkmcnt(0)")
    rv(2); mv(1)
    e("s_waitcnt lgkmcnt(0)")
    rv(3); mv(2)
    e("s_waitcnt lgkmcnt(0)")
    bar(a)
    issue_tile(e, SRD_V, sM0b, sNextK, 0, False, pol)
    mv(3)
    if TIMING[0]:
        ts_mark(a, 76)
        for k in range(4):
            e(f"s_cmp_eq_u32 s{sTask}, {k}")
            if not XM[0] or k == 3:
                e(f"s_cselect_b32 s{MK[3+k]}, s76, s{MK[3+k]}")
    e(f"s_mov_b32 s{sKVoff}, s{sNextK}")
    e(f"s_add_u32 s{sTask}, s{sTask}, 1")
    e(f"s_cmp_lt_u32 s{sTask}, 4")
    e(f"s_cbranch_scc1 {name}_chunk")
    e(f"v_mov_b32 v{vT0}, v{vL}")
    a.nop(2)
    e(f"v_permlane32_swap_b32 v{vL}, v{vT0}")
    a.nop(1)
    e(f"v_add_f32 v{vL}, v{vL}, v{vT0}")
    e(f"v_rcp_f32 v{vF}, v{vL}")
    a.nop(8)
    for k in range(64):
        e(f"v_mul_f32 v{O+k}, v{O+k}, v{vF}")
    for k in range(32):
        e(f"v_cvt_pk_bf16_f32 v{S+k}, v{O+2*k}, v{O+2*k+1}")
    e("s_waitcnt vmcnt(0)")
    e(f"s_lshl_b32 s{sT0}, s{sBs}, 18")
    e(f"s_lshl_b32 s{sT1}, s{sHq}, 2")
    e(f"s_add_u32 s{sT1}, s{sT1}, s{sWV}")
    e(f"s_lshl_b32 s{sT1}, s{sT1}, 13")
    e(f"s_add_u32 s{sT0}, s{sT0}, s{sT1}")
    for f in range(8):
        if f == 4:
            e(f"s_add_u32 s{sT0}, s{sT0}, 4096")
        e(f"buffer_store_dwordx4 v[{S+4*f}:{S+4*f+3}], v{vLane16}, s[{SRD_O}:{SRD_O+3}], s{sT0} offen offset:{(f%4)*1024} {OPOL[0]}")


def gen_attn(a, name, timing=False, pol_x="nt", pol_w="nt", pol_kv="nt", touch=True, delay_a=True, thresh=32, bound=64, qmarks=False, only=None, qonly=False, qskip='', qorder='adv', look=2, prio_a=0, prio_b=0, touch_a=False, sleep_q=8, sleep_b=48, xmarks=False, use_inv=False, altprio=False, vdep=False, kpre=False, merge='', fuse2=False, codepf=0, gran=8192, krot=False, qpipe=False, endwb=False, spoll=False, fuse=False, p3opt=None, opol='', gsleep=1, psig=10, pairwait=0, wo_early=None, asym=False, pol_kv_a=None, clk=False, single=False, exp_sleep=0, wo_pf=None, wtouch=0, prio_flash=0, qst='sc0 sc1', qld='sc0 sc1'):
    kernel_header(a, name)
    e = a.e
    TIMING[0] = timing
    QMARKS[0] = qmarks
    QSKIP[0] = qskip
    QORDER[0] = qorder
    LOOK[0] = look
    SLEEPQ[0] = sleep_q
    XM[0] = xmarks
    ALT[0] = altprio
    ASYM[0] = asym
    KPRE[0] = kpre
    MERGE[0] = merge
    KROT[0] = krot
    GRAN[0] = gran
    SPOLL[0] = spoll
    OPOL[0] = opol
    GSLEEP[0] = gsleep
    PSIG[0] = psig if pairwait else 0
    SINGLE[0] = single
    GB[0] = 0
    WT[0] = wtouch
    INV[0] = use_inv
    QST[0] = qst
    QST[1] = qld
    gen_prologue(a, name, timing)
    if only == "B":
        e(f"s_cmp_lg_u32 s{sRole}, 0")
        e(f"s_cbranch_scc1 {name}_done")
    if only == "A":
        e(f"s_cmp_eq_u32 s{sRole}, 0")
        e(f"s_cbranch_scc1 {name}_done")
    if timing:
        for k in range(8):
            e(f"s_mov_b32 s{MK[k]}, 0")
    e(f"s_and_b32 s{sT2}, s{sH}, 3")
    e(f"s_lshl_b32 s{sT2}, s{sT2}, 3")
    e(f"s_add_u32 s{sBs}, s{sT2}, s{sI}")
    e(f"s_lshr_b32 s{sHq}, s{sH}, 2")
    e(f"s_lshl_b32 s{sT0}, s{sI}, 5")
    e(f"s_add_u32 s{sT0}, s{sT0}, s{sH}")
    e(f"s_lshl_b32 s{sT1}, s{sBs}, 2")
    e(f"s_lshr_b32 s{sT2}, s{sH}, 3")
    e(f"s_add_u32 s{sT1}, s{sT1}, s{sT2}")
    e(f"s_cmp_eq_u32 s{sRole}, 0")
    e(f"s_cselect_b32 s{sKVoff}, s{sT0}, s{sT1}")
    e(f"s_lshl_b32 s{sKVoff}, s{sKVoff}, 17")
    if GRAN[0] == 8192:
        e(f"s_add_u32 s{sKVoff}, s{sKVoff}, s{sW8}")
    else:
        e(f"s_lshl_b32 s{sT0}, s{sWV}, 12")
        e(f"s_add_u32 s{sKVoff}, s{sKVoff}, s{sT0}")
    if krot:
        if krot == 1:
            e(f"s_and_b32 s{sT0}, s{sH}, 3")
        elif krot == 2:
            e(f"s_add_u32 s{sT0}, s{sH}, s{sI}")
        else:
            e(f"s_lshr_b32 s{sT0}, s{sH}, 1")
            e(f"s_add_u32 s{sT0}, s{sT0}, s{sI}")
        for T in range(4):
            e(f"s_add_u32 s{88+T}, s{sT0}, {T}")
            e(f"s_and_b32 s{88+T}, s{88+T}, 3")
            e(f"s_lshl_b32 s{88+T}, s{88+T}, 15")
    e(f"s_mov_b32 s{sOoff}, {8*32*131072}")
    if pairwait:
        e(f"s_and_b32 s{sT0}, s2, 255")
        e(f"s_lshl_b32 s{sT0}, s{sT0}, 8")
        e(f"s_add_u32 s{sT0}, s{sT0}, {PAIR_OFF}")
        e(f"s_add_u32 s{sPairP}, s{SRD_O}, s{sT0}")
        e(f"s_addc_u32 s{sPairP+1}, s{SRD_O+1}, 0")
        e(f"s_load_dword s{sPairN}, s[{sPairP}:{sPairP+1}], 0 glc")
    sNB, sNA, sNC = 82, 83, 75
    def dep_line(dst, br_expr, i_reg, kh_reg):
        e(f"s_lshl_b32 s{dst}, s{i_reg}, 1")
        e(f"s_add_u32 s{dst}, s{dst}, s{kh_reg}")
        if br_expr != 0:
            e(f"s_add_u32 s{dst}, s{dst}, {br_expr}")
        e(f"s_lshl_b32 s{dst}, s{dst}, 8")
        e(f"s_add_u32 s{dst}, s{dst}, {DEP_OFF}")
    def cons_coords(rbr, ri, rkh, ridx):
        e(f"s_lshr_b32 s{rbr}, s{sX}, 2")
        e(f"s_lshl_b32 s{rbr}, s{rbr}, 4")
        e(f"s_bfe_u32 s{rkh}, s{sX}, 0x10001")
        e(f"s_bfe_u32 s{ri}, s2, 0x30005")
        e(f"s_and_b32 s{ridx}, s{sX}, 1")
        e(f"s_lshl_b32 s{ridx}, s{ridx}, 2")
        e(f"s_bfe_u32 s{sT3}, s2, 0x20003")
        e(f"s_add_u32 s{ridx}, s{ridx}, s{sT3}")
    if fuse2:
        e(f"s_lshr_b32 s{sT2}, s{sH}, 4")
        e(f"v_mov_b32 v{vT0}, 0")
        dep_line(sT0, 16, sI, sT2)
        e(f"buffer_load_dword v{DEF+26}, v{vT0}, s[{SRD_O}:{SRD_O+3}], s{sT0} offen sc1")
        dep_line(sT0, 0, sI, sT2)
        e(f"buffer_load_dword v{DEF+27}, v{vT0}, s[{SRD_O}:{SRD_O+3}], s{sT0} offen sc1")
        cons_coords(sT4, sT5, sT2, sT1)
        dep_line(sT0, f"s{sT4}", sT5, sT2)
        e(f"buffer_load_dword v{DEF+28}, v{vT0}, s[{SRD_O}:{SRD_O+3}], s{sT0} offen sc1")
    if fuse:
        import phase3
        phase3.entry_loads(a)
    e(f"s_cmp_eq_u32 s{sRole}, 0")
    e(f"s_cbranch_scc1 {name}_startb")
    if pairwait:
        e("s_waitcnt lgkmcnt(0)")
        e(f"s_mul_i32 s{sPairN}, s{sPairN}, 0x9e3779b1")
        e(f"s_add_u32 s{sPairN}, s{sPairN}, 0x7f4a7c15")
        e(f"s_mov_b32 s{sT3}, {pairwait}")
        a.label(f"{name}_pw")
        e(f"s_load_dword s{sT1}, s[{sPairP}:{sPairP+1}], 16 glc")
        e("s_waitcnt lgkmcnt(0)")
        e(f"s_cmp_eq_u32 s{sT1}, s{sPairN}")
        e(f"s_cbranch_scc1 {name}_pw_ok")
        e(f"s_sub_u32 s{sT3}, s{sT3}, 1")
        e(f"s_cmp_eq_u32 s{sT3}, 0")
        e(f"s_cbranch_scc1 {name}_pw_ok")
        e("s_sleep 4")
        e(f"s_branch {name}_pw")
        a.label(f"{name}_pw_ok")
        e(f"s_cmp_lg_u32 s{sWV}, 0")
        e(f"s_cbranch_scc1 {name}_pw_d")
        e(f"s_and_b32 s{sT0}, s2, 255")
        e(f"s_lshl_b32 s{sT0}, s{sT0}, 8")
        e(f"s_add_u32 s{sT0}, s{sT0}, {PAIR_OFF}")
        e(f"v_mov_b32 v{vT0}, 0")
        e(f"v_mov_b32 v{vT1}, s{sPairN}")
        e(f"v_cmp_eq_u32 vcc, 0, v0")
        e(f"s_and_saveexec_b64 s[{sT2}:{sT3}], vcc")
        e(f"buffer_store_dword v{vT1}, v{vT0}, s[{SRD_O}:{SRD_O+3}], s{sT0} offen sc0 sc1")
        e(f"s_mov_b64 exec, s[{sT2}:{sT3}]")
        a.label(f"{name}_pw_d")
    if codepf:
        e(f"s_getpc_b64 s[52:53]")
        a.label(f"{name}_pc")
        e(f"s_bfe_u32 s{sT0}, s2, 0x50003")
        e(f"s_lshl_b32 s{sT0}, s{sT0}, 2")
        e(f"s_add_u32 s{sT0}, s{sT0}, s{sWV}")
        e(f"s_mul_i32 s{sT0}, s{sT0}, {64*codepf}")
        e(f"s_add_u32 s52, s52, s{sT0}")
        e(f"s_addc_u32 s53, s53, 0")
        for k in range(codepf):
            e(f"s_load_dwordx16 s[56:71], s[52:53], {64*k}")
        e("s_waitcnt lgkmcnt(0)")
    if wo_early is not None:
        e(f"s_load_dwordx2 s[52:53], s[0:1], 32")
        e(f"s_load_dwordx2 s[54:55], s[0:1], 72")
        e(f"s_and_b32 s{sT0}, s2, 255")
        e(f"s_lshl_b32 s{sT0}, s{sT0}, 2")
        e(f"s_add_u32 s{sT0}, s{sT0}, s{sWV}")
        e(f"s_waitcnt lgkmcnt(0)")
        e(f"s_cmp_lt_u32 s{sT0}, 512")
        e(f"s_cselect_b32 s{SRD_T}, s52, s54")
        e(f"s_cselect_b32 s{SRD_T+1}, s53, s55")
        e(f"s_and_b32 s{SRD_T+1}, s{SRD_T+1}, 0xffff")
        e(f"s_mov_b32 s{SRD_T+2}, {4096*1024*2}")
        e(f"s_mov_b32 s{SRD_T+3}, 0x20000")
        e(f"s_and_b32 s{sT0}, s{sT0}, 511")
        e(f"s_lshl_b32 s{sT0}, s{sT0}, 14")
        e(f"v_lshlrev_b32 v{vT0}, 7, v0")
        e(f"buffer_load_dword v{vT2}, v{vT0}, s[{SRD_T}:{SRD_T+3}], s{sT0} offen {wo_early}")
        e(f"s_add_u32 s{sT0}, s{sT0}, 8192")
        e(f"buffer_load_dword v{vT3}, v{vT0}, s[{SRD_T}:{SRD_T+3}], s{sT0} offen {wo_early}")
        e("s_waitcnt vmcnt(0)")
    if asym:
        if kpre:
            e(f"s_mov_b32 s{SRD_T}, s{sPtr+10}")
            e(f"s_and_b32 s{SRD_T+1}, s{sPtr+11}, 0xffff")
            e(f"s_mov_b32 s{SRD_T+2}, {32*32*131072}")
            e(f"s_mov_b32 s{SRD_T+3}, 0x20000")
            e(f"s_lshl_b32 s{sT4}, s{sI}, 5")
            e(f"s_add_u32 s{sT4}, s{sT4}, s{sH}")
            e(f"s_lshl_b32 s{sT4}, s{sT4}, 17")
            e(f"s_add_u32 s{sT4}, s{sT4}, s{sW8}")
            e(f"s_lshl_b32 s{sT5}, s{sWV}, 14")
            e(f"s_add_u32 s{sT5}, s{sT5}, {LDS_BYTES}")
            issue_tile(e, SRD_T, sT5, sT4, 0, True, pol_kv)
            e(f"s_add_u32 s{sT5}, s{sT5}, 8192")
            issue_tile(e, SRD_T, sT5, sT4, 32768, True, pol_kv)
        for k in range(16):
            if kpre and k == 8:
                e("s_waitcnt vmcnt(0)")
            e("s_barrier")
        e("s_barrier")
        e(f"v_mov_b32 v{vT3}, 0")
        e(f"ds_write_b32 v{vBarA}, v{vT3}")
        e("s_waitcnt lgkmcnt(0)")
        e("s_barrier")
    if exp_sleep:
        for k in range(exp_sleep):
            e("s_sleep 127")
    if delay_a:
        e(f"s_lshl_b32 s{sT4}, s{sX}, 2")
        e(f"s_cmp_lg_u32 s{sWV}, 0")
        e(f"s_cbranch_scc1 {name}_await")
        poll_counter(a, f"{name}_pollb", sT4, 255, None, thresh, bound, sleep=sleep_b)
        a.label(f"{name}_await")
        e("s_barrier")
    e(f"s_lshl_b32 s{sFlag}, s{sHq}, 3")
    e(f"s_add_u32 s{sFlag}, s{sFlag}, s{sI}")
    e(f"s_lshl_b32 s{sFlag}, s{sFlag}, 8")
    e(f"s_add_u32 s{sFlag}, s{sFlag}, {FLAG_OFF}")
    e(f"v_mov_b32 v{vT0}, 0")
    e(f"buffer_load_dword v{vNon}, v{vT0}, s[{SRD_O}:{SRD_O+3}], s{sFlag} offen sc0 sc1")
    if prio_a:
        e(f"s_setprio {prio_a}")
    if touch_a:
        gen_touch(a, pol_w)
    e(f"s_branch {name}_q")
    a.label(f"{name}_startb")
    if prio_b:
        e(f"s_setprio {prio_b}")
    if touch:
        gen_touch(a, pol_w)
    a.label(f"{name}_q")
    mark(a, 0)
    if clk:
        e("s_memtime s[76:77]")
        e("s_waitcnt lgkmcnt(0)")
        e(f"s_mov_b32 s{MK[5]}, s76")

    def hook_w():
        e(f"s_cmp_lg_u32 s{sRole}, 0")
        e(f"s_cbranch_scc1 {name}_hw")
        if delay_a:
            e(f"s_lshl_b32 s{sT4}, s{sX}, 2")
            signal(a, f"{name}_sigb", sT4, "1")
        issue_tile(e, SRD_K, sM0a, sKVoff, 2*32768 if kpre else 0, True, pol_kv, 2 if kpre else 0)
        a.label(f"{name}_hw")
    def hook_x():
        if LOOK[0] != 2:
            return
        e(f"s_cmp_lg_u32 s{sRole}, 0")
        e(f"s_cbranch_scc1 {name}_hx")
        issue_tile(e, SRD_K, sM0b, sKVoff, 32768, True, pol_kv)
        a.label(f"{name}_hx")
    (gen_qproj_pipe if qpipe else gen_qproj)(a, name, pol_x, pol_w, hook_w, hook_x)
    if fuse2:
        for r, v in ((sNB, DEF+26), (sNA, DEF+27), (sNC, DEF+28)):
            e(f"v_readfirstlane_b32 s{r}, v{v}")
        a.nop(3)
        for r in (sNB, sNA, sNC):
            e(f"s_mul_i32 s{r}, s{r}, 0x9e3779b1")
            e(f"s_add_u32 s{r}, s{r}, 0x7f4a7c15")
        e(f"s_cmp_lg_u32 s{sWid}, 0")
        e(f"s_cbranch_scc1 {name}_noack")
        cons_coords(sT4, sT5, sT2, sT1)
        dep_line(sT0, f"s{sT4}", sT5, sT2)
        e(f"s_lshl_b32 s{sT1}, s{sT1}, 2")
        e(f"s_add_u32 s{sT0}, s{sT0}, s{sT1}")
        e(f"v_mov_b32 v{vT0}, 0")
        e(f"v_mov_b32 v{vT1}, s{sNC}")
        e(f"v_cmp_eq_u32 vcc, 0, v0")
        e(f"s_and_saveexec_b64 s[{sT2}:{sT3}], vcc")
        e(f"buffer_store_dword v{vT1}, v{vT0}, s[{SRD_O}:{SRD_O+3}], s{sT0} offen offset:32 sc1")
        e(f"s_mov_b64 exec, s[{sT2}:{sT3}]")
        a.label(f"{name}_noack")
    if fuse:
        phase3.pick_tags(a)
    mark(a, 1)
    if clk:
        e("s_memtime s[76:77]")
        e("s_waitcnt lgkmcnt(0)")
        e(f"s_sub_u32 s{MK[6]}, s76, s{MK[5]}")
        e(f"s_mov_b32 s{MK[5]}, 0")
    if ALT[0]:
        e("s_setprio 0")
    if qonly:
        e(f"s_branch {name}_end")
    if single and asym:
        e(f"s_cmp_lg_u32 s{sRole}, 0")
        e(f"s_cbranch_scc1 {name}_rolea")
        if kpre:
            e(f"s_add_u32 s{sT0}, s{sW8}, {LDS_BYTES}")
            for k in range(8):
                e(f"v_add_u32 v{S+k}, s{sT0}, v{vKR+k}")
            for T in range(2):
                for k in range(8):
                    e(f"ds_read_b128 v[{O+32*T+4*k}:{O+32*T+4*k+3}], v{S+k} offset:{T*8192}")
            e("s_waitcnt lgkmcnt(0)")
        e("s_barrier")
        e(f"v_mov_b32 v{vT3}, 0")
        e(f"ds_write_b32 v{vBarA}, v{vT3}")
        e("s_waitcnt lgkmcnt(0)")
        e("s_barrier")
    elif single:
        e("s_barrier")
        e(f"v_mov_b32 v{vT3}, 0")
        e(f"ds_write_b32 v{vBarA}, v{vT3}")
        e("s_waitcnt lgkmcnt(0)")
        e("s_barrier")
    e(f"s_cmp_lg_u32 s{sRole}, 0")
    e(f"s_cbranch_scc1 {name}_rolea")
    if not single:
        e("s_barrier")
    q_broadcast(a, name, "q0", "0")
    e(f"s_mov_b32 s{sTask}, 0")
    if kpre:
        e(f"s_add_u32 s{sT5}, s{sKVoff}, s{sOoff}")
        for T in range(2):
            for k in range(8):
                mfma(e, S+16*T, O+32*T+4*k, QCUR+4*k, "0" if k == 0 else None)
        e(f"s_branch {name}_k2")
    gen_m1(a, name, pol_kv)
    e(f"s_branch {name}_end")
    a.label(f"{name}_rolea")
    e(f"s_setprio {prio_flash}")
    gen_flash(a, name, pol_kv if pol_kv_a is None else pol_kv_a)
    a.label(f"{name}_end")
    if fuse2:
        import oproj6
        e("s_waitcnt vmcnt(0)")
        e("s_setprio 0")
        if timing:
            ts_mark(a, 72)
        e("s_barrier")
        if timing:
            ts_mark(a, 84)
        e(f"s_cmp_lg_u32 s{sWid}, 0")
        e(f"s_cbranch_scc1 {name}_noflag")
        e(f"s_lshr_b32 s{sT2}, s{sH}, 4")
        e(f"s_and_b32 s{sT4}, s{sH}, 15")
        e(f"s_lshl_b32 s{sT4}, s{sT4}, 2")
        e(f"v_mov_b32 v{vT0}, 0")
        e(f"v_cmp_eq_u32 vcc, 0, v0")
        for br, tag in ((16, sNB), (0, sNA)):
            e(f"s_lshr_b32 s{sT2}, s{sH}, 4")
            dep_line(sT0, br, sI, sT2)
            e(f"s_add_u32 s{sT0}, s{sT0}, s{sT4}")
            e(f"v_mov_b32 v{vT1}, s{tag}")
            e(f"s_and_saveexec_b64 s[{sT2}:{sT3}], vcc")
            e(f"buffer_store_dword v{vT1}, v{vT0}, s[{SRD_O}:{SRD_O+3}], s{sT0} offen offset:64 sc1")
            e(f"s_mov_b64 exec, s[{sT2}:{sT3}]")
        a.label(f"{name}_noflag")
        e(f"s_mov_b32 s92, s{SRD_O}")
        e(f"s_mov_b32 s93, s{SRD_O+1}")
        e(f"s_mov_b32 s100, s{sWid}")
        def line_ptr(sBr, sKh, sI2):
            e(f"s_lshl_b32 s96, s{sBr}, 4")
            e(f"s_lshl_b32 s97, s{sI2}, 1")
            e(f"s_add_u32 s96, s96, s97")
            e(f"s_add_u32 s96, s96, s{sKh}")
            e(f"s_lshl_b32 s96, s96, 8")
            e(f"s_add_u32 s96, s96, {DEP_OFF}")
            e(f"s_add_u32 s94, s92, s96")
            e(f"s_addc_u32 s95, s93, 0")
        def all_equal(first, n):
            e(f"s_xor_b32 s97, s{first}, s{sNC}")
            for r in range(first + 1, first + n):
                e(f"s_xor_b32 s98, s{r}, s{sNC}")
                e(f"s_or_b32 s97, s97, s98")
            e("s_cmp_eq_u32 s97, 0")
        def wait(sLW, sBr, sKh, sI2, SRDO):
            e(f"s_cmp_lg_u32 s{sLW}, 0")
            e(f"s_cbranch_scc1 {name}_dw_d")
            line_ptr(sBr, sKh, sI2)
            e(f"v_and_b32 v4, 15, v0")
            e(f"v_lshlrev_b32 v4, 2, v4")
            a.label(f"{name}_dw")
            if not vdep:
                e("s_load_dwordx16 s[76:91], s[94:95], 64 glc")
                e("s_waitcnt lgkmcnt(0)")
                all_equal(76, 16)
                e(f"s_cbranch_scc0 {name}_dw_z")
            e(f"buffer_load_dword v5, v4, s[{SRDO}:{SRDO+3}], s96 offen offset:64 sc1")
            e("s_waitcnt vmcnt(0)")
            e(f"v_cmp_ne_u32 vcc, s{sNC}, v5")
            a.nop(4)
            e("s_cmp_eq_u64 vcc, 0")
            e(f"s_cbranch_scc1 {name}_dw_d")
            a.label(f"{name}_dw_z")
            e("s_sleep 1")
            e(f"s_branch {name}_dw")
            a.label(f"{name}_dw_d")
            if timing:
                ts_mark(a, 86)
        def finish(sWV2, sBr, sKh, sI2, sCol, SRDP):
            e(f"s_and_b32 s97, s{sCol}, 0x380")
            e(f"s_or_b32 s97, s97, s{sWV2}")
            e(f"s_cmp_lg_u32 s97, 0")
            e(f"s_cbranch_scc1 {name}_df_d")
            line_ptr(sBr, sKh, sI2)
            a.label(f"{name}_df")
            e("s_load_dwordx8 s[76:83], s[94:95], 32 glc")
            e("s_waitcnt lgkmcnt(0)")
            all_equal(76, 8)
            e(f"s_cbranch_scc0 {name}_df")
            e(f"v_mov_b32 v4, 0")
            e(f"v_mov_b32 v5, s{sNC}")
            e(f"v_cmp_eq_u32 vcc, 0, v0")
            e(f"s_and_saveexec_b64 s[44:45], vcc")
            e(f"buffer_store_dword v5, v4, s[{SRDP}:{SRDP+3}], s96 offen sc1")
            e(f"s_mov_b64 exec, s[44:45]")
            a.label(f"{name}_df_d")
        oproj6.gen_oproj(a, name + "_p", embed=dict(wid=100, wait=wait, finish=finish), **(p3opt or {}))
    if fuse:
        if timing:
            ts_mark(a, 76)
            e(f"s_mov_b32 s{MK[6]}, s76")
        phase3.gen_phase3(a, name, **(p3opt or {}))
    if endwb:
        e("s_waitcnt vmcnt(0)")
        e("s_barrier")
        e(f"s_cmp_lg_u32 s{sWV}, 0")
        e(f"s_cbranch_scc1 {name}_nowb")
        e("buffer_wbl2 sc1")
        a.label(f"{name}_nowb")
    if wo_pf is not None:
        e(f"s_load_dwordx2 s[52:53], s[0:1], 32")
        e(f"s_load_dwordx2 s[54:55], s[0:1], 72")
        e(f"s_waitcnt lgkmcnt(0)")
        e(f"s_cmp_lt_u32 s{sX}, 4")
        e(f"s_cselect_b32 s{SRD_W}, s52, s54")
        e(f"s_cselect_b32 s{SRD_W+1}, s53, s55")
        e(f"s_and_b32 s{SRD_W+1}, s{SRD_W+1}, 0xffff")
        e(f"s_mov_b32 s{SRD_W+2}, {4096*1024*2}")
        e(f"s_mov_b32 s{SRD_W+3}, 0x20000")
        if single:
            e(f"s_lshr_b32 s{sT0}, s2, 3")
            e(f"s_lshl_b32 s{sT0}, s{sT0}, 3")
            e(f"s_add_u32 s{sT0}, s{sT0}, s{sWid}")
        else:
            e(f"s_lshr_b32 s{sT0}, s2, 3")
            e(f"s_lshl_b32 s{sT0}, s{sT0}, 2")
            e(f"s_add_u32 s{sT0}, s{sT0}, s{sWV}")
        e(f"s_lshl_b32 s{sT0}, s{sT0}, 14")
        e(f"s_and_b32 s{sT1}, s{sX}, 1")
        e(f"s_lshl_b32 s{sT1}, s{sT1}, 10")
        e(f"s_add_u32 s{sT0}, s{sT0}, s{sT1}")
        e(f"s_bfe_u32 s{sT1}, s{sX}, 0x10001")
        e(f"s_lshl_b32 s{sT1}, s{sT1}, 22")
        e(f"s_add_u32 s{sT0}, s{sT0}, s{sT1}")
        e(f"v_lshrrev_b32 v{vT0}, 3, v0")
        e(f"v_lshlrev_b32 v{vT0}, 11, v{vT0}")
        e(f"v_and_b32 v{vT1}, 7, v0")
        e(f"v_lshlrev_b32 v{vT1}, 7, v{vT1}")
        e(f"v_add_u32 v{vT0}, v{vT0}, v{vT1}")
        e(f"buffer_load_dword v{vT2}, v{vT0}, s[{SRD_W}:{SRD_W+3}], s{sT0} offen {wo_pf}")
    e("s_waitcnt vmcnt(0)")
    if timing:
        mark(a, 7)
        wreg = 100 if fuse2 else (sWid if single else sWV)
        regs = [sTS] + MK[0:7]
        if fuse2:
            regs = [sTS, 72, 84, 86, 72, 72, 72, 72]
        ts_dump(a, regs, 0, wreg, 52, 8, nwaves=8 if single else 4)
        ts_end(a, sTS, 0, wreg, 52, 2, nwaves=8 if single else 4)
    a.label(f"{name}_done")
    e("s_endpgm")
    return dict(nv=256, ns=NS, lds=LDS_BYTES*(2 if single else 1), threads=512 if single else 256, grid=256 if single else 512)
```
